```python
import torch

def _softmax(x, axis=-1):
    return torch.softmax(x, dim=axis)
def _gelu(x):
    return torch.nn.functional.gelu(x, approximate="tanh")
def _silu(x):
    return torch.nn.functional.silu(x)
def _sigmoid(x):
    return torch.sigmoid(x)
def _layernorm(x, axis=-1, eps=1e-5):
    m = x.mean(dim=axis, keepdim=True)
    v = x.var(dim=axis, keepdim=True, unbiased=False)
    return (x - m) / torch.sqrt(v + eps)
def _scatter_add(tgt, idx, src, axis=0):
    return tgt.clone().index_add_(axis, idx, src)
def _segment_sum(src, seg, n):
    out = torch.zeros((n,) + src.shape[1:], dtype=src.dtype)
    return out.index_add_(0, seg, src)
def _pad(x, pw):
    flat = tuple(v for pair in reversed(pw) for v in pair)
    return torch.nn.functional.pad(x, flat)

kernel_name = 'standalone__gqa_block_cached__decode'

def setup_inputs():

    _w = (lambda a: (lambda t: t.to(torch.bfloat16) if t.is_floating_point() else t)(torch.as_tensor(a)))
    B, Sq, D = 4, 1, 576
    Hq, Hkv, Sk, Dh = 32, 16, 8192, 128
    assert Hq % Hkv == 0, (Hq, Hkv)
    return {
        "x": _w((lambda *s: torch.randn(*s, dtype=torch.bfloat16) * 0.8)(B, Sq, D)),
        "k_cache": _w((lambda *s: torch.randn(*s, dtype=torch.bfloat16) * 0.8)(B, Hkv, Sk, Dh)),
        "v_cache": _w((lambda *s: torch.randn(*s, dtype=torch.bfloat16) * 0.05)(B, Hkv, Sk, Dh)),
        "wq": _w((lambda *s: torch.randn(*s, dtype=torch.bfloat16) * 0.8)(D, Hq * Dh) * (D ** -0.5)),
        "wo": _w((lambda *s: torch.randn(*s, dtype=torch.bfloat16) * 0.05)(Hq * Dh, D) * ((Hq * Dh) ** -0.5)),
    }

def reference(x, k_cache, v_cache, wq, wo):
    B, Sq, D = x.shape
    Hq, Dh = 32, 128
    Hkv = k_cache.shape[1]
    rep = Hq // Hkv
    q = (lambda x, *d: x.permute(*d))((x @ wq).reshape(B, Sq, Hq, Dh), 0, 2, 1, 3)
    k = (lambda x, n, axis: torch.repeat_interleave(x, n, dim=axis))(k_cache, rep, axis=1)
    v = (lambda x, n, axis: torch.repeat_interleave(x, n, dim=axis))(v_cache, rep, axis=1)
    scores = torch.einsum("bhqd,bhkd->bhqk", q, k) * (Dh ** -0.5)
    p = _softmax(scores, axis=-1)
    o = torch.einsum("bhqk,bhkd->bhqd", p, v)
    return (lambda x, *d: x.permute(*d))(o, 0, 2, 1, 3).reshape(B, Sq, Hq * Dh) @ wo
```

```python
import math, struct, sys

def f2u(x):
    return struct.unpack('<I', struct.pack('<f', x))[0]

SCALE = math.log2(math.e) / math.sqrt(128.0)
NAME = "standalone__gqa_block_cached__decode_kernel"

HEADER = """; Kernarg layout for this problem (64 bytes, ptrs only, base s[0:1]):
"""

WS_QG = 0x10000
WS_PG = 0x100000
WS_YG = 0x400000
WS_CNT = 0x500000
WS_TS = 0x1000000
WS_SIZE = 0x2000000

L_X = 18432
L_Q = 73728
L_TAG = L_Q + 512
L_ML = L_TAG + 16
L_P = L_Q + 768
L_TOTAL = L_P + 7 * 1024
assert L_TOTAL <= 81920

def gen(D=4, WIN=16, dyn=False, stamps=False, kvflags="nt", wqflags="", woflags="", wo_delay=0, G=1, poll_sleep=1):
    U = 4
    PAIRB = 2 * 1024 * 1024
    BLK = 4096
    W = 2 * U * D
    WW = min(W, WIN) - 1
    L = []
    A = L.append
    dpp = "row_mask:0xf bank_mask:0xf"
    vKoff, vVoff, vT = 1, 2, 3
    vQ, vM, vO = 4, 8, 12
    vm, vl, va, vb = 16, 17, 18, 19
    vS, vD, vB = 20, 24, 24
    vK = 40
    vV = vK + 4 * U * D
    NV = max(vV + 4 * U * D, 168)
    sTag, sC, sPair, sSplit = 40, 41, 42, 43
    sSlot = 48
    nstamp = [0]
    def stamp(i):
        if stamps:
            A(f"  s_memrealtime s[{64+2*i}:{65+2*i}]")
    for ln in HEADER.rstrip("\n").split("\n"): A(ln)
    A(f"; @launch grid=(256,1,1) block=(320,1,1) lds={L_TOTAL}")
    A('.amdgcn_target "amdgcn-amd-amdhsa--gfx950"')
    A(".text")
    A(f".globl {NAME}")
    A(".p2align 8")
    A(f".type {NAME},@function")
    A(f"{NAME}:")
    A("  s_cmp_ge_u32 s2, 256")
    A("  s_cbranch_scc1 L_end")
    A("  s_load_dwordx16 s[4:19], s[0:1], 0")
    stamp(0)
    A("  v_lshrrev_b32 v3, 6, v0")
    A("  v_and_b32 v0, 63, v0")
    A("  v_readfirstlane_b32 s3, v3")
    A("  v_lshlrev_b32 v2, 4, v0")
    A(f"  s_lshr_b32 s{sPair}, s2, 2")
    A(f"  s_and_b32 s{sSplit}, s2, 3")
    A(f"  s_mov_b32 s30, {WS_SIZE}")
    A("  s_mov_b32 s31, 0x20000")
    A(f"  s_mov_b32 s{sC}, {hex(f2u(SCALE))}")
    A("  s_mov_b32 s61, 0x40000")
    A("  s_cmp_eq_u32 s3, 4")
    A("  s_cbranch_scc1 L_helper")
    A("  v_bfe_u32 v3, v0, 2, 2")
    A("  v_lshlrev_b32 v1, 8, v3")
    A("  v_lshrrev_b32 v3, 4, v0")
    A("  v_lshl_add_u32 v1, v3, 6, v1")
    A("  v_and_b32 v3, 3, v0")
    A("  v_lshl_add_u32 v1, v3, 4, v1")
    if dyn or G == 4:
        NREC = PAIRB
        A(f"  s_lshl_b32 s44, s{sPair}, 21")
        A(f"  s_lshl_b32 s45, s{sSplit}, 2")
        A("  s_add_u32 s45, s45, s3")
        A("  s_lshl_b32 s45, s45, 12")
        STEP = 16 * BLK
    else:
        NREC = PAIRB // 4
        A("  s_lshl_b32 s44, s2, 19")
        A("  s_lshl_b32 s45, s3, 12")
        STEP = 4 * BLK
    A(f"  s_mov_b32 s22, {NREC}")
    A("  s_mov_b32 s23, 0x20000")
    A(f"  s_mov_b32 s26, {NREC}")
    A("  s_mov_b32 s27, 0x20000")
    for d in range(D):
        A(f"  s_add_u32 s{sSlot+d}, s45, {d*STEP}")
    A("  s_waitcnt lgkmcnt(0)")
    A("  s_add_u32 s20, s6, s44")
    A("  s_addc_u32 s21, s7, 0")
    A("  s_add_u32 s24, s8, s44")
    A("  s_addc_u32 s25, s9, 0")
    def loads(kind, d, t):
        srd = "s[20:23]" if kind == "K" else "s[24:27]"
        off = vKoff if kind == "K" else vVoff
        r = (vK if kind == "K" else vV) + (d * U + t) * 4
        A(f"  buffer_load_dwordx4 v[{r}:{r+3}], v{off}, {srd}, s{sSlot+d} offen offset:{t*1024} {kvflags}")
    for d in range(D):
        for t in range(U): loads("K", d, t)
        for t in range(U): loads("V", d, t)
    A("  s_mov_b32 s28, s18")
    A("  s_mov_b32 s29, s19")
    if dyn:
        A(f"  s_lshl_b32 s44, s{sPair}, 8")
        A(f"  s_add_u32 s44, s44, {WS_CNT}")
        A("  s_add_u32 s46, s18, s44")
        A("  s_addc_u32 s47, s19, 0")
    A("  v_and_b32 v3, 1, v0")
    A("  v_mov_b32 v17, 0xffff")
    A("  v_lshlrev_b32 v3, 4, v3")
    A("  v_lshlrev_b32 v17, v3, v17")
    A("  v_bfe_u32 v3, v0, 1, 2")
    for r in range(4):
        A(f"  v_cmp_eq_u32 vcc, {r}, v3")
        A(f"  v_mov_b32 v{vO+r}, 0")
        A("  s_nop 0")
        A(f"  v_cndmask_b32 v{vM+r}, 0, v17, vcc")
    A(f"  v_mov_b32 v{vm}, 0xff800000")
    A(f"  v_mov_b32 v{vl}, 0")
    A("  v_bfe_u32 v3, v0, 3, 1")
    A("  v_lshlrev_b32 v18, 8, v3")
    A("  v_lshrrev_b32 v3, 4, v0")
    A("  v_lshl_add_u32 v18, v3, 6, v18")
    A("  v_and_b32 v3, 3, v0")
    A("  v_lshl_add_u32 v18, v3, 4, v18")
    A(f"  v_add_u32 v18, {L_Q}, v18")
    A(f"  v_mov_b32 v19, {L_TAG}")
    A("  s_barrier")
    A(f"  ds_read_b128 v[{vQ}:{vQ+3}], v18")
    A("  ds_read_b32 v3, v19")
    A("  s_waitcnt lgkmcnt(0)")
    A(f"  v_readfirstlane_b32 s{sTag}, v3")
    stamp(1)
    if dyn:
        A(f"  s_mov_b32 s60, {BLK}")
        A("  s_atomic_add s60, s[46:47], 0 glc")
    A("L_loop:")
    for d in range(D):
        A(f"  s_cmp_ge_u32 s{sSlot+d}, {NREC}")
        A("  s_cbranch_scc1 L_done")
        if dyn:
            A(f"  s_waitcnt vmcnt({WW})")
            A("  s_waitcnt lgkmcnt(0)")
            A(f"  s_add_u32 s{sSlot+d}, s60, {D*STEP}")
            A(f"  s_mov_b32 s60, {BLK}")
            A("  s_atomic_add s60, s[46:47], 0 glc")
        else:
            A(f"  s_add_u32 s{sSlot+d}, s{sSlot+d}, {D*STEP}")
        for t in range(U):
            r = vK + (d * U + t) * 4
            A(f"  s_waitcnt vmcnt({WW})")
            A(f"  v_mfma_f32_16x16x32_bf16 v[{vD+4*t}:{vD+4*t+3}], v[{r}:{r+3}], v[{vQ}:{vQ+3}], 0")
            loads("K", d, t)
        A("  s_nop 3")
        for j in range(4):
            for t in range(U):
                if j == 0:
                    A(f"  v_mov_b32_dpp v{vS+t}, v{vD+4*t} quad_perm:[0,0,0,0] {dpp}")
                else:
                    A(f"  v_add_f32_dpp v{vS+t}, v{vD+4*t+j}, v{vS+t} quad_perm:[{j},{j},{j},{j}] {dpp}")
        A(f"  v_max3_f32 v{va}, v{vm}, v{vS}, v{vS+1}")
        A(f"  v_max3_f32 v{va}, v{va}, v{vS+2}, v{vS+3}")
        A(f"  v_mov_b32 v{vb}, v{va}")
        A("  s_nop 1")
        A(f"  v_permlane32_swap_b32 v{va}, v{vb}")
        A(f"  v_max_f32 v{va}, v{va}, v{vb}")
        A(f"  v_mov_b32 v{vb}, v{va}")
        A("  s_nop 1")
        A(f"  v_permlane16_swap_b32 v{va}, v{vb}")
        A(f"  v_max_f32 v{va}, v{va}, v{vb}")
        A(f"  v_sub_f32 v{vb}, v{vm}, v{va}")
        A(f"  v_mul_f32 v{vb}, s{sC}, v{vb}")
        A(f"  v_exp_f32 v{vb}, v{vb}")
        A(f"  v_mov_b32 v{vm}, v{va}")
        A(f"  v_mul_f32 v{va}, s{sC}, v{va}")
        for t in range(U):
            A(f"  v_fma_f32 v{vS+t}, v{vS+t}, s{sC}, -v{va}")
        for t in range(U):
            A(f"  v_exp_f32 v{vS+t}, v{vS+t}")
        for r in range(4):
            A(f"  v_mul_f32 v{vO+r}, v{vO+r}, v{vb}")
        A(f"  v_mul_f32 v{vl}, v{vl}, v{vb}")
        for t in range(U):
            r = vV + (d * U + t) * 4
            A(f"  v_cvt_pk_bf16_f32 v{vT}, v{vS+t}, v{vS+t}")
            for j in range(4):
                A(f"  v_and_b32 v{vB+j}, v{vT}, v{vM+j}")
            A(f"  v_add_f32 v{vl}, v{vl}, v{vS+t}")
            A(f"  s_waitcnt vmcnt({WW})")
            A(f"  v_mfma_f32_16x16x32_bf16 v[{vO}:{vO+3}], v[{r}:{r+3}], v[{vB}:{vB+3}], v[{vO}:{vO+3}]")
            loads("V", d, t)
    A("  s_branch L_loop")
    A("L_done:")
    stamp(2)
    A(f"  v_mov_b32 v{vb}, v{vl}")
    A("  s_lshl_b32 s44, s3, 10")
    A(f"  s_add_u32 s44, s44, {L_P}")
    A(f"  v_permlane32_swap_b32 v{vl}, v{vb}")
    A(f"  v_add_f32 v{vl}, v{vl}, v{vb}")
    A(f"  v_mov_b32 v{vb}, v{vl}")
    A("  s_lshl_b32 s45, s3, 4")
    A(f"  s_add_u32 s45, s45, {L_ML}")
    A(f"  v_permlane16_swap_b32 v{vl}, v{vb}")
    A(f"  v_add_f32 v{vl}, v{vl}, v{vb}")
    A("  v_add_u32 v18, s44, v2")
    A("  v_and_b32 v19, 8, v0")
    A("  v_add_u32 v20, s45, v19")
    A(f"  ds_write_b128 v18, v[{vO}:{vO+3}]")
    A(f"  ds_write_b64 v20, v[{vm}:{vl}]")
    A("  s_waitcnt vmcnt(0) lgkmcnt(0)")
    A("  s_barrier")
    A("  s_branch L_tail")
    A("L_helper:")
    A("  s_and_b32 s44, s2, 7")
    A("  s_lshl_b32 s44, s44, 5")
    A("  s_lshr_b32 s45, s2, 3")
    A("  s_add_u32 s44, s44, s45")
    A("  v_lshrrev_b32 v3, 1, v0")
    A("  v_bfe_u32 v4, v3, 2, 2")
    A("  v_lshlrev_b32 v4, 3, v4")
    A("  v_lshrrev_b32 v5, 4, v3")
    A("  v_lshl_add_u32 v4, v5, 2, v4")
    A("  v_and_b32 v5, 3, v3")
    A("  v_add_u32 v4, v4, v5")
    A("  v_and_b32 v5, 1, v0")
    A("  v_lshlrev_b32 v5, 4, v5")
    A("  v_lshl_add_u32 v6, v4, 13, v5")
    A("  v_mul_u32_u24 v7, 1152, v4")
    A("  v_add_u32 v7, v7, v5")
    A("  s_mov_b32 s34, 4718592")
    A("  s_mov_b32 s35, 0x20000")
    A("  s_mov_b32 s38, 4608")
    A("  s_mov_b32 s39, 0x20000")
    A("  s_lshl_b32 s45, s44, 5")
    A(f"  s_mov_b32 m0, {L_X}")
    A("  s_waitcnt lgkmcnt(0)")
    A("  s_load_dword s46, s[18:19], 0 glc")
    A("  s_mov_b32 s36, s4")
    A("  s_mov_b32 s37, s5")
    A("  s_mov_b32 s32, s10")
    A("  s_mov_b32 s33, s11")
    A("  s_mov_b32 s28, s18")
    A("  s_mov_b32 s29, s19")
    if dyn:
        A("  s_and_b32 s47, s44, 15")
        A("  s_cmp_lg_u32 s47, 0")
        A("  s_cbranch_scc1 L_nozero")
        A("  v_lshlrev_b32 v5, 12, v0")
        A("  s_lshl_b32 s47, s44, 4")
        A(f"  s_add_u32 s47, s47, {WS_CNT}")
        A("  v_mov_b32 v11, 0")
        A("  s_mov_b64 exec, 15")
        A("  buffer_store_dword v11, v5, s[28:31], s47 offen sc1")
        A("  s_mov_b64 exec, -1")
        A("L_nozero:")
    for j in range(4):
        A(f"  buffer_load_dwordx4 v2, s[36:39], 0 offen offset:{j*1024} lds")
    A(f"  s_mov_b32 m0, {L_X+4096}")
    A("  s_movk_i32 s47, 4096")
    A("  buffer_load_dwordx4 v2, s[36:39], s47 offen lds")
    A("  s_mov_b32 m0, 0")
    A("  s_nop 0")
    A("L_wq:")
    A(f"  buffer_load_dwordx4 v6, s[32:35], s45 offen {wqflags} lds")
    A("  s_add_u32 m0, m0, 1024")
    A("  s_add_u32 s45, s45, 0x40000")
    A("  s_cmp_lt_u32 m0, 18432")
    A("  s_cbranch_scc1 L_wq")
    A("  v_and_b32 v8, 3, v0")
    A("  v_mul_u32_u24 v8, 1152, v8")
    A("  v_lshrrev_b32 v9, 4, v0")
    A("  v_lshl_add_u32 v8, v9, 4, v8")
    A("  v_lshlrev_b32 v10, 3, v0")
    A("  s_waitcnt lgkmcnt(0)")
    A(f"  s_mul_i32 s{sTag}, s46, 0x9e3779b1")
    A(f"  s_add_u32 s{sTag}, s{sTag}, 0x7f4a7c15")
    A("  s_waitcnt vmcnt(18)")
    vX = 24; vW = 96
    for t in range(18):
        A(f"  ds_read_b128 v[{vX+4*t}:{vX+4*t+3}], v8 offset:{L_X + t*64}")
    for t in range(18):
        A(f"  s_waitcnt vmcnt({17-t})")
        A(f"  ds_read_b64_tr_b16 v[{vW+4*t}:{vW+4*t+1}], v10 offset:{t*1024}")
        A(f"  ds_read_b64_tr_b16 v[{vW+4*t+2}:{vW+4*t+3}], v10 offset:{t*1024+512}")
        if t >= 2:
            u = t - 2
            A("  s_waitcnt lgkmcnt(4)")
            c = "0" if u == 0 else "v[12:15]"
            A(f"  v_mfma_f32_16x16x32_bf16 v[12:15], v[{vW+4*u}:{vW+4*u+3}], v[{vX+4*u}:{vX+4*u+3}], {c}")
    for u in (16, 17):
        A(f"  s_waitcnt lgkmcnt({2*(17-u)})")
        A(f"  v_mfma_f32_16x16x32_bf16 v[12:15], v[{vW+4*u}:{vW+4*u+3}], v[{vX+4*u}:{vX+4*u+3}], v[12:15]")
    A("  v_and_b32 v3, 15, v0")
    A("  v_lshlrev_b32 v4, 14, v3")
    A("  v_lshl_add_u32 v4, v9, 4, v4")
    A("  s_lshl_b32 s45, s44, 6")
    A(f"  s_add_u32 s45, s45, {WS_QG}")
    A(f"  v_mov_b32 v17, s{sTag}")
    A(f"  v_mov_b32 v19, s{sTag}")
    A("  v_cmp_gt_u32 vcc, 4, v3")
    A("  s_nop 1")
    A("  v_cvt_pk_bf16_f32 v16, v12, v13")
    A("  v_cvt_pk_bf16_f32 v18, v14, v15")
    A("  s_mov_b64 exec, vcc")
    A("  buffer_store_dwordx4 v[16:19], v4, s[28:31], s45 offen sc1")
    A("  s_mov_b64 exec, -1")
    stamp(1)
    A(f"  s_lshl_b32 s45, s{sPair}, 10")
    A(f"  s_add_u32 s45, s45, {WS_QG}")
    A(f"  v_add_u32 v11, {L_Q}, v10")
    A(f"  v_mov_b32 v3, {L_TAG}")
    A("  ds_write_b32 v3, v17")
    A("L_qpoll:")
    A("  buffer_load_dwordx4 v[20:23], v2, s[28:31], s45 offen sc1")
    A("  s_waitcnt vmcnt(0)")
    A(f"  v_cmp_eq_u32 vcc, s{sTag}, v21")
    A(f"  v_cmp_eq_u32 s[46:47], s{sTag}, v23")
    A("  s_and_b64 vcc, vcc, s[46:47]")
    A("  s_cmp_eq_u64 vcc, -1")
    A("  s_cbranch_scc1 L_qdone")
    A("  s_sub_u32 s61, s61, 1")
    A("  s_cbranch_scc0 L_qpoll")
    A("L_qdone:")
    A("  v_mov_b32 v21, v22")
    A("  ds_write_b64 v11, v[20:21]")
    A("  s_waitcnt lgkmcnt(0)")
    A("  s_barrier")
    stamp(2)
    A("  s_mov_b32 s32, s12")
    A("  s_mov_b32 s33, s13")
    A(f"  s_and_b32 s44, s{sPair}, 15")
    A("  s_mul_i32 s44, s44, 294912")
    A(f"  s_mul_i32 s45, s{sSplit}, 288")
    A("  s_add_u32 s44, s44, s45")
    if wo_delay:
        A(f"  s_movk_i32 s45, {wo_delay}")
        A("L_wod:")
        A("  s_sleep 64")
        A("  s_sub_u32 s45, s45, 1")
        A("  s_cmp_lg_u32 s45, 0")
        A("  s_cbranch_scc1 L_wod")
    A("  s_mov_b32 s46, 0")
    A("L_wo_k:")
    A("  s_mov_b32 m0, s46")
    A("  s_mov_b32 s45, s44")
    A("L_wo_t:")
    A(f"  buffer_load_dwordx4 v7, s[32:35], s45 offen {woflags} lds")
    A("  s_add_u32 m0, m0, 8192")
    A("  s_add_u32 s45, s45, 32")
    A("  s_cmp_lt_u32 m0, 73728")
    A("  s_cbranch_scc1 L_wo_t")
    A("  s_waitcnt vmcnt(9)")
    A("  s_add_u32 s44, s44, 36864")
    A("  s_add_u32 s46, s46, 1024")
    A("  s_cmp_lt_u32 s46, 8192")
    A("  s_cbranch_scc1 L_wo_k")
    A("  s_waitcnt vmcnt(0)")
    A("  v_and_b32 v19, 8, v0")
    A("  s_barrier")
    A("L_tail:")
    stamp(3)
    vF = 100
    A(f"  s_lshl_b32 s44, s{sPair}, 14")
    A("  s_lshl_b32 s45, s3, 12")
    A("  s_add_u32 s44, s44, s45")
    A(f"  s_add_u32 s44, s44, {WS_PG}")
    A("  v_lshlrev_b32 v10, 3, v0")
    A("  s_lshl_b32 s45, s3, 14")
    A("  v_add_u32 v10, s45, v10")
    A(f"  v_add_u32 v18, {L_P}, v2")
    A(f"  v_add_u32 v19, {L_ML}, v19")
    def combine4(pl, ml):
        for w in range(4):
            A(f"  ds_read_b64 v[{40+2*w}:{41+2*w}], v19 offset:{ml[w]*16}")
        for w in range(4):
            A(f"  ds_read_b128 v[{24+4*w}:{27+4*w}], v18 offset:{pl[w]*1024}")
        A("  s_waitcnt lgkmcnt(4)")
        A("  v_max3_f32 v48, v40, v42, v44")
        A("  v_max_f32 v48, v48, v46")
        for w in range(4):
            A(f"  v_sub_f32 v{40+2*w}, v{40+2*w}, v48")
        for w in range(4):
            A(f"  v_mul_f32 v{40+2*w}, s{sC}, v{40+2*w}")
        for w in range(4):
            A(f"  v_exp_f32 v{40+2*w}, v{40+2*w}")
        A("  s_nop 0")
        A("  v_mul_f32 v49, v40, v41")
        for w in range(1, 4):
            A(f"  v_fmac_f32 v49, v{40+2*w}, v{41+2*w}")
        A("  s_waitcnt lgkmcnt(0)")
        for r in range(4):
            A(f"  v_mul_f32 v{24+r}, v40, v{24+r}")
        for w in range(1, 4):
            for r in range(4):
                A(f"  v_fmac_f32 v{24+r}, v{40+2*w}, v{24+4*w+r}")
    A(f"  s_cmp_eq_u32 s3, s{sSplit}")
    A("  s_cbranch_scc0 L_remote")
    combine4([0, 1, 2, 3], [0, 1, 2, 3])
    for ln in ["v_mov_b32 v28, v24", f"v_mov_b32 v29, s{sTag}", "v_mov_b32 v30, v25", f"v_mov_b32 v31, s{sTag}",
               "v_mov_b32 v32, v26", f"v_mov_b32 v33, s{sTag}", "v_mov_b32 v34, v27", f"v_mov_b32 v35, s{sTag}",
               "v_mov_b32 v36, v48", f"v_mov_b32 v37, s{sTag}", "v_mov_b32 v38, v49", f"v_mov_b32 v39, s{sTag}"]:
        A("  " + ln)
    for j in range(3):
        A(f"  buffer_store_dwordx4 v[{28+4*j}:{31+4*j}], v2, s[28:31], s44 offen offset:{j*1024} sc1")
    A("  ds_write_b128 v18, v[24:27] offset:3072")
    A("  ds_write_b64 v19, v[48:49] offset:64")
    A("  s_branch L_frags")
    A("L_remote:")
    A("  s_cmp_eq_u32 s3, 4")
    A("  s_cbranch_scc1 L_frags")
    A(f"  s_sub_u32 s45, s3, s{sSplit}")
    A("  s_and_b32 s45, s45, 3")
    A("  s_lshl_b32 s46, s45, 10")
    A("  s_lshl_b32 s45, s45, 4")
    A("  v_add_u32 v20, s46, v18")
    A("  v_add_u32 v21, s45, v19")
    A("L_ppoll:")
    for j in range(3):
        A(f"  buffer_load_dwordx4 v[{28+4*j}:{31+4*j}], v2, s[28:31], s44 offen offset:{j*1024} sc1")
    A("  s_waitcnt vmcnt(0)")
    A("  v_min3_u32 v22, v29, v31, v33")
    A("  v_max3_u32 v23, v29, v31, v33")
    A("  v_min3_u32 v22, v22, v35, v37")
    A("  v_max3_u32 v23, v23, v35, v37")
    A("  v_min_u32 v22, v22, v39")
    A("  v_max_u32 v23, v23, v39")
    A(f"  v_cmp_eq_u32 vcc, s{sTag}, v22")
    A(f"  v_cmp_eq_u32 s[46:47], s{sTag}, v23")
    A("  s_and_b64 vcc, vcc, s[46:47]")
    A("  s_cmp_eq_u64 vcc, -1")
    A("  s_cbranch_scc1 L_pdone")
    if poll_sleep: A(f"  s_sleep {poll_sleep}")
    A("  s_sub_u32 s61, s61, 1")
    A("  s_cbranch_scc0 L_ppoll")
    A("L_pdone:")
    A("  v_mov_b32 v29, v30")
    A("  v_mov_b32 v30, v32")
    A("  v_mov_b32 v31, v34")
    A("  v_mov_b32 v37, v38")
    A("  ds_write_b128 v20, v[28:31] offset:3072")
    A("  ds_write_b64 v21, v[36:37] offset:64")
    A("L_frags:")
    for f in range(16):
        A(f"  ds_read_b64_tr_b16 v[{vF+4*f}:{vF+4*f+1}], v10 offset:{f*1024}")
        A(f"  ds_read_b64_tr_b16 v[{vF+4*f+2}:{vF+4*f+3}], v10 offset:{f*1024+512}")
    A("  s_waitcnt lgkmcnt(0)")
    A("  s_barrier")
    stamp(4)
    combine4([3, 4, 5, 6], [4, 5, 6, 7])
    A("  v_rcp_f32 v49, v49")
    A("  v_bfe_u32 v3, v0, 3, 1")
    A("  v_lshlrev_b32 v20, 8, v3")
    A("  v_lshrrev_b32 v9, 4, v0")
    A("  v_lshl_add_u32 v20, v9, 6, v20")
    A("  v_and_b32 v3, 7, v0")
    A("  v_lshl_add_u32 v20, v3, 1, v20")
    A("  s_lshl_b32 s45, s3, 9")
    A("  v_add_u32 v20, s45, v20")
    A("  v_lshl_add_u32 v21, v9, 4, s45")
    for r in range(4):
        A(f"  v_mul_f32 v{24+r}, v{24+r}, v49")
    A("  v_cvt_pk_bf16_f32 v24, v24, v25")
    A("  v_cvt_pk_bf16_f32 v26, v26, v27")
    A("  ds_write_b16 v20, v24")
    A("  ds_write_b16_d16_hi v20, v24 offset:16")
    A("  ds_write_b16 v20, v26 offset:32")
    A("  ds_write_b16_d16_hi v20, v26 offset:48")
    A("  s_waitcnt lgkmcnt(0)")
    for t in range(8):
        A(f"  ds_read_b128 v[{52+4*t}:{55+4*t}], v21 offset:{t*64}")
    for t in range(8):
        A(f"  s_waitcnt lgkmcnt({7-t})")
        for j in range(2):
            c = "0" if t == 0 else f"v[{24+4*j}:{27+4*j}]"
            f = j * 8 + t
            A(f"  v_mfma_f32_16x16x32_bf16 v[{24+4*j}:{27+4*j}], v[{52+4*t}:{55+4*t}], v[{vF+4*f}:{vF+4*f+3}], {c}")
    A(f"  s_mul_i32 s44, s{sPair}, 4608")
    A(f"  s_mul_i32 s45, s{sSplit}, 1152")
    A("  s_add_u32 s44, s44, s45")
    A("  s_lshl_b32 s45, s3, 8")
    A("  s_add_u32 s44, s44, s45")
    A(f"  s_add_u32 s44, s44, {WS_YG}")
    A("  v_lshlrev_b32 v10, 3, v0")
    A("  v_cmp_gt_u32 vcc, 16, v0")
    A(f"  v_mov_b32 v33, s{sTag}")
    A("  s_cmp_eq_u32 s3, 4")
    A("  s_cselect_b32 s46, 0xffff, -1")
    A("  s_mov_b32 s47, 0")
    A("  v_cndmask_b32 v32, v28, v24, vcc")
    A("  s_mov_b64 exec, s[46:47]")
    A("  buffer_store_dwordx2 v[32:33], v10, s[28:31], s44 offen sc1")
    A("  s_mov_b64 exec, -1")
    stamp(5)
    A("  s_cbranch_scc0 L_fin")
    A("  s_cmp_ge_u32 s2, 144")
    A("  s_cbranch_scc1 L_fin")
    A("  s_mul_i32 s44, s2, 1821")
    A("  s_lshr_b32 s44, s44, 16")
    A("  s_mul_i32 s45, s44, 36")
    A("  s_sub_u32 s45, s2, s45")
    A("  s_mul_i32 s46, s44, 73728")
    A("  s_lshl_b32 s47, s45, 7")
    A("  s_add_u32 s46, s46, s47")
    A(f"  s_add_u32 s46, s46, {WS_YG}")
    A("  v_and_b32 v3, 15, v0")
    A("  v_mul_u32_u24 v10, 18432, v9")
    A("  v_lshl_add_u32 v10, v3, 3, v10")
    A("  v_add_u32 v11, 4608, v10")
    A("  v_add_u32 v12, 9216, v10")
    A("  v_add_u32 v13, 13824, v10")
    A("  s_mov_b32 s36, s14")
    A("  s_mov_b32 s37, s15")
    A("  s_lshl_b32 s47, s2, 5")
    A("  v_lshlrev_b32 v3, 1, v0")
    A("  s_mov_b32 s61, 0x40000")
    A("L_ypoll:")
    for j in range(4):
        A(f"  buffer_load_dwordx2 v[{24+2*j}:{25+2*j}], v{10+j}, s[28:31], s46 offen sc1")
    A("  s_waitcnt vmcnt(0)")
    A("  v_min3_u32 v22, v25, v27, v29")
    A("  v_max3_u32 v23, v25, v27, v29")
    A("  v_min_u32 v22, v22, v31")
    A("  v_max_u32 v23, v23, v31")
    A(f"  v_cmp_eq_u32 vcc, s{sTag}, v22")
    A(f"  v_cmp_eq_u32 s[44:45], s{sTag}, v23")
    A("  s_and_b64 vcc, vcc, s[44:45]")
    A("  s_cmp_eq_u64 vcc, -1")
    A("  s_cbranch_scc1 L_ydone")
    if poll_sleep: A(f"  s_sleep {poll_sleep}")
    A("  s_sub_u32 s61, s61, 1")
    A("  s_cbranch_scc0 L_ypoll")
    A("L_ydone:")
    A("  v_add_f32 v24, v24, v26")
    A("  v_add_f32 v28, v28, v30")
    A("  v_add_f32 v24, v24, v28")
    A("  v_mov_b32 v25, v24")
    A("  s_nop 1")
    A("  v_permlane32_swap_b32 v24, v25")
    A("  v_add_f32 v24, v24, v25")
    A("  v_mov_b32 v25, v24")
    A("  s_nop 1")
    A("  v_permlane16_swap_b32 v24, v25")
    A("  v_add_f32 v24, v24, v25")
    A("  v_cvt_pk_bf16_f32 v24, v24, v24")
    A("  s_mov_b64 exec, 0xffff")
    A("  buffer_store_short v24, v3, s[36:39], s47 offen")
    A("  s_cmp_lg_u32 s2, 0")
    A("  s_cbranch_scc1 L_fin")
    A("  s_mov_b64 exec, 1")
    A("  buffer_store_dword v33, v3, s[28:31], 0 offen sc1")
    A("L_fin:")
    if stamps:
        stamp(6)
        A("  s_mul_i32 s44, s2, 5")
        A("  s_add_u32 s44, s44, s3")
        A("  s_lshl_b32 s44, s44, 6")
        A(f"  s_add_u32 s44, s44, {WS_TS}")
        A("  s_getreg_b32 s78, hwreg(HW_REG_XCC_ID)")
        A("  s_waitcnt lgkmcnt(0)")
        A("  s_mov_b64 exec, 1")
        for i in range(8):
            A(f"  v_mov_b32 v{24+i}, s{64+2*i}")
        A("  v_mov_b32 v3, 0")
        A("  buffer_store_dwordx4 v[24:27], v3, s[28:31], s44 offen")
        A("  buffer_store_dwordx4 v[28:31], v3, s[28:31], s44 offen offset:16")
    A("L_end:")
    A("  s_endpgm")
    A('.section .rodata,"a"')
    A(".p2align 6")
    A(f".amdhsa_kernel {NAME}")
    A(f"  .amdhsa_next_free_vgpr {NV}")
    A("  .amdhsa_next_free_sgpr 80")
    A(f"  .amdhsa_accum_offset {(NV+3)//4*4}")
    A("  .amdhsa_group_segment_fixed_size 0")
    A("  .amdhsa_kernarg_size 64")
    A("  .amdhsa_user_sgpr_count 2")
    A("  .amdhsa_user_sgpr_kernarg_segment_ptr 1")
    A("  .amdhsa_system_sgpr_workgroup_id_x 1")
    A("  .amdhsa_float_denorm_mode_32 3")
    A(".end_amdhsa_kernel")
    return "\n".join(L) + "\n"

if __name__ == "__main__":
    import json
    cfg = json.loads(sys.argv[1]) if len(sys.argv) > 1 else {}
    sys.stdout.write(gen(**cfg))
```

```python
import math, struct, sys

def f2u(x):
    return struct.unpack('<I', struct.pack('<f', x))[0]

SCALE = math.log2(math.e) / math.sqrt(128.0)
NAME = "standalone__gqa_block_cached__decode_kernel"

HEADER = """; Kernarg layout for this problem (64 bytes, ptrs only, base s[0:1]):
"""

WS_QG = 0x10000
WS_PG = 0x100000
WS_YG = 0x400000
WS_CNT = 0x500000
WS_TS = 0x1000000
WS_SIZE = 0x2000000

L_X = 18432
L_Q = 73728
L_TAG = L_Q + 512
L_ML = L_TAG + 16
L_P = L_Q + 768
L_TOTAL = L_P + 7 * 1024
assert L_TOTAL <= 81920

def gen(D=4, WIN=16, dyn=False, stamps=False, kvflags="nt", wqflags="", woflags="", wo_delay=0, G=1, poll_sleep=1):
    U = 4
    PAIRB = 2 * 1024 * 1024
    BLK = 4096
    W = 2 * U * D
    WW = min(W, WIN) - 1
    L = []
    A = L.append
    dpp = "row_mask:0xf bank_mask:0xf"
    vKoff, vVoff, vT = 1, 2, 3
    vQ, vM, vO = 4, 8, 12
    vm, vl, va, vb = 16, 17, 18, 19
    vS, vD, vB = 20, 24, 24
    vK = 40
    vV = vK + 4 * U * D
    NV = max(vV + 4 * U * D, 168)
    sTag, sC, sPair, sSplit = 40, 41, 42, 43
    sSlot = 48
    nstamp = [0]
    def stamp(i):
        if stamps:
            A(f"  s_memrealtime s[{64+2*i}:{65+2*i}]")
    for ln in HEADER.rstrip("\n").split("\n"): A(ln)
    A(f"; @launch grid=(256,1,1) block=(320,1,1) lds={L_TOTAL}")
    A('.amdgcn_target "amdgcn-amd-amdhsa--gfx950"')
    A(".text")
    A(f".globl {NAME}")
    A(".p2align 8")
    A(f".type {NAME},@function")
    A(f"{NAME}:")
    A("  s_cmp_ge_u32 s2, 256")
    A("  s_cbranch_scc1 L_end")
    A("  s_load_dwordx16 s[4:19], s[0:1], 0")
    stamp(0)
    A("  v_lshrrev_b32 v3, 6, v0")
    A("  v_and_b32 v0, 63, v0")
    A("  v_readfirstlane_b32 s3, v3")
    A("  v_lshlrev_b32 v2, 4, v0")
    A(f"  s_lshr_b32 s{sPair}, s2, 2")
    A(f"  s_and_b32 s{sSplit}, s2, 3")
    A(f"  s_mov_b32 s30, {WS_SIZE}")
    A("  s_mov_b32 s31, 0x20000")
    A(f"  s_mov_b32 s{sC}, {hex(f2u(SCALE))}")
    A("  s_mov_b32 s61, 0x40000")
    A("  s_cmp_eq_u32 s3, 4")
    A("  s_cbranch_scc1 L_helper")
    A("  v_bfe_u32 v3, v0, 2, 2")
    A("  v_lshlrev_b32 v1, 8, v3")
    A("  v_lshrrev_b32 v3, 4, v0")
    A("  v_lshl_add_u32 v1, v3, 6, v1")
    A("  v_and_b32 v3, 3, v0")
    A("  v_lshl_add_u32 v1, v3, 4, v1")
    if dyn or G == 4:
        NREC = PAIRB
        A(f"  s_lshl_b32 s44, s{sPair}, 21")
        A(f"  s_lshl_b32 s45, s{sSplit}, 2")
        A("  s_add_u32 s45, s45, s3")
        A("  s_lshl_b32 s45, s45, 12")
        STEP = 16 * BLK
    else:
        NREC = PAIRB // 4
        A("  s_lshl_b32 s44, s2, 19")
        A("  s_lshl_b32 s45, s3, 12")
        STEP = 4 * BLK
    A(f"  s_mov_b32 s22, {NREC}")
    A("  s_mov_b32 s23, 0x20000")
    A(f"  s_mov_b32 s26, {NREC}")
    A("  s_mov_b32 s27, 0x20000")
    for d in range(D):
        A(f"  s_add_u32 s{sSlot+d}, s45, {d*STEP}")
    A("  s_waitcnt lgkmcnt(0)")
    stamp(8)
    A("  s_add_u32 s20, s6, s44")
    A("  s_addc_u32 s21, s7, 0")
    A("  s_add_u32 s24, s8, s44")
    A("  s_addc_u32 s25, s9, 0")
    def loads(kind, d, t):
        srd = "s[20:23]" if kind == "K" else "s[24:27]"
        off = vKoff if kind == "K" else vVoff
        r = (vK if kind == "K" else vV) + (d * U + t) * 4
        A(f"  buffer_load_dwordx4 v[{r}:{r+3}], v{off}, {srd}, s{sSlot+d} offen offset:{t*1024} {kvflags}")
    for d in range(D):
        for t in range(U): loads("K", d, t)
        for t in range(U): loads("V", d, t)
    stamp(9)
    A("  s_mov_b32 s28, s18")
    A("  s_mov_b32 s29, s19")
    if dyn:
        A(f"  s_lshl_b32 s44, s{sPair}, 8")
        A(f"  s_add_u32 s44, s44, {WS_CNT}")
        A("  s_add_u32 s46, s18, s44")
        A("  s_addc_u32 s47, s19, 0")
    A("  v_and_b32 v3, 1, v0")
    A("  v_mov_b32 v17, 0xffff")
    A("  v_lshlrev_b32 v3, 4, v3")
    A("  v_lshlrev_b32 v17, v3, v17")
    A("  v_bfe_u32 v3, v0, 1, 2")
    for r in range(4):
        A(f"  v_cmp_eq_u32 vcc, {r}, v3")
        A(f"  v_mov_b32 v{vO+r}, 0")
        A("  s_nop 0")
        A(f"  v_cndmask_b32 v{vM+r}, 0, v17, vcc")
    A(f"  v_mov_b32 v{vm}, 0xff800000")
    A(f"  v_mov_b32 v{vl}, 0")
    A("  v_bfe_u32 v3, v0, 3, 1")
    A("  v_lshlrev_b32 v18, 8, v3")
    A("  v_lshrrev_b32 v3, 4, v0")
    A("  v_lshl_add_u32 v18, v3, 6, v18")
    A("  v_and_b32 v3, 3, v0")
    A("  v_lshl_add_u32 v18, v3, 4, v18")
    A(f"  v_add_u32 v18, {L_Q}, v18")
    A(f"  v_mov_b32 v19, {L_TAG}")
    A("  s_barrier")
    A(f"  ds_read_b128 v[{vQ}:{vQ+3}], v18")
    A("  ds_read_b32 v3, v19")
    A("  s_waitcnt lgkmcnt(0)")
    A(f"  v_readfirstlane_b32 s{sTag}, v3")
    stamp(1)
    if dyn:
        A(f"  s_mov_b32 s60, {BLK}")
        A("  s_atomic_add s60, s[46:47], 0 glc")
    A("L_loop:")
    for d in range(D):
        A(f"  s_cmp_ge_u32 s{sSlot+d}, {NREC}")
        A("  s_cbranch_scc1 L_done")
        if dyn:
            A(f"  s_waitcnt vmcnt({WW})")
            A("  s_waitcnt lgkmcnt(0)")
            A(f"  s_add_u32 s{sSlot+d}, s60, {D*STEP}")
            A(f"  s_mov_b32 s60, {BLK}")
            A("  s_atomic_add s60, s[46:47], 0 glc")
        else:
            A(f"  s_add_u32 s{sSlot+d}, s{sSlot+d}, {D*STEP}")
        for t in range(U):
            r = vK + (d * U + t) * 4
            A(f"  s_waitcnt vmcnt({WW})")
            A(f"  v_mfma_f32_16x16x32_bf16 v[{vD+4*t}:{vD+4*t+3}], v[{r}:{r+3}], v[{vQ}:{vQ+3}], 0")
            loads("K", d, t)
        A("  s_nop 3")
        for j in range(4):
            for t in range(U):
                if j == 0:
                    A(f"  v_mov_b32_dpp v{vS+t}, v{vD+4*t} quad_perm:[0,0,0,0] {dpp}")
                else:
                    A(f"  v_add_f32_dpp v{vS+t}, v{vD+4*t+j}, v{vS+t} quad_perm:[{j},{j},{j},{j}] {dpp}")
        A(f"  v_max3_f32 v{va}, v{vm}, v{vS}, v{vS+1}")
        A(f"  v_max3_f32 v{va}, v{va}, v{vS+2}, v{vS+3}")
        A(f"  v_mov_b32 v{vb}, v{va}")
        A("  s_nop 1")
        A(f"  v_permlane32_swap_b32 v{va}, v{vb}")
        A(f"  v_max_f32 v{va}, v{va}, v{vb}")
        A(f"  v_mov_b32 v{vb}, v{va}")
        A("  s_nop 1")
        A(f"  v_permlane16_swap_b32 v{va}, v{vb}")
        A(f"  v_max_f32 v{va}, v{va}, v{vb}")
        A(f"  v_sub_f32 v{vb}, v{vm}, v{va}")
        A(f"  v_mul_f32 v{vb}, s{sC}, v{vb}")
        A(f"  v_exp_f32 v{vb}, v{vb}")
        A(f"  v_mov_b32 v{vm}, v{va}")
        A(f"  v_mul_f32 v{va}, s{sC}, v{va}")
        for t in range(U):
            A(f"  v_fma_f32 v{vS+t}, v{vS+t}, s{sC}, -v{va}")
        for t in range(U):
            A(f"  v_exp_f32 v{vS+t}, v{vS+t}")
        for r in range(4):
            A(f"  v_mul_f32 v{vO+r}, v{vO+r}, v{vb}")
        A(f"  v_mul_f32 v{vl}, v{vl}, v{vb}")
        for t in range(U):
            r = vV + (d * U + t) * 4
            A(f"  v_cvt_pk_bf16_f32 v{vT}, v{vS+t}, v{vS+t}")
            for j in range(4):
                A(f"  v_and_b32 v{vB+j}, v{vT}, v{vM+j}")
            A(f"  v_add_f32 v{vl}, v{vl}, v{vS+t}")
            A(f"  s_waitcnt vmcnt({WW})")
            A(f"  v_mfma_f32_16x16x32_bf16 v[{vO}:{vO+3}], v[{r}:{r+3}], v[{vB}:{vB+3}], v[{vO}:{vO+3}]")
            loads("V", d, t)
    A("  s_branch L_loop")
    A("L_done:")
    stamp(2)
    A(f"  v_mov_b32 v{vb}, v{vl}")
    A("  s_lshl_b32 s44, s3, 10")
    A(f"  s_add_u32 s44, s44, {L_P}")
    A(f"  v_permlane32_swap_b32 v{vl}, v{vb}")
    A(f"  v_add_f32 v{vl}, v{vl}, v{vb}")
    A(f"  v_mov_b32 v{vb}, v{vl}")
    A("  s_lshl_b32 s45, s3, 4")
    A(f"  s_add_u32 s45, s45, {L_ML}")
    A(f"  v_permlane16_swap_b32 v{vl}, v{vb}")
    A(f"  v_add_f32 v{vl}, v{vl}, v{vb}")
    A("  v_add_u32 v18, s44, v2")
    A("  v_and_b32 v19, 8, v0")
    A("  v_add_u32 v20, s45, v19")
    A(f"  ds_write_b128 v18, v[{vO}:{vO+3}]")
    A(f"  ds_write_b64 v20, v[{vm}:{vl}]")
    A("  s_waitcnt vmcnt(0) lgkmcnt(0)")
    A("  s_barrier")
    A("  s_branch L_tail")
    A("L_helper:")
    A("  s_and_b32 s44, s2, 7")
    A("  s_lshl_b32 s44, s44, 5")
    A("  s_lshr_b32 s45, s2, 3")
    A("  s_add_u32 s44, s44, s45")
    A("  v_lshrrev_b32 v3, 1, v0")
    A("  v_bfe_u32 v4, v3, 2, 2")
    A("  v_lshlrev_b32 v4, 3, v4")
    A("  v_lshrrev_b32 v5, 4, v3")
    A("  v_lshl_add_u32 v4, v5, 2, v4")
    A("  v_and_b32 v5, 3, v3")
    A("  v_add_u32 v4, v4, v5")
    A("  v_and_b32 v5, 1, v0")
    A("  v_lshlrev_b32 v5, 4, v5")
    A("  v_lshl_add_u32 v6, v4, 13, v5")
    A("  v_mul_u32_u24 v7, 1152, v4")
    A("  v_add_u32 v7, v7, v5")
    A("  s_mov_b32 s34, 4718592")
    A("  s_mov_b32 s35, 0x20000")
    A("  s_mov_b32 s38, 4608")
    A("  s_mov_b32 s39, 0x20000")
    A("  s_lshl_b32 s45, s44, 5")
    A(f"  s_mov_b32 m0, {L_X}")
    A("  s_waitcnt lgkmcnt(0)")
    stamp(8)
    A("  s_load_dword s46, s[18:19], 0 glc")
    A("  s_mov_b32 s36, s4")
    A("  s_mov_b32 s37, s5")
    A("  s_mov_b32 s32, s10")
    A("  s_mov_b32 s33, s11")
    A("  s_mov_b32 s28, s18")
    A("  s_mov_b32 s29, s19")
    if dyn:
        A("  s_and_b32 s47, s44, 15")
        A("  s_cmp_lg_u32 s47, 0")
        A("  s_cbranch_scc1 L_nozero")
        A("  v_lshlrev_b32 v5, 12, v0")
        A("  s_lshl_b32 s47, s44, 4")
        A(f"  s_add_u32 s47, s47, {WS_CNT}")
        A("  v_mov_b32 v11, 0")
        A("  s_mov_b64 exec, 15")
        A("  buffer_store_dword v11, v5, s[28:31], s47 offen sc1")
        A("  s_mov_b64 exec, -1")
        A("L_nozero:")
    for j in range(4):
        A(f"  buffer_load_dwordx4 v2, s[36:39], 0 offen offset:{j*1024} lds")
    A(f"  s_mov_b32 m0, {L_X+4096}")
    A("  s_movk_i32 s47, 4096")
    A("  buffer_load_dwordx4 v2, s[36:39], s47 offen lds")
    A("  s_mov_b32 m0, 0")
    A("  s_nop 0")
    A("L_wq:")
    A(f"  buffer_load_dwordx4 v6, s[32:35], s45 offen {wqflags} lds")
    A("  s_add_u32 m0, m0, 1024")
    A("  s_add_u32 s45, s45, 0x40000")
    A("  s_cmp_lt_u32 m0, 18432")
    A("  s_cbranch_scc1 L_wq")
    stamp(9)
    A("  v_and_b32 v8, 3, v0")
    A("  v_mul_u32_u24 v8, 1152, v8")
    A("  v_lshrrev_b32 v9, 4, v0")
    A("  v_lshl_add_u32 v8, v9, 4, v8")
    A("  v_lshlrev_b32 v10, 3, v0")
    A("  s_waitcnt lgkmcnt(0)")
    A(f"  s_mul_i32 s{sTag}, s46, 0x9e3779b1")
    A(f"  s_add_u32 s{sTag}, s{sTag}, 0x7f4a7c15")
    stamp(10)
    A("  s_waitcnt vmcnt(18)")
    stamp(11)
    vX = 24; vW = 96
    for t in range(18):
        A(f"  ds_read_b128 v[{vX+4*t}:{vX+4*t+3}], v8 offset:{L_X + t*64}")
    for t in range(18):
        A(f"  s_waitcnt vmcnt({17-t})")
        if t == 0: stamp(12)
        if t == 8: stamp(13)
        if t == 17: stamp(14)
        A(f"  ds_read_b64_tr_b16 v[{vW+4*t}:{vW+4*t+1}], v10 offset:{t*1024}")
        A(f"  ds_read_b64_tr_b16 v[{vW+4*t+2}:{vW+4*t+3}], v10 offset:{t*1024+512}")
        if t >= 2:
            u = t - 2
            A("  s_waitcnt lgkmcnt(4)")
            c = "0" if u == 0 else "v[12:15]"
            A(f"  v_mfma_f32_16x16x32_bf16 v[12:15], v[{vW+4*u}:{vW+4*u+3}], v[{vX+4*u}:{vX+4*u+3}], {c}")
    for u in (16, 17):
        A(f"  s_waitcnt lgkmcnt({2*(17-u)})")
        A(f"  v_mfma_f32_16x16x32_bf16 v[12:15], v[{vW+4*u}:{vW+4*u+3}], v[{vX+4*u}:{vX+4*u+3}], v[12:15]")
    A("  v_and_b32 v3, 15, v0")
    A("  v_lshlrev_b32 v4, 14, v3")
    A("  v_lshl_add_u32 v4, v9, 4, v4")
    A("  s_lshl_b32 s45, s44, 6")
    A(f"  s_add_u32 s45, s45, {WS_QG}")
    A(f"  v_mov_b32 v17, s{sTag}")
    A(f"  v_mov_b32 v19, s{sTag}")
    A("  v_cmp_gt_u32 vcc, 4, v3")
    A("  s_nop 1")
    A("  v_cvt_pk_bf16_f32 v16, v12, v13")
    A("  v_cvt_pk_bf16_f32 v18, v14, v15")
    A("  s_mov_b64 exec, vcc")
    A("  buffer_store_dwordx4 v[16:19], v4, s[28:31], s45 offen sc1")
    A("  s_mov_b64 exec, -1")
    stamp(1)
    A(f"  s_lshl_b32 s45, s{sPair}, 10")
    A(f"  s_add_u32 s45, s45, {WS_QG}")
    A(f"  v_add_u32 v11, {L_Q}, v10")
    A(f"  v_mov_b32 v3, {L_TAG}")
    A("  ds_write_b32 v3, v17")
    A("L_qpoll:")
    A("  buffer_load_dwordx4 v[20:23], v2, s[28:31], s45 offen sc1")
    A("  s_waitcnt vmcnt(0)")
    A(f"  v_cmp_eq_u32 vcc, s{sTag}, v21")
    A(f"  v_cmp_eq_u32 s[46:47], s{sTag}, v23")
    A("  s_and_b64 vcc, vcc, s[46:47]")
    A("  s_cmp_eq_u64 vcc, -1")
    A("  s_cbranch_scc1 L_qdone")
    A("  s_sub_u32 s61, s61, 1")
    A("  s_cbranch_scc0 L_qpoll")
    A("L_qdone:")
    A("  v_mov_b32 v21, v22")
    A("  ds_write_b64 v11, v[20:21]")
    A("  s_waitcnt lgkmcnt(0)")
    A("  s_barrier")
    stamp(2)
    A("  s_mov_b32 s32, s12")
    A("  s_mov_b32 s33, s13")
    A(f"  s_and_b32 s44, s{sPair}, 15")
    A("  s_mul_i32 s44, s44, 294912")
    A(f"  s_mul_i32 s45, s{sSplit}, 288")
    A("  s_add_u32 s44, s44, s45")
    if wo_delay:
        A(f"  s_movk_i32 s45, {wo_delay}")
        A("L_wod:")
        A("  s_sleep 64")
        A("  s_sub_u32 s45, s45, 1")
        A("  s_cmp_lg_u32 s45, 0")
        A("  s_cbranch_scc1 L_wod")
    A("  s_mov_b32 s46, 0")
    A("L_wo_k:")
    A("  s_mov_b32 m0, s46")
    A("  s_mov_b32 s45, s44")
    A("L_wo_t:")
    A(f"  buffer_load_dwordx4 v7, s[32:35], s45 offen {woflags} lds")
    A("  s_add_u32 m0, m0, 8192")
    A("  s_add_u32 s45, s45, 32")
    A("  s_cmp_lt_u32 m0, 73728")
    A("  s_cbranch_scc1 L_wo_t")
    A("  s_waitcnt vmcnt(9)")
    A("  s_add_u32 s44, s44, 36864")
    A("  s_add_u32 s46, s46, 1024")
    A("  s_cmp_lt_u32 s46, 8192")
    A("  s_cbranch_scc1 L_wo_k")
    A("  s_waitcnt vmcnt(0)")
    A("  v_and_b32 v19, 8, v0")
    A("  s_barrier")
    A("L_tail:")
    stamp(3)
    vF = 100
    A(f"  s_lshl_b32 s44, s{sPair}, 14")
    A("  s_lshl_b32 s45, s3, 12")
    A("  s_add_u32 s44, s44, s45")
    A(f"  s_add_u32 s44, s44, {WS_PG}")
    A("  v_lshlrev_b32 v10, 3, v0")
    A("  s_lshl_b32 s45, s3, 14")
    A("  v_add_u32 v10, s45, v10")
    A(f"  v_add_u32 v18, {L_P}, v2")
    A(f"  v_add_u32 v19, {L_ML}, v19")
    def combine4(pl, ml):
        for w in range(4):
            A(f"  ds_read_b64 v[{40+2*w}:{41+2*w}], v19 offset:{ml[w]*16}")
        for w in range(4):
            A(f"  ds_read_b128 v[{24+4*w}:{27+4*w}], v18 offset:{pl[w]*1024}")
        A("  s_waitcnt lgkmcnt(4)")
        A("  v_max3_f32 v48, v40, v42, v44")
        A("  v_max_f32 v48, v48, v46")
        for w in range(4):
            A(f"  v_sub_f32 v{40+2*w}, v{40+2*w}, v48")
        for w in range(4):
            A(f"  v_mul_f32 v{40+2*w}, s{sC}, v{40+2*w}")
        for w in range(4):
            A(f"  v_exp_f32 v{40+2*w}, v{40+2*w}")
        A("  s_nop 0")
        A("  v_mul_f32 v49, v40, v41")
        for w in range(1, 4):
            A(f"  v_fmac_f32 v49, v{40+2*w}, v{41+2*w}")
        A("  s_waitcnt lgkmcnt(0)")
        for r in range(4):
            A(f"  v_mul_f32 v{24+r}, v40, v{24+r}")
        for w in range(1, 4):
            for r in range(4):
                A(f"  v_fmac_f32 v{24+r}, v{40+2*w}, v{24+4*w+r}")
    A(f"  s_cmp_eq_u32 s3, s{sSplit}")
    A("  s_cbranch_scc0 L_remote")
    combine4([0, 1, 2, 3], [0, 1, 2, 3])
    for ln in ["v_mov_b32 v28, v24", f"v_mov_b32 v29, s{sTag}", "v_mov_b32 v30, v25", f"v_mov_b32 v31, s{sTag}",
               "v_mov_b32 v32, v26", f"v_mov_b32 v33, s{sTag}", "v_mov_b32 v34, v27", f"v_mov_b32 v35, s{sTag}",
               "v_mov_b32 v36, v48", f"v_mov_b32 v37, s{sTag}", "v_mov_b32 v38, v49", f"v_mov_b32 v39, s{sTag}"]:
        A("  " + ln)
    for j in range(3):
        A(f"  buffer_store_dwordx4 v[{28+4*j}:{31+4*j}], v2, s[28:31], s44 offen offset:{j*1024} sc1")
    A("  ds_write_b128 v18, v[24:27] offset:3072")
    A("  ds_write_b64 v19, v[48:49] offset:64")
    A("  s_branch L_frags")
    A("L_remote:")
    A("  s_cmp_eq_u32 s3, 4")
    A("  s_cbranch_scc1 L_frags")
    A(f"  s_sub_u32 s45, s3, s{sSplit}")
    A("  s_and_b32 s45, s45, 3")
    A("  s_lshl_b32 s46, s45, 10")
    A("  s_lshl_b32 s45, s45, 4")
    A("  v_add_u32 v20, s46, v18")
    A("  v_add_u32 v21, s45, v19")
    A("L_ppoll:")
    for j in range(3):
        A(f"  buffer_load_dwordx4 v[{28+4*j}:{31+4*j}], v2, s[28:31], s44 offen offset:{j*1024} sc1")
    A("  s_waitcnt vmcnt(0)")
    A("  v_min3_u32 v22, v29, v31, v33")
    A("  v_max3_u32 v23, v29, v31, v33")
    A("  v_min3_u32 v22, v22, v35, v37")
    A("  v_max3_u32 v23, v23, v35, v37")
    A("  v_min_u32 v22, v22, v39")
    A("  v_max_u32 v23, v23, v39")
    A(f"  v_cmp_eq_u32 vcc, s{sTag}, v22")
    A(f"  v_cmp_eq_u32 s[46:47], s{sTag}, v23")
    A("  s_and_b64 vcc, vcc, s[46:47]")
    A("  s_cmp_eq_u64 vcc, -1")
    A("  s_cbranch_scc1 L_pdone")
    if poll_sleep: A(f"  s_sleep {poll_sleep}")
    A("  s_sub_u32 s61, s61, 1")
    A("  s_cbranch_scc0 L_ppoll")
    A("L_pdone:")
    A("  v_mov_b32 v29, v30")
    A("  v_mov_b32 v30, v32")
    A("  v_mov_b32 v31, v34")
    A("  v_mov_b32 v37, v38")
    A("  ds_write_b128 v20, v[28:31] offset:3072")
    A("  ds_write_b64 v21, v[36:37] offset:64")
    A("L_frags:")
    for f in range(16):
        A(f"  ds_read_b64_tr_b16 v[{vF+4*f}:{vF+4*f+1}], v10 offset:{f*1024}")
        A(f"  ds_read_b64_tr_b16 v[{vF+4*f+2}:{vF+4*f+3}], v10 offset:{f*1024+512}")
    A("  s_waitcnt lgkmcnt(0)")
    A("  s_barrier")
    stamp(4)
    combine4([3, 4, 5, 6], [4, 5, 6, 7])
    A("  v_rcp_f32 v49, v49")
    A("  v_bfe_u32 v3, v0, 3, 1")
    A("  v_lshlrev_b32 v20, 8, v3")
    A("  v_lshrrev_b32 v9, 4, v0")
    A("  v_lshl_add_u32 v20, v9, 6, v20")
    A("  v_and_b32 v3, 7, v0")
    A("  v_lshl_add_u32 v20, v3, 1, v20")
    A("  s_lshl_b32 s45, s3, 9")
    A("  v_add_u32 v20, s45, v20")
    A("  v_lshl_add_u32 v21, v9, 4, s45")
    for r in range(4):
        A(f"  v_mul_f32 v{24+r}, v{24+r}, v49")
    A("  v_cvt_pk_bf16_f32 v24, v24, v25")
    A("  v_cvt_pk_bf16_f32 v26, v26, v27")
    A("  ds_write_b16 v20, v24")
    A("  ds_write_b16_d16_hi v20, v24 offset:16")
    A("  ds_write_b16 v20, v26 offset:32")
    A("  ds_write_b16_d16_hi v20, v26 offset:48")
    A("  s_waitcnt lgkmcnt(0)")
    for t in range(8):
        A(f"  ds_read_b128 v[{52+4*t}:{55+4*t}], v21 offset:{t*64}")
    for t in range(8):
        A(f"  s_waitcnt lgkmcnt({7-t})")
        for j in range(2):
            c = "0" if t == 0 else f"v[{24+4*j}:{27+4*j}]"
            f = j * 8 + t
            A(f"  v_mfma_f32_16x16x32_bf16 v[{24+4*j}:{27+4*j}], v[{52+4*t}:{55+4*t}], v[{vF+4*f}:{vF+4*f+3}], {c}")
    A(f"  s_mul_i32 s44, s{sPair}, 4608")
    A(f"  s_mul_i32 s45, s{sSplit}, 1152")
    A("  s_add_u32 s44, s44, s45")
    A("  s_lshl_b32 s45, s3, 8")
    A("  s_add_u32 s44, s44, s45")
    A(f"  s_add_u32 s44, s44, {WS_YG}")
    A("  v_lshlrev_b32 v10, 3, v0")
    A("  v_cmp_gt_u32 vcc, 16, v0")
    A(f"  v_mov_b32 v33, s{sTag}")
    A("  s_cmp_eq_u32 s3, 4")
    A("  s_cselect_b32 s46, 0xffff, -1")
    A("  s_mov_b32 s47, 0")
    A("  v_cndmask_b32 v32, v28, v24, vcc")
    A("  s_mov_b64 exec, s[46:47]")
    A("  buffer_store_dwordx2 v[32:33], v10, s[28:31], s44 offen sc1")
    A("  s_mov_b64 exec, -1")
    stamp(5)
    A("  s_cbranch_scc0 L_fin")
    A("  s_cmp_ge_u32 s2, 144")
    A("  s_cbranch_scc1 L_fin")
    A("  s_mul_i32 s44, s2, 1821")
    A("  s_lshr_b32 s44, s44, 16")
    A("  s_mul_i32 s45, s44, 36")
    A("  s_sub_u32 s45, s2, s45")
    A("  s_mul_i32 s46, s44, 73728")
    A("  s_lshl_b32 s47, s45, 7")
    A("  s_add_u32 s46, s46, s47")
    A(f"  s_add_u32 s46, s46, {WS_YG}")
    A("  v_and_b32 v3, 15, v0")
    A("  v_mul_u32_u24 v10, 18432, v9")
    A("  v_lshl_add_u32 v10, v3, 3, v10")
    A("  v_add_u32 v11, 4608, v10")
    A("  v_add_u32 v12, 9216, v10")
    A("  v_add_u32 v13, 13824, v10")
    A("  s_mov_b32 s36, s14")
    A("  s_mov_b32 s37, s15")
    A("  s_lshl_b32 s47, s2, 5")
    A("  v_lshlrev_b32 v3, 1, v0")
    A("  s_mov_b32 s61, 0x40000")
    A("L_ypoll:")
    for j in range(4):
        A(f"  buffer_load_dwordx2 v[{24+2*j}:{25+2*j}], v{10+j}, s[28:31], s46 offen sc1")
    A("  s_waitcnt vmcnt(0)")
    A("  v_min3_u32 v22, v25, v27, v29")
    A("  v_max3_u32 v23, v25, v27, v29")
    A("  v_min_u32 v22, v22, v31")
    A("  v_max_u32 v23, v23, v31")
    A(f"  v_cmp_eq_u32 vcc, s{sTag}, v22")
    A(f"  v_cmp_eq_u32 s[44:45], s{sTag}, v23")
    A("  s_and_b64 vcc, vcc, s[44:45]")
    A("  s_cmp_eq_u64 vcc, -1")
    A("  s_cbranch_scc1 L_ydone")
    if poll_sleep: A(f"  s_sleep {poll_sleep}")
    A("  s_sub_u32 s61, s61, 1")
    A("  s_cbranch_scc0 L_ypoll")
    A("L_ydone:")
    A("  v_add_f32 v24, v24, v26")
    A("  v_add_f32 v28, v28, v30")
    A("  v_add_f32 v24, v24, v28")
    A("  v_mov_b32 v25, v24")
    A("  s_nop 1")
    A("  v_permlane32_swap_b32 v24, v25")
    A("  v_add_f32 v24, v24, v25")
    A("  v_mov_b32 v25, v24")
    A("  s_nop 1")
    A("  v_permlane16_swap_b32 v24, v25")
    A("  v_add_f32 v24, v24, v25")
    A("  v_cvt_pk_bf16_f32 v24, v24, v24")
    A("  s_mov_b64 exec, 0xffff")
    A("  buffer_store_short v24, v3, s[36:39], s47 offen")
    A("  s_cmp_lg_u32 s2, 0")
    A("  s_cbranch_scc1 L_fin")
    A("  s_mov_b64 exec, 1")
    A("  buffer_store_dword v33, v3, s[28:31], 0 offen sc1")
    A("L_fin:")
    if stamps:
        stamp(6)
        A("  s_mul_i32 s44, s2, 5")
        A("  s_add_u32 s44, s44, s3")
        A("  s_lshl_b32 s44, s44, 6")
        A(f"  s_add_u32 s44, s44, {WS_TS}")
        A("  s_getreg_b32 s78, hwreg(HW_REG_XCC_ID)")
        A("  s_waitcnt lgkmcnt(0)")
        A("  s_mov_b64 exec, 1")
        for i in range(16):
            A(f"  v_mov_b32 v{24+i}, s{64+2*i}")
        A("  v_mov_b32 v3, 0")
        for j in range(4):
            A(f"  buffer_store_dwordx4 v[{24+4*j}:{27+4*j}], v3, s[28:31], s44 offen offset:{16*j}")
    A("L_end:")
    A("  s_endpgm")
    A('.section .rodata,"a"')
    A(".p2align 6")
    A(f".amdhsa_kernel {NAME}")
    A(f"  .amdhsa_next_free_vgpr {NV}")
    A("  .amdhsa_next_free_sgpr %d" % (96 if stamps else 64))
    A(f"  .amdhsa_accum_offset {(NV+3)//4*4}")
    A("  .amdhsa_group_segment_fixed_size 0")
    A("  .amdhsa_kernarg_size 64")
    A("  .amdhsa_user_sgpr_count 2")
    A("  .amdhsa_user_sgpr_kernarg_segment_ptr 1")
    A("  .amdhsa_system_sgpr_workgroup_id_x 1")
    A("  .amdhsa_float_denorm_mode_32 3")
    A(".end_amdhsa_kernel")
    return "\n".join(L) + "\n"

if __name__ == "__main__":
    import json
    cfg = json.loads(sys.argv[1]) if len(sys.argv) > 1 else {}
    sys.stdout.write(gen(**cfg))
```

```python
import math, struct, sys
from gen_full import f2u, SCALE, NAME, HEADER

WS_QG = 0x40000
WS_PG = 0x100000
WS_YG = 0x200000
WS_CNT = 0x300000
WS_TS = 0x1000000
WS_SIZE = 0x2000000

L_Q = 19456
L_FLAG = L_Q + 512
L_ML = L_FLAG + 16
L_O = L_Q + 640
L_P = L_O + 512
L_TOTAL = L_P + 4 * 1024

def gen(E=2, WIN0=8, hyb=26, stamps=False, kvflags="nt", wqflags="nt", woflags="nt",
        qdelay=0, pdelay=0, ydelay=0, psleep=0, prew=True, wo_early=False, pre0=0, skip="", xflags="", qpflags="sc1", tkwait=True, fine=False, notail=False, warm=False):
    U = 4
    D = 2 + E
    PAIRB = 2 * 1024 * 1024
    BLK = 4096
    STEP = 16 * BLK
    L = []
    A = L.append
    dpp = "row_mask:0xf bank_mask:0xf"
    vKoff, vVoff, vT = 1, 2, 3
    vQ, vM, vO = 4, 8, 12
    vm, vl, va, vb = 16, 17, 18, 19
    vS, vD, vB = 20, 24, 24
    vK = 40
    NV = max(vK + 32 * D, 132)
    sTag, sC, sPair, sSplit = 40, 41, 42, 43
    sSlot = 48
    def stamp(i):
        if stamps:
            A(f"  s_memrealtime s[{64+2*i}:{65+2*i}]")
    def tagcheck(regs, label_ok, label_loop, sleep):
        if len(regs) == 1:
            A(f"  v_cmp_eq_u32 vcc, s{sTag}, v{regs[0]}")
        else:
            A(f"  v_min3_u32 v22, v{regs[0]}, v{regs[1]}, v{regs[2]}")
            A(f"  v_max3_u32 v23, v{regs[0]}, v{regs[1]}, v{regs[2]}")
            i = 3
            while i < len(regs):
                if i + 1 < len(regs):
                    A(f"  v_min3_u32 v22, v22, v{regs[i]}, v{regs[i+1]}")
                    A(f"  v_max3_u32 v23, v23, v{regs[i]}, v{regs[i+1]}")
                    i += 2
                else:
                    A(f"  v_min_u32 v22, v22, v{regs[i]}")
                    A(f"  v_max_u32 v23, v23, v{regs[i]}")
                    i += 1
            A(f"  v_cmp_eq_u32 vcc, s{sTag}, v22")
            A(f"  v_cmp_eq_u32 s[62:63], s{sTag}, v23")
            A("  s_and_b64 vcc, vcc, s[62:63]")
        A("  s_cmp_eq_u64 vcc, -1")
        A(f"  s_cbranch_scc1 {label_ok}")
        if sleep: A(f"  s_sleep {sleep}")
        A("  s_sub_u32 s61, s61, 1")
        A(f"  s_cbranch_scc0 {label_loop}")
        A(f"{label_ok}:")
    def yaddr(vdst, vtmp):
        A("  s_mov_b32 s45, 196608")
        A(f"  v_mul_lo_u32 v{vdst}, v9, s45")
        A(f"  v_bfe_u32 v{vtmp}, v0, 2, 2")
        A(f"  v_lshl_add_u32 v{vdst}, v{vtmp}, 12, v{vdst}")
        A(f"  v_and_b32 v{vtmp}, 3, v0")
        A(f"  v_lshl_add_u32 v{vdst}, v{vtmp}, 4, v{vdst}")
        A("  s_lshr_b32 s45, s2, 6")
        A("  s_mul_i32 s58, s45, 49152")
        A("  s_and_b32 s45, s2, 63")
        A("  s_lshl_b32 s45, s45, 6")
        A("  s_add_u32 s58, s58, s45")
        A(f"  s_add_u32 s58, s58, {WS_YG}")
    for ln in HEADER.rstrip("\n").split("\n"): A(ln)
    A(f"; @launch grid=(256,1,1) block=(320,1,1) lds={L_TOTAL}")
    A('.amdgcn_target "amdgcn-amd-amdhsa--gfx950"')
    A(".text")
    A(f".globl {NAME}")
    A(".p2align 8")
    A(f".type {NAME},@function")
    A(f"{NAME}:")
    A("  s_cmp_ge_u32 s2, 256")
    A("  s_cbranch_scc1 L_end")
    A("  s_load_dwordx16 s[4:19], s[0:1], 0")
    stamp(0)
    A("  v_lshrrev_b32 v3, 6, v0")
    A("  v_and_b32 v0, 63, v0")
    A("  v_readfirstlane_b32 s3, v3")
    A("  v_lshlrev_b32 v2, 4, v0")
    A(f"  s_lshr_b32 s{sPair}, s2, 2")
    A(f"  s_and_b32 s{sSplit}, s2, 3")
    A(f"  s_mov_b32 s30, {WS_SIZE}")
    A("  s_mov_b32 s31, 0x20000")
    A(f"  s_mov_b32 s{sC}, {hex(f2u(SCALE))}")
    A("  s_mov_b32 s61, 0x40000")
    A("  s_cmp_lg_u32 s3, 0")
    A("  s_cbranch_scc1 L_attn")
    if warm:
        A("  s_getpc_b64 s[52:53]")
        A("L_pc:")
        A("  v_lshlrev_b32 v4, 7, v0")
        A("  v_min_u32 v4, L_end-L_pc, v4")
        A("  global_load_dword v131, v4, s[52:53]")
    A("  s_and_b32 s44, s2, 7")
    A("  s_lshl_b32 s44, s44, 5")
    A("  s_lshr_b32 s45, s2, 3")
    A("  s_add_u32 s44, s44, s45")
    A("  v_lshrrev_b32 v9, 4, v0")
    A("  v_bfe_u32 v4, v0, 2, 2")
    A("  v_lshl_add_u32 v4, v9, 3, v4")
    A("  v_and_b32 v8, 3, v0")
    A("  v_lshlrev_b32 v5, 4, v8")
    A("  v_lshl_add_u32 v6, v4, 13, v5")
    A("  v_mul_u32_u24 v7, 1152, v8")
    A("  v_lshl_add_u32 v7, v9, 4, v7")
    A("  s_mov_b32 s34, 4718592")
    A("  s_mov_b32 s35, 0x20000")
    A("  s_mov_b32 s38, 4608")
    A("  s_mov_b32 s39, 0x20000")
    A("  s_lshr_b32 s45, s44, 1")
    A("  s_lshl_b32 s45, s45, 6")
    A("  s_and_b32 s47, s44, 1")
    A("  s_mul_i32 s46, s47, 2359296")
    A("  s_add_u32 s45, s45, s46")
    A("  s_add_u32 s46, s45, 32768")
    A("  s_mul_i32 s56, s47, 576")
    A("  s_mov_b32 m0, 0")
    A(f"  v_mov_b32 v3, {L_FLAG}")
    A("  v_mov_b32 v12, 0")
    A("  v_mov_b32 v13, 0")
    A("  v_mov_b32 v14, 0")
    A("  v_mov_b32 v15, 0")
    A("  ds_write_b128 v3, v[12:15]")
    A("  s_waitcnt lgkmcnt(0)")
    stamp(8)
    A("  s_mov_b32 s36, s4")
    A("  s_mov_b32 s37, s5")
    A("  s_mov_b32 s32, s10")
    A("  s_mov_b32 s33, s11")
    A("  s_load_dword s60, s[18:19], 0")
    vX = 24; vW = 60
    for t in range(9):
        if "x" not in skip: A(f"  buffer_load_dwordx4 v[{vX+4*t}:{vX+4*t+3}], v7, s[36:39], s56 offen offset:{t*64} {xflags}")
    A("  s_mov_b32 s28, s18")
    A("  s_mov_b32 s29, s19")
    A("  s_and_b32 s56, s44, 15")
    A("  s_cmp_lg_u32 s56, 0")
    A("  s_cbranch_scc1 L_wq")
    A("  v_lshlrev_b32 v5, 12, v0")
    A("  s_lshl_b32 s56, s44, 4")
    A(f"  s_add_u32 s56, s56, {WS_CNT}")
    A("  s_mov_b64 exec, 15")
    A("  buffer_store_dword v12, v5, s[28:31], s56 offen sc1")
    A("  s_mov_b64 exec, -1")
    A("L_wq:")
    if "w" not in skip: A(f"  buffer_load_dwordx4 v6, s[32:35], s45 offen {wqflags} lds")
    A("  s_add_u32 m0, m0, 1024")
    A("  s_add_u32 s45, s45, 0x40000")
    if "w" not in skip: A(f"  buffer_load_dwordx4 v6, s[32:35], s46 offen {wqflags} lds")
    A("  s_add_u32 m0, m0, 1024")
    A("  s_add_u32 s46, s46, 0x40000")
    A("  s_cmp_lt_u32 m0, 18432")
    A("  s_cbranch_scc1 L_wq")
    A("  s_barrier")
    stamp(9)
    A("  v_lshrrev_b32 v10, 2, v0")
    A("  v_lshlrev_b32 v10, 6, v10")
    A("  v_lshl_add_u32 v10, v8, 3, v10")
    A("  v_lshlrev_b32 v4, 16, v8")
    A("  v_lshl_add_u32 v4, v9, 5, v4")
    A("  v_bfe_u32 v5, v0, 3, 1")
    A("  v_lshl_add_u32 v4, v5, 7, v4")
    A("  v_bfe_u32 v5, v0, 2, 1")
    A("  v_lshl_add_u32 v4, v5, 4, v4")
    A("  s_lshr_b32 s45, s44, 4")
    A("  s_lshl_b32 s45, s45, 12")
    A("  s_lshl_b32 s46, s47, 11")
    A("  s_add_u32 s45, s45, s46")
    A("  s_bfe_u32 s46, s44, 0x30001")
    A("  s_lshl_b32 s46, s46, 8")
    A("  s_add_u32 s45, s45, s46")
    A(f"  s_add_u32 s45, s45, {WS_QG}")
    A("  s_mov_b32 s56, 0xf0f0f0f0")
    A("  s_mov_b32 s57, 0xf0f0f0f0")
    A("  s_mov_b32 s58, 0xff00ff00")
    A("  s_mov_b32 s59, 0xff00ff00")
    A("  s_waitcnt lgkmcnt(0)")
    stamp(14)
    A(f"  s_mul_i32 s{sTag}, s60, 0x9e3779b1")
    A(f"  s_add_u32 s{sTag}, s{sTag}, 0x7f4a7c15")
    A(f"  v_mov_b32 v21, s{sTag}")
    A(f"  v_mov_b32 v23, s{sTag}")
    def qmfma(t):
        for j in range(2):
            r = vW + 8 * t + 4 * j
            c = "0" if t == 0 else f"v[{12+4*j}:{15+4*j}]"
            A(f"  v_mfma_f32_16x16x32_bf16 v[{12+4*j}:{15+4*j}], v[{r}:{r+3}], v[{vX+4*t}:{vX+4*t+3}], {c}")
    for t in range(9):
        A(f"  s_waitcnt vmcnt({16-2*t})")
        if t == 8: stamp(10)
        for j in range(2):
            r = vW + 8 * t + 4 * j
            A(f"  ds_read_b64_tr_b16 v[{r}:{r+1}], v10 offset:{t*2048 + j*32}")
            A(f"  ds_read_b64_tr_b16 v[{r+2}:{r+3}], v10 offset:{t*2048 + 1024 + j*32}")
        if t >= 1:
            A("  s_waitcnt lgkmcnt(4)")
            qmfma(t - 1)
    A("  s_waitcnt lgkmcnt(0)")
    qmfma(8)
    A("  s_nop 7")
    A("  v_cndmask_b32 v12, v12, v14, s[56:57]")
    A("  v_cndmask_b32 v13, v13, v15, s[56:57]")
    A("  v_cndmask_b32 v16, v16, v18, s[56:57]")
    A("  v_cndmask_b32 v17, v17, v19, s[56:57]")
    A("  v_cndmask_b32 v20, v12, v16, s[58:59]")
    A("  v_cndmask_b32 v22, v13, v17, s[58:59]")
    if "s" not in skip: A("  buffer_store_dwordx4 v[20:23], v4, s[28:31], s45 offen sc1")
    stamp(1)
    A(f"  s_lshl_b32 s45, s{sPair}, 12")
    A(f"  s_add_u32 s45, s45, {WS_QG}")
    A("  v_lshlrev_b32 v11, 2, v0")
    A(f"  v_add_u32 v11, {L_Q}, v11")
    if qdelay: A(f"  s_sleep {qdelay}")
    if "p" in skip: A("  s_branch L_qdone")
    A("L_qpoll:")
    for j in range(4):
        A(f"  buffer_load_dwordx4 v[{24+4*j}:{27+4*j}], v2, s[28:31], s45 offen offset:{j*1024} {qpflags}")
    A("  s_waitcnt vmcnt(0)")
    tagcheck([25, 27, 29, 31, 33, 35, 37, 39], "L_qdone", "L_qpoll", 0)
    A("  v_add_f32 v24, v24, v32")
    A("  v_add_f32 v26, v26, v34")
    A("  v_add_f32 v28, v28, v36")
    A("  v_add_f32 v30, v30, v38")
    A("  v_cvt_pk_bf16_f32 v24, v24, v26")
    A("  v_cvt_pk_bf16_f32 v28, v28, v30")
    A("  v_mov_b32 v20, 1")
    A("  ds_write_b32 v11, v24")
    A("  ds_write_b32 v11, v28 offset:256")
    A("  ds_write_b64 v3, v[20:21]")
    if stamps: A("  s_mov_b32 s86, s61")
    stamp(12)
    A("  v_bfe_u32 v4, v0, 3, 1")
    A("  v_lshlrev_b32 v8, 9, v4")
    A("  v_lshl_add_u32 v8, v9, 7, v8")
    A("  v_and_b32 v4, 7, v0")
    A("  v_lshl_add_u32 v8, v4, 4, v8")
    A("  s_lshl_b32 s46, s2, 10")
    A(f"  s_add_u32 s46, s46, {WS_PG}")
    if prew:
        yaddr(7, 4)
        A("  v_mov_b32 v15, s60")
        A("  buffer_store_dwordx4 v[12:15], v2, s[28:31], s46 offen sc1")
        for tg in range(3):
            A("  buffer_store_dwordx4 v[12:15], v7, s[28:31], s58 offen sc1")
            if tg < 2: A("  s_add_u32 s58, s58, 16384")
    A("  s_mov_b32 s32, s12")
    A("  s_mov_b32 s33, s13")
    A("  s_and_b32 s44, s2, 63")
    A("  s_mul_i32 s44, s44, 73728")
    A("  s_lshr_b32 s45, s2, 6")
    A("  s_mul_i32 s45, s45, 288")
    A("  s_add_u32 s44, s44, s45")
    A("  v_mul_u32_u24 v4, 57, v0")
    A("  v_lshrrev_b32 v4, 10, v4")
    A("  v_mul_u32_u24 v4, 864, v4")
    A("  v_add_u32 v6, v4, v2")
    A(f"  v_add_u32 v4, {L_P}, v2")
    A("  v_and_b32 v5, 8, v0")
    A(f"  v_add_u32 v5, {L_ML}, v5")
    A(f"  v_mov_b32 v23, s{sTag}")
    A("  s_lshl_b32 s47, s2, 12")
    A(f"  s_add_u32 s47, s47, {WS_YG}")
    A("  s_mov_b32 s36, s14")
    A("  s_mov_b32 s37, s15")
    A("  s_lshr_b32 s56, s2, 2")
    A("  s_mul_i32 s56, s56, 96")
    A("  s_and_b32 s57, s2, 3")
    A("  s_lshl_b32 s57, s57, 3")
    A("  s_add_u32 s56, s56, s57")
    A("  v_lshrrev_b32 v10, 5, v0")
    A("  v_bfe_u32 v11, v0, 4, 1")
    A("  v_lshl_add_u32 v10, v11, 1, v10")
    A("  v_lshlrev_b32 v10, 5, v10")
    A("  v_and_b32 v11, 3, v0")
    A("  v_lshl_add_u32 v10, v11, 1, v10")
    A("  s_mov_b32 s3, 4")
    A("  s_mov_b32 m0, 0")
    A("  s_waitcnt vmcnt(0)")
    if not wo_early:
        A("  s_mov_b32 s61, 0x100000")
        A("L_wait_end:")
        A("  s_sleep 4")
        A("  ds_read_b32 v24, v3 offset:8")
        A("  s_waitcnt lgkmcnt(0)")
        A("  v_readfirstlane_b32 s45, v24")
        A("  s_cmp_lg_u32 s45, 0")
        A("  s_cbranch_scc1 L_wo_go")
        A("  s_sub_u32 s61, s61, 1")
        A("  s_cbranch_scc0 L_wait_end")
        A("L_wo_go:")
    stamp(13)
    A("  s_mov_b32 exec_hi, 0x3fffff")
    A("L_wo:")
    if "o" not in skip: A(f"  buffer_load_dwordx4 v6, s[32:35], s44 offen {woflags} lds")
    A("  s_add_u32 m0, m0, 864")
    A("  s_add_u32 s44, s44, 3456")
    A("  s_cmp_lt_u32 m0, 18432")
    A("  s_cbranch_scc1 L_wo")
    A("  s_mov_b32 exec_hi, -1")
    A("  s_mov_b32 s61, 0x40000")
    A("  s_barrier")
    stamp(3)
    for w in range(4):
        A(f"  ds_read_b64 v[{40+2*w}:{41+2*w}], v5 offset:{w*16}")
    for w in range(4):
        A(f"  ds_read_b128 v[{24+4*w}:{27+4*w}], v4 offset:{w*1024}")
    A("  s_waitcnt lgkmcnt(4)")
    A("  v_max3_f32 v20, v40, v42, v44")
    A("  v_max_f32 v20, v20, v46")
    A(f"  v_mul_f32 v20, s{sC}, v20")
    for w in range(4): A(f"  v_fma_f32 v{40+2*w}, v{40+2*w}, s{sC}, -v20")
    for w in range(4): A(f"  v_exp_f32 v{40+2*w}, v{40+2*w}")
    A("  s_nop 0")
    A("  v_mul_f32 v22, v40, v41")
    for w in range(1, 4): A(f"  v_fmac_f32 v22, v{40+2*w}, v{41+2*w}")
    A("  v_rcp_f32 v21, v22")
    A("  v_log_f32 v22, v22")
    A("  s_waitcnt lgkmcnt(0)")
    for r in range(4): A(f"  v_mul_f32 v{24+r}, v40, v{24+r}")
    for w in range(1, 4):
        for r in range(4): A(f"  v_fmac_f32 v{24+r}, v{40+2*w}, v{24+4*w+r}")
    A("  v_add_f32 v22, v22, v20")
    for r in range(4): A(f"  v_mul_f32 v{24+r}, v21, v{24+r}")
    A("  v_cvt_pk_bf16_f32 v20, v24, v25")
    A("  v_cvt_pk_bf16_f32 v21, v26, v27")
    A("  buffer_store_dwordx4 v[20:23], v8, s[28:31], s46 offen sc1")
    stamp(15)
    A("  s_waitcnt vmcnt(1)")
    stamp(2)
    A("  s_barrier")
    stamp(4)
    stamp(5)
    A("  s_cmp_ge_u32 s2, 192")
    A("  s_cbranch_scc1 L_fin")
    if ydelay: A(f"  s_sleep {ydelay}")
    if notail: A("  s_branch L_ydone")
    A("L_ypoll:")
    for j in range(4):
        A(f"  buffer_load_dwordx4 v[{32+4*j}:{35+4*j}], v2, s[28:31], s47 offen offset:{j*1024} sc1")
    A("  s_waitcnt vmcnt(0)")
    tagcheck([35, 39, 43, 47], "L_ydone", "L_ypoll", psleep)
    for c in range(3):
        A(f"  v_add_f32 v{32+c}, v{32+c}, v{36+c}")
        A(f"  v_add_f32 v{40+c}, v{40+c}, v{44+c}")
    A("  v_add_f32 v34, v34, v42")
    A("  v_add_f32 v32, v32, v40")
    A("  v_add_f32 v33, v33, v41")
    A("  v_mov_b32 v35, v34")
    A("  s_nop 0")
    A("  v_permlane32_swap_b32 v32, v33")
    A("  v_permlane32_swap_b32 v34, v35")
    A("  v_add_f32 v32, v32, v33")
    A("  v_add_f32 v34, v34, v35")
    A("  s_nop 1")
    A("  v_permlane16_swap_b32 v32, v34")
    A("  v_add_f32 v32, v32, v34")
    A("  s_nop 1")
    A(f"  v_add_f32_dpp v32, v32, v32 row_ror:8 {dpp}")
    A("  s_nop 1")
    A(f"  v_add_f32_dpp v32, v32, v32 row_ror:4 {dpp}")
    A("  s_mov_b32 exec_lo, 0x000f000f")
    A("  s_mov_b32 exec_hi, 0x0000000f")
    A("  v_cvt_pk_bf16_f32 v32, v32, v32")
    A("  buffer_store_short v32, v10, s[36:39], s56 offen")
    A("  s_cmp_lg_u32 s2, 0")
    A("  s_cbranch_scc1 L_fin")
    A("  s_mov_b64 exec, 1")
    A("  buffer_store_dword v47, v2, s[28:31], 0 offen sc1")
    A("  s_branch L_fin")
    A("L_attn:")
    A("  s_sub_u32 s3, s3, 1")
    A("  v_bfe_u32 v3, v0, 2, 2")
    A("  v_lshlrev_b32 v1, 8, v3")
    A("  v_lshrrev_b32 v3, 4, v0")
    A("  v_lshl_add_u32 v1, v3, 6, v1")
    A("  v_and_b32 v3, 3, v0")
    A("  v_lshl_add_u32 v1, v3, 4, v1")
    A(f"  s_lshl_b32 s44, s{sPair}, 21")
    A(f"  s_lshl_b32 s45, s{sSplit}, 2")
    A("  s_add_u32 s45, s45, s3")
    A("  s_lshl_b32 s45, s45, 12")
    A(f"  s_mov_b32 s22, {PAIRB}")
    A("  s_mov_b32 s23, 0x20000")
    A(f"  s_mov_b32 s26, {PAIRB}")
    A("  s_mov_b32 s27, 0x20000")
    for d in range(D):
        A(f"  s_add_u32 s{sSlot+d}, s45, {d*STEP}")
    A("  s_waitcnt lgkmcnt(0)")
    A("  s_add_u32 s20, s6, s44")
    A("  s_addc_u32 s21, s7, 0")
    A("  s_add_u32 s24, s8, s44")
    A("  s_addc_u32 s25, s9, 0")
    def reg(kind, d, t):
        return vK + 32 * d + (0 if kind == "K" else 16) + 4 * t
    def loads(kind, d, t):
        srd = "s[20:23]" if kind == "K" else "s[24:27]"
        off = vKoff if kind == "K" else vVoff
        r = reg(kind, d, t)
        A(f"  buffer_load_dwordx4 v[{r}:{r+3}], v{off}, {srd}, s{sSlot+d} offen offset:{t*1024} {kvflags}")
    setup = []
    S = setup.append
    S("  s_mov_b32 s28, s18")
    S("  s_mov_b32 s29, s19")
    S(f"  s_lshl_b32 s44, s{sPair}, 8")
    S(f"  s_add_u32 s44, s44, {WS_CNT}")
    S("  s_add_u32 s46, s18, s44")
    S("  s_addc_u32 s47, s19, 0")
    S(f"  s_add_u32 s59, s45, {D*STEP}")
    S("  s_mov_b32 s57, 1")
    S("  v_and_b32 v3, 1, v0")
    S("  v_mov_b32 v17, 0xffff")
    S("  v_lshlrev_b32 v3, 4, v3")
    S("  v_lshlrev_b32 v17, v3, v17")
    S("  v_bfe_u32 v3, v0, 1, 2")
    for r in range(4):
        S(f"  v_cmp_eq_u32 vcc, {r}, v3")
        S(f"  v_mov_b32 v{vO+r}, 0")
        S("  s_nop 0")
        S(f"  v_cndmask_b32 v{vM+r}, 0, v17, vcc")
    S(f"  v_mov_b32 v{vm}, 0xff800000")
    S(f"  v_mov_b32 v{vl}, 0")
    S("  v_bfe_u32 v3, v0, 3, 1")
    S("  v_lshlrev_b32 v18, 8, v3")
    S("  v_lshrrev_b32 v3, 4, v0")
    S("  v_lshl_add_u32 v18, v3, 6, v18")
    S("  v_and_b32 v3, 3, v0")
    S("  v_lshl_add_u32 v18, v3, 4, v18")
    S(f"  v_add_u32 v18, {L_Q}, v18")
    S(f"  v_mov_b32 v19, {L_FLAG}")
    n = 0
    for d in range(D):
        for kind in "KV":
            for t in range(U):
                if n == pre0:
                    A("  s_barrier")
                    stamp(8)
                if n == min(WIN0, 8 * D - 1):
                    for ln in setup: A(ln)
                if n >= WIN0: A(f"  s_waitcnt vmcnt({WIN0-1})")
                loads(kind, d, t)
                n += 1
    stamp(9)
    A("  s_mov_b32 s61, 0x400000")
    A("L_qwait:")
    A("  ds_read_b64 v[20:21], v19")
    A(f"  ds_read_b128 v[{vQ}:{vQ+3}], v18")
    A("  s_waitcnt lgkmcnt(0)")
    A("  v_readfirstlane_b32 s44, v20")
    A(f"  v_readfirstlane_b32 s{sTag}, v21")
    A("  s_cmp_lg_u32 s44, 0")
    A("  s_cbranch_scc1 L_qgo")
    A("  s_sleep 1")
    A("  s_sub_u32 s61, s61, 1")
    A("  s_cbranch_scc0 L_qwait")
    A("L_qgo:")
    stamp(1)
    STATIC = hyb * STEP
    def body(d, ring):
        for t in range(U):
            r = reg("K", d, t)
            if ring: A(f"  s_waitcnt vmcnt({15 if fine else 15-t})")
            A(f"  v_mfma_f32_16x16x32_bf16 v[{vD+4*t}:{vD+4*t+3}], v[{r}:{r+3}], v[{vQ}:{vQ+3}], 0")
            if ring and fine:
                A(f"  s_cbranch_scc1 L_sk{d}_{t}")
                loads("K", d, t)
                A(f"L_sk{d}_{t}:")
        if ring and not fine:
            A(f"  s_cbranch_scc1 L_sk{d}")
            for t in range(U): loads("K", d, t)
            A(f"L_sk{d}:")
        A("  s_nop 4")
        for j in range(4):
            for t in range(U):
                if j == 0:
                    A(f"  v_mov_b32_dpp v{vS+t}, v{vD+4*t} quad_perm:[0,0,0,0] {dpp}")
                else:
                    A(f"  v_add_f32_dpp v{vS+t}, v{vD+4*t+j}, v{vS+t} quad_perm:[{j},{j},{j},{j}] {dpp}")
        A(f"  v_max3_f32 v{va}, v{vm}, v{vS}, v{vS+1}")
        A(f"  v_max3_f32 v{va}, v{va}, v{vS+2}, v{vS+3}")
        A(f"  v_mov_b32 v{vb}, v{va}")
        A("  s_nop 1")
        A(f"  v_permlane32_swap_b32 v{va}, v{vb}")
        A(f"  v_max_f32 v{va}, v{va}, v{vb}")
        A(f"  v_mov_b32 v{vb}, v{va}")
        A("  s_nop 1")
        A(f"  v_permlane16_swap_b32 v{va}, v{vb}")
        A(f"  v_max_f32 v{va}, v{va}, v{vb}")
        A(f"  v_sub_f32 v{vb}, v{vm}, v{va}")
        A(f"  v_mul_f32 v{vb}, s{sC}, v{vb}")
        A(f"  v_exp_f32 v{vb}, v{vb}")
        A(f"  v_mov_b32 v{vm}, v{va}")
        A(f"  v_mul_f32 v{va}, s{sC}, v{va}")
        for t in range(U):
            A(f"  v_fma_f32 v{vS+t}, v{vS+t}, s{sC}, -v{va}")
        for t in range(U):
            A(f"  v_exp_f32 v{vS+t}, v{vS+t}")
        for r in range(4):
            A(f"  v_mul_f32 v{vO+r}, v{vO+r}, v{vb}")
        A(f"  v_mul_f32 v{vl}, v{vl}, v{vb}")
        for t in range(U):
            A(f"  v_cvt_pk_bf16_f32 v{vT}, v{vS+t}, v{vS+t}")
            for j in range(4):
                A(f"  v_and_b32 v{vB+4*t+j}, v{vT}, v{vM+j}")
            A(f"  v_add_f32 v{vl}, v{vl}, v{vS+t}")
        if ring:
            A(f"  s_cbranch_scc1 L_dw{d}")
            A(f"L_dr{d}:")
        for t in range(U):
            r = reg("V", d, t)
            if ring: A(f"  s_waitcnt vmcnt({15 if fine else 15-t})")
            A(f"  v_mfma_f32_16x16x32_bf16 v[{vO}:{vO+3}], v[{r}:{r+3}], v[{vB+4*t}:{vB+4*t+3}], v[{vO}:{vO+3}]")
            if ring and fine and t < 3:
                A(f"  s_cbranch_scc1 L_sv{d}_{t}")
                loads("V", d, t)
                A(f"L_sv{d}_{t}:")
        if ring:
            A(f"  s_cbranch_scc1 L_sv{d}")
            for t in range(3 if fine else 0, U): loads("V", d, t)
    A("L_loop:")
    for d in range(2):
        A(f"  s_cmp_lt_u32 s59, {STATIC}")
        A(f"  s_cbranch_scc0 L_dy{d}")
        A(f"  s_mov_b32 s{sSlot+d}, s59")
        A(f"  s_add_u32 s59, s59, {STEP}")
        A(f"  s_cmp_ge_u32 s59, {STATIC}")
        A(f"  s_cbranch_scc1 L_tf{d}")
        A(f"L_go{d}:")
        body(d, True)
    A("  s_cmp_eq_u32 s57, 0")
    A("  s_cbranch_scc1 L_loop")
    A("  s_mov_b32 s57, 0")
    stamp(13)
    A("  s_waitcnt vmcnt(16)")
    for e in range(E):
        body(2 + e, False)
    stamp(14)
    A("  s_branch L_loop")
    for d in range(2):
        A(f"L_dy{d}:")
        if tkwait: A("  s_waitcnt vmcnt(15)")
        A("  s_waitcnt lgkmcnt(0)")
        A(f"  s_add_u32 s{sSlot+d}, s60, {STATIC}")
        A(f"  s_cmp_ge_u32 s{sSlot+d}, {PAIRB}")
        A(f"  s_cbranch_scc0 L_tk{d}")
        A(f"  v_mov_b32 v{va}, {L_FLAG}")
        A(f"  ds_write_b32 v{va}, v{va} offset:8")
        if fine: A("  s_waitcnt vmcnt(12)")
        A(f"  s_branch L_go{d}")
        A(f"L_tf{d}:")
        stamp(12)
        A(f"L_tk{d}:")
        A(f"  s_mov_b32 s60, {BLK}")
        A("  s_atomic_add s60, s[46:47], 0 glc")
        A("  s_cmp_eq_u32 s59, 0")
        A(f"  s_branch L_go{d}")
        A(f"L_dw{d}:")
        A("  s_waitcnt vmcnt(8)")
        A(f"  s_cmp_lt_u32 s{sSlot+1-d}, {PAIRB}")
        A(f"  s_cbranch_scc1 L_dr{d}")
        A("  s_waitcnt vmcnt(0)")
        A("  s_cmp_eq_u32 s59, s59")
        A(f"  s_branch L_dr{d}")
        A(f"L_sv{d}:")
        A(f"  s_cmp_ge_u32 s{sSlot+1-d}, {PAIRB}")
        A("  s_cbranch_scc1 L_done")
        A(f"  s_mov_b32 s{sSlot+1-d}, {PAIRB}")
        A("  s_waitcnt vmcnt(4)")
        A("  s_cmp_eq_u32 s59, s59")
        A(f"  s_branch L_go{1-d}")
    A("L_done:")
    stamp(2)
    A(f"  v_mov_b32 v{vb}, v{vl}")
    A("  s_lshl_b32 s44, s3, 10")
    A("  s_lshl_b32 s45, s3, 4")
    A(f"  v_permlane32_swap_b32 v{vl}, v{vb}")
    A(f"  v_add_f32 v{vl}, v{vl}, v{vb}")
    A(f"  v_mov_b32 v{vb}, v{vl}")
    A(f"  s_add_u32 s44, s44, {L_P}")
    A(f"  s_add_u32 s45, s45, {L_ML}")
    A(f"  v_permlane16_swap_b32 v{vl}, v{vb}")
    A(f"  v_add_f32 v{vl}, v{vl}, v{vb}")
    A("  v_and_b32 v5, 8, v0")
    A("  v_add_u32 v6, s44, v2")
    A("  v_add_u32 v7, s45, v5")
    A(f"  ds_write_b128 v6, v[{vO}:{vO+3}]")
    A(f"  ds_write_b64 v7, v[{vm}:{vl}]")
    A("  s_waitcnt lgkmcnt(0)")
    A("  s_barrier")
    stamp(3)
    A("  s_and_b32 s44, s2, 60")
    A("  s_lshl_b32 s45, s3, 6")
    A("  s_add_u32 s44, s44, s45")
    A("  s_lshl_b32 s44, s44, 10")
    A(f"  s_lshl_b32 s45, s{sSplit}, 8")
    A("  s_add_u32 s44, s44, s45")
    A(f"  s_add_u32 s44, s44, {WS_PG}")
    A("  v_lshrrev_b32 v9, 4, v0")
    A("  v_and_b32 v3, 15, v0")
    A("  v_lshlrev_b32 v4, 10, v9")
    A("  v_lshl_add_u32 v4, v3, 4, v4")
    A("  s_lshl_b32 s56, s3, 7")
    A(f"  s_add_u32 s56, s56, {L_O}")
    A("  v_lshl_add_u32 v11, v5, 3, s56")
    A("  v_lshrrev_b32 v3, 5, v0")
    A("  v_lshl_add_u32 v11, v3, 4, v11")
    A("  v_bfe_u32 v3, v0, 4, 1")
    A("  v_lshl_add_u32 v11, v3, 5, v11")
    A("  v_and_b32 v3, 7, v0")
    A("  v_lshl_add_u32 v11, v3, 1, v11")
    A("  v_bfe_u32 v3, v0, 2, 2")
    A("  v_lshl_add_u32 v10, v9, 3, v3")
    A("  v_mul_u32_u24 v10, 288, v10")
    A("  v_and_b32 v1, 3, v0")
    A("  v_lshl_add_u32 v10, v1, 3, v10")
    A("  s_mul_i32 s45, s3, 96")
    A("  v_add_u32 v10, s45, v10")
    A("  v_lshlrev_b32 v1, 7, v3")
    A("  v_lshl_add_u32 v1, v9, 4, v1")
    A(f"  v_add_u32 v1, {L_O}, v1")
    yaddr(6, 3)
    A("  s_lshl_b32 s45, s3, 14")
    A("  s_add_u32 s58, s58, s45")
    A("  s_mov_b32 s61, 0x40000")
    if pdelay: A(f"  s_sleep {pdelay}")
    if notail: A("  s_branch L_pdone")
    A("L_ppoll:")
    A("  buffer_load_dwordx4 v[24:27], v4, s[28:31], s44 offen sc1")
    A("  s_waitcnt vmcnt(0)")
    tagcheck([27], "L_pdone", "L_ppoll", psleep)
    if stamps: A("  s_mov_b32 s86, s61")
    stamp(10)
    A("  v_mov_b32 v28, v26")
    A("  v_mov_b32 v29, v26")
    A("  v_lshlrev_b32 v32, 16, v24")
    A("  v_and_b32 v33, 0xffff0000, v24")
    A("  v_permlane32_swap_b32 v28, v29")
    A("  v_max_f32 v28, v28, v29")
    A("  v_mov_b32 v29, v28")
    A("  v_lshlrev_b32 v34, 16, v25")
    A("  v_and_b32 v35, 0xffff0000, v25")
    A("  v_permlane16_swap_b32 v28, v29")
    A("  v_max_f32 v28, v28, v29")
    A("  v_sub_f32 v28, v26, v28")
    A("  v_exp_f32 v28, v28")
    A("  s_nop 0")
    A("  v_mov_b32 v29, v28")
    for r in range(4): A(f"  v_mul_f32 v{32+r}, v28, v{32+r}")
    A("  v_permlane32_swap_b32 v28, v29")
    A("  v_permlane32_swap_b32 v32, v33")
    A("  v_permlane32_swap_b32 v34, v35")
    A("  v_add_f32 v28, v28, v29")
    A("  v_mov_b32 v29, v28")
    A("  v_add_f32 v32, v32, v33")
    A("  v_add_f32 v34, v34, v35")
    A("  v_permlane16_swap_b32 v28, v29")
    A("  v_add_f32 v28, v28, v29")
    A("  v_permlane16_swap_b32 v32, v34")
    A("  v_rcp_f32 v28, v28")
    A("  v_add_f32 v32, v32, v34")
    A("  v_mul_f32 v32, v32, v28")
    A("  v_cvt_pk_bf16_f32 v32, v32, v32")
    A("  ds_write_b16 v11, v32")
    A("  s_waitcnt lgkmcnt(0)")
    A("  s_barrier")
    stamp(4)
    A("  s_cmp_eq_u32 s3, 3")
    A("  s_cbranch_scc1 L_fin5")
    A("  ds_read_b128 v[36:39], v1")
    for tl in range(3):
        A(f"  ds_read_b64_tr_b16 v[{44+4*tl}:{45+4*tl}], v10 offset:{tl*32}")
        A(f"  ds_read_b64_tr_b16 v[{46+4*tl}:{47+4*tl}], v10 offset:{tl*32+1152}")
    A("  ds_read_b128 v[40:43], v1 offset:64")
    for tl in range(3):
        A(f"  ds_read_b64_tr_b16 v[{56+4*tl}:{57+4*tl}], v10 offset:{tl*32+9216}")
        A(f"  ds_read_b64_tr_b16 v[{58+4*tl}:{59+4*tl}], v10 offset:{tl*32+9216+1152}")
    A("  s_waitcnt lgkmcnt(7)")
    for tl in (2, 1, 0):
        A(f"  v_mfma_f32_16x16x32_bf16 v[{24+4*tl}:{27+4*tl}], v[36:39], v[{44+4*tl}:{47+4*tl}], 0")
    A("  s_waitcnt lgkmcnt(0)")
    for tl in (2, 1, 0):
        A(f"  v_mfma_f32_16x16x32_bf16 v[{24+4*tl}:{27+4*tl}], v[40:43], v[{56+4*tl}:{59+4*tl}], v[{24+4*tl}:{27+4*tl}]")
    A("  s_nop 7")
    A("  v_mov_b32 v26, v32")
    A("  v_mov_b32 v25, v28")
    A(f"  v_mov_b32 v27, s{sTag}")
    A("  buffer_store_dwordx4 v[24:27], v6, s[28:31], s58 offen sc1")
    A("L_fin5:")
    stamp(5)
    A("L_fin:")
    if stamps:
        stamp(6)
        A("  s_mul_i32 s44, s2, 5")
        A("  s_add_u32 s44, s44, s3")
        A("  s_lshl_b32 s44, s44, 6")
        A(f"  s_add_u32 s44, s44, {WS_TS}")
        A("  s_mov_b32 s78, s61")
        A("  s_waitcnt lgkmcnt(0)")
        A("  s_mov_b64 exec, 1")
        for i in range(16):
            A(f"  v_mov_b32 v{64+i}, s{64+2*i}")
        A("  v_mov_b32 v3, 0")
        for j in range(4):
            A(f"  buffer_store_dwordx4 v[{64+4*j}:{67+4*j}], v3, s[28:31], s44 offen offset:{16*j}")
    A("L_end:")
    A("  s_endpgm")
    A('.section .rodata,"a"')
    A(".p2align 6")
    A(f".amdhsa_kernel {NAME}")
    A(f"  .amdhsa_next_free_vgpr {NV}")
    A("  .amdhsa_next_free_sgpr %d" % (96 if stamps else 64))
    A(f"  .amdhsa_accum_offset {(NV+3)//4*4}")
    A("  .amdhsa_group_segment_fixed_size 0")
    A("  .amdhsa_kernarg_size 64")
    A("  .amdhsa_user_sgpr_count 2")
    A("  .amdhsa_user_sgpr_kernarg_segment_ptr 1")
    A("  .amdhsa_system_sgpr_workgroup_id_x 1")
    A("  .amdhsa_float_denorm_mode_32 3")
    A(".end_amdhsa_kernel")
    return "\n".join(L) + "\n"

if __name__ == "__main__":
    import json
    cfg = json.loads(sys.argv[1]) if len(sys.argv) > 1 else {}
    sys.stdout.write(gen(**cfg))
```

```python
import math, struct, sys
from gen_full import f2u, SCALE, NAME, HEADER

WS_QG = 0x40000
WS_PG = 0x100000
WS_YG = 0x200000
WS_CNT = 0x300000
WS_TS = 0x1000000
WS_SIZE = 0x2000000

L_Q = 19456
L_FLAG = L_Q + 512
L_ML = L_FLAG + 16
L_O = L_Q + 640
L_P = L_O + 512
L_TOTAL = L_P + 4 * 1024

def gen(E=2, WIN0=8, hyb=26, stamps=False, kvflags="nt", wqflags="nt", woflags="nt",
        qdelay=0, pdelay=0, ydelay=0, psleep=0, prew=True, wo_early=False, pre0=0, skip="", xflags="", qpflags="sc1", tkwait=True, fine=False, notail=False, warm=False, dbg=False):
    U = 4
    D = 2 + E
    PAIRB = 2 * 1024 * 1024
    BLK = 4096
    STEP = 16 * BLK
    L = []
    A = L.append
    dpp = "row_mask:0xf bank_mask:0xf"
    vKoff, vVoff, vT = 1, 2, 3
    vQ, vM, vO = 4, 8, 12
    vm, vl, va, vb = 16, 17, 18, 19
    vS, vD, vB = 20, 24, 24
    vK = 40
    NV = max(vK + 32 * D, 132)
    sTag, sC, sPair, sSplit = 40, 41, 42, 43
    sSlot = 48
    def stamp(i):
        if stamps:
            A(f"  s_memrealtime s[{64+2*i}:{65+2*i}]")
    def tagcheck(regs, label_ok, label_loop, sleep):
        if len(regs) == 1:
            A(f"  v_cmp_eq_u32 vcc, s{sTag}, v{regs[0]}")
        else:
            A(f"  v_min3_u32 v22, v{regs[0]}, v{regs[1]}, v{regs[2]}")
            A(f"  v_max3_u32 v23, v{regs[0]}, v{regs[1]}, v{regs[2]}")
            i = 3
            while i < len(regs):
                if i + 1 < len(regs):
                    A(f"  v_min3_u32 v22, v22, v{regs[i]}, v{regs[i+1]}")
                    A(f"  v_max3_u32 v23, v23, v{regs[i]}, v{regs[i+1]}")
                    i += 2
                else:
                    A(f"  v_min_u32 v22, v22, v{regs[i]}")
                    A(f"  v_max_u32 v23, v23, v{regs[i]}")
                    i += 1
            A(f"  v_cmp_eq_u32 vcc, s{sTag}, v22")
            A(f"  v_cmp_eq_u32 s[62:63], s{sTag}, v23")
            A("  s_and_b64 vcc, vcc, s[62:63]")
        A("  s_cmp_eq_u64 vcc, -1")
        A(f"  s_cbranch_scc1 {label_ok}")
        if sleep: A(f"  s_sleep {sleep}")
        A("  s_sub_u32 s61, s61, 1")
        A(f"  s_cbranch_scc0 {label_loop}")
        A(f"{label_ok}:")
    def yaddr(vdst, vtmp):
        A("  s_mov_b32 s45, 196608")
        A(f"  v_mul_lo_u32 v{vdst}, v9, s45")
        A(f"  v_bfe_u32 v{vtmp}, v0, 2, 2")
        A(f"  v_lshl_add_u32 v{vdst}, v{vtmp}, 12, v{vdst}")
        A(f"  v_and_b32 v{vtmp}, 3, v0")
        A(f"  v_lshl_add_u32 v{vdst}, v{vtmp}, 4, v{vdst}")
        A("  s_lshr_b32 s45, s2, 6")
        A("  s_mul_i32 s58, s45, 49152")
        A("  s_and_b32 s45, s2, 63")
        A("  s_lshl_b32 s45, s45, 6")
        A("  s_add_u32 s58, s58, s45")
        A(f"  s_add_u32 s58, s58, {WS_YG}")
    for ln in HEADER.rstrip("\n").split("\n"): A(ln)
    A(f"; @launch grid=(256,1,1) block=(320,1,1) lds={L_TOTAL}")
    A('.amdgcn_target "amdgcn-amd-amdhsa--gfx950"')
    A(".text")
    A(f".globl {NAME}")
    A(".p2align 8")
    A(f".type {NAME},@function")
    A(f"{NAME}:")
    A("  s_cmp_ge_u32 s2, 256")
    A("  s_cbranch_scc1 L_end")
    A("  s_load_dwordx16 s[4:19], s[0:1], 0")
    stamp(0)
    A("  v_lshrrev_b32 v3, 6, v0")
    A("  v_and_b32 v0, 63, v0")
    A("  v_readfirstlane_b32 s3, v3")
    A("  v_lshlrev_b32 v2, 4, v0")
    A(f"  s_lshr_b32 s{sPair}, s2, 2")
    A(f"  s_and_b32 s{sSplit}, s2, 3")
    A(f"  s_mov_b32 s30, {WS_SIZE}")
    A("  s_mov_b32 s31, 0x20000")
    A(f"  s_mov_b32 s{sC}, {hex(f2u(SCALE))}")
    A("  s_mov_b32 s61, 0x40000")
    A("  s_cmp_lg_u32 s3, 0")
    A("  s_cbranch_scc1 L_attn")
    if warm:
        A("  s_getpc_b64 s[52:53]")
        A("L_pc:")
        A("  v_lshlrev_b32 v4, 7, v0")
        A("  v_min_u32 v4, L_end-L_pc, v4")
        A("  global_load_dword v131, v4, s[52:53]")
    A("  s_and_b32 s44, s2, 7")
    A("  s_lshl_b32 s44, s44, 5")
    A("  s_lshr_b32 s45, s2, 3")
    A("  s_add_u32 s44, s44, s45")
    A("  v_lshrrev_b32 v9, 4, v0")
    A("  v_bfe_u32 v4, v0, 2, 2")
    A("  v_lshl_add_u32 v4, v9, 3, v4")
    A("  v_and_b32 v8, 3, v0")
    A("  v_lshlrev_b32 v5, 4, v8")
    A("  v_lshl_add_u32 v6, v4, 13, v5")
    A("  v_mul_u32_u24 v7, 1152, v8")
    A("  v_lshl_add_u32 v7, v9, 4, v7")
    A("  s_mov_b32 s34, 4718592")
    A("  s_mov_b32 s35, 0x20000")
    A("  s_mov_b32 s38, 4608")
    A("  s_mov_b32 s39, 0x20000")
    A("  s_lshr_b32 s45, s44, 1")
    A("  s_lshl_b32 s45, s45, 6")
    A("  s_and_b32 s47, s44, 1")
    A("  s_mul_i32 s46, s47, 2359296")
    A("  s_add_u32 s45, s45, s46")
    A("  s_add_u32 s46, s45, 32768")
    A("  s_mul_i32 s56, s47, 576")
    A("  s_mov_b32 m0, 0")
    A(f"  v_mov_b32 v3, {L_FLAG}")
    A("  v_mov_b32 v12, 0")
    A("  v_mov_b32 v13, 0")
    A("  v_mov_b32 v14, 0")
    A("  v_mov_b32 v15, 0")
    A("  ds_write_b128 v3, v[12:15]")
    A("  s_waitcnt lgkmcnt(0)")
    stamp(8)
    A("  s_mov_b32 s36, s4")
    A("  s_mov_b32 s37, s5")
    A("  s_mov_b32 s32, s10")
    A("  s_mov_b32 s33, s11")
    A("  s_load_dword s60, s[18:19], 0")
    vX = 24; vW = 60
    for t in range(9):
        if "x" not in skip: A(f"  buffer_load_dwordx4 v[{vX+4*t}:{vX+4*t+3}], v7, s[36:39], s56 offen offset:{t*64} {xflags}")
    A("  s_mov_b32 s28, s18")
    A("  s_mov_b32 s29, s19")
    A("  s_and_b32 s56, s44, 15")
    A("  s_cmp_lg_u32 s56, 0")
    A("  s_cbranch_scc1 L_wq")
    A("  v_lshlrev_b32 v5, 12, v0")
    A("  s_lshl_b32 s56, s44, 4")
    A(f"  s_add_u32 s56, s56, {WS_CNT}")
    A("  s_mov_b64 exec, 15")
    A("  buffer_store_dword v12, v5, s[28:31], s56 offen sc1")
    A("  s_mov_b64 exec, -1")
    A("L_wq:")
    if "w" not in skip: A(f"  buffer_load_dwordx4 v6, s[32:35], s45 offen {wqflags} lds")
    A("  s_add_u32 m0, m0, 1024")
    A("  s_add_u32 s45, s45, 0x40000")
    if "w" not in skip: A(f"  buffer_load_dwordx4 v6, s[32:35], s46 offen {wqflags} lds")
    A("  s_add_u32 m0, m0, 1024")
    A("  s_add_u32 s46, s46, 0x40000")
    A("  s_cmp_lt_u32 m0, 18432")
    A("  s_cbranch_scc1 L_wq")
    A("  s_barrier")
    stamp(9)
    A("  v_lshrrev_b32 v10, 2, v0")
    A("  v_lshlrev_b32 v10, 6, v10")
    A("  v_lshl_add_u32 v10, v8, 3, v10")
    A("  v_lshlrev_b32 v4, 16, v8")
    A("  v_lshl_add_u32 v4, v9, 5, v4")
    A("  v_bfe_u32 v5, v0, 3, 1")
    A("  v_lshl_add_u32 v4, v5, 7, v4")
    A("  v_bfe_u32 v5, v0, 2, 1")
    A("  v_lshl_add_u32 v4, v5, 4, v4")
    A("  s_lshr_b32 s45, s44, 4")
    A("  s_lshl_b32 s45, s45, 12")
    A("  s_lshl_b32 s46, s47, 11")
    A("  s_add_u32 s45, s45, s46")
    A("  s_bfe_u32 s46, s44, 0x30001")
    A("  s_lshl_b32 s46, s46, 8")
    A("  s_add_u32 s45, s45, s46")
    A(f"  s_add_u32 s45, s45, {WS_QG}")
    A("  s_mov_b32 s56, 0xf0f0f0f0")
    A("  s_mov_b32 s57, 0xf0f0f0f0")
    A("  s_mov_b32 s58, 0xff00ff00")
    A("  s_mov_b32 s59, 0xff00ff00")
    A("  s_waitcnt lgkmcnt(0)")
    stamp(14)
    A(f"  s_mul_i32 s{sTag}, s60, 0x9e3779b1")
    A(f"  s_add_u32 s{sTag}, s{sTag}, 0x7f4a7c15")
    A(f"  v_mov_b32 v21, s{sTag}")
    A(f"  v_mov_b32 v23, s{sTag}")
    def qmfma(t):
        for j in range(2):
            r = vW + 8 * t + 4 * j
            c = "0" if t == 0 else f"v[{12+4*j}:{15+4*j}]"
            A(f"  v_mfma_f32_16x16x32_bf16 v[{12+4*j}:{15+4*j}], v[{r}:{r+3}], v[{vX+4*t}:{vX+4*t+3}], {c}")
    for t in range(9):
        A(f"  s_waitcnt vmcnt({16-2*t})")
        if t == 8: stamp(10)
        for j in range(2):
            r = vW + 8 * t + 4 * j
            A(f"  ds_read_b64_tr_b16 v[{r}:{r+1}], v10 offset:{t*2048 + j*32}")
            A(f"  ds_read_b64_tr_b16 v[{r+2}:{r+3}], v10 offset:{t*2048 + 1024 + j*32}")
        if t >= 1:
            A("  s_waitcnt lgkmcnt(4)")
            qmfma(t - 1)
    A("  s_waitcnt lgkmcnt(0)")
    qmfma(8)
    A("  s_nop 7")
    A("  v_cndmask_b32 v12, v12, v14, s[56:57]")
    A("  v_cndmask_b32 v13, v13, v15, s[56:57]")
    A("  v_cndmask_b32 v16, v16, v18, s[56:57]")
    A("  v_cndmask_b32 v17, v17, v19, s[56:57]")
    A("  v_cndmask_b32 v20, v12, v16, s[58:59]")
    A("  v_cndmask_b32 v22, v13, v17, s[58:59]")
    if "s" not in skip: A("  buffer_store_dwordx4 v[20:23], v4, s[28:31], s45 offen sc1")
    stamp(1)
    A(f"  s_lshl_b32 s45, s{sPair}, 12")
    A(f"  s_add_u32 s45, s45, {WS_QG}")
    A("  v_lshlrev_b32 v11, 2, v0")
    A(f"  v_add_u32 v11, {L_Q}, v11")
    if qdelay: A(f"  s_sleep {qdelay}")
    if "p" in skip: A("  s_branch L_qdone")
    A("L_qpoll:")
    for j in range(4):
        A(f"  buffer_load_dwordx4 v[{24+4*j}:{27+4*j}], v2, s[28:31], s45 offen offset:{j*1024} {qpflags}")
    A("  s_waitcnt vmcnt(0)")
    tagcheck([25, 27, 29, 31, 33, 35, 37, 39], "L_qdone", "L_qpoll", 0)
    A("  v_add_f32 v24, v24, v32")
    A("  v_add_f32 v26, v26, v34")
    A("  v_add_f32 v28, v28, v36")
    A("  v_add_f32 v30, v30, v38")
    A("  v_cvt_pk_bf16_f32 v24, v24, v26")
    A("  v_cvt_pk_bf16_f32 v28, v28, v30")
    A("  v_mov_b32 v20, 1")
    A("  ds_write_b32 v11, v24")
    A("  ds_write_b32 v11, v28 offset:256")
    A("  ds_write_b64 v3, v[20:21]")
    if stamps: A("  s_mov_b32 s86, s61")
    stamp(12)
    A("  v_bfe_u32 v4, v0, 3, 1")
    A("  v_lshlrev_b32 v8, 9, v4")
    A("  v_lshl_add_u32 v8, v9, 7, v8")
    A("  v_and_b32 v4, 7, v0")
    A("  v_lshl_add_u32 v8, v4, 4, v8")
    A("  s_lshl_b32 s46, s2, 10")
    A(f"  s_add_u32 s46, s46, {WS_PG}")
    if prew:
        yaddr(7, 4)
        A("  v_mov_b32 v15, s60")
        A("  buffer_store_dwordx4 v[12:15], v2, s[28:31], s46 offen sc1")
        for tg in range(3):
            A("  buffer_store_dwordx4 v[12:15], v7, s[28:31], s58 offen sc1")
            if tg < 2: A("  s_add_u32 s58, s58, 16384")
    A("  s_mov_b32 s32, s12")
    A("  s_mov_b32 s33, s13")
    A("  s_and_b32 s44, s2, 63")
    A("  s_mul_i32 s44, s44, 73728")
    A("  s_lshr_b32 s45, s2, 6")
    A("  s_mul_i32 s45, s45, 288")
    A("  s_add_u32 s44, s44, s45")
    A("  v_mul_u32_u24 v4, 57, v0")
    A("  v_lshrrev_b32 v4, 10, v4")
    A("  v_mul_u32_u24 v4, 864, v4")
    A("  v_add_u32 v6, v4, v2")
    A(f"  v_add_u32 v4, {L_P}, v2")
    A("  v_and_b32 v5, 8, v0")
    A(f"  v_add_u32 v5, {L_ML}, v5")
    A(f"  v_mov_b32 v23, s{sTag}")
    A("  s_lshl_b32 s47, s2, 12")
    A(f"  s_add_u32 s47, s47, {WS_YG}")
    A("  s_mov_b32 s36, s14")
    A("  s_mov_b32 s37, s15")
    A("  s_lshr_b32 s56, s2, 2")
    A("  s_mul_i32 s56, s56, 96")
    A("  s_and_b32 s57, s2, 3")
    A("  s_lshl_b32 s57, s57, 3")
    A("  s_add_u32 s56, s56, s57")
    A("  v_lshrrev_b32 v10, 5, v0")
    A("  v_bfe_u32 v11, v0, 4, 1")
    A("  v_lshl_add_u32 v10, v11, 1, v10")
    A("  v_lshlrev_b32 v10, 5, v10")
    A("  v_and_b32 v11, 3, v0")
    A("  v_lshl_add_u32 v10, v11, 1, v10")
    A("  s_mov_b32 s3, 4")
    A("  s_mov_b32 m0, 0")
    A("  s_waitcnt vmcnt(0)")
    if not wo_early:
        A("  s_mov_b32 s61, 0x100000")
        A("L_wait_end:")
        A("  s_sleep 4")
        A("  ds_read_b32 v24, v3 offset:8")
        A("  s_waitcnt lgkmcnt(0)")
        A("  v_readfirstlane_b32 s45, v24")
        A("  s_cmp_lg_u32 s45, 0")
        A("  s_cbranch_scc1 L_wo_go")
        A("  s_sub_u32 s61, s61, 1")
        A("  s_cbranch_scc0 L_wait_end")
        A("L_wo_go:")
    stamp(13)
    A("  s_mov_b32 exec_hi, 0x3fffff")
    A("L_wo:")
    if "o" not in skip: A(f"  buffer_load_dwordx4 v6, s[32:35], s44 offen {woflags} lds")
    A("  s_add_u32 m0, m0, 864")
    A("  s_add_u32 s44, s44, 3456")
    A("  s_cmp_lt_u32 m0, 18432")
    A("  s_cbranch_scc1 L_wo")
    A("  s_mov_b32 exec_hi, -1")
    A("  s_mov_b32 s61, 0x40000")
    A("  s_barrier")
    stamp(3)
    for w in range(4):
        A(f"  ds_read_b64 v[{40+2*w}:{41+2*w}], v5 offset:{w*16}")
    for w in range(4):
        A(f"  ds_read_b128 v[{24+4*w}:{27+4*w}], v4 offset:{w*1024}")
    A("  s_waitcnt lgkmcnt(4)")
    A("  v_max3_f32 v20, v40, v42, v44")
    A("  v_max_f32 v20, v20, v46")
    A(f"  v_mul_f32 v20, s{sC}, v20")
    for w in range(4): A(f"  v_fma_f32 v{40+2*w}, v{40+2*w}, s{sC}, -v20")
    for w in range(4): A(f"  v_exp_f32 v{40+2*w}, v{40+2*w}")
    A("  s_nop 0")
    A("  v_mul_f32 v22, v40, v41")
    for w in range(1, 4): A(f"  v_fmac_f32 v22, v{40+2*w}, v{41+2*w}")
    A("  v_rcp_f32 v21, v22")
    A("  v_log_f32 v22, v22")
    A("  s_waitcnt lgkmcnt(0)")
    for r in range(4): A(f"  v_mul_f32 v{24+r}, v40, v{24+r}")
    for w in range(1, 4):
        for r in range(4): A(f"  v_fmac_f32 v{24+r}, v{40+2*w}, v{24+4*w+r}")
    A("  v_add_f32 v22, v22, v20")
    for r in range(4): A(f"  v_mul_f32 v{24+r}, v21, v{24+r}")
    A("  v_cvt_pk_bf16_f32 v20, v24, v25")
    A("  v_cvt_pk_bf16_f32 v21, v26, v27")
    A("  buffer_store_dwordx4 v[20:23], v8, s[28:31], s46 offen sc1")
    stamp(15)
    A("  s_waitcnt vmcnt(1)")
    stamp(2)
    A("  s_barrier")
    stamp(4)
    stamp(5)
    A("  s_cmp_ge_u32 s2, 192")
    A("  s_cbranch_scc1 L_fin")
    if ydelay: A(f"  s_sleep {ydelay}")
    if notail: A("  s_branch L_ydone")
    A("L_ypoll:")
    for j in range(4):
        A(f"  buffer_load_dwordx4 v[{32+4*j}:{35+4*j}], v2, s[28:31], s47 offen offset:{j*1024} sc1")
    A("  s_waitcnt vmcnt(0)")
    tagcheck([35, 39, 43, 47], "L_ydone", "L_ypoll", psleep)
    for c in range(3):
        A(f"  v_add_f32 v{32+c}, v{32+c}, v{36+c}")
        A(f"  v_add_f32 v{40+c}, v{40+c}, v{44+c}")
    A("  v_add_f32 v34, v34, v42")
    A("  v_add_f32 v32, v32, v40")
    A("  v_add_f32 v33, v33, v41")
    A("  v_mov_b32 v35, v34")
    A("  s_nop 0")
    A("  v_permlane32_swap_b32 v32, v33")
    A("  v_permlane32_swap_b32 v34, v35")
    A("  v_add_f32 v32, v32, v33")
    A("  v_add_f32 v34, v34, v35")
    A("  s_nop 1")
    A("  v_permlane16_swap_b32 v32, v34")
    A("  v_add_f32 v32, v32, v34")
    A("  s_nop 1")
    A(f"  v_add_f32_dpp v32, v32, v32 row_ror:8 {dpp}")
    A("  s_nop 1")
    A(f"  v_add_f32_dpp v32, v32, v32 row_ror:4 {dpp}")
    A("  s_mov_b32 exec_lo, 0x000f000f")
    A("  s_mov_b32 exec_hi, 0x0000000f")
    A("  v_cvt_pk_bf16_f32 v32, v32, v32")
    A("  buffer_store_short v32, v10, s[36:39], s56 offen")
    A("  s_cmp_lg_u32 s2, 0")
    A("  s_cbranch_scc1 L_fin")
    A("  s_mov_b64 exec, 1")
    A("  buffer_store_dword v47, v2, s[28:31], 0 offen sc1")
    A("  s_branch L_fin")
    A("L_attn:")
    A("  s_sub_u32 s3, s3, 1")
    A("  v_bfe_u32 v3, v0, 2, 2")
    A("  v_lshlrev_b32 v1, 8, v3")
    A("  v_lshrrev_b32 v3, 4, v0")
    A("  v_lshl_add_u32 v1, v3, 6, v1")
    A("  v_and_b32 v3, 3, v0")
    A("  v_lshl_add_u32 v1, v3, 4, v1")
    A(f"  s_lshl_b32 s44, s{sPair}, 21")
    A(f"  s_lshl_b32 s45, s{sSplit}, 2")
    A("  s_add_u32 s45, s45, s3")
    A("  s_lshl_b32 s45, s45, 12")
    A(f"  s_mov_b32 s22, {PAIRB}")
    A("  s_mov_b32 s23, 0x20000")
    A(f"  s_mov_b32 s26, {PAIRB}")
    A("  s_mov_b32 s27, 0x20000")
    for d in range(D):
        A(f"  s_add_u32 s{sSlot+d}, s45, {d*STEP}")
    A("  s_waitcnt lgkmcnt(0)")
    A("  s_add_u32 s20, s6, s44")
    A("  s_addc_u32 s21, s7, 0")
    A("  s_add_u32 s24, s8, s44")
    A("  s_addc_u32 s25, s9, 0")
    def reg(kind, d, t):
        return vK + 32 * d + (0 if kind == "K" else 16) + 4 * t
    def loads(kind, d, t):
        srd = "s[20:23]" if kind == "K" else "s[24:27]"
        off = vKoff if kind == "K" else vVoff
        r = reg(kind, d, t)
        A(f"  buffer_load_dwordx4 v[{r}:{r+3}], v{off}, {srd}, s{sSlot+d} offen offset:{t*1024} {kvflags}")
    setup = []
    S = setup.append
    S("  s_mov_b32 s28, s18")
    S("  s_mov_b32 s29, s19")
    S(f"  s_lshl_b32 s44, s{sPair}, 8")
    S(f"  s_add_u32 s44, s44, {WS_CNT}")
    S("  s_add_u32 s46, s18, s44")
    S("  s_addc_u32 s47, s19, 0")
    S(f"  s_add_u32 s59, s45, {D*STEP}")
    S("  s_mov_b32 s57, 1")
    S("  v_and_b32 v3, 1, v0")
    S("  v_mov_b32 v17, 0xffff")
    S("  v_lshlrev_b32 v3, 4, v3")
    S("  v_lshlrev_b32 v17, v3, v17")
    S("  v_bfe_u32 v3, v0, 1, 2")
    for r in range(4):
        S(f"  v_cmp_eq_u32 vcc, {r}, v3")
        S(f"  v_mov_b32 v{vO+r}, 0")
        S("  s_nop 0")
        S(f"  v_cndmask_b32 v{vM+r}, 0, v17, vcc")
    S(f"  v_mov_b32 v{vm}, 0xff800000")
    S(f"  v_mov_b32 v{vl}, 0")
    S("  v_bfe_u32 v3, v0, 3, 1")
    S("  v_lshlrev_b32 v18, 8, v3")
    S("  v_lshrrev_b32 v3, 4, v0")
    S("  v_lshl_add_u32 v18, v3, 6, v18")
    S("  v_and_b32 v3, 3, v0")
    S("  v_lshl_add_u32 v18, v3, 4, v18")
    S(f"  v_add_u32 v18, {L_Q}, v18")
    S(f"  v_mov_b32 v19, {L_FLAG}")
    n = 0
    for d in range(D):
        for kind in "KV":
            for t in range(U):
                if n == pre0:
                    A("  s_barrier")
                    stamp(8)
                if n == min(WIN0, 8 * D - 1):
                    for ln in setup: A(ln)
                if n >= WIN0: A(f"  s_waitcnt vmcnt({WIN0-1})")
                loads(kind, d, t)
                n += 1
    stamp(9)
    A("  s_mov_b32 s61, 0x400000")
    A("L_qwait:")
    A("  ds_read_b64 v[20:21], v19")
    A(f"  ds_read_b128 v[{vQ}:{vQ+3}], v18")
    A("  s_waitcnt lgkmcnt(0)")
    A("  v_readfirstlane_b32 s44, v20")
    A(f"  v_readfirstlane_b32 s{sTag}, v21")
    A("  s_cmp_lg_u32 s44, 0")
    A("  s_cbranch_scc1 L_qgo")
    A("  s_sleep 1")
    A("  s_sub_u32 s61, s61, 1")
    A("  s_cbranch_scc0 L_qwait")
    A("L_qgo:")
    stamp(1)
    STATIC = hyb * STEP
    def body(d, ring):
        for t in range(U):
            r = reg("K", d, t)
            if ring: A(f"  s_waitcnt vmcnt({15 if fine else 15-t})")
            A(f"  v_mfma_f32_16x16x32_bf16 v[{vD+4*t}:{vD+4*t+3}], v[{r}:{r+3}], v[{vQ}:{vQ+3}], 0")
            if ring and fine:
                A(f"  s_cbranch_scc1 L_sk{d}_{t}")
                loads("K", d, t)
                A(f"L_sk{d}_{t}:")
        if ring and not fine:
            A(f"  s_cbranch_scc1 L_sk{d}")
            for t in range(U): loads("K", d, t)
            A(f"L_sk{d}:")
        A("  s_nop 4")
        for j in range(4):
            for t in range(U):
                if j == 0:
                    A(f"  v_mov_b32_dpp v{vS+t}, v{vD+4*t} quad_perm:[0,0,0,0] {dpp}")
                else:
                    A(f"  v_add_f32_dpp v{vS+t}, v{vD+4*t+j}, v{vS+t} quad_perm:[{j},{j},{j},{j}] {dpp}")
        A(f"  v_max3_f32 v{va}, v{vm}, v{vS}, v{vS+1}")
        A(f"  v_max3_f32 v{va}, v{va}, v{vS+2}, v{vS+3}")
        A(f"  v_mov_b32 v{vb}, v{va}")
        A("  s_nop 1")
        A(f"  v_permlane32_swap_b32 v{va}, v{vb}")
        A(f"  v_max_f32 v{va}, v{va}, v{vb}")
        A(f"  v_mov_b32 v{vb}, v{va}")
        A("  s_nop 1")
        A(f"  v_permlane16_swap_b32 v{va}, v{vb}")
        A(f"  v_max_f32 v{va}, v{va}, v{vb}")
        A(f"  v_sub_f32 v{vb}, v{vm}, v{va}")
        A(f"  v_mul_f32 v{vb}, s{sC}, v{vb}")
        A(f"  v_exp_f32 v{vb}, v{vb}")
        A(f"  v_mov_b32 v{vm}, v{va}")
        A(f"  v_mul_f32 v{va}, s{sC}, v{va}")
        for t in range(U):
            A(f"  v_fma_f32 v{vS+t}, v{vS+t}, s{sC}, -v{va}")
        for t in range(U):
            A(f"  v_exp_f32 v{vS+t}, v{vS+t}")
        for r in range(4):
            A(f"  v_mul_f32 v{vO+r}, v{vO+r}, v{vb}")
        A(f"  v_mul_f32 v{vl}, v{vl}, v{vb}")
        for t in range(U):
            A(f"  v_cvt_pk_bf16_f32 v{vT}, v{vS+t}, v{vS+t}")
            for j in range(4):
                A(f"  v_and_b32 v{vB+4*t+j}, v{vT}, v{vM+j}")
            A(f"  v_add_f32 v{vl}, v{vl}, v{vS+t}")
        if ring:
            A(f"  s_cbranch_scc1 L_dw{d}")
            A(f"L_dr{d}:")
        for t in range(U):
            r = reg("V", d, t)
            if ring: A(f"  s_waitcnt vmcnt({15 if fine else 15-t})")
            A(f"  v_mfma_f32_16x16x32_bf16 v[{vO}:{vO+3}], v[{r}:{r+3}], v[{vB+4*t}:{vB+4*t+3}], v[{vO}:{vO+3}]")
            if ring and fine and t < 3:
                A(f"  s_cbranch_scc1 L_sv{d}_{t}")
                loads("V", d, t)
                A(f"L_sv{d}_{t}:")
        if ring:
            A(f"  s_cbranch_scc1 L_sv{d}")
            for t in range(3 if fine else 0, U): loads("V", d, t)
    A("L_loop:")
    for d in range(2):
        A(f"  s_cmp_lt_u32 s59, {STATIC}")
        A(f"  s_cbranch_scc0 L_dy{d}")
        A(f"  s_mov_b32 s{sSlot+d}, s59")
        A(f"  s_add_u32 s59, s59, {STEP}")
        A(f"  s_cmp_ge_u32 s59, {STATIC}")
        A(f"  s_cbranch_scc1 L_tf{d}")
        A(f"L_go{d}:")
        body(d, True)
    A("  s_cmp_eq_u32 s57, 0")
    A("  s_cbranch_scc1 L_loop")
    A("  s_mov_b32 s57, 0")
    stamp(13)
    A("  s_waitcnt vmcnt(16)")
    for e in range(E):
        body(2 + e, False)
    stamp(14)
    A("  s_branch L_loop")
    for d in range(2):
        A(f"L_dy{d}:")
        if tkwait: A("  s_waitcnt vmcnt(15)")
        A("  s_waitcnt lgkmcnt(0)")
        A(f"  s_add_u32 s{sSlot+d}, s60, {STATIC}")
        A(f"  s_cmp_ge_u32 s{sSlot+d}, {PAIRB}")
        A(f"  s_cbranch_scc0 L_tk{d}")
        A(f"  v_mov_b32 v{va}, {L_FLAG}")
        A(f"  ds_write_b32 v{va}, v{va} offset:8")
        if fine: A("  s_waitcnt vmcnt(12)")
        A(f"  s_branch L_go{d}")
        A(f"L_tf{d}:")
        stamp(12)
        A(f"L_tk{d}:")
        A(f"  s_mov_b32 s60, {BLK}")
        A("  s_atomic_add s60, s[46:47], 0 glc")
        A("  s_cmp_eq_u32 s59, 0")
        A(f"  s_branch L_go{d}")
        A(f"L_dw{d}:")
        A("  s_waitcnt vmcnt(8)")
        A(f"  s_cmp_lt_u32 s{sSlot+1-d}, {PAIRB}")
        A(f"  s_cbranch_scc1 L_dr{d}")
        A("  s_waitcnt vmcnt(0)")
        A("  s_cmp_eq_u32 s59, s59")
        A(f"  s_branch L_dr{d}")
        A(f"L_sv{d}:")
        A(f"  s_cmp_ge_u32 s{sSlot+1-d}, {PAIRB}")
        A("  s_cbranch_scc1 L_done")
        A(f"  s_mov_b32 s{sSlot+1-d}, {PAIRB}")
        A("  s_waitcnt vmcnt(4)")
        A("  s_cmp_eq_u32 s59, s59")
        A(f"  s_branch L_go{1-d}")
    A("L_done:")
    stamp(2)
    A(f"  v_mov_b32 v{vb}, v{vl}")
    A("  s_lshl_b32 s44, s3, 10")
    A("  s_lshl_b32 s45, s3, 4")
    A(f"  v_permlane32_swap_b32 v{vl}, v{vb}")
    A(f"  v_add_f32 v{vl}, v{vl}, v{vb}")
    A(f"  v_mov_b32 v{vb}, v{vl}")
    A(f"  s_add_u32 s44, s44, {L_P}")
    A(f"  s_add_u32 s45, s45, {L_ML}")
    A(f"  v_permlane16_swap_b32 v{vl}, v{vb}")
    A(f"  v_add_f32 v{vl}, v{vl}, v{vb}")
    A("  v_and_b32 v5, 8, v0")
    A("  v_add_u32 v6, s44, v2")
    A("  v_add_u32 v7, s45, v5")
    A(f"  ds_write_b128 v6, v[{vO}:{vO+3}]")
    A(f"  ds_write_b64 v7, v[{vm}:{vl}]")
    A("  s_waitcnt lgkmcnt(0)")
    A("  s_barrier")
    stamp(3)
    A("  s_and_b32 s44, s2, 60")
    A("  s_lshl_b32 s45, s3, 6")
    A("  s_add_u32 s44, s44, s45")
    A("  s_lshl_b32 s44, s44, 10")
    A(f"  s_lshl_b32 s45, s{sSplit}, 8")
    A("  s_add_u32 s44, s44, s45")
    A(f"  s_add_u32 s44, s44, {WS_PG}")
    A("  v_lshrrev_b32 v9, 4, v0")
    A("  v_and_b32 v3, 15, v0")
    A("  v_lshlrev_b32 v4, 10, v9")
    A("  v_lshl_add_u32 v4, v3, 4, v4")
    A("  s_lshl_b32 s56, s3, 7")
    A(f"  s_add_u32 s56, s56, {L_O}")
    A("  v_lshl_add_u32 v11, v5, 3, s56")
    A("  v_lshrrev_b32 v3, 5, v0")
    A("  v_lshl_add_u32 v11, v3, 4, v11")
    A("  v_bfe_u32 v3, v0, 4, 1")
    A("  v_lshl_add_u32 v11, v3, 5, v11")
    A("  v_and_b32 v3, 7, v0")
    A("  v_lshl_add_u32 v11, v3, 1, v11")
    A("  v_bfe_u32 v3, v0, 2, 2")
    A("  v_lshl_add_u32 v10, v9, 3, v3")
    A("  v_mul_u32_u24 v10, 288, v10")
    A("  v_and_b32 v1, 3, v0")
    A("  v_lshl_add_u32 v10, v1, 3, v10")
    A("  s_mul_i32 s45, s3, 96")
    A("  v_add_u32 v10, s45, v10")
    A("  v_lshlrev_b32 v1, 7, v3")
    A("  v_lshl_add_u32 v1, v9, 4, v1")
    A(f"  v_add_u32 v1, {L_O}, v1")
    yaddr(6, 3)
    A("  s_lshl_b32 s45, s3, 14")
    A("  s_add_u32 s58, s58, s45")
    A("  s_mov_b32 s61, 0x40000")
    if pdelay: A(f"  s_sleep {pdelay}")
    if notail: A("  s_branch L_pdone")
    A("L_ppoll:")
    A("  buffer_load_dwordx4 v[24:27], v4, s[28:31], s44 offen sc1")
    A("  s_waitcnt vmcnt(0)")
    tagcheck([27], "L_pdone", "L_ppoll", psleep)
    if stamps: A("  s_mov_b32 s86, s61")
    stamp(10)
    A("  v_mov_b32 v28, v26")
    A("  v_mov_b32 v29, v26")
    A("  v_lshlrev_b32 v32, 16, v24")
    A("  v_and_b32 v33, 0xffff0000, v24")
    A("  v_permlane32_swap_b32 v28, v29")
    A("  v_max_f32 v28, v28, v29")
    A("  v_mov_b32 v29, v28")
    A("  v_lshlrev_b32 v34, 16, v25")
    A("  v_and_b32 v35, 0xffff0000, v25")
    A("  v_permlane16_swap_b32 v28, v29")
    A("  v_max_f32 v28, v28, v29")
    A("  v_sub_f32 v28, v26, v28")
    A("  v_exp_f32 v28, v28")
    A("  s_nop 0")
    A("  v_mov_b32 v29, v28")
    for r in range(4): A(f"  v_mul_f32 v{32+r}, v28, v{32+r}")
    A("  v_permlane32_swap_b32 v28, v29")
    A("  v_permlane32_swap_b32 v32, v33")
    A("  v_permlane32_swap_b32 v34, v35")
    A("  v_add_f32 v28, v28, v29")
    A("  v_mov_b32 v29, v28")
    A("  v_add_f32 v32, v32, v33")
    A("  v_add_f32 v34, v34, v35")
    A("  v_permlane16_swap_b32 v28, v29")
    A("  v_add_f32 v28, v28, v29")
    A("  v_permlane16_swap_b32 v32, v34")
    A("  v_rcp_f32 v28, v28")
    A("  v_add_f32 v32, v32, v34")
    A("  v_mul_f32 v32, v32, v28")
    A("  v_cvt_pk_bf16_f32 v32, v32, v32")
    A("  ds_write_b16 v11, v32")
    A("  s_waitcnt lgkmcnt(0)")
    A("  s_barrier")
    stamp(4)
    A("  s_cmp_eq_u32 s3, 3")
    A("  s_cbranch_scc1 L_fin5")
    A("  ds_read_b128 v[36:39], v1")
    for tl in range(3):
        A(f"  ds_read_b64_tr_b16 v[{44+4*tl}:{45+4*tl}], v10 offset:{tl*32}")
        A(f"  ds_read_b64_tr_b16 v[{46+4*tl}:{47+4*tl}], v10 offset:{tl*32+1152}")
    A("  ds_read_b128 v[40:43], v1 offset:64")
    for tl in range(3):
        A(f"  ds_read_b64_tr_b16 v[{56+4*tl}:{57+4*tl}], v10 offset:{tl*32+9216}")
        A(f"  ds_read_b64_tr_b16 v[{58+4*tl}:{59+4*tl}], v10 offset:{tl*32+9216+1152}")
    A("  s_waitcnt lgkmcnt(7)")
    for tl in (2, 1, 0):
        A(f"  v_mfma_f32_16x16x32_bf16 v[{24+4*tl}:{27+4*tl}], v[36:39], v[{44+4*tl}:{47+4*tl}], 0")
    A("  s_waitcnt lgkmcnt(0)")
    for tl in (2, 1, 0):
        A(f"  v_mfma_f32_16x16x32_bf16 v[{24+4*tl}:{27+4*tl}], v[40:43], v[{56+4*tl}:{59+4*tl}], v[{24+4*tl}:{27+4*tl}]")
    A("  s_nop 7")
    A("  v_mov_b32 v26, v32")
    A("  v_mov_b32 v25, v28")
    A(f"  v_mov_b32 v27, s{sTag}")
    A("  buffer_store_dwordx4 v[24:27], v6, s[28:31], s58 offen sc1")
    A("L_fin5:")
    stamp(5)
    A("L_fin:")
    if stamps:
        stamp(6)
        A("  s_mul_i32 s44, s2, 5")
        A("  s_add_u32 s44, s44, s3")
        A("  s_lshl_b32 s44, s44, 6")
        A(f"  s_add_u32 s44, s44, {WS_TS}")
        A("  s_mov_b32 s78, s61")
        A("  s_waitcnt lgkmcnt(0)")
        A("  s_mov_b64 exec, 1")
        for i in range(16):
            A(f"  v_mov_b32 v{64+i}, s{64+2*i}")
        A("  v_mov_b32 v3, 0")
        for j in range(4):
            A(f"  buffer_store_dwordx4 v[{64+4*j}:{67+4*j}], v3, s[28:31], s44 offen offset:{16*j}")
    if dbg:
        A("  s_mov_b32 s32, s16")
        A("  s_mov_b32 s33, s17")
        A("  s_mov_b32 s34, 256")
        A("  s_mov_b32 s35, 0x20000")
        A("  v_not_b32 v80, v64")
        A("  buffer_atomic_umax v80, v3, s[32:35], 0 offen offset:0")
        A("  buffer_atomic_umax v64, v3, s[32:35], 0 offen offset:4")
        A("  buffer_atomic_umax v70, v3, s[32:35], 0 offen offset:60")
        A("  s_cmp_eq_u32 s3, 4")
        A("  s_cbranch_scc1 L_dbgh")
        for slot, st in ((2, 8), (3, 9), (4, 1), (5, 13), (6, 14), (7, 2), (8, 10), (9, 5)):
            A(f"  buffer_atomic_umax v{64+st}, v3, s[32:35], 0 offen offset:{4*slot}")
        A("  s_branch L_end")
        A("L_dbgh:")
        for slot, st in ((10, 8), (11, 10), (12, 12), (13, 13), (14, 15)):
            A(f"  buffer_atomic_umax v{64+st}, v3, s[32:35], 0 offen offset:{4*slot}")
    A("L_end:")
    A("  s_endpgm")
    A('.section .rodata,"a"')
    A(".p2align 6")
    A(f".amdhsa_kernel {NAME}")
    A(f"  .amdhsa_next_free_vgpr {NV}")
    A("  .amdhsa_next_free_sgpr %d" % (96 if stamps else 64))
    A(f"  .amdhsa_accum_offset {(NV+3)//4*4}")
    A("  .amdhsa_group_segment_fixed_size 0")
    A("  .amdhsa_kernarg_size 64")
    A("  .amdhsa_user_sgpr_count 2")
    A("  .amdhsa_user_sgpr_kernarg_segment_ptr 1")
    A("  .amdhsa_system_sgpr_workgroup_id_x 1")
    A("  .amdhsa_float_denorm_mode_32 3")
    A(".end_amdhsa_kernel")
    return "\n".join(L) + "\n"

if __name__ == "__main__":
    import json
    cfg = json.loads(sys.argv[1]) if len(sys.argv) > 1 else {}
    sys.stdout.write(gen(**cfg))
```

```python
import math, struct, sys
from gen_full import f2u, SCALE, NAME, HEADER

WS_QG = 0x40000
WS_PG = 0x100000
WS_YG = 0x200000
WS_CNT = 0x300000
WS_TS = 0x1000000
WS_SIZE = 0x2000000

L_Q = 19456
L_FLAG = L_Q + 512
L_ML = L_FLAG + 16
L_O = L_Q + 640
L_P = L_O + 512
L_TOTAL = L_P + 4 * 1024

def gen(E=2, WIN0=8, hyb=26, stamps=False, kvflags="nt", wqflags="nt", woflags="nt",
        qdelay=0, pdelay=0, ydelay=0, psleep=0, prew=True, wo_early=False, pre0=0, skip="", xflags="", qpflags="sc1", tkwait=True, fine=False, notail=False, warm=False, dbg=False, spin=None):
    U = 4
    D = 2 + E
    PAIRB = 2 * 1024 * 1024
    BLK = 4096
    STEP = 16 * BLK
    L = []
    A = L.append
    dpp = "row_mask:0xf bank_mask:0xf"
    vKoff, vVoff, vT = 1, 2, 3
    vQ, vM, vO = 4, 8, 12
    vm, vl, va, vb = 16, 17, 18, 19
    vS, vD, vB = 20, 24, 24
    vK = 40
    NV = max(vK + 32 * D, 132)
    sTag, sC, sPair, sSplit = 40, 41, 42, 43
    sSlot = 48
    def stamp(i):
        if stamps:
            A(f"  s_memrealtime s[{64+2*i}:{65+2*i}]")
    def tagcheck(regs, label_ok, label_loop, sleep):
        if len(regs) == 1:
            A(f"  v_cmp_eq_u32 vcc, s{sTag}, v{regs[0]}")
        else:
            A(f"  v_min3_u32 v22, v{regs[0]}, v{regs[1]}, v{regs[2]}")
            A(f"  v_max3_u32 v23, v{regs[0]}, v{regs[1]}, v{regs[2]}")
            i = 3
            while i < len(regs):
                if i + 1 < len(regs):
                    A(f"  v_min3_u32 v22, v22, v{regs[i]}, v{regs[i+1]}")
                    A(f"  v_max3_u32 v23, v23, v{regs[i]}, v{regs[i+1]}")
                    i += 2
                else:
                    A(f"  v_min_u32 v22, v22, v{regs[i]}")
                    A(f"  v_max_u32 v23, v23, v{regs[i]}")
                    i += 1
            A(f"  v_cmp_eq_u32 vcc, s{sTag}, v22")
            A(f"  v_cmp_eq_u32 s[62:63], s{sTag}, v23")
            A("  s_and_b64 vcc, vcc, s[62:63]")
        A("  s_cmp_eq_u64 vcc, -1")
        A(f"  s_cbranch_scc1 {label_ok}")
        if sleep: A(f"  s_sleep {sleep}")
        A("  s_sub_u32 s61, s61, 1")
        A(f"  s_cbranch_scc0 {label_loop}")
        A(f"{label_ok}:")
    def yaddr(vdst, vtmp):
        A("  s_mov_b32 s45, 196608")
        A(f"  v_mul_lo_u32 v{vdst}, v9, s45")
        A(f"  v_bfe_u32 v{vtmp}, v0, 2, 2")
        A(f"  v_lshl_add_u32 v{vdst}, v{vtmp}, 12, v{vdst}")
        A(f"  v_and_b32 v{vtmp}, 3, v0")
        A(f"  v_lshl_add_u32 v{vdst}, v{vtmp}, 4, v{vdst}")
        A("  s_lshr_b32 s45, s2, 6")
        A("  s_mul_i32 s58, s45, 49152")
        A("  s_and_b32 s45, s2, 63")
        A("  s_lshl_b32 s45, s45, 6")
        A("  s_add_u32 s58, s58, s45")
        A(f"  s_add_u32 s58, s58, {WS_YG}")
    for ln in HEADER.rstrip("\n").split("\n"): A(ln)
    A(f"; @launch grid=(256,1,1) block=(320,1,1) lds={L_TOTAL}")
    A('.amdgcn_target "amdgcn-amd-amdhsa--gfx950"')
    A(".text")
    A(f".globl {NAME}")
    A(".p2align 8")
    A(f".type {NAME},@function")
    A(f"{NAME}:")
    A("  s_cmp_ge_u32 s2, 256")
    A("  s_cbranch_scc1 L_end")
    A("  s_load_dwordx16 s[4:19], s[0:1], 0")
    stamp(0)
    A("  v_lshrrev_b32 v3, 6, v0")
    A("  v_and_b32 v0, 63, v0")
    A("  v_readfirstlane_b32 s3, v3")
    A("  v_lshlrev_b32 v2, 4, v0")
    A(f"  s_lshr_b32 s{sPair}, s2, 2")
    A(f"  s_and_b32 s{sSplit}, s2, 3")
    A(f"  s_mov_b32 s30, {WS_SIZE}")
    A("  s_mov_b32 s31, 0x20000")
    A(f"  s_mov_b32 s{sC}, {hex(f2u(SCALE))}")
    A("  s_mov_b32 s61, 0x40000")
    A("  s_cmp_lg_u32 s3, 0")
    A("  s_cbranch_scc1 L_attn")
    if warm:
        A("  s_getpc_b64 s[52:53]")
        A("L_pc:")
        A("  v_lshlrev_b32 v4, 7, v0")
        A("  v_min_u32 v4, L_end-L_pc, v4")
        A("  global_load_dword v131, v4, s[52:53]")
    A("  s_and_b32 s44, s2, 7")
    A("  s_lshl_b32 s44, s44, 5")
    A("  s_lshr_b32 s45, s2, 3")
    A("  s_add_u32 s44, s44, s45")
    A("  v_lshrrev_b32 v9, 4, v0")
    A("  v_bfe_u32 v4, v0, 2, 2")
    A("  v_lshl_add_u32 v4, v9, 3, v4")
    A("  v_and_b32 v8, 3, v0")
    A("  v_lshlrev_b32 v5, 4, v8")
    A("  v_lshl_add_u32 v6, v4, 13, v5")
    A("  v_mul_u32_u24 v7, 1152, v8")
    A("  v_lshl_add_u32 v7, v9, 4, v7")
    A("  s_mov_b32 s34, 4718592")
    A("  s_mov_b32 s35, 0x20000")
    A("  s_mov_b32 s38, 4608")
    A("  s_mov_b32 s39, 0x20000")
    A("  s_lshr_b32 s45, s44, 1")
    A("  s_lshl_b32 s45, s45, 6")
    A("  s_and_b32 s47, s44, 1")
    A("  s_mul_i32 s46, s47, 2359296")
    A("  s_add_u32 s45, s45, s46")
    A("  s_add_u32 s46, s45, 32768")
    A("  s_mul_i32 s56, s47, 576")
    A("  s_mov_b32 m0, 0")
    A(f"  v_mov_b32 v3, {L_FLAG}")
    A("  v_mov_b32 v12, 0")
    A("  v_mov_b32 v13, 0")
    A("  v_mov_b32 v14, 0")
    A("  v_mov_b32 v15, 0")
    A("  ds_write_b128 v3, v[12:15]")
    A("  s_waitcnt lgkmcnt(0)")
    stamp(8)
    A("  s_mov_b32 s36, s4")
    A("  s_mov_b32 s37, s5")
    A("  s_mov_b32 s32, s10")
    A("  s_mov_b32 s33, s11")
    A("  s_load_dword s60, s[18:19], 0")
    vX = 24; vW = 60
    for t in range(9):
        if "x" not in skip: A(f"  buffer_load_dwordx4 v[{vX+4*t}:{vX+4*t+3}], v7, s[36:39], s56 offen offset:{t*64} {xflags}")
    A("  s_mov_b32 s28, s18")
    A("  s_mov_b32 s29, s19")
    A("  s_and_b32 s56, s44, 15")
    A("  s_cmp_lg_u32 s56, 0")
    A("  s_cbranch_scc1 L_wq")
    A("  v_lshlrev_b32 v5, 12, v0")
    A("  s_lshl_b32 s56, s44, 4")
    A(f"  s_add_u32 s56, s56, {WS_CNT}")
    A("  s_mov_b64 exec, 15")
    A("  buffer_store_dword v12, v5, s[28:31], s56 offen sc1")
    A("  s_mov_b64 exec, -1")
    A("L_wq:")
    if "w" not in skip: A(f"  buffer_load_dwordx4 v6, s[32:35], s45 offen {wqflags} lds")
    A("  s_add_u32 m0, m0, 1024")
    A("  s_add_u32 s45, s45, 0x40000")
    if "w" not in skip: A(f"  buffer_load_dwordx4 v6, s[32:35], s46 offen {wqflags} lds")
    A("  s_add_u32 m0, m0, 1024")
    A("  s_add_u32 s46, s46, 0x40000")
    A("  s_cmp_lt_u32 m0, 18432")
    A("  s_cbranch_scc1 L_wq")
    A("  s_barrier")
    stamp(9)
    A("  v_lshrrev_b32 v10, 2, v0")
    A("  v_lshlrev_b32 v10, 6, v10")
    A("  v_lshl_add_u32 v10, v8, 3, v10")
    A("  v_lshlrev_b32 v4, 16, v8")
    A("  v_lshl_add_u32 v4, v9, 5, v4")
    A("  v_bfe_u32 v5, v0, 3, 1")
    A("  v_lshl_add_u32 v4, v5, 7, v4")
    A("  v_bfe_u32 v5, v0, 2, 1")
    A("  v_lshl_add_u32 v4, v5, 4, v4")
    A("  s_lshr_b32 s45, s44, 4")
    A("  s_lshl_b32 s45, s45, 12")
    A("  s_lshl_b32 s46, s47, 11")
    A("  s_add_u32 s45, s45, s46")
    A("  s_bfe_u32 s46, s44, 0x30001")
    A("  s_lshl_b32 s46, s46, 8")
    A("  s_add_u32 s45, s45, s46")
    A(f"  s_add_u32 s45, s45, {WS_QG}")
    A("  s_mov_b32 s56, 0xf0f0f0f0")
    A("  s_mov_b32 s57, 0xf0f0f0f0")
    A("  s_mov_b32 s58, 0xff00ff00")
    A("  s_mov_b32 s59, 0xff00ff00")
    A("  s_waitcnt lgkmcnt(0)")
    stamp(14)
    A(f"  s_mul_i32 s{sTag}, s60, 0x9e3779b1")
    A(f"  s_add_u32 s{sTag}, s{sTag}, 0x7f4a7c15")
    A(f"  v_mov_b32 v21, s{sTag}")
    A(f"  v_mov_b32 v23, s{sTag}")
    def qmfma(t):
        for j in range(2):
            r = vW + 8 * t + 4 * j
            c = "0" if t == 0 else f"v[{12+4*j}:{15+4*j}]"
            A(f"  v_mfma_f32_16x16x32_bf16 v[{12+4*j}:{15+4*j}], v[{r}:{r+3}], v[{vX+4*t}:{vX+4*t+3}], {c}")
    for t in range(9):
        A(f"  s_waitcnt vmcnt({16-2*t})")
        if t == 8: stamp(10)
        for j in range(2):
            r = vW + 8 * t + 4 * j
            A(f"  ds_read_b64_tr_b16 v[{r}:{r+1}], v10 offset:{t*2048 + j*32}")
            A(f"  ds_read_b64_tr_b16 v[{r+2}:{r+3}], v10 offset:{t*2048 + 1024 + j*32}")
        if t >= 1:
            A("  s_waitcnt lgkmcnt(4)")
            qmfma(t - 1)
    A("  s_waitcnt lgkmcnt(0)")
    qmfma(8)
    A("  s_nop 7")
    A("  v_cndmask_b32 v12, v12, v14, s[56:57]")
    A("  v_cndmask_b32 v13, v13, v15, s[56:57]")
    A("  v_cndmask_b32 v16, v16, v18, s[56:57]")
    A("  v_cndmask_b32 v17, v17, v19, s[56:57]")
    A("  v_cndmask_b32 v20, v12, v16, s[58:59]")
    A("  v_cndmask_b32 v22, v13, v17, s[58:59]")
    if "s" not in skip: A("  buffer_store_dwordx4 v[20:23], v4, s[28:31], s45 offen sc1")
    stamp(1)
    A(f"  s_lshl_b32 s45, s{sPair}, 12")
    A(f"  s_add_u32 s45, s45, {WS_QG}")
    A("  v_lshlrev_b32 v11, 2, v0")
    A(f"  v_add_u32 v11, {L_Q}, v11")
    if qdelay: A(f"  s_sleep {qdelay}")
    if "p" in skip: A("  s_branch L_qdone")
    A("L_qpoll:")
    for j in range(4):
        A(f"  buffer_load_dwordx4 v[{24+4*j}:{27+4*j}], v2, s[28:31], s45 offen offset:{j*1024} {qpflags}")
    A("  s_waitcnt vmcnt(0)")
    tagcheck([25, 27, 29, 31, 33, 35, 37, 39], "L_qdone", "L_qpoll", 0)
    A("  v_add_f32 v24, v24, v32")
    A("  v_add_f32 v26, v26, v34")
    A("  v_add_f32 v28, v28, v36")
    A("  v_add_f32 v30, v30, v38")
    A("  v_cvt_pk_bf16_f32 v24, v24, v26")
    A("  v_cvt_pk_bf16_f32 v28, v28, v30")
    A("  v_mov_b32 v20, 1")
    A("  ds_write_b32 v11, v24")
    A("  ds_write_b32 v11, v28 offset:256")
    A("  ds_write_b64 v3, v[20:21]")
    if stamps: A("  s_mov_b32 s86, s61")
    stamp(12)
    A("  v_bfe_u32 v4, v0, 3, 1")
    A("  v_lshlrev_b32 v8, 9, v4")
    A("  v_lshl_add_u32 v8, v9, 7, v8")
    A("  v_and_b32 v4, 7, v0")
    A("  v_lshl_add_u32 v8, v4, 4, v8")
    A("  s_lshl_b32 s46, s2, 10")
    A(f"  s_add_u32 s46, s46, {WS_PG}")
    if prew:
        yaddr(7, 4)
        A("  v_mov_b32 v15, s60")
        A("  buffer_store_dwordx4 v[12:15], v2, s[28:31], s46 offen sc1")
        for tg in range(3):
            A("  buffer_store_dwordx4 v[12:15], v7, s[28:31], s58 offen sc1")
            if tg < 2: A("  s_add_u32 s58, s58, 16384")
    A("  s_mov_b32 s32, s12")
    A("  s_mov_b32 s33, s13")
    A("  s_and_b32 s44, s2, 63")
    A("  s_mul_i32 s44, s44, 73728")
    A("  s_lshr_b32 s45, s2, 6")
    A("  s_mul_i32 s45, s45, 288")
    A("  s_add_u32 s44, s44, s45")
    A("  v_mul_u32_u24 v4, 57, v0")
    A("  v_lshrrev_b32 v4, 10, v4")
    A("  v_mul_u32_u24 v4, 864, v4")
    A("  v_add_u32 v6, v4, v2")
    A(f"  v_add_u32 v4, {L_P}, v2")
    A("  v_and_b32 v5, 8, v0")
    A(f"  v_add_u32 v5, {L_ML}, v5")
    A(f"  v_mov_b32 v23, s{sTag}")
    A("  s_lshl_b32 s47, s2, 12")
    A(f"  s_add_u32 s47, s47, {WS_YG}")
    A("  s_mov_b32 s36, s14")
    A("  s_mov_b32 s37, s15")
    A("  s_lshr_b32 s56, s2, 2")
    A("  s_mul_i32 s56, s56, 96")
    A("  s_and_b32 s57, s2, 3")
    A("  s_lshl_b32 s57, s57, 3")
    A("  s_add_u32 s56, s56, s57")
    A("  v_lshrrev_b32 v10, 5, v0")
    A("  v_bfe_u32 v11, v0, 4, 1")
    A("  v_lshl_add_u32 v10, v11, 1, v10")
    A("  v_lshlrev_b32 v10, 5, v10")
    A("  v_and_b32 v11, 3, v0")
    A("  v_lshl_add_u32 v10, v11, 1, v10")
    A("  s_mov_b32 s3, 4")
    A("  s_mov_b32 m0, 0")
    A("  s_waitcnt vmcnt(0)")
    if not wo_early:
        A("  s_mov_b32 s61, 0x100000")
        A("L_wait_end:")
        A("  s_sleep 4")
        A("  ds_read_b32 v24, v3 offset:8")
        A("  s_waitcnt lgkmcnt(0)")
        A("  v_readfirstlane_b32 s45, v24")
        A("  s_cmp_lg_u32 s45, 0")
        A("  s_cbranch_scc1 L_wo_go")
        A("  s_sub_u32 s61, s61, 1")
        A("  s_cbranch_scc0 L_wait_end")
        A("L_wo_go:")
    stamp(13)
    A("  s_mov_b32 exec_hi, 0x3fffff")
    A("L_wo:")
    if "o" not in skip: A(f"  buffer_load_dwordx4 v6, s[32:35], s44 offen {woflags} lds")
    A("  s_add_u32 m0, m0, 864")
    A("  s_add_u32 s44, s44, 3456")
    A("  s_cmp_lt_u32 m0, 18432")
    A("  s_cbranch_scc1 L_wo")
    A("  s_mov_b32 exec_hi, -1")
    A("  s_mov_b32 s61, 0x40000")
    A("  s_barrier")
    stamp(3)
    for w in range(4):
        A(f"  ds_read_b64 v[{40+2*w}:{41+2*w}], v5 offset:{w*16}")
    for w in range(4):
        A(f"  ds_read_b128 v[{24+4*w}:{27+4*w}], v4 offset:{w*1024}")
    A("  s_waitcnt lgkmcnt(4)")
    A("  v_max3_f32 v20, v40, v42, v44")
    A("  v_max_f32 v20, v20, v46")
    A(f"  v_mul_f32 v20, s{sC}, v20")
    for w in range(4): A(f"  v_fma_f32 v{40+2*w}, v{40+2*w}, s{sC}, -v20")
    for w in range(4): A(f"  v_exp_f32 v{40+2*w}, v{40+2*w}")
    A("  s_nop 0")
    A("  v_mul_f32 v22, v40, v41")
    for w in range(1, 4): A(f"  v_fmac_f32 v22, v{40+2*w}, v{41+2*w}")
    A("  v_rcp_f32 v21, v22")
    A("  v_log_f32 v22, v22")
    A("  s_waitcnt lgkmcnt(0)")
    for r in range(4): A(f"  v_mul_f32 v{24+r}, v40, v{24+r}")
    for w in range(1, 4):
        for r in range(4): A(f"  v_fmac_f32 v{24+r}, v{40+2*w}, v{24+4*w+r}")
    A("  v_add_f32 v22, v22, v20")
    for r in range(4): A(f"  v_mul_f32 v{24+r}, v21, v{24+r}")
    A("  v_cvt_pk_bf16_f32 v20, v24, v25")
    A("  v_cvt_pk_bf16_f32 v21, v26, v27")
    A("  buffer_store_dwordx4 v[20:23], v8, s[28:31], s46 offen sc1")
    stamp(15)
    A("  s_waitcnt vmcnt(1)")
    stamp(2)
    A("  s_barrier")
    stamp(4)
    stamp(5)
    A("  s_cmp_ge_u32 s2, 192")
    A("  s_cbranch_scc1 L_fin")
    if ydelay: A(f"  s_sleep {ydelay}")
    if notail: A("  s_branch L_ydone")
    A("L_ypoll:")
    for j in range(4):
        A(f"  buffer_load_dwordx4 v[{32+4*j}:{35+4*j}], v2, s[28:31], s47 offen offset:{j*1024} sc1")
    A("  s_waitcnt vmcnt(0)")
    tagcheck([35, 39, 43, 47], "L_ydone", "L_ypoll", psleep)
    for c in range(3):
        A(f"  v_add_f32 v{32+c}, v{32+c}, v{36+c}")
        A(f"  v_add_f32 v{40+c}, v{40+c}, v{44+c}")
    A("  v_add_f32 v34, v34, v42")
    A("  v_add_f32 v32, v32, v40")
    A("  v_add_f32 v33, v33, v41")
    A("  v_mov_b32 v35, v34")
    A("  s_nop 0")
    A("  v_permlane32_swap_b32 v32, v33")
    A("  v_permlane32_swap_b32 v34, v35")
    A("  v_add_f32 v32, v32, v33")
    A("  v_add_f32 v34, v34, v35")
    A("  s_nop 1")
    A("  v_permlane16_swap_b32 v32, v34")
    A("  v_add_f32 v32, v32, v34")
    A("  s_nop 1")
    A(f"  v_add_f32_dpp v32, v32, v32 row_ror:8 {dpp}")
    A("  s_nop 1")
    A(f"  v_add_f32_dpp v32, v32, v32 row_ror:4 {dpp}")
    A("  s_mov_b32 exec_lo, 0x000f000f")
    A("  s_mov_b32 exec_hi, 0x0000000f")
    A("  v_cvt_pk_bf16_f32 v32, v32, v32")
    A("  buffer_store_short v32, v10, s[36:39], s56 offen")
    A("  s_cmp_lg_u32 s2, 0")
    A("  s_cbranch_scc1 L_fin")
    A("  s_mov_b64 exec, 1")
    A("  buffer_store_dword v47, v2, s[28:31], 0 offen sc1")
    A("  s_branch L_fin")
    A("L_attn:")
    A("  s_sub_u32 s3, s3, 1")
    A("  v_bfe_u32 v3, v0, 2, 2")
    A("  v_lshlrev_b32 v1, 8, v3")
    A("  v_lshrrev_b32 v3, 4, v0")
    A("  v_lshl_add_u32 v1, v3, 6, v1")
    A("  v_and_b32 v3, 3, v0")
    A("  v_lshl_add_u32 v1, v3, 4, v1")
    A(f"  s_lshl_b32 s44, s{sPair}, 21")
    A(f"  s_lshl_b32 s45, s{sSplit}, 2")
    A("  s_add_u32 s45, s45, s3")
    A("  s_lshl_b32 s45, s45, 12")
    A(f"  s_mov_b32 s22, {PAIRB}")
    A("  s_mov_b32 s23, 0x20000")
    A(f"  s_mov_b32 s26, {PAIRB}")
    A("  s_mov_b32 s27, 0x20000")
    for d in range(D):
        A(f"  s_add_u32 s{sSlot+d}, s45, {d*STEP}")
    A("  s_waitcnt lgkmcnt(0)")
    A("  s_add_u32 s20, s6, s44")
    A("  s_addc_u32 s21, s7, 0")
    A("  s_add_u32 s24, s8, s44")
    A("  s_addc_u32 s25, s9, 0")
    def reg(kind, d, t):
        return vK + 32 * d + (0 if kind == "K" else 16) + 4 * t
    def loads(kind, d, t):
        srd = "s[20:23]" if kind == "K" else "s[24:27]"
        off = vKoff if kind == "K" else vVoff
        r = reg(kind, d, t)
        A(f"  buffer_load_dwordx4 v[{r}:{r+3}], v{off}, {srd}, s{sSlot+d} offen offset:{t*1024} {kvflags}")
    setup = []
    S = setup.append
    S("  s_mov_b32 s28, s18")
    S("  s_mov_b32 s29, s19")
    S(f"  s_lshl_b32 s44, s{sPair}, 8")
    S(f"  s_add_u32 s44, s44, {WS_CNT}")
    S("  s_add_u32 s46, s18, s44")
    S("  s_addc_u32 s47, s19, 0")
    S(f"  s_add_u32 s59, s45, {D*STEP}")
    S("  s_mov_b32 s57, 1")
    S("  v_and_b32 v3, 1, v0")
    S("  v_mov_b32 v17, 0xffff")
    S("  v_lshlrev_b32 v3, 4, v3")
    S("  v_lshlrev_b32 v17, v3, v17")
    S("  v_bfe_u32 v3, v0, 1, 2")
    for r in range(4):
        S(f"  v_cmp_eq_u32 vcc, {r}, v3")
        S(f"  v_mov_b32 v{vO+r}, 0")
        S("  s_nop 0")
        S(f"  v_cndmask_b32 v{vM+r}, 0, v17, vcc")
    S(f"  v_mov_b32 v{vm}, 0xff800000")
    S(f"  v_mov_b32 v{vl}, 0")
    S("  v_bfe_u32 v3, v0, 3, 1")
    S("  v_lshlrev_b32 v18, 8, v3")
    S("  v_lshrrev_b32 v3, 4, v0")
    S("  v_lshl_add_u32 v18, v3, 6, v18")
    S("  v_and_b32 v3, 3, v0")
    S("  v_lshl_add_u32 v18, v3, 4, v18")
    S(f"  v_add_u32 v18, {L_Q}, v18")
    S(f"  v_mov_b32 v19, {L_FLAG}")
    n = 0
    for d in range(D):
        for kind in "KV":
            for t in range(U):
                if n == pre0:
                    A("  s_barrier")
                    stamp(8)
                if n == min(WIN0, 8 * D - 1):
                    for ln in setup: A(ln)
                if n >= WIN0: A(f"  s_waitcnt vmcnt({WIN0-1})")
                loads(kind, d, t)
                n += 1
    stamp(9)
    A("  s_mov_b32 s61, 0x400000")
    A("L_qwait:")
    A("  ds_read_b64 v[20:21], v19")
    A(f"  ds_read_b128 v[{vQ}:{vQ+3}], v18")
    A("  s_waitcnt lgkmcnt(0)")
    A("  v_readfirstlane_b32 s44, v20")
    A(f"  v_readfirstlane_b32 s{sTag}, v21")
    A("  s_cmp_lg_u32 s44, 0")
    A("  s_cbranch_scc1 L_qgo")
    A("  s_sleep 1")
    A("  s_sub_u32 s61, s61, 1")
    A("  s_cbranch_scc0 L_qwait")
    A("L_qgo:")
    stamp(1)
    STATIC = hyb * STEP
    def body(d, ring):
        for t in range(U):
            r = reg("K", d, t)
            if ring: A(f"  s_waitcnt vmcnt({15 if fine else 15-t})")
            A(f"  v_mfma_f32_16x16x32_bf16 v[{vD+4*t}:{vD+4*t+3}], v[{r}:{r+3}], v[{vQ}:{vQ+3}], 0")
            if ring and fine:
                A(f"  s_cbranch_scc1 L_sk{d}_{t}")
                loads("K", d, t)
                A(f"L_sk{d}_{t}:")
        if ring and not fine:
            A(f"  s_cbranch_scc1 L_sk{d}")
            for t in range(U): loads("K", d, t)
            A(f"L_sk{d}:")
        A("  s_nop 4")
        for j in range(4):
            for t in range(U):
                if j == 0:
                    A(f"  v_mov_b32_dpp v{vS+t}, v{vD+4*t} quad_perm:[0,0,0,0] {dpp}")
                else:
                    A(f"  v_add_f32_dpp v{vS+t}, v{vD+4*t+j}, v{vS+t} quad_perm:[{j},{j},{j},{j}] {dpp}")
        A(f"  v_max3_f32 v{va}, v{vm}, v{vS}, v{vS+1}")
        A(f"  v_max3_f32 v{va}, v{va}, v{vS+2}, v{vS+3}")
        A(f"  v_mov_b32 v{vb}, v{va}")
        A("  s_nop 1")
        A(f"  v_permlane32_swap_b32 v{va}, v{vb}")
        A(f"  v_max_f32 v{va}, v{va}, v{vb}")
        A(f"  v_mov_b32 v{vb}, v{va}")
        A("  s_nop 1")
        A(f"  v_permlane16_swap_b32 v{va}, v{vb}")
        A(f"  v_max_f32 v{va}, v{va}, v{vb}")
        A(f"  v_sub_f32 v{vb}, v{vm}, v{va}")
        A(f"  v_mul_f32 v{vb}, s{sC}, v{vb}")
        A(f"  v_exp_f32 v{vb}, v{vb}")
        A(f"  v_mov_b32 v{vm}, v{va}")
        A(f"  v_mul_f32 v{va}, s{sC}, v{va}")
        for t in range(U):
            A(f"  v_fma_f32 v{vS+t}, v{vS+t}, s{sC}, -v{va}")
        for t in range(U):
            A(f"  v_exp_f32 v{vS+t}, v{vS+t}")
        for r in range(4):
            A(f"  v_mul_f32 v{vO+r}, v{vO+r}, v{vb}")
        A(f"  v_mul_f32 v{vl}, v{vl}, v{vb}")
        for t in range(U):
            A(f"  v_cvt_pk_bf16_f32 v{vT}, v{vS+t}, v{vS+t}")
            for j in range(4):
                A(f"  v_and_b32 v{vB+4*t+j}, v{vT}, v{vM+j}")
            A(f"  v_add_f32 v{vl}, v{vl}, v{vS+t}")
        if ring:
            A(f"  s_cbranch_scc1 L_dw{d}")
            A(f"L_dr{d}:")
        for t in range(U):
            r = reg("V", d, t)
            if ring: A(f"  s_waitcnt vmcnt({15 if fine else 15-t})")
            A(f"  v_mfma_f32_16x16x32_bf16 v[{vO}:{vO+3}], v[{r}:{r+3}], v[{vB+4*t}:{vB+4*t+3}], v[{vO}:{vO+3}]")
            if ring and fine and t < 3:
                A(f"  s_cbranch_scc1 L_sv{d}_{t}")
                loads("V", d, t)
                A(f"L_sv{d}_{t}:")
        if ring:
            A(f"  s_cbranch_scc1 L_sv{d}")
            for t in range(3 if fine else 0, U): loads("V", d, t)
    A("L_loop:")
    for d in range(2):
        A(f"  s_cmp_lt_u32 s59, {STATIC}")
        A(f"  s_cbranch_scc0 L_dy{d}")
        A(f"  s_mov_b32 s{sSlot+d}, s59")
        A(f"  s_add_u32 s59, s59, {STEP}")
        A(f"  s_cmp_ge_u32 s59, {STATIC}")
        A(f"  s_cbranch_scc1 L_tf{d}")
        A(f"L_go{d}:")
        body(d, True)
    A("  s_cmp_eq_u32 s57, 0")
    A("  s_cbranch_scc1 L_loop")
    A("  s_mov_b32 s57, 0")
    stamp(13)
    A("  s_waitcnt vmcnt(16)")
    for e in range(E):
        body(2 + e, False)
    stamp(14)
    A("  s_branch L_loop")
    for d in range(2):
        A(f"L_dy{d}:")
        if tkwait: A("  s_waitcnt vmcnt(15)")
        A("  s_waitcnt lgkmcnt(0)")
        A(f"  s_add_u32 s{sSlot+d}, s60, {STATIC}")
        A(f"  s_cmp_ge_u32 s{sSlot+d}, {PAIRB}")
        A(f"  s_cbranch_scc0 L_tk{d}")
        A(f"  v_mov_b32 v{va}, {L_FLAG}")
        A(f"  ds_write_b32 v{va}, v{va} offset:8")
        if fine: A("  s_waitcnt vmcnt(12)")
        A(f"  s_branch L_go{d}")
        A(f"L_tf{d}:")
        stamp(12)
        A(f"L_tk{d}:")
        A(f"  s_mov_b32 s60, {BLK}")
        A("  s_atomic_add s60, s[46:47], 0 glc")
        A("  s_cmp_eq_u32 s59, 0")
        A(f"  s_branch L_go{d}")
        A(f"L_dw{d}:")
        A("  s_waitcnt vmcnt(8)")
        A(f"  s_cmp_lt_u32 s{sSlot+1-d}, {PAIRB}")
        A(f"  s_cbranch_scc1 L_dr{d}")
        A("  s_waitcnt vmcnt(0)")
        A("  s_cmp_eq_u32 s59, s59")
        A(f"  s_branch L_dr{d}")
        A(f"L_sv{d}:")
        A(f"  s_cmp_ge_u32 s{sSlot+1-d}, {PAIRB}")
        A("  s_cbranch_scc1 L_done")
        A(f"  s_mov_b32 s{sSlot+1-d}, {PAIRB}")
        A("  s_waitcnt vmcnt(4)")
        A("  s_cmp_eq_u32 s59, s59")
        A(f"  s_branch L_go{1-d}")
    A("L_done:")
    stamp(2)
    A(f"  v_mov_b32 v{vb}, v{vl}")
    A("  s_lshl_b32 s44, s3, 10")
    A("  s_lshl_b32 s45, s3, 4")
    A(f"  v_permlane32_swap_b32 v{vl}, v{vb}")
    A(f"  v_add_f32 v{vl}, v{vl}, v{vb}")
    A(f"  v_mov_b32 v{vb}, v{vl}")
    A(f"  s_add_u32 s44, s44, {L_P}")
    A(f"  s_add_u32 s45, s45, {L_ML}")
    A(f"  v_permlane16_swap_b32 v{vl}, v{vb}")
    A(f"  v_add_f32 v{vl}, v{vl}, v{vb}")
    A("  v_and_b32 v5, 8, v0")
    A("  v_add_u32 v6, s44, v2")
    A("  v_add_u32 v7, s45, v5")
    A(f"  ds_write_b128 v6, v[{vO}:{vO+3}]")
    A(f"  ds_write_b64 v7, v[{vm}:{vl}]")
    A("  s_waitcnt lgkmcnt(0)")
    A("  s_barrier")
    stamp(3)
    A("  s_and_b32 s44, s2, 60")
    A("  s_lshl_b32 s45, s3, 6")
    A("  s_add_u32 s44, s44, s45")
    A("  s_lshl_b32 s44, s44, 10")
    A(f"  s_lshl_b32 s45, s{sSplit}, 8")
    A("  s_add_u32 s44, s44, s45")
    A(f"  s_add_u32 s44, s44, {WS_PG}")
    A("  v_lshrrev_b32 v9, 4, v0")
    A("  v_and_b32 v3, 15, v0")
    A("  v_lshlrev_b32 v4, 10, v9")
    A("  v_lshl_add_u32 v4, v3, 4, v4")
    A("  s_lshl_b32 s56, s3, 7")
    A(f"  s_add_u32 s56, s56, {L_O}")
    A("  v_lshl_add_u32 v11, v5, 3, s56")
    A("  v_lshrrev_b32 v3, 5, v0")
    A("  v_lshl_add_u32 v11, v3, 4, v11")
    A("  v_bfe_u32 v3, v0, 4, 1")
    A("  v_lshl_add_u32 v11, v3, 5, v11")
    A("  v_and_b32 v3, 7, v0")
    A("  v_lshl_add_u32 v11, v3, 1, v11")
    A("  v_bfe_u32 v3, v0, 2, 2")
    A("  v_lshl_add_u32 v10, v9, 3, v3")
    A("  v_mul_u32_u24 v10, 288, v10")
    A("  v_and_b32 v1, 3, v0")
    A("  v_lshl_add_u32 v10, v1, 3, v10")
    A("  s_mul_i32 s45, s3, 96")
    A("  v_add_u32 v10, s45, v10")
    A("  v_lshlrev_b32 v1, 7, v3")
    A("  v_lshl_add_u32 v1, v9, 4, v1")
    A(f"  v_add_u32 v1, {L_O}, v1")
    yaddr(6, 3)
    A("  s_lshl_b32 s45, s3, 14")
    A("  s_add_u32 s58, s58, s45")
    A("  s_mov_b32 s61, 0x40000")
    if pdelay: A(f"  s_sleep {pdelay}")
    if notail: A("  s_branch L_pdone")
    A("L_ppoll:")
    A("  buffer_load_dwordx4 v[24:27], v4, s[28:31], s44 offen sc1")
    A("  s_waitcnt vmcnt(0)")
    tagcheck([27], "L_pdone", "L_ppoll", psleep)
    if stamps: A("  s_mov_b32 s86, s61")
    stamp(10)
    A("  v_mov_b32 v28, v26")
    A("  v_mov_b32 v29, v26")
    A("  v_lshlrev_b32 v32, 16, v24")
    A("  v_and_b32 v33, 0xffff0000, v24")
    A("  v_permlane32_swap_b32 v28, v29")
    A("  v_max_f32 v28, v28, v29")
    A("  v_mov_b32 v29, v28")
    A("  v_lshlrev_b32 v34, 16, v25")
    A("  v_and_b32 v35, 0xffff0000, v25")
    A("  v_permlane16_swap_b32 v28, v29")
    A("  v_max_f32 v28, v28, v29")
    A("  v_sub_f32 v28, v26, v28")
    A("  v_exp_f32 v28, v28")
    A("  s_nop 0")
    A("  v_mov_b32 v29, v28")
    for r in range(4): A(f"  v_mul_f32 v{32+r}, v28, v{32+r}")
    A("  v_permlane32_swap_b32 v28, v29")
    A("  v_permlane32_swap_b32 v32, v33")
    A("  v_permlane32_swap_b32 v34, v35")
    A("  v_add_f32 v28, v28, v29")
    A("  v_mov_b32 v29, v28")
    A("  v_add_f32 v32, v32, v33")
    A("  v_add_f32 v34, v34, v35")
    A("  v_permlane16_swap_b32 v28, v29")
    A("  v_add_f32 v28, v28, v29")
    A("  v_permlane16_swap_b32 v32, v34")
    A("  v_rcp_f32 v28, v28")
    A("  v_add_f32 v32, v32, v34")
    A("  v_mul_f32 v32, v32, v28")
    A("  v_cvt_pk_bf16_f32 v32, v32, v32")
    A("  ds_write_b16 v11, v32")
    A("  s_waitcnt lgkmcnt(0)")
    A("  s_barrier")
    stamp(4)
    A("  s_cmp_eq_u32 s3, 3")
    A("  s_cbranch_scc1 L_fin5")
    A("  ds_read_b128 v[36:39], v1")
    for tl in range(3):
        A(f"  ds_read_b64_tr_b16 v[{44+4*tl}:{45+4*tl}], v10 offset:{tl*32}")
        A(f"  ds_read_b64_tr_b16 v[{46+4*tl}:{47+4*tl}], v10 offset:{tl*32+1152}")
    A("  ds_read_b128 v[40:43], v1 offset:64")
    for tl in range(3):
        A(f"  ds_read_b64_tr_b16 v[{56+4*tl}:{57+4*tl}], v10 offset:{tl*32+9216}")
        A(f"  ds_read_b64_tr_b16 v[{58+4*tl}:{59+4*tl}], v10 offset:{tl*32+9216+1152}")
    A("  s_waitcnt lgkmcnt(7)")
    for tl in (2, 1, 0):
        A(f"  v_mfma_f32_16x16x32_bf16 v[{24+4*tl}:{27+4*tl}], v[36:39], v[{44+4*tl}:{47+4*tl}], 0")
    A("  s_waitcnt lgkmcnt(0)")
    for tl in (2, 1, 0):
        A(f"  v_mfma_f32_16x16x32_bf16 v[{24+4*tl}:{27+4*tl}], v[40:43], v[{56+4*tl}:{59+4*tl}], v[{24+4*tl}:{27+4*tl}]")
    A("  s_nop 7")
    A("  v_mov_b32 v26, v32")
    A("  v_mov_b32 v25, v28")
    A(f"  v_mov_b32 v27, s{sTag}")
    A("  buffer_store_dwordx4 v[24:27], v6, s[28:31], s58 offen sc1")
    A("L_fin5:")
    stamp(5)
    A("L_fin:")
    if stamps:
        stamp(6)
        A("  s_mul_i32 s44, s2, 5")
        A("  s_add_u32 s44, s44, s3")
        A("  s_lshl_b32 s44, s44, 6")
        A(f"  s_add_u32 s44, s44, {WS_TS}")
        A("  s_mov_b32 s78, s61")
        A("  s_waitcnt lgkmcnt(0)")
        A("  s_mov_b64 exec, 1")
        for i in range(16):
            A(f"  v_mov_b32 v{64+i}, s{64+2*i}")
        A("  v_mov_b32 v3, 0")
        for j in range(4):
            A(f"  buffer_store_dwordx4 v[{64+4*j}:{67+4*j}], v3, s[28:31], s44 offen offset:{16*j}")
    if spin is not None:
        fixed, mult, sa, sb, who = spin
        A(f"  s_cmp_eq_u32 s3, {who}")
        A("  s_cbranch_scc0 L_end")
        A(f"  s_sub_u32 s44, s{64+2*sb}, s{64+2*sa}")
        A(f"  s_mul_i32 s44, s44, {mult}")
        A(f"  s_add_u32 s44, s44, {fixed}")
        A("  s_min_u32 s44, s44, 200000")
        A("L_spin:")
        A("  s_memrealtime s[46:47]")
        A("  s_waitcnt lgkmcnt(0)")
        A("  s_sub_u32 s45, s46, s64")
        A("  s_cmp_lt_u32 s45, s44")
        A("  s_cbranch_scc1 L_spin")
    if dbg:
        A("  s_mov_b32 s32, s16")
        A("  s_mov_b32 s33, s17")
        A("  s_mov_b32 s34, 256")
        A("  s_mov_b32 s35, 0x20000")
        A("  v_not_b32 v80, v64")
        A("  buffer_atomic_umax v80, v3, s[32:35], 0 offen offset:0")
        A("  buffer_atomic_umax v64, v3, s[32:35], 0 offen offset:4")
        A("  buffer_atomic_umax v70, v3, s[32:35], 0 offen offset:60")
        A("  s_cmp_eq_u32 s3, 4")
        A("  s_cbranch_scc1 L_dbgh")
        for slot, st in ((2, 8), (3, 9), (4, 1), (5, 13), (6, 14), (7, 2), (8, 10), (9, 5)):
            A(f"  buffer_atomic_umax v{64+st}, v3, s[32:35], 0 offen offset:{4*slot}")
        A("  s_branch L_end")
        A("L_dbgh:")
        for slot, st in ((10, 8), (11, 10), (12, 12), (13, 13), (14, 15)):
            A(f"  buffer_atomic_umax v{64+st}, v3, s[32:35], 0 offen offset:{4*slot}")
    A("L_end:")
    A("  s_endpgm")
    A('.section .rodata,"a"')
    A(".p2align 6")
    A(f".amdhsa_kernel {NAME}")
    A(f"  .amdhsa_next_free_vgpr {NV}")
    A("  .amdhsa_next_free_sgpr %d" % (96 if stamps else 64))
    A(f"  .amdhsa_accum_offset {(NV+3)//4*4}")
    A("  .amdhsa_group_segment_fixed_size 0")
    A("  .amdhsa_kernarg_size 64")
    A("  .amdhsa_user_sgpr_count 2")
    A("  .amdhsa_user_sgpr_kernarg_segment_ptr 1")
    A("  .amdhsa_system_sgpr_workgroup_id_x 1")
    A("  .amdhsa_float_denorm_mode_32 3")
    A(".end_amdhsa_kernel")
    return "\n".join(L) + "\n"

if __name__ == "__main__":
    import json
    cfg = json.loads(sys.argv[1]) if len(sys.argv) > 1 else {}
    sys.stdout.write(gen(**cfg))
```

```python
import math, struct, sys
from gen_full import f2u, SCALE, NAME, HEADER

WS_QG = 0x40000
WS_PG = 0x100000
WS_YG = 0x200000
WS_CNT = 0x300000
WS_TS = 0x1000000
WS_SIZE = 0x2000000

L_Q = 19456
L_FLAG = L_Q + 512
L_ML = L_FLAG + 16
L_O = L_Q + 640
L_P = L_O + 512
L_TOTAL = L_P + 4 * 1024

def gen(E=2, WIN0=8, hyb=26, stamps=False, kvflags="nt", wqflags="nt", woflags="nt",
        qdelay=0, pdelay=0, ydelay=0, psleep=0, prew=True, wo_early=False, pre0=0, skip="", xflags="", qpflags="sc1", tkwait=True, fine=False, notail=False, warm=False, dbg=False, spin=None):
    U = 4
    D = 2 + E
    PAIRB = 2 * 1024 * 1024
    BLK = 4096
    STEP = 16 * BLK
    L = []
    A = L.append
    dpp = "row_mask:0xf bank_mask:0xf"
    vKoff, vVoff, vT = 1, 2, 3
    vQ, vM, vO = 4, 8, 12
    vm, vl, va, vb = 16, 17, 18, 19
    vS, vD, vB = 20, 24, 24
    vK = 40
    NV = max(vK + 32 * D, 132)
    sTag, sC, sPair, sSplit = 40, 41, 42, 43
    sSlot = 48
    def stamp(i):
        if stamps:
            A(f"  s_memrealtime s[{64+2*i}:{65+2*i}]")
    def tagcheck(regs, label_ok, label_loop, sleep):
        if len(regs) == 1:
            A(f"  v_cmp_eq_u32 vcc, s{sTag}, v{regs[0]}")
        else:
            A(f"  v_min3_u32 v22, v{regs[0]}, v{regs[1]}, v{regs[2]}")
            A(f"  v_max3_u32 v23, v{regs[0]}, v{regs[1]}, v{regs[2]}")
            i = 3
            while i < len(regs):
                if i + 1 < len(regs):
                    A(f"  v_min3_u32 v22, v22, v{regs[i]}, v{regs[i+1]}")
                    A(f"  v_max3_u32 v23, v23, v{regs[i]}, v{regs[i+1]}")
                    i += 2
                else:
                    A(f"  v_min_u32 v22, v22, v{regs[i]}")
                    A(f"  v_max_u32 v23, v23, v{regs[i]}")
                    i += 1
            A(f"  v_cmp_eq_u32 vcc, s{sTag}, v22")
            A(f"  v_cmp_eq_u32 s[62:63], s{sTag}, v23")
            A("  s_and_b64 vcc, vcc, s[62:63]")
        A("  s_cmp_eq_u64 vcc, -1")
        A(f"  s_cbranch_scc1 {label_ok}")
        if sleep: A(f"  s_sleep {sleep}")
        A("  s_sub_u32 s61, s61, 1")
        A(f"  s_cbranch_scc0 {label_loop}")
        A(f"{label_ok}:")
    def yaddr(vdst, vtmp):
        A("  s_mov_b32 s45, 196608")
        A(f"  v_mul_lo_u32 v{vdst}, v9, s45")
        A(f"  v_bfe_u32 v{vtmp}, v0, 2, 2")
        A(f"  v_lshl_add_u32 v{vdst}, v{vtmp}, 12, v{vdst}")
        A(f"  v_and_b32 v{vtmp}, 3, v0")
        A(f"  v_lshl_add_u32 v{vdst}, v{vtmp}, 4, v{vdst}")
        A("  s_lshr_b32 s45, s2, 6")
        A("  s_mul_i32 s58, s45, 49152")
        A("  s_and_b32 s45, s2, 63")
        A("  s_lshl_b32 s45, s45, 6")
        A("  s_add_u32 s58, s58, s45")
        A(f"  s_add_u32 s58, s58, {WS_YG}")
    for ln in HEADER.rstrip("\n").split("\n"): A(ln)
    A(f"; @launch grid=(256,1,1) block=(320,1,1) lds={L_TOTAL}")
    A('.amdgcn_target "amdgcn-amd-amdhsa--gfx950"')
    A(".text")
    A(f".globl {NAME}")
    A(".p2align 8")
    A(f".type {NAME},@function")
    A(f"{NAME}:")
    A("  s_cmp_ge_u32 s2, 256")
    A("  s_cbranch_scc1 L_end")
    A("  s_load_dwordx16 s[4:19], s[0:1], 0")
    stamp(0)
    A("  v_lshrrev_b32 v3, 6, v0")
    A("  v_and_b32 v0, 63, v0")
    A("  v_readfirstlane_b32 s3, v3")
    A("  v_lshlrev_b32 v2, 4, v0")
    A(f"  s_lshr_b32 s{sPair}, s2, 2")
    A(f"  s_and_b32 s{sSplit}, s2, 3")
    A(f"  s_mov_b32 s30, {WS_SIZE}")
    A("  s_mov_b32 s31, 0x20000")
    A(f"  s_mov_b32 s{sC}, {hex(f2u(SCALE))}")
    A("  s_mov_b32 s61, 0x40000")
    A("  s_cmp_lg_u32 s3, 0")
    A("  s_cbranch_scc1 L_attn")
    if warm:
        A("  s_getpc_b64 s[52:53]")
        A("L_pc:")
        A("  v_lshlrev_b32 v4, 7, v0")
        A("  v_min_u32 v4, L_end-L_pc, v4")
        A("  global_load_dword v131, v4, s[52:53]")
    A("  s_and_b32 s44, s2, 7")
    A("  s_lshl_b32 s44, s44, 5")
    A("  s_lshr_b32 s45, s2, 3")
    A("  s_add_u32 s44, s44, s45")
    A("  v_lshrrev_b32 v9, 4, v0")
    A("  v_bfe_u32 v4, v0, 2, 2")
    A("  v_lshl_add_u32 v4, v9, 3, v4")
    A("  v_and_b32 v8, 3, v0")
    A("  v_lshlrev_b32 v5, 4, v8")
    A("  v_lshl_add_u32 v6, v4, 13, v5")
    A("  v_mul_u32_u24 v7, 1152, v8")
    A("  v_lshl_add_u32 v7, v9, 4, v7")
    A("  s_mov_b32 s34, 4718592")
    A("  s_mov_b32 s35, 0x20000")
    A("  s_mov_b32 s38, 4608")
    A("  s_mov_b32 s39, 0x20000")
    A("  s_lshr_b32 s45, s44, 1")
    A("  s_lshl_b32 s45, s45, 6")
    A("  s_and_b32 s47, s44, 1")
    A("  s_mul_i32 s46, s47, 2359296")
    A("  s_add_u32 s45, s45, s46")
    A("  s_add_u32 s46, s45, 32768")
    A("  s_mul_i32 s56, s47, 576")
    A("  s_mov_b32 m0, 0")
    A(f"  v_mov_b32 v3, {L_FLAG}")
    A("  v_mov_b32 v12, 0")
    A("  v_mov_b32 v13, 0")
    A("  v_mov_b32 v14, 0")
    A("  v_mov_b32 v15, 0")
    A("  ds_write_b128 v3, v[12:15]")
    A("  s_waitcnt lgkmcnt(0)")
    stamp(8)
    A("  s_mov_b32 s36, s4")
    A("  s_mov_b32 s37, s5")
    A("  s_mov_b32 s32, s10")
    A("  s_mov_b32 s33, s11")
    A("  s_load_dword s60, s[18:19], 0")
    vX = 24; vW = 60
    for t in range(9):
        if "x" not in skip: A(f"  buffer_load_dwordx4 v[{vX+4*t}:{vX+4*t+3}], v7, s[36:39], s56 offen offset:{t*64} {xflags}")
    A("  s_mov_b32 s28, s18")
    A("  s_mov_b32 s29, s19")
    A("  s_and_b32 s56, s44, 15")
    A("  s_cmp_lg_u32 s56, 0")
    A("  s_cbranch_scc1 L_wq")
    A("  v_lshlrev_b32 v5, 12, v0")
    A("  s_lshl_b32 s56, s44, 4")
    A(f"  s_add_u32 s56, s56, {WS_CNT}")
    A("  s_mov_b64 exec, 15")
    A("  buffer_store_dword v12, v5, s[28:31], s56 offen sc1")
    A("  s_mov_b64 exec, -1")
    A("L_wq:")
    if "w" not in skip: A(f"  buffer_load_dwordx4 v6, s[32:35], s45 offen {wqflags} lds")
    A("  s_add_u32 m0, m0, 1024")
    A("  s_add_u32 s45, s45, 0x40000")
    if "w" not in skip: A(f"  buffer_load_dwordx4 v6, s[32:35], s46 offen {wqflags} lds")
    A("  s_add_u32 m0, m0, 1024")
    A("  s_add_u32 s46, s46, 0x40000")
    A("  s_cmp_lt_u32 m0, 18432")
    A("  s_cbranch_scc1 L_wq")
    A("  s_barrier")
    stamp(9)
    A("  v_lshrrev_b32 v10, 2, v0")
    A("  v_lshlrev_b32 v10, 6, v10")
    A("  v_lshl_add_u32 v10, v8, 3, v10")
    A("  v_lshlrev_b32 v4, 16, v8")
    A("  v_lshl_add_u32 v4, v9, 5, v4")
    A("  v_bfe_u32 v5, v0, 3, 1")
    A("  v_lshl_add_u32 v4, v5, 7, v4")
    A("  v_bfe_u32 v5, v0, 2, 1")
    A("  v_lshl_add_u32 v4, v5, 4, v4")
    A("  s_lshr_b32 s45, s44, 4")
    A("  s_lshl_b32 s45, s45, 12")
    A("  s_lshl_b32 s46, s47, 11")
    A("  s_add_u32 s45, s45, s46")
    A("  s_bfe_u32 s46, s44, 0x30001")
    A("  s_lshl_b32 s46, s46, 8")
    A("  s_add_u32 s45, s45, s46")
    A(f"  s_add_u32 s45, s45, {WS_QG}")
    A("  s_mov_b32 s56, 0xf0f0f0f0")
    A("  s_mov_b32 s57, 0xf0f0f0f0")
    A("  s_mov_b32 s58, 0xff00ff00")
    A("  s_mov_b32 s59, 0xff00ff00")
    A("  s_waitcnt lgkmcnt(0)")
    stamp(14)
    A(f"  s_mul_i32 s{sTag}, s60, 0x9e3779b1")
    A(f"  s_add_u32 s{sTag}, s{sTag}, 0x7f4a7c15")
    A(f"  v_mov_b32 v21, s{sTag}")
    A(f"  v_mov_b32 v23, s{sTag}")
    def qmfma(t):
        for j in range(2):
            r = vW + 8 * t + 4 * j
            c = "0" if t == 0 else f"v[{12+4*j}:{15+4*j}]"
            A(f"  v_mfma_f32_16x16x32_bf16 v[{12+4*j}:{15+4*j}], v[{r}:{r+3}], v[{vX+4*t}:{vX+4*t+3}], {c}")
    for t in range(9):
        A(f"  s_waitcnt vmcnt({16-2*t})")
        if t == 8: stamp(10)
        for j in range(2):
            r = vW + 8 * t + 4 * j
            A(f"  ds_read_b64_tr_b16 v[{r}:{r+1}], v10 offset:{t*2048 + j*32}")
            A(f"  ds_read_b64_tr_b16 v[{r+2}:{r+3}], v10 offset:{t*2048 + 1024 + j*32}")
        if t >= 1:
            A("  s_waitcnt lgkmcnt(4)")
            qmfma(t - 1)
    A("  s_waitcnt lgkmcnt(0)")
    qmfma(8)
    A("  s_nop 7")
    A("  v_cndmask_b32 v12, v12, v14, s[56:57]")
    A("  v_cndmask_b32 v13, v13, v15, s[56:57]")
    A("  v_cndmask_b32 v16, v16, v18, s[56:57]")
    A("  v_cndmask_b32 v17, v17, v19, s[56:57]")
    A("  v_cndmask_b32 v20, v12, v16, s[58:59]")
    A("  v_cndmask_b32 v22, v13, v17, s[58:59]")
    if "s" not in skip: A("  buffer_store_dwordx4 v[20:23], v4, s[28:31], s45 offen sc1")
    stamp(1)
    A(f"  s_lshl_b32 s45, s{sPair}, 12")
    A(f"  s_add_u32 s45, s45, {WS_QG}")
    A("  v_lshlrev_b32 v11, 2, v0")
    A(f"  v_add_u32 v11, {L_Q}, v11")
    if qdelay: A(f"  s_sleep {qdelay}")
    if "p" in skip: A("  s_branch L_qdone")
    A("L_qpoll:")
    for j in range(4):
        A(f"  buffer_load_dwordx4 v[{24+4*j}:{27+4*j}], v2, s[28:31], s45 offen offset:{j*1024} {qpflags}")
    A("  s_waitcnt vmcnt(0)")
    tagcheck([25, 27, 29, 31, 33, 35, 37, 39], "L_qdone", "L_qpoll", 0)
    A("  v_add_f32 v24, v24, v32")
    A("  v_add_f32 v26, v26, v34")
    A("  v_add_f32 v28, v28, v36")
    A("  v_add_f32 v30, v30, v38")
    A("  v_cvt_pk_bf16_f32 v24, v24, v26")
    A("  v_cvt_pk_bf16_f32 v28, v28, v30")
    A("  v_mov_b32 v20, 1")
    A("  ds_write_b32 v11, v24")
    A("  ds_write_b32 v11, v28 offset:256")
    A("  ds_write_b64 v3, v[20:21]")
    if stamps: A("  s_mov_b32 s86, s61")
    stamp(12)
    A("  v_bfe_u32 v4, v0, 3, 1")
    A("  v_lshlrev_b32 v8, 9, v4")
    A("  v_lshl_add_u32 v8, v9, 7, v8")
    A("  v_and_b32 v4, 7, v0")
    A("  v_lshl_add_u32 v8, v4, 4, v8")
    A("  s_lshl_b32 s46, s2, 10")
    A(f"  s_add_u32 s46, s46, {WS_PG}")
    if prew:
        yaddr(7, 4)
        A("  v_mov_b32 v15, s60")
        A("  buffer_store_dwordx4 v[12:15], v2, s[28:31], s46 offen sc1")
        for tg in range(3):
            A("  buffer_store_dwordx4 v[12:15], v7, s[28:31], s58 offen sc1")
            if tg < 2: A("  s_add_u32 s58, s58, 16384")
    A("  s_mov_b32 s32, s12")
    A("  s_mov_b32 s33, s13")
    A("  s_and_b32 s44, s2, 63")
    A("  s_mul_i32 s44, s44, 73728")
    A("  s_lshr_b32 s45, s2, 6")
    A("  s_mul_i32 s45, s45, 288")
    A("  s_add_u32 s44, s44, s45")
    A("  v_mul_u32_u24 v4, 57, v0")
    A("  v_lshrrev_b32 v4, 10, v4")
    A("  v_mul_u32_u24 v4, 864, v4")
    A("  v_add_u32 v6, v4, v2")
    A(f"  v_add_u32 v4, {L_P}, v2")
    A("  v_and_b32 v5, 8, v0")
    A(f"  v_add_u32 v5, {L_ML}, v5")
    A(f"  v_mov_b32 v23, s{sTag}")
    A("  s_lshl_b32 s47, s2, 12")
    A(f"  s_add_u32 s47, s47, {WS_YG}")
    A("  s_mov_b32 s36, s14")
    A("  s_mov_b32 s37, s15")
    A("  s_lshr_b32 s56, s2, 2")
    A("  s_mul_i32 s56, s56, 96")
    A("  s_and_b32 s57, s2, 3")
    A("  s_lshl_b32 s57, s57, 3")
    A("  s_add_u32 s56, s56, s57")
    A("  v_lshrrev_b32 v10, 5, v0")
    A("  v_bfe_u32 v11, v0, 4, 1")
    A("  v_lshl_add_u32 v10, v11, 1, v10")
    A("  v_lshlrev_b32 v10, 5, v10")
    A("  v_and_b32 v11, 3, v0")
    A("  v_lshl_add_u32 v10, v11, 1, v10")
    A("  s_mov_b32 s3, 4")
    A("  s_mov_b32 m0, 0")
    A("  s_waitcnt vmcnt(0)")
    if not wo_early:
        A("  s_mov_b32 s61, 0x100000")
        A("L_wait_end:")
        A("  s_sleep 4")
        A("  ds_read_b32 v24, v3 offset:8")
        A("  s_waitcnt lgkmcnt(0)")
        A("  v_readfirstlane_b32 s45, v24")
        A("  s_cmp_lg_u32 s45, 0")
        A("  s_cbranch_scc1 L_wo_go")
        A("  s_sub_u32 s61, s61, 1")
        A("  s_cbranch_scc0 L_wait_end")
        A("L_wo_go:")
    stamp(13)
    A("  s_mov_b32 exec_hi, 0x3fffff")
    A("L_wo:")
    if "o" not in skip: A(f"  buffer_load_dwordx4 v6, s[32:35], s44 offen {woflags} lds")
    A("  s_add_u32 m0, m0, 864")
    A("  s_add_u32 s44, s44, 3456")
    A("  s_cmp_lt_u32 m0, 18432")
    A("  s_cbranch_scc1 L_wo")
    A("  s_mov_b32 exec_hi, -1")
    A("  s_mov_b32 s61, 0x40000")
    A("  s_barrier")
    stamp(3)
    for w in range(4):
        A(f"  ds_read_b64 v[{40+2*w}:{41+2*w}], v5 offset:{w*16}")
    for w in range(4):
        A(f"  ds_read_b128 v[{24+4*w}:{27+4*w}], v4 offset:{w*1024}")
    A("  s_waitcnt lgkmcnt(4)")
    A("  v_max3_f32 v20, v40, v42, v44")
    A("  v_max_f32 v20, v20, v46")
    A(f"  v_mul_f32 v20, s{sC}, v20")
    for w in range(4): A(f"  v_fma_f32 v{40+2*w}, v{40+2*w}, s{sC}, -v20")
    for w in range(4): A(f"  v_exp_f32 v{40+2*w}, v{40+2*w}")
    A("  s_nop 0")
    A("  v_mul_f32 v22, v40, v41")
    for w in range(1, 4): A(f"  v_fmac_f32 v22, v{40+2*w}, v{41+2*w}")
    A("  v_rcp_f32 v21, v22")
    A("  v_log_f32 v22, v22")
    A("  s_waitcnt lgkmcnt(0)")
    for r in range(4): A(f"  v_mul_f32 v{24+r}, v40, v{24+r}")
    for w in range(1, 4):
        for r in range(4): A(f"  v_fmac_f32 v{24+r}, v{40+2*w}, v{24+4*w+r}")
    A("  v_add_f32 v22, v22, v20")
    for r in range(4): A(f"  v_mul_f32 v{24+r}, v21, v{24+r}")
    A("  v_cvt_pk_bf16_f32 v20, v24, v25")
    A("  v_cvt_pk_bf16_f32 v21, v26, v27")
    A("  buffer_store_dwordx4 v[20:23], v8, s[28:31], s46 offen sc1")
    stamp(15)
    A("  s_waitcnt vmcnt(1)")
    stamp(2)
    A("  s_barrier")
    stamp(4)
    stamp(5)
    A("  s_cmp_ge_u32 s2, 192")
    A("  s_cbranch_scc1 L_fin")
    if ydelay: A(f"  s_sleep {ydelay}")
    if notail: A("  s_branch L_ydone")
    A("L_ypoll:")
    for j in range(4):
        A(f"  buffer_load_dwordx4 v[{32+4*j}:{35+4*j}], v2, s[28:31], s47 offen offset:{j*1024} sc1")
    A("  s_waitcnt vmcnt(0)")
    tagcheck([35, 39, 43, 47], "L_ydone", "L_ypoll", psleep)
    for c in range(3):
        A(f"  v_add_f32 v{32+c}, v{32+c}, v{36+c}")
        A(f"  v_add_f32 v{40+c}, v{40+c}, v{44+c}")
    A("  v_add_f32 v34, v34, v42")
    A("  v_add_f32 v32, v32, v40")
    A("  v_add_f32 v33, v33, v41")
    A("  v_mov_b32 v35, v34")
    A("  s_nop 0")
    A("  v_permlane32_swap_b32 v32, v33")
    A("  v_permlane32_swap_b32 v34, v35")
    A("  v_add_f32 v32, v32, v33")
    A("  v_add_f32 v34, v34, v35")
    A("  s_nop 1")
    A("  v_permlane16_swap_b32 v32, v34")
    A("  v_add_f32 v32, v32, v34")
    A("  s_nop 1")
    A(f"  v_add_f32_dpp v32, v32, v32 row_ror:8 {dpp}")
    A("  s_nop 1")
    A(f"  v_add_f32_dpp v32, v32, v32 row_ror:4 {dpp}")
    A("  s_mov_b32 exec_lo, 0x000f000f")
    A("  s_mov_b32 exec_hi, 0x0000000f")
    A("  v_cvt_pk_bf16_f32 v32, v32, v32")
    A("  buffer_store_short v32, v10, s[36:39], s56 offen")
    A("  s_cmp_lg_u32 s2, 0")
    A("  s_cbranch_scc1 L_fin")
    A("  s_mov_b64 exec, 1")
    A("  buffer_store_dword v47, v2, s[28:31], 0 offen sc1")
    A("  s_branch L_fin")
    A("L_attn:")
    A("  s_sub_u32 s3, s3, 1")
    A("  v_bfe_u32 v3, v0, 2, 2")
    A("  v_lshlrev_b32 v1, 8, v3")
    A("  v_lshrrev_b32 v3, 4, v0")
    A("  v_lshl_add_u32 v1, v3, 6, v1")
    A("  v_and_b32 v3, 3, v0")
    A("  v_lshl_add_u32 v1, v3, 4, v1")
    A(f"  s_lshl_b32 s44, s{sPair}, 21")
    A(f"  s_lshl_b32 s45, s{sSplit}, 2")
    A("  s_add_u32 s45, s45, s3")
    A("  s_lshl_b32 s45, s45, 12")
    A(f"  s_mov_b32 s22, {PAIRB}")
    A("  s_mov_b32 s23, 0x20000")
    A(f"  s_mov_b32 s26, {PAIRB}")
    A("  s_mov_b32 s27, 0x20000")
    for d in range(D):
        A(f"  s_add_u32 s{sSlot+d}, s45, {d*STEP}")
    A("  s_waitcnt lgkmcnt(0)")
    A("  s_add_u32 s20, s6, s44")
    A("  s_addc_u32 s21, s7, 0")
    A("  s_add_u32 s24, s8, s44")
    A("  s_addc_u32 s25, s9, 0")
    def reg(kind, d, t):
        return vK + 32 * d + (0 if kind == "K" else 16) + 4 * t
    def loads(kind, d, t):
        srd = "s[20:23]" if kind == "K" else "s[24:27]"
        off = vKoff if kind == "K" else vVoff
        r = reg(kind, d, t)
        A(f"  buffer_load_dwordx4 v[{r}:{r+3}], v{off}, {srd}, s{sSlot+d} offen offset:{t*1024} {kvflags}")
    setup = []
    S = setup.append
    S("  s_mov_b32 s28, s18")
    S("  s_mov_b32 s29, s19")
    S(f"  s_lshl_b32 s44, s{sPair}, 8")
    S(f"  s_add_u32 s44, s44, {WS_CNT}")
    S("  s_add_u32 s46, s18, s44")
    S("  s_addc_u32 s47, s19, 0")
    S(f"  s_add_u32 s59, s45, {D*STEP}")
    S("  s_mov_b32 s57, 1")
    S("  v_and_b32 v3, 1, v0")
    S("  v_mov_b32 v17, 0xffff")
    S("  v_lshlrev_b32 v3, 4, v3")
    S("  v_lshlrev_b32 v17, v3, v17")
    S("  v_bfe_u32 v3, v0, 1, 2")
    for r in range(4):
        S(f"  v_cmp_eq_u32 vcc, {r}, v3")
        S(f"  v_mov_b32 v{vO+r}, 0")
        S("  s_nop 0")
        S(f"  v_cndmask_b32 v{vM+r}, 0, v17, vcc")
    S(f"  v_mov_b32 v{vm}, 0xff800000")
    S(f"  v_mov_b32 v{vl}, 0")
    S("  v_bfe_u32 v3, v0, 3, 1")
    S("  v_lshlrev_b32 v18, 8, v3")
    S("  v_lshrrev_b32 v3, 4, v0")
    S("  v_lshl_add_u32 v18, v3, 6, v18")
    S("  v_and_b32 v3, 3, v0")
    S("  v_lshl_add_u32 v18, v3, 4, v18")
    S(f"  v_add_u32 v18, {L_Q}, v18")
    S(f"  v_mov_b32 v19, {L_FLAG}")
    n = 0
    for d in range(D):
        for kind in "KV":
            for t in range(U):
                if n == pre0:
                    A("  s_barrier")
                    stamp(8)
                if n == min(WIN0, 8 * D - 1):
                    for ln in setup: A(ln)
                if n >= WIN0: A(f"  s_waitcnt vmcnt({WIN0-1})")
                loads(kind, d, t)
                n += 1
    stamp(9)
    A("  s_mov_b32 s61, 0x400000")
    A("L_qwait:")
    A("  ds_read_b64 v[20:21], v19")
    A(f"  ds_read_b128 v[{vQ}:{vQ+3}], v18")
    A("  s_waitcnt lgkmcnt(0)")
    A("  v_readfirstlane_b32 s44, v20")
    A(f"  v_readfirstlane_b32 s{sTag}, v21")
    A("  s_cmp_lg_u32 s44, 0")
    A("  s_cbranch_scc1 L_qgo")
    A("  s_sleep 1")
    A("  s_sub_u32 s61, s61, 1")
    A("  s_cbranch_scc0 L_qwait")
    A("L_qgo:")
    stamp(1)
    STATIC = hyb * STEP
    def body(d, ring):
        for t in range(U):
            r = reg("K", d, t)
            if ring: A(f"  s_waitcnt vmcnt({15 if fine else 15-t})")
            A(f"  v_mfma_f32_16x16x32_bf16 v[{vD+4*t}:{vD+4*t+3}], v[{r}:{r+3}], v[{vQ}:{vQ+3}], 0")
            if ring and fine:
                A(f"  s_cbranch_scc1 L_sk{d}_{t}")
                loads("K", d, t)
                A(f"L_sk{d}_{t}:")
        if ring and not fine:
            A(f"  s_cbranch_scc1 L_sk{d}")
            for t in range(U): loads("K", d, t)
            A(f"L_sk{d}:")
        A("  s_nop 4")
        for j in range(4):
            for t in range(U):
                if j == 0:
                    A(f"  v_mov_b32_dpp v{vS+t}, v{vD+4*t} quad_perm:[0,0,0,0] {dpp}")
                else:
                    A(f"  v_add_f32_dpp v{vS+t}, v{vD+4*t+j}, v{vS+t} quad_perm:[{j},{j},{j},{j}] {dpp}")
        A(f"  v_max3_f32 v{va}, v{vm}, v{vS}, v{vS+1}")
        A(f"  v_max3_f32 v{va}, v{va}, v{vS+2}, v{vS+3}")
        A(f"  v_mov_b32 v{vb}, v{va}")
        A("  s_nop 1")
        A(f"  v_permlane32_swap_b32 v{va}, v{vb}")
        A(f"  v_max_f32 v{va}, v{va}, v{vb}")
        A(f"  v_mov_b32 v{vb}, v{va}")
        A("  s_nop 1")
        A(f"  v_permlane16_swap_b32 v{va}, v{vb}")
        A(f"  v_max_f32 v{va}, v{va}, v{vb}")
        A(f"  v_sub_f32 v{vb}, v{vm}, v{va}")
        A(f"  v_mul_f32 v{vb}, s{sC}, v{vb}")
        A(f"  v_exp_f32 v{vb}, v{vb}")
        A(f"  v_mov_b32 v{vm}, v{va}")
        A(f"  v_mul_f32 v{va}, s{sC}, v{va}")
        for t in range(U):
            A(f"  v_fma_f32 v{vS+t}, v{vS+t}, s{sC}, -v{va}")
        for t in range(U):
            A(f"  v_exp_f32 v{vS+t}, v{vS+t}")
        for r in range(4):
            A(f"  v_mul_f32 v{vO+r}, v{vO+r}, v{vb}")
        A(f"  v_mul_f32 v{vl}, v{vl}, v{vb}")
        for t in range(U):
            A(f"  v_cvt_pk_bf16_f32 v{vT}, v{vS+t}, v{vS+t}")
            for j in range(4):
                A(f"  v_and_b32 v{vB+4*t+j}, v{vT}, v{vM+j}")
            A(f"  v_add_f32 v{vl}, v{vl}, v{vS+t}")
        if ring:
            A(f"  s_cbranch_scc1 L_dw{d}")
            A(f"L_dr{d}:")
        for t in range(U):
            r = reg("V", d, t)
            if ring: A(f"  s_waitcnt vmcnt({15 if fine else 15-t})")
            A(f"  v_mfma_f32_16x16x32_bf16 v[{vO}:{vO+3}], v[{r}:{r+3}], v[{vB+4*t}:{vB+4*t+3}], v[{vO}:{vO+3}]")
            if ring and fine and t < 3:
                A(f"  s_cbranch_scc1 L_sv{d}_{t}")
                loads("V", d, t)
                A(f"L_sv{d}_{t}:")
        if ring:
            A(f"  s_cbranch_scc1 L_sv{d}")
            for t in range(3 if fine else 0, U): loads("V", d, t)
    A("L_loop:")
    for d in range(2):
        A(f"  s_cmp_lt_u32 s59, {STATIC}")
        A(f"  s_cbranch_scc0 L_dy{d}")
        A(f"  s_mov_b32 s{sSlot+d}, s59")
        A(f"  s_add_u32 s59, s59, {STEP}")
        A(f"  s_cmp_ge_u32 s59, {STATIC}")
        A(f"  s_cbranch_scc1 L_tf{d}")
        A(f"L_go{d}:")
        body(d, True)
    A("  s_cmp_eq_u32 s57, 0")
    A("  s_cbranch_scc1 L_loop")
    A("  s_mov_b32 s57, 0")
    stamp(13)
    A("  s_waitcnt vmcnt(16)")
    for e in range(E):
        body(2 + e, False)
    stamp(14)
    A("  s_branch L_loop")
    for d in range(2):
        A(f"L_dy{d}:")
        if tkwait: A("  s_waitcnt vmcnt(15)")
        A("  s_waitcnt lgkmcnt(0)")
        A(f"  s_add_u32 s{sSlot+d}, s60, {STATIC}")
        A(f"  s_cmp_ge_u32 s{sSlot+d}, {PAIRB}")
        A(f"  s_cbranch_scc0 L_tk{d}")
        A(f"  v_mov_b32 v{va}, {L_FLAG}")
        A(f"  ds_write_b32 v{va}, v{va} offset:8")
        if fine: A("  s_waitcnt vmcnt(12)")
        A(f"  s_branch L_go{d}")
        A(f"L_tf{d}:")
        stamp(12)
        A(f"L_tk{d}:")
        A(f"  s_mov_b32 s60, {BLK}")
        A("  s_atomic_add s60, s[46:47], 0 glc")
        A("  s_cmp_eq_u32 s59, 0")
        A(f"  s_branch L_go{d}")
        A(f"L_dw{d}:")
        A("  s_waitcnt vmcnt(8)")
        A(f"  s_cmp_lt_u32 s{sSlot+1-d}, {PAIRB}")
        A(f"  s_cbranch_scc1 L_dr{d}")
        A("  s_waitcnt vmcnt(0)")
        A("  s_cmp_eq_u32 s59, s59")
        A(f"  s_branch L_dr{d}")
        A(f"L_sv{d}:")
        A(f"  s_cmp_ge_u32 s{sSlot+1-d}, {PAIRB}")
        A("  s_cbranch_scc1 L_done")
        A(f"  s_mov_b32 s{sSlot+1-d}, {PAIRB}")
        A("  s_waitcnt vmcnt(4)")
        A("  s_cmp_eq_u32 s59, s59")
        A(f"  s_branch L_go{1-d}")
    A("L_done:")
    stamp(2)
    A(f"  v_mov_b32 v{vb}, v{vl}")
    A("  s_lshl_b32 s44, s3, 10")
    A("  s_lshl_b32 s45, s3, 4")
    A(f"  v_permlane32_swap_b32 v{vl}, v{vb}")
    A(f"  v_add_f32 v{vl}, v{vl}, v{vb}")
    A(f"  v_mov_b32 v{vb}, v{vl}")
    A(f"  s_add_u32 s44, s44, {L_P}")
    A(f"  s_add_u32 s45, s45, {L_ML}")
    A(f"  v_permlane16_swap_b32 v{vl}, v{vb}")
    A(f"  v_add_f32 v{vl}, v{vl}, v{vb}")
    A("  v_and_b32 v5, 8, v0")
    A("  v_add_u32 v6, s44, v2")
    A("  v_add_u32 v7, s45, v5")
    A(f"  ds_write_b128 v6, v[{vO}:{vO+3}]")
    A(f"  ds_write_b64 v7, v[{vm}:{vl}]")
    A("  s_waitcnt lgkmcnt(0)")
    A("  s_barrier")
    stamp(3)
    A("  s_and_b32 s44, s2, 60")
    A("  s_lshl_b32 s45, s3, 6")
    A("  s_add_u32 s44, s44, s45")
    A("  s_lshl_b32 s44, s44, 10")
    A(f"  s_lshl_b32 s45, s{sSplit}, 8")
    A("  s_add_u32 s44, s44, s45")
    A(f"  s_add_u32 s44, s44, {WS_PG}")
    A("  v_lshrrev_b32 v9, 4, v0")
    A("  v_and_b32 v3, 15, v0")
    A("  v_lshlrev_b32 v4, 10, v9")
    A("  v_lshl_add_u32 v4, v3, 4, v4")
    A("  s_lshl_b32 s56, s3, 7")
    A(f"  s_add_u32 s56, s56, {L_O}")
    A("  v_lshl_add_u32 v11, v5, 3, s56")
    A("  v_lshrrev_b32 v3, 5, v0")
    A("  v_lshl_add_u32 v11, v3, 4, v11")
    A("  v_bfe_u32 v3, v0, 4, 1")
    A("  v_lshl_add_u32 v11, v3, 5, v11")
    A("  v_and_b32 v3, 7, v0")
    A("  v_lshl_add_u32 v11, v3, 1, v11")
    A("  v_bfe_u32 v3, v0, 2, 2")
    A("  v_lshl_add_u32 v10, v9, 3, v3")
    A("  v_mul_u32_u24 v10, 288, v10")
    A("  v_and_b32 v1, 3, v0")
    A("  v_lshl_add_u32 v10, v1, 3, v10")
    A("  s_mul_i32 s45, s3, 96")
    A("  v_add_u32 v10, s45, v10")
    A("  v_lshlrev_b32 v1, 7, v3")
    A("  v_lshl_add_u32 v1, v9, 4, v1")
    A(f"  v_add_u32 v1, {L_O}, v1")
    yaddr(6, 3)
    A("  s_lshl_b32 s45, s3, 14")
    A("  s_add_u32 s58, s58, s45")
    A("  s_mov_b32 s61, 0x40000")
    if pdelay: A(f"  s_sleep {pdelay}")
    if notail: A("  s_branch L_pdone")
    A("L_ppoll:")
    A("  buffer_load_dwordx4 v[24:27], v4, s[28:31], s44 offen sc1")
    A("  s_waitcnt vmcnt(0)")
    tagcheck([27], "L_pdone", "L_ppoll", psleep)
    if stamps: A("  s_mov_b32 s86, s61")
    stamp(10)
    A("  v_mov_b32 v28, v26")
    A("  v_mov_b32 v29, v26")
    A("  v_lshlrev_b32 v32, 16, v24")
    A("  v_and_b32 v33, 0xffff0000, v24")
    A("  v_permlane32_swap_b32 v28, v29")
    A("  v_max_f32 v28, v28, v29")
    A("  v_mov_b32 v29, v28")
    A("  v_lshlrev_b32 v34, 16, v25")
    A("  v_and_b32 v35, 0xffff0000, v25")
    A("  v_permlane16_swap_b32 v28, v29")
    A("  v_max_f32 v28, v28, v29")
    A("  v_sub_f32 v28, v26, v28")
    A("  v_exp_f32 v28, v28")
    A("  s_nop 0")
    A("  v_mov_b32 v29, v28")
    for r in range(4): A(f"  v_mul_f32 v{32+r}, v28, v{32+r}")
    A("  v_permlane32_swap_b32 v28, v29")
    A("  v_permlane32_swap_b32 v32, v33")
    A("  v_permlane32_swap_b32 v34, v35")
    A("  v_add_f32 v28, v28, v29")
    A("  v_mov_b32 v29, v28")
    A("  v_add_f32 v32, v32, v33")
    A("  v_add_f32 v34, v34, v35")
    A("  v_permlane16_swap_b32 v28, v29")
    A("  v_add_f32 v28, v28, v29")
    A("  v_permlane16_swap_b32 v32, v34")
    A("  v_rcp_f32 v28, v28")
    A("  v_add_f32 v32, v32, v34")
    A("  v_mul_f32 v32, v32, v28")
    A("  v_cvt_pk_bf16_f32 v32, v32, v32")
    A("  ds_write_b16 v11, v32")
    A("  s_waitcnt lgkmcnt(0)")
    A("  s_barrier")
    stamp(4)
    A("  s_cmp_eq_u32 s3, 3")
    A("  s_cbranch_scc1 L_fin5")
    A("  ds_read_b128 v[36:39], v1")
    for tl in range(3):
        A(f"  ds_read_b64_tr_b16 v[{44+4*tl}:{45+4*tl}], v10 offset:{tl*32}")
        A(f"  ds_read_b64_tr_b16 v[{46+4*tl}:{47+4*tl}], v10 offset:{tl*32+1152}")
    A("  ds_read_b128 v[40:43], v1 offset:64")
    for tl in range(3):
        A(f"  ds_read_b64_tr_b16 v[{56+4*tl}:{57+4*tl}], v10 offset:{tl*32+9216}")
        A(f"  ds_read_b64_tr_b16 v[{58+4*tl}:{59+4*tl}], v10 offset:{tl*32+9216+1152}")
    A("  s_waitcnt lgkmcnt(7)")
    for tl in (2, 1, 0):
        A(f"  v_mfma_f32_16x16x32_bf16 v[{24+4*tl}:{27+4*tl}], v[36:39], v[{44+4*tl}:{47+4*tl}], 0")
    A("  s_waitcnt lgkmcnt(0)")
    for tl in (2, 1, 0):
        A(f"  v_mfma_f32_16x16x32_bf16 v[{24+4*tl}:{27+4*tl}], v[40:43], v[{56+4*tl}:{59+4*tl}], v[{24+4*tl}:{27+4*tl}]")
    A("  s_nop 7")
    A("  v_mov_b32 v26, v32")
    A("  v_mov_b32 v25, v28")
    A(f"  v_mov_b32 v27, s{sTag}")
    A("  buffer_store_dwordx4 v[24:27], v6, s[28:31], s58 offen sc1")
    A("L_fin5:")
    stamp(5)
    A("L_fin:")
    if stamps:
        stamp(6)
        A("  s_mul_i32 s44, s2, 5")
        A("  s_add_u32 s44, s44, s3")
        A("  s_lshl_b32 s44, s44, 6")
        A(f"  s_add_u32 s44, s44, {WS_TS}")
        A("  s_mov_b32 s78, s61")
        A("  s_waitcnt lgkmcnt(0)")
        A("  s_mov_b64 exec, 1")
        for i in range(16):
            A(f"  v_mov_b32 v{64+i}, s{64+2*i}")
        A("  v_mov_b32 v3, 0")
        for j in range(4):
            A(f"  buffer_store_dwordx4 v[{64+4*j}:{67+4*j}], v3, s[28:31], s44 offen offset:{16*j}")
    if spin is not None:
        fixed, mult, sa, sb, who = spin[:5]
        if len(spin) > 5:
            A(f"  s_cmp_eq_u32 s2, {spin[5]}")
            A("  s_cbranch_scc0 L_end")
        A(f"  s_cmp_eq_u32 s3, {who}")
        A("  s_cbranch_scc0 L_end")
        A(f"  s_sub_u32 s44, s{64+2*sb}, s{64+2*sa}")
        A(f"  s_mul_i32 s44, s44, {mult}")
        A(f"  s_add_u32 s44, s44, {fixed}")
        A("  s_min_u32 s44, s44, 200000")
        A("L_spin:")
        A("  s_memrealtime s[46:47]")
        A("  s_waitcnt lgkmcnt(0)")
        A("  s_sub_u32 s45, s46, s64")
        A("  s_cmp_lt_u32 s45, s44")
        A("  s_cbranch_scc1 L_spin")
    if dbg:
        A("  s_mov_b32 s32, s16")
        A("  s_mov_b32 s33, s17")
        A("  s_mov_b32 s34, 256")
        A("  s_mov_b32 s35, 0x20000")
        A("  v_not_b32 v80, v64")
        A("  buffer_atomic_umax v80, v3, s[32:35], 0 offen offset:0")
        A("  buffer_atomic_umax v64, v3, s[32:35], 0 offen offset:4")
        A("  buffer_atomic_umax v70, v3, s[32:35], 0 offen offset:60")
        A("  s_cmp_eq_u32 s3, 4")
        A("  s_cbranch_scc1 L_dbgh")
        for slot, st in ((2, 8), (3, 9), (4, 1), (5, 13), (6, 14), (7, 2), (8, 10), (9, 5)):
            A(f"  buffer_atomic_umax v{64+st}, v3, s[32:35], 0 offen offset:{4*slot}")
        A("  s_branch L_end")
        A("L_dbgh:")
        for slot, st in ((10, 8), (11, 10), (12, 12), (13, 13), (14, 15)):
            A(f"  buffer_atomic_umax v{64+st}, v3, s[32:35], 0 offen offset:{4*slot}")
    A("L_end:")
    A("  s_endpgm")
    A('.section .rodata,"a"')
    A(".p2align 6")
    A(f".amdhsa_kernel {NAME}")
    A(f"  .amdhsa_next_free_vgpr {NV}")
    A("  .amdhsa_next_free_sgpr %d" % (96 if stamps else 64))
    A(f"  .amdhsa_accum_offset {(NV+3)//4*4}")
    A("  .amdhsa_group_segment_fixed_size 0")
    A("  .amdhsa_kernarg_size 64")
    A("  .amdhsa_user_sgpr_count 2")
    A("  .amdhsa_user_sgpr_kernarg_segment_ptr 1")
    A("  .amdhsa_system_sgpr_workgroup_id_x 1")
    A("  .amdhsa_float_denorm_mode_32 3")
    A(".end_amdhsa_kernel")
    return "\n".join(L) + "\n"

if __name__ == "__main__":
    import json
    cfg = json.loads(sys.argv[1]) if len(sys.argv) > 1 else {}
    sys.stdout.write(gen(**cfg))
```

```python
import math, struct, sys
from gen_full import f2u, SCALE, NAME, HEADER

WS_QG = 0x40000
WS_PG = 0x100000
WS_YG = 0x200000
WS_CNT = 0x300000
WS_TS = 0x1000000
WS_SIZE = 0x2000000

L_Q = 19456
L_FLAG = L_Q + 512
L_ML = L_FLAG + 16
L_O = L_Q + 640
L_P = L_O + 512
L_TOTAL = L_P + 4 * 1024

def gen(E=2, WIN0=8, hyb=26, stamps=False, kvflags="nt", wqflags="nt", woflags="nt",
        qdelay=0, pdelay=0, ydelay=0, psleep=0, prew=True, wo_early=False, pre0=0, skip="", xflags="", qpflags="sc1", tkwait=True, fine=False, notail=False, warm=False, dbg=False, spin=None, wo_late=False, GW=None, GWall=False, xdma=False, pair12=False, prer=False, outflags="", ypipe=False, y2=False):
    U = 4
    D = 2 + E
    PAIRB = 2 * 1024 * 1024
    BLK = 4096
    STEP = 16 * BLK
    L = []
    A = L.append
    dpp = "row_mask:0xf bank_mask:0xf"
    vKoff, vVoff, vT = 1, 2, 3
    vQ, vM, vO = 4, 8, 12
    vm, vl, va, vb = 16, 17, 18, 19
    vS, vD, vB = 20, 24, 24
    vK = 40
    NV = max(vK + 32 * D, 132)
    sTag, sC, sPair, sSplit = 40, 41, 42, 43
    sSlot = 48
    def stamp(i):
        if stamps:
            A(f"  s_memrealtime s[{64+2*i}:{65+2*i}]")
    def tagcheck(regs, label_ok, label_loop, sleep):
        if len(regs) == 1:
            A(f"  v_cmp_eq_u32 vcc, s{sTag}, v{regs[0]}")
        else:
            A(f"  v_min3_u32 v22, v{regs[0]}, v{regs[1]}, v{regs[2]}")
            A(f"  v_max3_u32 v23, v{regs[0]}, v{regs[1]}, v{regs[2]}")
            i = 3
            while i < len(regs):
                if i + 1 < len(regs):
                    A(f"  v_min3_u32 v22, v22, v{regs[i]}, v{regs[i+1]}")
                    A(f"  v_max3_u32 v23, v23, v{regs[i]}, v{regs[i+1]}")
                    i += 2
                else:
                    A(f"  v_min_u32 v22, v22, v{regs[i]}")
                    A(f"  v_max_u32 v23, v23, v{regs[i]}")
                    i += 1
            A(f"  v_cmp_eq_u32 vcc, s{sTag}, v22")
            A(f"  v_cmp_eq_u32 s[62:63], s{sTag}, v23")
            A("  s_and_b64 vcc, vcc, s[62:63]")
        A("  s_cmp_eq_u64 vcc, -1")
        A(f"  s_cbranch_scc1 {label_ok}")
        if sleep: A(f"  s_sleep {sleep}")
        A("  s_sub_u32 s61, s61, 1")
        A(f"  s_cbranch_scc0 {label_loop}")
        A(f"{label_ok}:")
    def yaddr(vdst, vtmp):
        A("  s_mov_b32 s45, 196608")
        A(f"  v_mul_lo_u32 v{vdst}, v9, s45")
        if y2:
            A(f"  v_bfe_u32 v{vtmp}, v0, 3, 1")
            A(f"  v_lshl_add_u32 v{vdst}, v{vtmp}, 13, v{vdst}")
            A(f"  v_and_b32 v{vtmp}, 7, v0")
        else:
            A(f"  v_bfe_u32 v{vtmp}, v0, 2, 2")
            A(f"  v_lshl_add_u32 v{vdst}, v{vtmp}, 12, v{vdst}")
            A(f"  v_and_b32 v{vtmp}, 3, v0")
        A(f"  v_lshl_add_u32 v{vdst}, v{vtmp}, 4, v{vdst}")
        A("  s_lshr_b32 s45, s2, 6")
        A("  s_mul_i32 s58, s45, 49152")
        A("  s_and_b32 s45, s2, 63")
        A(f"  s_lshl_b32 s45, s45, {7 if y2 else 6}")
        A("  s_add_u32 s58, s58, s45")
        A(f"  s_add_u32 s58, s58, {WS_YG}")
    for ln in HEADER.rstrip("\n").split("\n"): A(ln)
    A(f"; @launch grid=(256,1,1) block=(320,1,1) lds={L_TOTAL}")
    A('.amdgcn_target "amdgcn-amd-amdhsa--gfx950"')
    A(".text")
    A(f".globl {NAME}")
    A(".p2align 8")
    A(f".type {NAME},@function")
    A(f"{NAME}:")
    A("  s_cmp_ge_u32 s2, 256")
    A("  s_cbranch_scc1 L_end")
    A("  s_load_dwordx16 s[4:19], s[0:1], 0")
    stamp(0)
    A("  v_lshrrev_b32 v3, 6, v0")
    A("  v_and_b32 v0, 63, v0")
    A("  v_readfirstlane_b32 s3, v3")
    A("  v_lshlrev_b32 v2, 4, v0")
    A(f"  s_lshr_b32 s{sPair}, s2, 2")
    A(f"  s_and_b32 s{sSplit}, s2, 3")
    A(f"  s_mov_b32 s30, {WS_SIZE}")
    A("  s_mov_b32 s31, 0x20000")
    A(f"  s_mov_b32 s{sC}, {hex(f2u(SCALE))}")
    A("  s_mov_b32 s61, 0x40000")
    A("  s_cmp_lg_u32 s3, 0")
    A("  s_cbranch_scc1 L_attn")
    if warm:
        A("  s_getpc_b64 s[52:53]")
        A("L_pc:")
        A("  v_lshlrev_b32 v4, 7, v0")
        A("  v_min_u32 v4, L_end-L_pc, v4")
        A("  global_load_dword v131, v4, s[52:53]")
    A("  s_and_b32 s44, s2, 7")
    A("  s_lshl_b32 s44, s44, 5")
    A("  s_lshr_b32 s45, s2, 3")
    A("  s_add_u32 s44, s44, s45")
    A("  v_lshrrev_b32 v9, 4, v0")
    A("  v_bfe_u32 v4, v0, 2, 2")
    A("  v_lshl_add_u32 v4, v9, 3, v4")
    A("  v_and_b32 v8, 3, v0")
    A("  v_lshlrev_b32 v5, 4, v8")
    A("  v_lshl_add_u32 v6, v4, 13, v5")
    A("  v_mul_u32_u24 v7, 1152, v8")
    A("  v_lshl_add_u32 v7, v9, 4, v7")
    A("  s_mov_b32 s34, 4718592")
    A("  s_mov_b32 s35, 0x20000")
    A("  s_mov_b32 s38, 4608")
    A("  s_mov_b32 s39, 0x20000")
    A("  s_lshr_b32 s45, s44, 1")
    A("  s_lshl_b32 s45, s45, 6")
    A("  s_and_b32 s47, s44, 1")
    A("  s_mul_i32 s46, s47, 2359296")
    A("  s_add_u32 s45, s45, s46")
    A("  s_add_u32 s46, s45, 32768")
    A("  s_mul_i32 s56, s47, 576")
    A("  s_mov_b32 m0, 0")
    A(f"  v_mov_b32 v3, {L_FLAG}")
    A("  v_mov_b32 v12, 0")
    A("  v_mov_b32 v13, 0")
    A("  v_mov_b32 v14, 0")
    A("  v_mov_b32 v15, 0")
    A("  ds_write_b128 v3, v[12:15]")
    A("  s_waitcnt lgkmcnt(0)")
    stamp(8)
    A("  s_mov_b32 s36, s4")
    A("  s_mov_b32 s37, s5")
    A("  s_mov_b32 s32, s10")
    A("  s_mov_b32 s33, s11")
    A("  s_load_dword s60, s[18:19], 0")
    vX = 24; vW = 60
    if xdma:
        A(f"  s_mov_b32 m0, {L_P}")
        A("  s_mov_b32 exec_hi, 15")
        for b in range(4):
            A(f"  buffer_load_dwordx4 v2, s[36:39], s56 offen offset:{b*1152} lds")
        A("  s_mov_b32 exec_hi, -1")
        A("  s_mov_b32 m0, 0")
    for t in range(9):
        if "x" not in skip and not xdma: A(f"  buffer_load_dwordx4 v[{vX+4*t}:{vX+4*t+3}], v7, s[36:39], s56 offen offset:{t*64} {xflags}")
    A("  s_mov_b32 s28, s18")
    A("  s_mov_b32 s29, s19")
    A("  s_and_b32 s56, s44, 15")
    A("  s_cmp_lg_u32 s56, 0")
    A("  s_cbranch_scc1 L_wq")
    A("  v_lshlrev_b32 v5, 12, v0")
    A("  s_lshl_b32 s56, s44, 4")
    A(f"  s_add_u32 s56, s56, {WS_CNT}")
    A("  s_mov_b64 exec, 15")
    A("  buffer_store_dword v12, v5, s[28:31], s56 offen sc1")
    A("  s_mov_b64 exec, -1")
    A("L_wq:")
    if "w" not in skip: A(f"  buffer_load_dwordx4 v6, s[32:35], s45 offen {wqflags} lds")
    A("  s_add_u32 m0, m0, 1024")
    A("  s_add_u32 s45, s45, 0x40000")
    if "w" not in skip: A(f"  buffer_load_dwordx4 v6, s[32:35], s46 offen {wqflags} lds")
    A("  s_add_u32 m0, m0, 1024")
    A("  s_add_u32 s46, s46, 0x40000")
    A("  s_cmp_lt_u32 m0, 18432")
    A("  s_cbranch_scc1 L_wq")
    A("  s_barrier")
    stamp(9)
    A("  v_lshrrev_b32 v10, 2, v0")
    A("  v_lshlrev_b32 v10, 6, v10")
    A("  v_lshl_add_u32 v10, v8, 3, v10")
    A("  v_lshlrev_b32 v4, 16, v8")
    A("  v_lshl_add_u32 v4, v9, 5, v4")
    A("  v_bfe_u32 v5, v0, 3, 1")
    A("  v_lshl_add_u32 v4, v5, 7, v4")
    A("  v_bfe_u32 v5, v0, 2, 1")
    A("  v_lshl_add_u32 v4, v5, 4, v4")
    A("  s_lshr_b32 s45, s44, 4")
    A("  s_lshl_b32 s45, s45, 12")
    A("  s_lshl_b32 s46, s47, 11")
    A("  s_add_u32 s45, s45, s46")
    A("  s_bfe_u32 s46, s44, 0x30001")
    A("  s_lshl_b32 s46, s46, 8")
    A("  s_add_u32 s45, s45, s46")
    A(f"  s_add_u32 s45, s45, {WS_QG}")
    A("  s_mov_b32 s56, 0xf0f0f0f0")
    A("  s_mov_b32 s57, 0xf0f0f0f0")
    A("  s_mov_b32 s58, 0xff00ff00")
    A("  s_mov_b32 s59, 0xff00ff00")
    A("  s_waitcnt lgkmcnt(0)")
    stamp(14)
    A(f"  s_mul_i32 s{sTag}, s60, 0x9e3779b1")
    A(f"  s_add_u32 s{sTag}, s{sTag}, 0x7f4a7c15")
    A(f"  v_mov_b32 v21, s{sTag}")
    A(f"  v_mov_b32 v23, s{sTag}")
    if xdma:
        A("  s_waitcnt vmcnt(18)")
        for t in range(9):
            A(f"  ds_read_b128 v[{vX+4*t}:{vX+4*t+3}], v7 offset:{L_P + t*64}")
    def qmfma(t):
        for j in range(2):
            r = vW + 8 * t + 4 * j
            c = "0" if t == 0 else f"v[{12+4*j}:{15+4*j}]"
            A(f"  v_mfma_f32_16x16x32_bf16 v[{12+4*j}:{15+4*j}], v[{r}:{r+3}], v[{vX+4*t}:{vX+4*t+3}], {c}")
    for t in range(9):
        A(f"  s_waitcnt vmcnt({16-2*t})")
        if t == 8: stamp(10)
        for j in range(2):
            r = vW + 8 * t + 4 * j
            A(f"  ds_read_b64_tr_b16 v[{r}:{r+1}], v10 offset:{t*2048 + j*32}")
            A(f"  ds_read_b64_tr_b16 v[{r+2}:{r+3}], v10 offset:{t*2048 + 1024 + j*32}")
        if t >= 1:
            A("  s_waitcnt lgkmcnt(4)")
            qmfma(t - 1)
    A("  s_waitcnt lgkmcnt(0)")
    qmfma(8)
    A("  s_nop 7")
    A("  v_cndmask_b32 v12, v12, v14, s[56:57]")
    A("  v_cndmask_b32 v13, v13, v15, s[56:57]")
    A("  v_cndmask_b32 v16, v16, v18, s[56:57]")
    A("  v_cndmask_b32 v17, v17, v19, s[56:57]")
    A("  v_cndmask_b32 v20, v12, v16, s[58:59]")
    A("  v_cndmask_b32 v22, v13, v17, s[58:59]")
    if "s" not in skip: A("  buffer_store_dwordx4 v[20:23], v4, s[28:31], s45 offen sc1")
    stamp(1)
    A(f"  s_lshl_b32 s45, s{sPair}, 12")
    A(f"  s_add_u32 s45, s45, {WS_QG}")
    A("  v_lshlrev_b32 v11, 2, v0")
    A(f"  v_add_u32 v11, {L_Q}, v11")
    if qdelay: A(f"  s_sleep {qdelay}")
    if "p" in skip: A("  s_branch L_qdone")
    A("L_qpoll:")
    for j in range(4):
        A(f"  buffer_load_dwordx4 v[{24+4*j}:{27+4*j}], v2, s[28:31], s45 offen offset:{j*1024} {qpflags}")
    A("  s_waitcnt vmcnt(0)")
    tagcheck([25, 27, 29, 31, 33, 35, 37, 39], "L_qdone", "L_qpoll", 0)
    A("  v_add_f32 v24, v24, v32")
    A("  v_add_f32 v26, v26, v34")
    A("  v_add_f32 v28, v28, v36")
    A("  v_add_f32 v30, v30, v38")
    A("  v_cvt_pk_bf16_f32 v24, v24, v26")
    A("  v_cvt_pk_bf16_f32 v28, v28, v30")
    A("  v_mov_b32 v20, 1")
    A("  ds_write_b32 v11, v24")
    A("  ds_write_b32 v11, v28 offset:256")
    A("  ds_write_b64 v3, v[20:21]")
    if stamps: A("  s_mov_b32 s86, s61")
    stamp(12)
    A("  v_bfe_u32 v4, v0, 3, 1")
    A("  v_lshlrev_b32 v8, 9, v4")
    A("  v_lshl_add_u32 v8, v9, 7, v8")
    A("  v_and_b32 v4, 7, v0")
    A("  v_lshl_add_u32 v8, v4, 4, v8")
    A("  s_lshl_b32 s46, s2, 10")
    A(f"  s_add_u32 s46, s46, {WS_PG}")
    if prew:
        yaddr(7, 4)
        A("  v_mov_b32 v15, s60")
        A("  buffer_store_dwordx4 v[12:15], v2, s[28:31], s46 offen sc1")
        for tg in range(3):
            A("  buffer_store_dwordx4 v[12:15], v7, s[28:31], s58 offen sc1")
            if tg < 2: A("  s_add_u32 s58, s58, 16384")
    A("  s_mov_b32 s32, s12")
    A("  s_mov_b32 s33, s13")
    A("  s_and_b32 s44, s2, 63")
    A("  s_mul_i32 s44, s44, 73728")
    A("  s_lshr_b32 s45, s2, 6")
    A("  s_mul_i32 s45, s45, 288")
    A("  s_add_u32 s44, s44, s45")
    A("  v_mul_u32_u24 v4, 57, v0")
    A("  v_lshrrev_b32 v4, 10, v4")
    A("  v_mul_u32_u24 v4, 864, v4")
    A("  v_add_u32 v6, v4, v2")
    A(f"  v_add_u32 v4, {L_P}, v2")
    A("  v_and_b32 v5, 8, v0")
    A(f"  v_add_u32 v5, {L_ML}, v5")
    A(f"  v_mov_b32 v23, s{sTag}")
    if y2:
        A("  s_lshr_b32 s47, s2, 1")
        A("  s_lshl_b32 s47, s47, 13")
        A("  s_and_b32 s45, s2, 1")
        A("  s_lshl_b32 s45, s45, 6")
        A("  s_add_u32 s47, s47, s45")
        A("  v_lshrrev_b32 v1, 2, v0")
        A("  v_lshlrev_b32 v1, 7, v1")
        A("  v_and_b32 v11, 3, v0")
        A("  v_lshl_add_u32 v1, v11, 4, v1")
        A("  v_add_u32 v7, 4096, v1")
    else:
        A("  s_lshl_b32 s47, s2, 12")
    A(f"  s_add_u32 s47, s47, {WS_YG}")
    def yload(j):
        if y2: A(f"  buffer_load_dwordx4 v[{32+4*j}:{35+4*j}], v{7 if j >= 2 else 1}, s[28:31], s47 offen offset:{(j&1)*2048} sc1")
        else: A(f"  buffer_load_dwordx4 v[{32+4*j}:{35+4*j}], v2, s[28:31], s47 offen offset:{j*1024} sc1")
    if prer:
        A("  buffer_load_dwordx4 v[48:51], v2, s[28:31], s46 offen sc1")
        for j in range(4):
            yload(j)
    A("  s_mov_b32 s36, s14")
    A("  s_mov_b32 s37, s15")
    A("  s_lshr_b32 s56, s2, 2")
    A("  s_mul_i32 s56, s56, 96")
    A("  s_and_b32 s57, s2, 3")
    A("  s_lshl_b32 s57, s57, 3")
    A("  s_add_u32 s56, s56, s57")
    A("  v_lshrrev_b32 v10, 5, v0")
    A("  v_bfe_u32 v11, v0, 4, 1")
    A("  v_lshl_add_u32 v10, v11, 1, v10")
    A("  v_lshlrev_b32 v10, 5, v10")
    A("  v_and_b32 v11, 3, v0")
    A("  v_lshl_add_u32 v10, v11, 1, v10")
    A("  s_mov_b32 s3, 4")
    A("  s_mov_b32 m0, 0")
    A("  s_waitcnt vmcnt(0)")
    def wo_issue():
        stamp(13)
        A("  s_mov_b32 exec_hi, 0x3fffff")
        A("L_wo:")
        if "o" not in skip: A(f"  buffer_load_dwordx4 v6, s[32:35], s44 offen {woflags} lds")
        A("  s_add_u32 m0, m0, 864")
        A("  s_add_u32 s44, s44, 3456")
        A("  s_cmp_lt_u32 m0, 18432")
        A("  s_cbranch_scc1 L_wo")
        A("  s_mov_b32 exec_hi, -1")
    if not wo_early and wo_late != 2:
        A("  s_mov_b32 s61, 0x100000")
        A("L_wait_end:")
        A("  s_sleep 2")
        A("  ds_read_b32 v24, v3 offset:8")
        A("  s_waitcnt lgkmcnt(0)")
        A("  v_readfirstlane_b32 s45, v24")
        A("  s_cmp_lg_u32 s45, 0")
        A("  s_cbranch_scc1 L_wo_go")
        A("  s_sub_u32 s61, s61, 1")
        A("  s_cbranch_scc0 L_wait_end")
        A("L_wo_go:")
    if wo_late != 2: wo_issue()
    A("  s_mov_b32 s61, 0x40000")
    A("  s_barrier")
    stamp(3)
    for w in range(4):
        A(f"  ds_read_b64 v[{40+2*w}:{41+2*w}], v5 offset:{w*16}")
    for w in range(4):
        A(f"  ds_read_b128 v[{24+4*w}:{27+4*w}], v4 offset:{w*1024}")
    A("  s_waitcnt lgkmcnt(4)")
    A("  v_max3_f32 v20, v40, v42, v44")
    A("  v_max_f32 v20, v20, v46")
    A(f"  v_mul_f32 v20, s{sC}, v20")
    for w in range(4): A(f"  v_fma_f32 v{40+2*w}, v{40+2*w}, s{sC}, -v20")
    for w in range(4): A(f"  v_exp_f32 v{40+2*w}, v{40+2*w}")
    A("  s_nop 0")
    A("  v_mul_f32 v22, v40, v41")
    for w in range(1, 4): A(f"  v_fmac_f32 v22, v{40+2*w}, v{41+2*w}")
    A("  v_rcp_f32 v21, v22")
    A("  v_log_f32 v22, v22")
    A("  s_waitcnt lgkmcnt(0)")
    for r in range(4): A(f"  v_mul_f32 v{24+r}, v40, v{24+r}")
    for w in range(1, 4):
        for r in range(4): A(f"  v_fmac_f32 v{24+r}, v{40+2*w}, v{24+4*w+r}")
    A("  v_add_f32 v22, v22, v20")
    for r in range(4): A(f"  v_mul_f32 v{24+r}, v21, v{24+r}")
    A("  v_cvt_pk_bf16_f32 v20, v24, v25")
    A("  v_cvt_pk_bf16_f32 v21, v26, v27")
    A("  buffer_store_dwordx4 v[20:23], v8, s[28:31], s46 offen sc1")
    stamp(15)
    if wo_late == 2: wo_issue()
    A(f"  s_waitcnt vmcnt({0 if wo_late == 2 else 1})")
    stamp(2)
    A("  s_barrier")
    stamp(4)
    stamp(5)
    A("  s_cmp_ge_u32 s2, 192")
    A("  s_cbranch_scc1 L_fin")
    if ydelay: A(f"  s_sleep {ydelay}")
    if notail: A("  s_branch L_ydone")
    if not ypipe:
        A("L_ypoll:")
        for j in range(4):
            yload(j)
        A("  s_waitcnt vmcnt(0)")
        tagcheck([35, 39, 43, 47], "L_ydone", "L_ypoll", psleep)
    else:
        for j in range(4):
            yload(j)
        A("L_ypoll:")
        A("  s_waitcnt vmcnt(0)")
        A("  s_mov_b32 s45, 0")
        for j in range(4):
            A(f"  v_cmp_ne_u32 vcc, s{sTag}, v{35+4*j}")
            A(f"  s_cbranch_vccz L_yok{j}")
            yload(j)
            A("  s_mov_b32 s45, 1")
            A(f"L_yok{j}:")
        A("  s_cmp_eq_u32 s45, 0")
        A("  s_cbranch_scc1 L_ydone")
        A("  s_sub_u32 s61, s61, 1")
        A("  s_cbranch_scc0 L_ypoll")
        A("  s_waitcnt vmcnt(0)")
        A("L_ydone:")
    for c in range(3):
        A(f"  v_add_f32 v{32+c}, v{32+c}, v{36+c}")
        A(f"  v_add_f32 v{40+c}, v{40+c}, v{44+c}")
    A("  v_add_f32 v34, v34, v42")
    A("  v_add_f32 v32, v32, v40")
    A("  v_add_f32 v33, v33, v41")
    A("  v_mov_b32 v35, v34")
    A("  s_nop 0")
    A("  v_permlane32_swap_b32 v32, v33")
    A("  v_permlane32_swap_b32 v34, v35")
    A("  v_add_f32 v32, v32, v33")
    A("  v_add_f32 v34, v34, v35")
    A("  s_nop 1")
    A("  v_permlane16_swap_b32 v32, v34")
    A("  v_add_f32 v32, v32, v34")
    A("  s_nop 1")
    A(f"  v_add_f32_dpp v32, v32, v32 row_ror:8 {dpp}")
    A("  s_nop 1")
    A(f"  v_add_f32_dpp v32, v32, v32 row_ror:4 {dpp}")
    A("  s_mov_b32 exec_lo, 0x000f000f")
    A("  s_mov_b32 exec_hi, 0x0000000f")
    A("  v_cvt_pk_bf16_f32 v32, v32, v32")
    A(f"  buffer_store_short v32, v10, s[36:39], s56 offen {outflags}")
    A("  s_cmp_lg_u32 s2, 0")
    A("  s_cbranch_scc1 L_fin")
    A("  s_mov_b64 exec, 1")
    A("  buffer_store_dword v47, v2, s[28:31], 0 offen sc1")
    A("  s_branch L_fin")
    A("L_attn:")
    A("  s_sub_u32 s3, s3, 1")
    def remap(r, tmp):
        if pair12 == 1:
            A(f"  s_and_b32 s{tmp}, s{r}, 4096")
            A(f"  s_lshr_b32 s{tmp}, s{tmp}, 1")
            A(f"  s_sub_u32 s{r}, s{r}, s{tmp}")
        if pair12 == 2:
            A(f"  s_bfe_u32 s{tmp}, s{r}, 0x2000c")
            A(f"  s_mulk_i32 s{tmp}, 3072")
            A(f"  s_sub_u32 s{r}, s{r}, s{tmp}")
    if pair12 == 2:
        A("  v_bfe_u32 v3, v0, 2, 2")
        A("  v_lshlrev_b32 v1, 12, v3")
        A("  v_and_b32 v3, 15, v0")
        A(f"  v_lshlrev_b32 v{vVoff}, 4, v3")
        A("  v_lshrrev_b32 v3, 4, v0")
        A(f"  v_lshl_add_u32 v{vVoff}, v3, 12, v{vVoff}")
    elif pair12:
        A("  v_bfe_u32 v3, v0, 2, 1")
        A("  v_lshlrev_b32 v1, 8, v3")
        A("  v_bfe_u32 v3, v0, 3, 1")
        A("  v_lshl_add_u32 v1, v3, 12, v1")
        A("  v_and_b32 v3, 31, v0")
        A(f"  v_lshlrev_b32 v{vVoff}, 4, v3")
        A("  v_lshrrev_b32 v3, 5, v0")
        A(f"  v_lshl_add_u32 v{vVoff}, v3, 12, v{vVoff}")
    else:
        A("  v_bfe_u32 v3, v0, 2, 2")
        A("  v_lshlrev_b32 v1, 8, v3")
    A("  v_lshrrev_b32 v3, 4, v0")
    A("  v_lshl_add_u32 v1, v3, 6, v1")
    A("  v_and_b32 v3, 3, v0")
    A("  v_lshl_add_u32 v1, v3, 4, v1")
    A(f"  s_lshl_b32 s44, s{sPair}, 21")
    A(f"  s_lshl_b32 s45, s{sSplit}, 2")
    A("  s_add_u32 s45, s45, s3")
    A("  s_lshl_b32 s45, s45, 12")
    remap(45, 46)
    A(f"  s_mov_b32 s22, {PAIRB}")
    A("  s_mov_b32 s23, 0x20000")
    A(f"  s_mov_b32 s26, {PAIRB}")
    A("  s_mov_b32 s27, 0x20000")
    for d in range(D):
        A(f"  s_add_u32 s{sSlot+d}, s45, {d*STEP}")
    A("  s_waitcnt lgkmcnt(0)")
    A("  s_add_u32 s20, s6, s44")
    A("  s_addc_u32 s21, s7, 0")
    A("  s_add_u32 s24, s8, s44")
    A("  s_addc_u32 s25, s9, 0")
    def reg(kind, d, t):
        return vK + 32 * d + (0 if kind == "K" else 16) + 4 * t
    def loads(kind, d, t):
        srd = "s[20:23]" if kind == "K" else "s[24:27]"
        off = vKoff if kind == "K" else vVoff
        r = reg(kind, d, t)
        A(f"  buffer_load_dwordx4 v[{r}:{r+3}], v{off}, {srd}, s{sSlot+d} offen offset:{t*(1024 >> int(pair12))} {kvflags}")
    setup = []
    S = setup.append
    S("  s_mov_b32 s28, s18")
    S("  s_mov_b32 s29, s19")
    S(f"  s_lshl_b32 s44, s{sPair}, 8")
    S(f"  s_add_u32 s44, s44, {WS_CNT}")
    S("  s_add_u32 s46, s18, s44")
    S("  s_addc_u32 s47, s19, 0")
    S(f"  s_add_u32 s59, s45, {D*STEP}")
    S("  s_mov_b32 s57, 1")
    S("  v_and_b32 v3, 1, v0")
    S("  v_mov_b32 v17, 0xffff")
    S("  v_lshlrev_b32 v3, 4, v3")
    S("  v_lshlrev_b32 v17, v3, v17")
    S("  v_bfe_u32 v3, v0, 1, 2")
    for r in range(4):
        S(f"  v_cmp_eq_u32 vcc, {r}, v3")
        S(f"  v_mov_b32 v{vO+r}, 0")
        S("  s_nop 0")
        S(f"  v_cndmask_b32 v{vM+r}, 0, v17, vcc")
    S(f"  v_mov_b32 v{vm}, 0xff800000")
    S(f"  v_mov_b32 v{vl}, 0")
    S("  v_bfe_u32 v3, v0, 3, 1")
    S("  v_lshlrev_b32 v18, 8, v3")
    S("  v_lshrrev_b32 v3, 4, v0")
    S("  v_lshl_add_u32 v18, v3, 6, v18")
    S("  v_and_b32 v3, 3, v0")
    S("  v_lshl_add_u32 v18, v3, 4, v18")
    S(f"  v_add_u32 v18, {L_Q}, v18")
    S(f"  v_mov_b32 v19, {L_FLAG}")
    n = 0
    for d in range(D):
        for kind in "KV":
            for t in range(U):
                if n == pre0:
                    A("  s_barrier")
                    stamp(8)
                if n == min(WIN0, 8 * D - 1):
                    for ln in setup: A(ln)
                if n >= WIN0: A(f"  s_waitcnt vmcnt({WIN0-1})")
                loads(kind, d, t)
                n += 1
    stamp(9)
    A("  s_mov_b32 s61, 0x400000")
    A("L_qwait:")
    A("  ds_read_b64 v[20:21], v19")
    A(f"  ds_read_b128 v[{vQ}:{vQ+3}], v18")
    A("  s_waitcnt lgkmcnt(0)")
    A("  v_readfirstlane_b32 s44, v20")
    A(f"  v_readfirstlane_b32 s{sTag}, v21")
    A("  s_cmp_lg_u32 s44, 0")
    A("  s_cbranch_scc1 L_qgo")
    A("  s_sleep 1")
    A("  s_sub_u32 s61, s61, 1")
    A("  s_cbranch_scc0 L_qwait")
    A("L_qgo:")
    stamp(1)
    STATIC = hyb * STEP
    def gate(tag):
        if GW is None: return
        if not GWall: A(f"  s_cbranch_vccz L_g{tag}")
        A(f"  s_waitcnt vmcnt({GW})")
        A(f"L_g{tag}:")
    A("  s_mov_b64 vcc, 0")
    def body(d, ring):
        for t in range(U):
            r = reg("K", d, t)
            if ring: A(f"  s_waitcnt vmcnt({15 if fine else 15-t})")
            A(f"  v_mfma_f32_16x16x32_bf16 v[{vD+4*t}:{vD+4*t+3}], v[{r}:{r+3}], v[{vQ}:{vQ+3}], 0")
            if ring and fine:
                A(f"  s_cbranch_scc1 L_sk{d}_{t}")
                loads("K", d, t)
                A(f"L_sk{d}_{t}:")
        if ring and not fine:
            A(f"  s_cbranch_scc1 L_sk{d}")
            gate(f"k{d}")
            for t in range(U): loads("K", d, t)
            A(f"L_sk{d}:")
        A("  s_nop 4")
        for j in range(4):
            for t in range(U):
                if j == 0:
                    A(f"  v_mov_b32_dpp v{vS+t}, v{vD+4*t} quad_perm:[0,0,0,0] {dpp}")
                else:
                    A(f"  v_add_f32_dpp v{vS+t}, v{vD+4*t+j}, v{vS+t} quad_perm:[{j},{j},{j},{j}] {dpp}")
        A(f"  v_max3_f32 v{va}, v{vm}, v{vS}, v{vS+1}")
        A(f"  v_max3_f32 v{va}, v{va}, v{vS+2}, v{vS+3}")
        A(f"  v_mov_b32 v{vb}, v{va}")
        A("  s_nop 1")
        A(f"  v_permlane32_swap_b32 v{va}, v{vb}")
        A(f"  v_max_f32 v{va}, v{va}, v{vb}")
        A(f"  v_mov_b32 v{vb}, v{va}")
        A("  s_nop 1")
        A(f"  v_permlane16_swap_b32 v{va}, v{vb}")
        A(f"  v_max_f32 v{va}, v{va}, v{vb}")
        A(f"  v_sub_f32 v{vb}, v{vm}, v{va}")
        A(f"  v_mul_f32 v{vb}, s{sC}, v{vb}")
        A(f"  v_exp_f32 v{vb}, v{vb}")
        A(f"  v_mov_b32 v{vm}, v{va}")
        A(f"  v_mul_f32 v{va}, s{sC}, v{va}")
        for t in range(U):
            A(f"  v_fma_f32 v{vS+t}, v{vS+t}, s{sC}, -v{va}")
        for t in range(U):
            A(f"  v_exp_f32 v{vS+t}, v{vS+t}")
        for r in range(4):
            A(f"  v_mul_f32 v{vO+r}, v{vO+r}, v{vb}")
        A(f"  v_mul_f32 v{vl}, v{vl}, v{vb}")
        for t in range(U):
            A(f"  v_cvt_pk_bf16_f32 v{vT}, v{vS+t}, v{vS+t}")
            for j in range(4):
                A(f"  v_and_b32 v{vB+4*t+j}, v{vT}, v{vM+j}")
            A(f"  v_add_f32 v{vl}, v{vl}, v{vS+t}")
        if ring:
            A(f"  s_cbranch_scc1 L_dw{d}")
            A(f"L_dr{d}:")
        for t in range(U):
            r = reg("V", d, t)
            if ring: A(f"  s_waitcnt vmcnt({15 if fine else 15-t})")
            A(f"  v_mfma_f32_16x16x32_bf16 v[{vO}:{vO+3}], v[{r}:{r+3}], v[{vB+4*t}:{vB+4*t+3}], v[{vO}:{vO+3}]")
            if ring and fine and t < 3:
                A(f"  s_cbranch_scc1 L_sv{d}_{t}")
                loads("V", d, t)
                A(f"L_sv{d}_{t}:")
        if ring:
            A(f"  s_cbranch_scc1 L_sv{d}")
            gate(f"v{d}")
            for t in range(3 if fine else 0, U): loads("V", d, t)
    A("L_loop:")
    for d in range(2):
        A(f"  s_cmp_lt_u32 s59, {STATIC}")
        A(f"  s_cbranch_scc0 L_dy{d}")
        A(f"  s_mov_b32 s{sSlot+d}, s59")
        A(f"  s_add_u32 s59, s59, {STEP}")
        A(f"  s_cmp_ge_u32 s59, {STATIC}")
        A(f"  s_cbranch_scc1 L_tf{d}")
        A(f"L_go{d}:")
        body(d, True)
    A("  s_cmp_eq_u32 s57, 0")
    A("  s_cbranch_scc1 L_loop")
    A("  s_mov_b32 s57, 0")
    stamp(13)
    A("  s_waitcnt vmcnt(16)")
    for e in range(E):
        body(2 + e, False)
    stamp(14)
    A("  s_branch L_loop")
    for d in range(2):
        A(f"L_dy{d}:")
        if tkwait: A("  s_waitcnt vmcnt(15)")
        A("  s_waitcnt lgkmcnt(0)")
        A(f"  s_add_u32 s{sSlot+d}, s60, {STATIC}")
        remap(sSlot + d, 56)
        A(f"  s_cmp_ge_u32 s{sSlot+d}, {PAIRB}")
        A(f"  s_cbranch_scc0 L_tk{d}")
        stamp(15)
        if not wo_late:
            A(f"  v_mov_b32 v{va}, {L_FLAG}")
            A(f"  ds_write_b32 v{va}, v{va} offset:8")
        if fine: A("  s_waitcnt vmcnt(12)")
        A(f"  s_branch L_go{d}")
        A(f"L_tf{d}:")
        A("  s_mov_b64 vcc, -1")
        stamp(12)
        A(f"L_tk{d}:")
        A(f"  s_mov_b32 s60, {BLK}")
        A("  s_atomic_add s60, s[46:47], 0 glc")
        A("  s_cmp_eq_u32 s59, 0")
        A(f"  s_branch L_go{d}")
        A(f"L_dw{d}:")
        A("  s_waitcnt vmcnt(8)")
        A(f"  s_cmp_lt_u32 s{sSlot+1-d}, {PAIRB}")
        A(f"  s_cbranch_scc1 L_dr{d}")
        A("  s_waitcnt vmcnt(0)")
        A("  s_cmp_eq_u32 s59, s59")
        A(f"  s_branch L_dr{d}")
        A(f"L_sv{d}:")
        A(f"  s_cmp_ge_u32 s{sSlot+1-d}, {PAIRB}")
        A("  s_cbranch_scc1 L_done")
        A(f"  s_mov_b32 s{sSlot+1-d}, {PAIRB}")
        A("  s_waitcnt vmcnt(4)")
        if wo_late == 1:
            A(f"  v_mov_b32 v{va}, {L_FLAG}")
            A(f"  ds_write_b32 v{va}, v{va} offset:8")
        A("  s_cmp_eq_u32 s59, s59")
        A(f"  s_branch L_go{1-d}")
    A("L_done:")
    stamp(2)
    A(f"  v_mov_b32 v{vb}, v{vl}")
    A("  s_lshl_b32 s44, s3, 10")
    A("  s_lshl_b32 s45, s3, 4")
    A(f"  v_permlane32_swap_b32 v{vl}, v{vb}")
    A(f"  v_add_f32 v{vl}, v{vl}, v{vb}")
    A(f"  v_mov_b32 v{vb}, v{vl}")
    A(f"  s_add_u32 s44, s44, {L_P}")
    A(f"  s_add_u32 s45, s45, {L_ML}")
    A(f"  v_permlane16_swap_b32 v{vl}, v{vb}")
    A(f"  v_add_f32 v{vl}, v{vl}, v{vb}")
    A("  v_and_b32 v5, 8, v0")
    A("  v_lshl_add_u32 v6, v0, 4, s44")
    A("  v_add_u32 v7, s45, v5")
    A(f"  ds_write_b128 v6, v[{vO}:{vO+3}]")
    A(f"  ds_write_b64 v7, v[{vm}:{vl}]")
    A("  s_waitcnt lgkmcnt(0)")
    A("  s_barrier")
    stamp(3)
    A("  s_and_b32 s44, s2, 60")
    A("  s_lshl_b32 s45, s3, 6")
    A("  s_add_u32 s44, s44, s45")
    A("  s_lshl_b32 s44, s44, 10")
    A(f"  s_lshl_b32 s45, s{sSplit}, 8")
    A("  s_add_u32 s44, s44, s45")
    A(f"  s_add_u32 s44, s44, {WS_PG}")
    A("  v_lshrrev_b32 v9, 4, v0")
    A("  v_and_b32 v3, 15, v0")
    A("  v_lshlrev_b32 v4, 10, v9")
    A("  v_lshl_add_u32 v4, v3, 4, v4")
    A("  s_lshl_b32 s56, s3, 7")
    A(f"  s_add_u32 s56, s56, {L_O}")
    A("  v_lshl_add_u32 v11, v5, 3, s56")
    A("  v_lshrrev_b32 v3, 5, v0")
    A("  v_lshl_add_u32 v11, v3, 4, v11")
    A("  v_bfe_u32 v3, v0, 4, 1")
    A("  v_lshl_add_u32 v11, v3, 5, v11")
    A("  v_and_b32 v3, 7, v0")
    A("  v_lshl_add_u32 v11, v3, 1, v11")
    A("  v_bfe_u32 v3, v0, 2, 2")
    A("  v_lshl_add_u32 v10, v9, 3, v3")
    A("  v_mul_u32_u24 v10, 288, v10")
    A("  v_and_b32 v1, 3, v0")
    A("  v_lshl_add_u32 v10, v1, 3, v10")
    A("  s_mul_i32 s45, s3, 96")
    A("  v_add_u32 v10, s45, v10")
    A("  v_lshlrev_b32 v1, 7, v3")
    A("  v_lshl_add_u32 v1, v9, 4, v1")
    A(f"  v_add_u32 v1, {L_O}, v1")
    yaddr(6, 3)
    A("  s_lshl_b32 s45, s3, 14")
    A("  s_add_u32 s58, s58, s45")
    A("  s_mov_b32 s61, 0x40000")
    if pdelay: A(f"  s_sleep {pdelay}")
    if notail: A("  s_branch L_pdone")
    A("L_ppoll:")
    A("  buffer_load_dwordx4 v[24:27], v4, s[28:31], s44 offen sc1")
    A("  s_waitcnt vmcnt(0)")
    tagcheck([27], "L_pdone", "L_ppoll", psleep)
    if stamps: A("  s_mov_b32 s86, s61")
    stamp(10)
    A("  v_mov_b32 v28, v26")
    A("  v_mov_b32 v29, v26")
    A("  v_lshlrev_b32 v32, 16, v24")
    A("  v_and_b32 v33, 0xffff0000, v24")
    A("  v_permlane32_swap_b32 v28, v29")
    A("  v_max_f32 v28, v28, v29")
    A("  v_mov_b32 v29, v28")
    A("  v_lshlrev_b32 v34, 16, v25")
    A("  v_and_b32 v35, 0xffff0000, v25")
    A("  v_permlane16_swap_b32 v28, v29")
    A("  v_max_f32 v28, v28, v29")
    A("  v_sub_f32 v28, v26, v28")
    A("  v_exp_f32 v28, v28")
    A("  s_nop 0")
    A("  v_mov_b32 v29, v28")
    for r in range(4): A(f"  v_mul_f32 v{32+r}, v28, v{32+r}")
    A("  v_permlane32_swap_b32 v28, v29")
    A("  v_permlane32_swap_b32 v32, v33")
    A("  v_permlane32_swap_b32 v34, v35")
    A("  v_add_f32 v28, v28, v29")
    A("  v_mov_b32 v29, v28")
    A("  v_add_f32 v32, v32, v33")
    A("  v_add_f32 v34, v34, v35")
    A("  v_permlane16_swap_b32 v28, v29")
    A("  v_add_f32 v28, v28, v29")
    A("  v_permlane16_swap_b32 v32, v34")
    A("  v_rcp_f32 v28, v28")
    A("  v_add_f32 v32, v32, v34")
    A("  v_mul_f32 v32, v32, v28")
    A("  v_cvt_pk_bf16_f32 v32, v32, v32")
    A("  ds_write_b16 v11, v32")
    A("  s_waitcnt lgkmcnt(0)")
    A("  s_barrier")
    stamp(4)
    A("  s_cmp_eq_u32 s3, 3")
    A("  s_cbranch_scc1 L_fin5")
    A("  ds_read_b128 v[36:39], v1")
    for tl in range(3):
        A(f"  ds_read_b64_tr_b16 v[{44+4*tl}:{45+4*tl}], v10 offset:{tl*32}")
        A(f"  ds_read_b64_tr_b16 v[{46+4*tl}:{47+4*tl}], v10 offset:{tl*32+1152}")
    A("  ds_read_b128 v[40:43], v1 offset:64")
    for tl in range(3):
        A(f"  ds_read_b64_tr_b16 v[{56+4*tl}:{57+4*tl}], v10 offset:{tl*32+9216}")
        A(f"  ds_read_b64_tr_b16 v[{58+4*tl}:{59+4*tl}], v10 offset:{tl*32+9216+1152}")
    A("  s_waitcnt lgkmcnt(7)")
    for tl in (2, 1, 0):
        A(f"  v_mfma_f32_16x16x32_bf16 v[{24+4*tl}:{27+4*tl}], v[36:39], v[{44+4*tl}:{47+4*tl}], 0")
    A("  s_waitcnt lgkmcnt(0)")
    for tl in (2, 1, 0):
        A(f"  v_mfma_f32_16x16x32_bf16 v[{24+4*tl}:{27+4*tl}], v[40:43], v[{56+4*tl}:{59+4*tl}], v[{24+4*tl}:{27+4*tl}]")
    A("  s_nop 7")
    A("  v_mov_b32 v26, v32")
    A("  v_mov_b32 v25, v28")
    A(f"  v_mov_b32 v27, s{sTag}")
    A("  buffer_store_dwordx4 v[24:27], v6, s[28:31], s58 offen sc1")
    A("L_fin5:")
    stamp(5)
    A("L_fin:")
    if stamps:
        stamp(6)
        A("  s_mul_i32 s44, s2, 5")
        A("  s_add_u32 s44, s44, s3")
        A("  s_lshl_b32 s44, s44, 6")
        A(f"  s_add_u32 s44, s44, {WS_TS}")
        A("  s_mov_b32 s78, s61")
        A("  s_waitcnt lgkmcnt(0)")
        A("  s_mov_b64 exec, 1")
        for i in range(16):
            A(f"  v_mov_b32 v{64+i}, s{64+2*i}")
        A("  v_mov_b32 v3, 0")
        for j in range(4):
            A(f"  buffer_store_dwordx4 v[{64+4*j}:{67+4*j}], v3, s[28:31], s44 offen offset:{16*j}")
    if spin is not None:
        fixed, mult, sa, sb, who = spin[:5]
        if len(spin) > 5:
            A(f"  s_cmp_eq_u32 s2, {spin[5]}")
            A("  s_cbranch_scc0 L_end")
        A(f"  s_cmp_eq_u32 s3, {who}")
        A("  s_cbranch_scc0 L_end")
        A(f"  s_sub_u32 s44, s{64+2*sb}, s{64+2*sa}")
        A(f"  s_mul_i32 s44, s44, {mult}")
        A(f"  s_add_u32 s44, s44, {fixed}")
        A("  s_min_u32 s44, s44, 200000")
        A("L_spin:")
        A("  s_memrealtime s[46:47]")
        A("  s_waitcnt lgkmcnt(0)")
        A("  s_sub_u32 s45, s46, s64")
        A("  s_cmp_lt_u32 s45, s44")
        A("  s_cbranch_scc1 L_spin")
    if dbg:
        A("  s_mov_b32 s32, s16")
        A("  s_mov_b32 s33, s17")
        A("  s_mov_b32 s34, 256")
        A("  s_mov_b32 s35, 0x20000")
        A("  v_not_b32 v80, v64")
        A("  buffer_atomic_umax v80, v3, s[32:35], 0 offen offset:0")
        A("  buffer_atomic_umax v64, v3, s[32:35], 0 offen offset:4")
        A("  buffer_atomic_umax v70, v3, s[32:35], 0 offen offset:60")
        A("  s_cmp_eq_u32 s3, 4")
        A("  s_cbranch_scc1 L_dbgh")
        for slot, st in ((2, 8), (3, 9), (4, 1), (5, 13), (6, 14), (7, 2), (8, 10), (9, 5)):
            A(f"  buffer_atomic_umax v{64+st}, v3, s[32:35], 0 offen offset:{4*slot}")
        A("  s_branch L_end")
        A("L_dbgh:")
        for slot, st in ((10, 8), (11, 10), (12, 12), (13, 13), (14, 15)):
            A(f"  buffer_atomic_umax v{64+st}, v3, s[32:35], 0 offen offset:{4*slot}")
    A("L_end:")
    A("  s_endpgm")
    A('.section .rodata,"a"')
    A(".p2align 6")
    A(f".amdhsa_kernel {NAME}")
    A(f"  .amdhsa_next_free_vgpr {NV}")
    A("  .amdhsa_next_free_sgpr %d" % (96 if stamps else 64))
    A(f"  .amdhsa_accum_offset {(NV+3)//4*4}")
    A("  .amdhsa_group_segment_fixed_size 0")
    A("  .amdhsa_kernarg_size 64")
    A("  .amdhsa_user_sgpr_count 2")
    A("  .amdhsa_user_sgpr_kernarg_segment_ptr 1")
    A("  .amdhsa_system_sgpr_workgroup_id_x 1")
    A("  .amdhsa_float_denorm_mode_32 3")
    A(".end_amdhsa_kernel")
    return "\n".join(L) + "\n"

if __name__ == "__main__":
    import json
    cfg = json.loads(sys.argv[1]) if len(sys.argv) > 1 else {}
    sys.stdout.write(gen(**cfg))
```

```python
import math, struct, sys
from gen_full import f2u, SCALE, NAME, HEADER

WS_QG = 0x40000
WS_PG = 0x100000
WS_YG = 0x200000
WS_CNT = 0x300000
WS_TS = 0x1000000
WS_SIZE = 0x2000000

L_Q = 19456
L_FLAG = L_Q + 512
L_ML = L_FLAG + 16
L_O = L_Q + 640
L_P = L_O + 512
L_TOTAL = L_P + 4 * 1024

def gen(E=2, WIN0=8, hyb=26, stamps=False, kvflags="nt", wqflags="nt", woflags="nt",
        qdelay=0, pdelay=0, ydelay=0, psleep=0, prew=True, wo_early=False, pre0=0, skip="", xflags="", qpflags="sc1", tkwait=True, fine=False, notail=False, warm=False, dbg=False, spin=None, wo_late=False, GW=None, GWall=False, xdma=False, pair12=False, prer=False, outflags="", ypipe=False, y2=False, nostampstore=False, endstore=None):
    U = 4
    D = 2 + E
    PAIRB = 2 * 1024 * 1024
    BLK = 4096
    STEP = 16 * BLK
    L = []
    A = L.append
    dpp = "row_mask:0xf bank_mask:0xf"
    vKoff, vVoff, vT = 1, 2, 3
    vQ, vM, vO = 4, 8, 12
    vm, vl, va, vb = 16, 17, 18, 19
    vS, vD, vB = 20, 24, 24
    vK = 40
    NV = max(vK + 32 * D, 132)
    sTag, sC, sPair, sSplit = 40, 41, 42, 43
    sSlot = 48
    def stamp(i):
        if stamps:
            A(f"  s_memrealtime s[{64+2*i}:{65+2*i}]")
    def tagcheck(regs, label_ok, label_loop, sleep):
        if len(regs) == 1:
            A(f"  v_cmp_eq_u32 vcc, s{sTag}, v{regs[0]}")
        else:
            A(f"  v_min3_u32 v22, v{regs[0]}, v{regs[1]}, v{regs[2]}")
            A(f"  v_max3_u32 v23, v{regs[0]}, v{regs[1]}, v{regs[2]}")
            i = 3
            while i < len(regs):
                if i + 1 < len(regs):
                    A(f"  v_min3_u32 v22, v22, v{regs[i]}, v{regs[i+1]}")
                    A(f"  v_max3_u32 v23, v23, v{regs[i]}, v{regs[i+1]}")
                    i += 2
                else:
                    A(f"  v_min_u32 v22, v22, v{regs[i]}")
                    A(f"  v_max_u32 v23, v23, v{regs[i]}")
                    i += 1
            A(f"  v_cmp_eq_u32 vcc, s{sTag}, v22")
            A(f"  v_cmp_eq_u32 s[62:63], s{sTag}, v23")
            A("  s_and_b64 vcc, vcc, s[62:63]")
        A("  s_cmp_eq_u64 vcc, -1")
        A(f"  s_cbranch_scc1 {label_ok}")
        if sleep: A(f"  s_sleep {sleep}")
        A("  s_sub_u32 s61, s61, 1")
        A(f"  s_cbranch_scc0 {label_loop}")
        A(f"{label_ok}:")
    def yaddr(vdst, vtmp):
        A("  s_mov_b32 s45, 196608")
        A(f"  v_mul_lo_u32 v{vdst}, v9, s45")
        if y2:
            A(f"  v_bfe_u32 v{vtmp}, v0, 3, 1")
            A(f"  v_lshl_add_u32 v{vdst}, v{vtmp}, 13, v{vdst}")
            A(f"  v_and_b32 v{vtmp}, 7, v0")
        else:
            A(f"  v_bfe_u32 v{vtmp}, v0, 2, 2")
            A(f"  v_lshl_add_u32 v{vdst}, v{vtmp}, 12, v{vdst}")
            A(f"  v_and_b32 v{vtmp}, 3, v0")
        A(f"  v_lshl_add_u32 v{vdst}, v{vtmp}, 4, v{vdst}")
        A("  s_lshr_b32 s45, s2, 6")
        A("  s_mul_i32 s58, s45, 49152")
        A("  s_and_b32 s45, s2, 63")
        A(f"  s_lshl_b32 s45, s45, {7 if y2 else 6}")
        A("  s_add_u32 s58, s58, s45")
        A(f"  s_add_u32 s58, s58, {WS_YG}")
    for ln in HEADER.rstrip("\n").split("\n"): A(ln)
    A(f"; @launch grid=(256,1,1) block=(320,1,1) lds={L_TOTAL}")
    A('.amdgcn_target "amdgcn-amd-amdhsa--gfx950"')
    A(".text")
    A(f".globl {NAME}")
    A(".p2align 8")
    A(f".type {NAME},@function")
    A(f"{NAME}:")
    A("  s_cmp_ge_u32 s2, 256")
    A("  s_cbranch_scc1 L_end")
    A("  s_load_dwordx16 s[4:19], s[0:1], 0")
    stamp(0)
    A("  v_lshrrev_b32 v3, 6, v0")
    A("  v_and_b32 v0, 63, v0")
    A("  v_readfirstlane_b32 s3, v3")
    A("  v_lshlrev_b32 v2, 4, v0")
    A(f"  s_lshr_b32 s{sPair}, s2, 2")
    A(f"  s_and_b32 s{sSplit}, s2, 3")
    A(f"  s_mov_b32 s30, {WS_SIZE}")
    A("  s_mov_b32 s31, 0x20000")
    A(f"  s_mov_b32 s{sC}, {hex(f2u(SCALE))}")
    A("  s_mov_b32 s61, 0x40000")
    A("  s_cmp_lg_u32 s3, 0")
    A("  s_cbranch_scc1 L_attn")
    if warm:
        A("  s_getpc_b64 s[52:53]")
        A("L_pc:")
        A("  v_lshlrev_b32 v4, 7, v0")
        A("  v_min_u32 v4, L_end-L_pc, v4")
        A("  global_load_dword v131, v4, s[52:53]")
    A("  s_and_b32 s44, s2, 7")
    A("  s_lshl_b32 s44, s44, 5")
    A("  s_lshr_b32 s45, s2, 3")
    A("  s_add_u32 s44, s44, s45")
    A("  v_lshrrev_b32 v9, 4, v0")
    A("  v_bfe_u32 v4, v0, 2, 2")
    A("  v_lshl_add_u32 v4, v9, 3, v4")
    A("  v_and_b32 v8, 3, v0")
    A("  v_lshlrev_b32 v5, 4, v8")
    A("  v_lshl_add_u32 v6, v4, 13, v5")
    A("  v_mul_u32_u24 v7, 1152, v8")
    A("  v_lshl_add_u32 v7, v9, 4, v7")
    A("  s_mov_b32 s34, 4718592")
    A("  s_mov_b32 s35, 0x20000")
    A("  s_mov_b32 s38, 4608")
    A("  s_mov_b32 s39, 0x20000")
    A("  s_lshr_b32 s45, s44, 1")
    A("  s_lshl_b32 s45, s45, 6")
    A("  s_and_b32 s47, s44, 1")
    A("  s_mul_i32 s46, s47, 2359296")
    A("  s_add_u32 s45, s45, s46")
    A("  s_add_u32 s46, s45, 32768")
    A("  s_mul_i32 s56, s47, 576")
    A("  s_mov_b32 m0, 0")
    A(f"  v_mov_b32 v3, {L_FLAG}")
    A("  v_mov_b32 v12, 0")
    A("  v_mov_b32 v13, 0")
    A("  v_mov_b32 v14, 0")
    A("  v_mov_b32 v15, 0")
    A("  ds_write_b128 v3, v[12:15]")
    A("  s_waitcnt lgkmcnt(0)")
    stamp(8)
    A("  s_mov_b32 s36, s4")
    A("  s_mov_b32 s37, s5")
    A("  s_mov_b32 s32, s10")
    A("  s_mov_b32 s33, s11")
    A("  s_load_dword s60, s[18:19], 0")
    vX = 24; vW = 60
    if xdma:
        A(f"  s_mov_b32 m0, {L_P}")
        A("  s_mov_b32 exec_hi, 15")
        for b in range(4):
            A(f"  buffer_load_dwordx4 v2, s[36:39], s56 offen offset:{b*1152} lds")
        A("  s_mov_b32 exec_hi, -1")
        A("  s_mov_b32 m0, 0")
    for t in range(9):
        if "x" not in skip and not xdma: A(f"  buffer_load_dwordx4 v[{vX+4*t}:{vX+4*t+3}], v7, s[36:39], s56 offen offset:{t*64} {xflags}")
    A("  s_mov_b32 s28, s18")
    A("  s_mov_b32 s29, s19")
    A("  s_and_b32 s56, s44, 15")
    A("  s_cmp_lg_u32 s56, 0")
    A("  s_cbranch_scc1 L_wq")
    A("  v_lshlrev_b32 v5, 12, v0")
    A("  s_lshl_b32 s56, s44, 4")
    A(f"  s_add_u32 s56, s56, {WS_CNT}")
    A("  s_mov_b64 exec, 15")
    A("  buffer_store_dword v12, v5, s[28:31], s56 offen sc1")
    A("  s_mov_b64 exec, -1")
    A("L_wq:")
    if "w" not in skip: A(f"  buffer_load_dwordx4 v6, s[32:35], s45 offen {wqflags} lds")
    A("  s_add_u32 m0, m0, 1024")
    A("  s_add_u32 s45, s45, 0x40000")
    if "w" not in skip: A(f"  buffer_load_dwordx4 v6, s[32:35], s46 offen {wqflags} lds")
    A("  s_add_u32 m0, m0, 1024")
    A("  s_add_u32 s46, s46, 0x40000")
    A("  s_cmp_lt_u32 m0, 18432")
    A("  s_cbranch_scc1 L_wq")
    A("  s_barrier")
    stamp(9)
    A("  v_lshrrev_b32 v10, 2, v0")
    A("  v_lshlrev_b32 v10, 6, v10")
    A("  v_lshl_add_u32 v10, v8, 3, v10")
    A("  v_lshlrev_b32 v4, 16, v8")
    A("  v_lshl_add_u32 v4, v9, 5, v4")
    A("  v_bfe_u32 v5, v0, 3, 1")
    A("  v_lshl_add_u32 v4, v5, 7, v4")
    A("  v_bfe_u32 v5, v0, 2, 1")
    A("  v_lshl_add_u32 v4, v5, 4, v4")
    A("  s_lshr_b32 s45, s44, 4")
    A("  s_lshl_b32 s45, s45, 12")
    A("  s_lshl_b32 s46, s47, 11")
    A("  s_add_u32 s45, s45, s46")
    A("  s_bfe_u32 s46, s44, 0x30001")
    A("  s_lshl_b32 s46, s46, 8")
    A("  s_add_u32 s45, s45, s46")
    A(f"  s_add_u32 s45, s45, {WS_QG}")
    A("  s_mov_b32 s56, 0xf0f0f0f0")
    A("  s_mov_b32 s57, 0xf0f0f0f0")
    A("  s_mov_b32 s58, 0xff00ff00")
    A("  s_mov_b32 s59, 0xff00ff00")
    A("  s_waitcnt lgkmcnt(0)")
    stamp(14)
    A(f"  s_mul_i32 s{sTag}, s60, 0x9e3779b1")
    A(f"  s_add_u32 s{sTag}, s{sTag}, 0x7f4a7c15")
    A(f"  v_mov_b32 v21, s{sTag}")
    A(f"  v_mov_b32 v23, s{sTag}")
    if xdma:
        A("  s_waitcnt vmcnt(18)")
        for t in range(9):
            A(f"  ds_read_b128 v[{vX+4*t}:{vX+4*t+3}], v7 offset:{L_P + t*64}")
    def qmfma(t):
        for j in range(2):
            r = vW + 8 * t + 4 * j
            c = "0" if t == 0 else f"v[{12+4*j}:{15+4*j}]"
            A(f"  v_mfma_f32_16x16x32_bf16 v[{12+4*j}:{15+4*j}], v[{r}:{r+3}], v[{vX+4*t}:{vX+4*t+3}], {c}")
    for t in range(9):
        A(f"  s_waitcnt vmcnt({16-2*t})")
        if t == 8: stamp(10)
        for j in range(2):
            r = vW + 8 * t + 4 * j
            A(f"  ds_read_b64_tr_b16 v[{r}:{r+1}], v10 offset:{t*2048 + j*32}")
            A(f"  ds_read_b64_tr_b16 v[{r+2}:{r+3}], v10 offset:{t*2048 + 1024 + j*32}")
        if t >= 1:
            A("  s_waitcnt lgkmcnt(4)")
            qmfma(t - 1)
    A("  s_waitcnt lgkmcnt(0)")
    qmfma(8)
    A("  s_nop 7")
    A("  v_cndmask_b32 v12, v12, v14, s[56:57]")
    A("  v_cndmask_b32 v13, v13, v15, s[56:57]")
    A("  v_cndmask_b32 v16, v16, v18, s[56:57]")
    A("  v_cndmask_b32 v17, v17, v19, s[56:57]")
    A("  v_cndmask_b32 v20, v12, v16, s[58:59]")
    A("  v_cndmask_b32 v22, v13, v17, s[58:59]")
    if "s" not in skip: A("  buffer_store_dwordx4 v[20:23], v4, s[28:31], s45 offen sc1")
    stamp(1)
    A(f"  s_lshl_b32 s45, s{sPair}, 12")
    A(f"  s_add_u32 s45, s45, {WS_QG}")
    A("  v_lshlrev_b32 v11, 2, v0")
    A(f"  v_add_u32 v11, {L_Q}, v11")
    if qdelay: A(f"  s_sleep {qdelay}")
    if "p" in skip: A("  s_branch L_qdone")
    A("L_qpoll:")
    for j in range(4):
        A(f"  buffer_load_dwordx4 v[{24+4*j}:{27+4*j}], v2, s[28:31], s45 offen offset:{j*1024} {qpflags}")
    A("  s_waitcnt vmcnt(0)")
    tagcheck([25, 27, 29, 31, 33, 35, 37, 39], "L_qdone", "L_qpoll", 0)
    A("  v_add_f32 v24, v24, v32")
    A("  v_add_f32 v26, v26, v34")
    A("  v_add_f32 v28, v28, v36")
    A("  v_add_f32 v30, v30, v38")
    A("  v_cvt_pk_bf16_f32 v24, v24, v26")
    A("  v_cvt_pk_bf16_f32 v28, v28, v30")
    A("  v_mov_b32 v20, 1")
    A("  ds_write_b32 v11, v24")
    A("  ds_write_b32 v11, v28 offset:256")
    A("  ds_write_b64 v3, v[20:21]")
    if stamps: A("  s_mov_b32 s86, s61")
    stamp(12)
    A("  v_bfe_u32 v4, v0, 3, 1")
    A("  v_lshlrev_b32 v8, 9, v4")
    A("  v_lshl_add_u32 v8, v9, 7, v8")
    A("  v_and_b32 v4, 7, v0")
    A("  v_lshl_add_u32 v8, v4, 4, v8")
    A("  s_lshl_b32 s46, s2, 10")
    A(f"  s_add_u32 s46, s46, {WS_PG}")
    if prew:
        yaddr(7, 4)
        A("  v_mov_b32 v15, s60")
        A("  buffer_store_dwordx4 v[12:15], v2, s[28:31], s46 offen sc1")
        for tg in range(3):
            A("  buffer_store_dwordx4 v[12:15], v7, s[28:31], s58 offen sc1")
            if tg < 2: A("  s_add_u32 s58, s58, 16384")
    A("  s_mov_b32 s32, s12")
    A("  s_mov_b32 s33, s13")
    A("  s_and_b32 s44, s2, 63")
    A("  s_mul_i32 s44, s44, 73728")
    A("  s_lshr_b32 s45, s2, 6")
    A("  s_mul_i32 s45, s45, 288")
    A("  s_add_u32 s44, s44, s45")
    A("  v_mul_u32_u24 v4, 57, v0")
    A("  v_lshrrev_b32 v4, 10, v4")
    A("  v_mul_u32_u24 v4, 864, v4")
    A("  v_add_u32 v6, v4, v2")
    A(f"  v_add_u32 v4, {L_P}, v2")
    A("  v_and_b32 v5, 8, v0")
    A(f"  v_add_u32 v5, {L_ML}, v5")
    A(f"  v_mov_b32 v23, s{sTag}")
    if y2:
        A("  s_lshr_b32 s47, s2, 1")
        A("  s_lshl_b32 s47, s47, 13")
        A("  s_and_b32 s45, s2, 1")
        A("  s_lshl_b32 s45, s45, 6")
        A("  s_add_u32 s47, s47, s45")
        A("  v_lshrrev_b32 v1, 2, v0")
        A("  v_lshlrev_b32 v1, 7, v1")
        A("  v_and_b32 v11, 3, v0")
        A("  v_lshl_add_u32 v1, v11, 4, v1")
        A("  v_add_u32 v7, 4096, v1")
    else:
        A("  s_lshl_b32 s47, s2, 12")
    A(f"  s_add_u32 s47, s47, {WS_YG}")
    def yload(j):
        if y2: A(f"  buffer_load_dwordx4 v[{32+4*j}:{35+4*j}], v{7 if j >= 2 else 1}, s[28:31], s47 offen offset:{(j&1)*2048} sc1")
        else: A(f"  buffer_load_dwordx4 v[{32+4*j}:{35+4*j}], v2, s[28:31], s47 offen offset:{j*1024} sc1")
    if prer:
        A("  buffer_load_dwordx4 v[48:51], v2, s[28:31], s46 offen sc1")
        for j in range(4):
            yload(j)
    A("  s_mov_b32 s36, s14")
    A("  s_mov_b32 s37, s15")
    A("  s_lshr_b32 s56, s2, 2")
    A("  s_mul_i32 s56, s56, 96")
    A("  s_and_b32 s57, s2, 3")
    A("  s_lshl_b32 s57, s57, 3")
    A("  s_add_u32 s56, s56, s57")
    A("  v_lshrrev_b32 v10, 5, v0")
    A("  v_bfe_u32 v11, v0, 4, 1")
    A("  v_lshl_add_u32 v10, v11, 1, v10")
    A("  v_lshlrev_b32 v10, 5, v10")
    A("  v_and_b32 v11, 3, v0")
    A("  v_lshl_add_u32 v10, v11, 1, v10")
    A("  s_mov_b32 s3, 4")
    A("  s_mov_b32 m0, 0")
    A("  s_waitcnt vmcnt(0)")
    def wo_issue():
        stamp(13)
        A("  s_mov_b32 exec_hi, 0x3fffff")
        A("L_wo:")
        if "o" not in skip: A(f"  buffer_load_dwordx4 v6, s[32:35], s44 offen {woflags} lds")
        A("  s_add_u32 m0, m0, 864")
        A("  s_add_u32 s44, s44, 3456")
        A("  s_cmp_lt_u32 m0, 18432")
        A("  s_cbranch_scc1 L_wo")
        A("  s_mov_b32 exec_hi, -1")
    if not wo_early and wo_late != 2:
        A("  s_mov_b32 s61, 0x100000")
        A("L_wait_end:")
        A("  s_sleep 2")
        A("  ds_read_b32 v24, v3 offset:8")
        A("  s_waitcnt lgkmcnt(0)")
        A("  v_readfirstlane_b32 s45, v24")
        A("  s_cmp_lg_u32 s45, 0")
        A("  s_cbranch_scc1 L_wo_go")
        A("  s_sub_u32 s61, s61, 1")
        A("  s_cbranch_scc0 L_wait_end")
        A("L_wo_go:")
    if wo_late != 2: wo_issue()
    A("  s_mov_b32 s61, 0x40000")
    A("  s_barrier")
    stamp(3)
    for w in range(4):
        A(f"  ds_read_b64 v[{40+2*w}:{41+2*w}], v5 offset:{w*16}")
    for w in range(4):
        A(f"  ds_read_b128 v[{24+4*w}:{27+4*w}], v4 offset:{w*1024}")
    A("  s_waitcnt lgkmcnt(4)")
    A("  v_max3_f32 v20, v40, v42, v44")
    A("  v_max_f32 v20, v20, v46")
    A(f"  v_mul_f32 v20, s{sC}, v20")
    for w in range(4): A(f"  v_fma_f32 v{40+2*w}, v{40+2*w}, s{sC}, -v20")
    for w in range(4): A(f"  v_exp_f32 v{40+2*w}, v{40+2*w}")
    A("  s_nop 0")
    A("  v_mul_f32 v22, v40, v41")
    for w in range(1, 4): A(f"  v_fmac_f32 v22, v{40+2*w}, v{41+2*w}")
    A("  v_rcp_f32 v21, v22")
    A("  v_log_f32 v22, v22")
    A("  s_waitcnt lgkmcnt(0)")
    for r in range(4): A(f"  v_mul_f32 v{24+r}, v40, v{24+r}")
    for w in range(1, 4):
        for r in range(4): A(f"  v_fmac_f32 v{24+r}, v{40+2*w}, v{24+4*w+r}")
    A("  v_add_f32 v22, v22, v20")
    for r in range(4): A(f"  v_mul_f32 v{24+r}, v21, v{24+r}")
    A("  v_cvt_pk_bf16_f32 v20, v24, v25")
    A("  v_cvt_pk_bf16_f32 v21, v26, v27")
    A("  buffer_store_dwordx4 v[20:23], v8, s[28:31], s46 offen sc1")
    stamp(15)
    if wo_late == 2: wo_issue()
    A(f"  s_waitcnt vmcnt({0 if wo_late == 2 else 1})")
    stamp(2)
    A("  s_barrier")
    stamp(4)
    stamp(5)
    A("  s_cmp_ge_u32 s2, 192")
    A("  s_cbranch_scc1 L_fin")
    if ydelay: A(f"  s_sleep {ydelay}")
    if notail: A("  s_branch L_ydone")
    if not ypipe:
        A("L_ypoll:")
        for j in range(4):
            yload(j)
        A("  s_waitcnt vmcnt(0)")
        tagcheck([35, 39, 43, 47], "L_ydone", "L_ypoll", psleep)
    else:
        for j in range(4):
            yload(j)
        A("L_ypoll:")
        A("  s_waitcnt vmcnt(0)")
        A("  s_mov_b32 s45, 0")
        for j in range(4):
            A(f"  v_cmp_ne_u32 vcc, s{sTag}, v{35+4*j}")
            A(f"  s_cbranch_vccz L_yok{j}")
            yload(j)
            A("  s_mov_b32 s45, 1")
            A(f"L_yok{j}:")
        A("  s_cmp_eq_u32 s45, 0")
        A("  s_cbranch_scc1 L_ydone")
        A("  s_sub_u32 s61, s61, 1")
        A("  s_cbranch_scc0 L_ypoll")
        A("  s_waitcnt vmcnt(0)")
        A("L_ydone:")
    for c in range(3):
        A(f"  v_add_f32 v{32+c}, v{32+c}, v{36+c}")
        A(f"  v_add_f32 v{40+c}, v{40+c}, v{44+c}")
    A("  v_add_f32 v34, v34, v42")
    A("  v_add_f32 v32, v32, v40")
    A("  v_add_f32 v33, v33, v41")
    A("  v_mov_b32 v35, v34")
    A("  s_nop 0")
    A("  v_permlane32_swap_b32 v32, v33")
    A("  v_permlane32_swap_b32 v34, v35")
    A("  v_add_f32 v32, v32, v33")
    A("  v_add_f32 v34, v34, v35")
    A("  s_nop 1")
    A("  v_permlane16_swap_b32 v32, v34")
    A("  v_add_f32 v32, v32, v34")
    A("  s_nop 1")
    A(f"  v_add_f32_dpp v32, v32, v32 row_ror:8 {dpp}")
    A("  s_nop 1")
    A(f"  v_add_f32_dpp v32, v32, v32 row_ror:4 {dpp}")
    A("  s_mov_b32 exec_lo, 0x000f000f")
    A("  s_mov_b32 exec_hi, 0x0000000f")
    A("  v_cvt_pk_bf16_f32 v32, v32, v32")
    A(f"  buffer_store_short v32, v10, s[36:39], s56 offen {outflags}")
    A("  s_cmp_lg_u32 s2, 0")
    A("  s_cbranch_scc1 L_fin")
    A("  s_mov_b64 exec, 1")
    A("  buffer_store_dword v47, v2, s[28:31], 0 offen sc1")
    A("  s_branch L_fin")
    A("L_attn:")
    A("  s_sub_u32 s3, s3, 1")
    def remap(r, tmp):
        if pair12 == 1:
            A(f"  s_and_b32 s{tmp}, s{r}, 4096")
            A(f"  s_lshr_b32 s{tmp}, s{tmp}, 1")
            A(f"  s_sub_u32 s{r}, s{r}, s{tmp}")
        if pair12 == 2:
            A(f"  s_bfe_u32 s{tmp}, s{r}, 0x2000c")
            A(f"  s_mulk_i32 s{tmp}, 3072")
            A(f"  s_sub_u32 s{r}, s{r}, s{tmp}")
    if pair12 == 2:
        A("  v_bfe_u32 v3, v0, 2, 2")
        A("  v_lshlrev_b32 v1, 12, v3")
        A("  v_and_b32 v3, 15, v0")
        A(f"  v_lshlrev_b32 v{vVoff}, 4, v3")
        A("  v_lshrrev_b32 v3, 4, v0")
        A(f"  v_lshl_add_u32 v{vVoff}, v3, 12, v{vVoff}")
    elif pair12:
        A("  v_bfe_u32 v3, v0, 2, 1")
        A("  v_lshlrev_b32 v1, 8, v3")
        A("  v_bfe_u32 v3, v0, 3, 1")
        A("  v_lshl_add_u32 v1, v3, 12, v1")
        A("  v_and_b32 v3, 31, v0")
        A(f"  v_lshlrev_b32 v{vVoff}, 4, v3")
        A("  v_lshrrev_b32 v3, 5, v0")
        A(f"  v_lshl_add_u32 v{vVoff}, v3, 12, v{vVoff}")
    else:
        A("  v_bfe_u32 v3, v0, 2, 2")
        A("  v_lshlrev_b32 v1, 8, v3")
    A("  v_lshrrev_b32 v3, 4, v0")
    A("  v_lshl_add_u32 v1, v3, 6, v1")
    A("  v_and_b32 v3, 3, v0")
    A("  v_lshl_add_u32 v1, v3, 4, v1")
    A(f"  s_lshl_b32 s44, s{sPair}, 21")
    A(f"  s_lshl_b32 s45, s{sSplit}, 2")
    A("  s_add_u32 s45, s45, s3")
    A("  s_lshl_b32 s45, s45, 12")
    remap(45, 46)
    A(f"  s_mov_b32 s22, {PAIRB}")
    A("  s_mov_b32 s23, 0x20000")
    A(f"  s_mov_b32 s26, {PAIRB}")
    A("  s_mov_b32 s27, 0x20000")
    for d in range(D):
        A(f"  s_add_u32 s{sSlot+d}, s45, {d*STEP}")
    A("  s_waitcnt lgkmcnt(0)")
    A("  s_add_u32 s20, s6, s44")
    A("  s_addc_u32 s21, s7, 0")
    A("  s_add_u32 s24, s8, s44")
    A("  s_addc_u32 s25, s9, 0")
    def reg(kind, d, t):
        return vK + 32 * d + (0 if kind == "K" else 16) + 4 * t
    def loads(kind, d, t):
        srd = "s[20:23]" if kind == "K" else "s[24:27]"
        off = vKoff if kind == "K" else vVoff
        r = reg(kind, d, t)
        A(f"  buffer_load_dwordx4 v[{r}:{r+3}], v{off}, {srd}, s{sSlot+d} offen offset:{t*(1024 >> int(pair12))} {kvflags}")
    setup = []
    S = setup.append
    S("  s_mov_b32 s28, s18")
    S("  s_mov_b32 s29, s19")
    S(f"  s_lshl_b32 s44, s{sPair}, 8")
    S(f"  s_add_u32 s44, s44, {WS_CNT}")
    S("  s_add_u32 s46, s18, s44")
    S("  s_addc_u32 s47, s19, 0")
    S(f"  s_add_u32 s59, s45, {D*STEP}")
    S("  s_mov_b32 s57, 1")
    S("  v_and_b32 v3, 1, v0")
    S("  v_mov_b32 v17, 0xffff")
    S("  v_lshlrev_b32 v3, 4, v3")
    S("  v_lshlrev_b32 v17, v3, v17")
    S("  v_bfe_u32 v3, v0, 1, 2")
    for r in range(4):
        S(f"  v_cmp_eq_u32 vcc, {r}, v3")
        S(f"  v_mov_b32 v{vO+r}, 0")
        S("  s_nop 0")
        S(f"  v_cndmask_b32 v{vM+r}, 0, v17, vcc")
    S(f"  v_mov_b32 v{vm}, 0xff800000")
    S(f"  v_mov_b32 v{vl}, 0")
    S("  v_bfe_u32 v3, v0, 3, 1")
    S("  v_lshlrev_b32 v18, 8, v3")
    S("  v_lshrrev_b32 v3, 4, v0")
    S("  v_lshl_add_u32 v18, v3, 6, v18")
    S("  v_and_b32 v3, 3, v0")
    S("  v_lshl_add_u32 v18, v3, 4, v18")
    S(f"  v_add_u32 v18, {L_Q}, v18")
    S(f"  v_mov_b32 v19, {L_FLAG}")
    n = 0
    for d in range(D):
        for kind in "KV":
            for t in range(U):
                if n == pre0:
                    A("  s_barrier")
                    stamp(8)
                if n == min(WIN0, 8 * D - 1):
                    for ln in setup: A(ln)
                if n >= WIN0: A(f"  s_waitcnt vmcnt({WIN0-1})")
                loads(kind, d, t)
                n += 1
    stamp(9)
    A("  s_mov_b32 s61, 0x400000")
    A("L_qwait:")
    A("  ds_read_b64 v[20:21], v19")
    A(f"  ds_read_b128 v[{vQ}:{vQ+3}], v18")
    A("  s_waitcnt lgkmcnt(0)")
    A("  v_readfirstlane_b32 s44, v20")
    A(f"  v_readfirstlane_b32 s{sTag}, v21")
    A("  s_cmp_lg_u32 s44, 0")
    A("  s_cbranch_scc1 L_qgo")
    A("  s_sleep 1")
    A("  s_sub_u32 s61, s61, 1")
    A("  s_cbranch_scc0 L_qwait")
    A("L_qgo:")
    stamp(1)
    STATIC = hyb * STEP
    def gate(tag):
        if GW is None: return
        if not GWall: A(f"  s_cbranch_vccz L_g{tag}")
        A(f"  s_waitcnt vmcnt({GW})")
        A(f"L_g{tag}:")
    A("  s_mov_b64 vcc, 0")
    def body(d, ring):
        for t in range(U):
            r = reg("K", d, t)
            if ring: A(f"  s_waitcnt vmcnt({15 if fine else 15-t})")
            A(f"  v_mfma_f32_16x16x32_bf16 v[{vD+4*t}:{vD+4*t+3}], v[{r}:{r+3}], v[{vQ}:{vQ+3}], 0")
            if ring and fine:
                A(f"  s_cbranch_scc1 L_sk{d}_{t}")
                loads("K", d, t)
                A(f"L_sk{d}_{t}:")
        if ring and not fine:
            A(f"  s_cbranch_scc1 L_sk{d}")
            gate(f"k{d}")
            for t in range(U): loads("K", d, t)
            A(f"L_sk{d}:")
        A("  s_nop 4")
        for j in range(4):
            for t in range(U):
                if j == 0:
                    A(f"  v_mov_b32_dpp v{vS+t}, v{vD+4*t} quad_perm:[0,0,0,0] {dpp}")
                else:
                    A(f"  v_add_f32_dpp v{vS+t}, v{vD+4*t+j}, v{vS+t} quad_perm:[{j},{j},{j},{j}] {dpp}")
        A(f"  v_max3_f32 v{va}, v{vm}, v{vS}, v{vS+1}")
        A(f"  v_max3_f32 v{va}, v{va}, v{vS+2}, v{vS+3}")
        A(f"  v_mov_b32 v{vb}, v{va}")
        A("  s_nop 1")
        A(f"  v_permlane32_swap_b32 v{va}, v{vb}")
        A(f"  v_max_f32 v{va}, v{va}, v{vb}")
        A(f"  v_mov_b32 v{vb}, v{va}")
        A("  s_nop 1")
        A(f"  v_permlane16_swap_b32 v{va}, v{vb}")
        A(f"  v_max_f32 v{va}, v{va}, v{vb}")
        A(f"  v_sub_f32 v{vb}, v{vm}, v{va}")
        A(f"  v_mul_f32 v{vb}, s{sC}, v{vb}")
        A(f"  v_exp_f32 v{vb}, v{vb}")
        A(f"  v_mov_b32 v{vm}, v{va}")
        A(f"  v_mul_f32 v{va}, s{sC}, v{va}")
        for t in range(U):
            A(f"  v_fma_f32 v{vS+t}, v{vS+t}, s{sC}, -v{va}")
        for t in range(U):
            A(f"  v_exp_f32 v{vS+t}, v{vS+t}")
        for r in range(4):
            A(f"  v_mul_f32 v{vO+r}, v{vO+r}, v{vb}")
        A(f"  v_mul_f32 v{vl}, v{vl}, v{vb}")
        for t in range(U):
            A(f"  v_cvt_pk_bf16_f32 v{vT}, v{vS+t}, v{vS+t}")
            for j in range(4):
                A(f"  v_and_b32 v{vB+4*t+j}, v{vT}, v{vM+j}")
            A(f"  v_add_f32 v{vl}, v{vl}, v{vS+t}")
        if ring:
            A(f"  s_cbranch_scc1 L_dw{d}")
            A(f"L_dr{d}:")
        for t in range(U):
            r = reg("V", d, t)
            if ring: A(f"  s_waitcnt vmcnt({15 if fine else 15-t})")
            A(f"  v_mfma_f32_16x16x32_bf16 v[{vO}:{vO+3}], v[{r}:{r+3}], v[{vB+4*t}:{vB+4*t+3}], v[{vO}:{vO+3}]")
            if ring and fine and t < 3:
                A(f"  s_cbranch_scc1 L_sv{d}_{t}")
                loads("V", d, t)
                A(f"L_sv{d}_{t}:")
        if ring:
            A(f"  s_cbranch_scc1 L_sv{d}")
            gate(f"v{d}")
            for t in range(3 if fine else 0, U): loads("V", d, t)
    A("L_loop:")
    for d in range(2):
        A(f"  s_cmp_lt_u32 s59, {STATIC}")
        A(f"  s_cbranch_scc0 L_dy{d}")
        A(f"  s_mov_b32 s{sSlot+d}, s59")
        A(f"  s_add_u32 s59, s59, {STEP}")
        A(f"  s_cmp_ge_u32 s59, {STATIC}")
        A(f"  s_cbranch_scc1 L_tf{d}")
        A(f"L_go{d}:")
        body(d, True)
    A("  s_cmp_eq_u32 s57, 0")
    A("  s_cbranch_scc1 L_loop")
    A("  s_mov_b32 s57, 0")
    stamp(13)
    A("  s_waitcnt vmcnt(16)")
    for e in range(E):
        body(2 + e, False)
    stamp(14)
    A("  s_branch L_loop")
    for d in range(2):
        A(f"L_dy{d}:")
        if tkwait: A("  s_waitcnt vmcnt(15)")
        A("  s_waitcnt lgkmcnt(0)")
        A(f"  s_add_u32 s{sSlot+d}, s60, {STATIC}")
        remap(sSlot + d, 56)
        A(f"  s_cmp_ge_u32 s{sSlot+d}, {PAIRB}")
        A(f"  s_cbranch_scc0 L_tk{d}")
        stamp(15)
        if not wo_late:
            A(f"  v_mov_b32 v{va}, {L_FLAG}")
            A(f"  ds_write_b32 v{va}, v{va} offset:8")
        if fine: A("  s_waitcnt vmcnt(12)")
        A(f"  s_branch L_go{d}")
        A(f"L_tf{d}:")
        A("  s_mov_b64 vcc, -1")
        stamp(12)
        A(f"L_tk{d}:")
        A(f"  s_mov_b32 s60, {BLK}")
        A("  s_atomic_add s60, s[46:47], 0 glc")
        A("  s_cmp_eq_u32 s59, 0")
        A(f"  s_branch L_go{d}")
        A(f"L_dw{d}:")
        A("  s_waitcnt vmcnt(8)")
        A(f"  s_cmp_lt_u32 s{sSlot+1-d}, {PAIRB}")
        A(f"  s_cbranch_scc1 L_dr{d}")
        A("  s_waitcnt vmcnt(0)")
        A("  s_cmp_eq_u32 s59, s59")
        A(f"  s_branch L_dr{d}")
        A(f"L_sv{d}:")
        A(f"  s_cmp_ge_u32 s{sSlot+1-d}, {PAIRB}")
        A("  s_cbranch_scc1 L_done")
        A(f"  s_mov_b32 s{sSlot+1-d}, {PAIRB}")
        A("  s_waitcnt vmcnt(4)")
        if wo_late == 1:
            A(f"  v_mov_b32 v{va}, {L_FLAG}")
            A(f"  ds_write_b32 v{va}, v{va} offset:8")
        A("  s_cmp_eq_u32 s59, s59")
        A(f"  s_branch L_go{1-d}")
    A("L_done:")
    stamp(2)
    A(f"  v_mov_b32 v{vb}, v{vl}")
    A("  s_lshl_b32 s44, s3, 10")
    A("  s_lshl_b32 s45, s3, 4")
    A(f"  v_permlane32_swap_b32 v{vl}, v{vb}")
    A(f"  v_add_f32 v{vl}, v{vl}, v{vb}")
    A(f"  v_mov_b32 v{vb}, v{vl}")
    A(f"  s_add_u32 s44, s44, {L_P}")
    A(f"  s_add_u32 s45, s45, {L_ML}")
    A(f"  v_permlane16_swap_b32 v{vl}, v{vb}")
    A(f"  v_add_f32 v{vl}, v{vl}, v{vb}")
    A("  v_and_b32 v5, 8, v0")
    A("  v_lshl_add_u32 v6, v0, 4, s44")
    A("  v_add_u32 v7, s45, v5")
    A(f"  ds_write_b128 v6, v[{vO}:{vO+3}]")
    A(f"  ds_write_b64 v7, v[{vm}:{vl}]")
    A("  s_waitcnt lgkmcnt(0)")
    A("  s_barrier")
    stamp(3)
    A("  s_and_b32 s44, s2, 60")
    A("  s_lshl_b32 s45, s3, 6")
    A("  s_add_u32 s44, s44, s45")
    A("  s_lshl_b32 s44, s44, 10")
    A(f"  s_lshl_b32 s45, s{sSplit}, 8")
    A("  s_add_u32 s44, s44, s45")
    A(f"  s_add_u32 s44, s44, {WS_PG}")
    A("  v_lshrrev_b32 v9, 4, v0")
    A("  v_and_b32 v3, 15, v0")
    A("  v_lshlrev_b32 v4, 10, v9")
    A("  v_lshl_add_u32 v4, v3, 4, v4")
    A("  s_lshl_b32 s56, s3, 7")
    A(f"  s_add_u32 s56, s56, {L_O}")
    A("  v_lshl_add_u32 v11, v5, 3, s56")
    A("  v_lshrrev_b32 v3, 5, v0")
    A("  v_lshl_add_u32 v11, v3, 4, v11")
    A("  v_bfe_u32 v3, v0, 4, 1")
    A("  v_lshl_add_u32 v11, v3, 5, v11")
    A("  v_and_b32 v3, 7, v0")
    A("  v_lshl_add_u32 v11, v3, 1, v11")
    A("  v_bfe_u32 v3, v0, 2, 2")
    A("  v_lshl_add_u32 v10, v9, 3, v3")
    A("  v_mul_u32_u24 v10, 288, v10")
    A("  v_and_b32 v1, 3, v0")
    A("  v_lshl_add_u32 v10, v1, 3, v10")
    A("  s_mul_i32 s45, s3, 96")
    A("  v_add_u32 v10, s45, v10")
    A("  v_lshlrev_b32 v1, 7, v3")
    A("  v_lshl_add_u32 v1, v9, 4, v1")
    A(f"  v_add_u32 v1, {L_O}, v1")
    yaddr(6, 3)
    A("  s_lshl_b32 s45, s3, 14")
    A("  s_add_u32 s58, s58, s45")
    A("  s_mov_b32 s61, 0x40000")
    if pdelay: A(f"  s_sleep {pdelay}")
    if notail: A("  s_branch L_pdone")
    A("L_ppoll:")
    A("  buffer_load_dwordx4 v[24:27], v4, s[28:31], s44 offen sc1")
    A("  s_waitcnt vmcnt(0)")
    tagcheck([27], "L_pdone", "L_ppoll", psleep)
    if stamps: A("  s_mov_b32 s86, s61")
    stamp(10)
    A("  v_mov_b32 v28, v26")
    A("  v_mov_b32 v29, v26")
    A("  v_lshlrev_b32 v32, 16, v24")
    A("  v_and_b32 v33, 0xffff0000, v24")
    A("  v_permlane32_swap_b32 v28, v29")
    A("  v_max_f32 v28, v28, v29")
    A("  v_mov_b32 v29, v28")
    A("  v_lshlrev_b32 v34, 16, v25")
    A("  v_and_b32 v35, 0xffff0000, v25")
    A("  v_permlane16_swap_b32 v28, v29")
    A("  v_max_f32 v28, v28, v29")
    A("  v_sub_f32 v28, v26, v28")
    A("  v_exp_f32 v28, v28")
    A("  s_nop 0")
    A("  v_mov_b32 v29, v28")
    for r in range(4): A(f"  v_mul_f32 v{32+r}, v28, v{32+r}")
    A("  v_permlane32_swap_b32 v28, v29")
    A("  v_permlane32_swap_b32 v32, v33")
    A("  v_permlane32_swap_b32 v34, v35")
    A("  v_add_f32 v28, v28, v29")
    A("  v_mov_b32 v29, v28")
    A("  v_add_f32 v32, v32, v33")
    A("  v_add_f32 v34, v34, v35")
    A("  v_permlane16_swap_b32 v28, v29")
    A("  v_add_f32 v28, v28, v29")
    A("  v_permlane16_swap_b32 v32, v34")
    A("  v_rcp_f32 v28, v28")
    A("  v_add_f32 v32, v32, v34")
    A("  v_mul_f32 v32, v32, v28")
    A("  v_cvt_pk_bf16_f32 v32, v32, v32")
    A("  ds_write_b16 v11, v32")
    A("  s_waitcnt lgkmcnt(0)")
    A("  s_barrier")
    stamp(4)
    A("  s_cmp_eq_u32 s3, 3")
    A("  s_cbranch_scc1 L_fin5")
    A("  ds_read_b128 v[36:39], v1")
    for tl in range(3):
        A(f"  ds_read_b64_tr_b16 v[{44+4*tl}:{45+4*tl}], v10 offset:{tl*32}")
        A(f"  ds_read_b64_tr_b16 v[{46+4*tl}:{47+4*tl}], v10 offset:{tl*32+1152}")
    A("  ds_read_b128 v[40:43], v1 offset:64")
    for tl in range(3):
        A(f"  ds_read_b64_tr_b16 v[{56+4*tl}:{57+4*tl}], v10 offset:{tl*32+9216}")
        A(f"  ds_read_b64_tr_b16 v[{58+4*tl}:{59+4*tl}], v10 offset:{tl*32+9216+1152}")
    A("  s_waitcnt lgkmcnt(7)")
    for tl in (2, 1, 0):
        A(f"  v_mfma_f32_16x16x32_bf16 v[{24+4*tl}:{27+4*tl}], v[36:39], v[{44+4*tl}:{47+4*tl}], 0")
    A("  s_waitcnt lgkmcnt(0)")
    for tl in (2, 1, 0):
        A(f"  v_mfma_f32_16x16x32_bf16 v[{24+4*tl}:{27+4*tl}], v[40:43], v[{56+4*tl}:{59+4*tl}], v[{24+4*tl}:{27+4*tl}]")
    A("  s_nop 7")
    A("  v_mov_b32 v26, v32")
    A("  v_mov_b32 v25, v28")
    A(f"  v_mov_b32 v27, s{sTag}")
    A("  buffer_store_dwordx4 v[24:27], v6, s[28:31], s58 offen sc1")
    A("L_fin5:")
    stamp(5)
    A("L_fin:")
    if stamps:
        stamp(6)
        A("  s_mul_i32 s44, s2, 5")
        A("  s_add_u32 s44, s44, s3")
        A("  s_lshl_b32 s44, s44, 6")
        A(f"  s_add_u32 s44, s44, {WS_TS}")
        A("  s_mov_b32 s78, s61")
        A("  s_waitcnt lgkmcnt(0)")
        A("  s_mov_b64 exec, 1")
        for i in range(16):
            A(f"  v_mov_b32 v{64+i}, s{64+2*i}")
        A("  v_mov_b32 v3, 0")
        A("  s_mov_b32 s55, s44")
        for j in range(4):
            if not nostampstore: A(f"  buffer_store_dwordx4 v[{64+4*j}:{67+4*j}], v3, s[28:31], s44 offen offset:{16*j}")
    if spin is not None:
        fixed, mult, sa, sb, who = spin[:5]
        if len(spin) > 5:
            A(f"  s_cmp_eq_u32 s2, {spin[5]}")
            A("  s_cbranch_scc0 L_end")
        A(f"  s_cmp_eq_u32 s3, {who}")
        A("  s_cbranch_scc0 L_end")
        A(f"  s_sub_u32 s44, s{64+2*sb}, s{64+2*sa}")
        A(f"  s_mul_i32 s44, s44, {mult}")
        A(f"  s_add_u32 s44, s44, {fixed}")
        A("  s_min_u32 s44, s44, 200000")
        A("L_spin:")
        A("  s_memrealtime s[46:47]")
        A("  s_waitcnt lgkmcnt(0)")
        A("  s_sub_u32 s45, s46, s64")
        A("  s_cmp_lt_u32 s45, s44")
        A("  s_cbranch_scc1 L_spin")
        if endstore is not None:
            A(f"  buffer_store_short v64, v3, s[28:31], s55 offen {endstore}")
    if dbg:
        A("  s_mov_b32 s32, s16")
        A("  s_mov_b32 s33, s17")
        A("  s_mov_b32 s34, 256")
        A("  s_mov_b32 s35, 0x20000")
        A("  v_not_b32 v80, v64")
        A("  buffer_atomic_umax v80, v3, s[32:35], 0 offen offset:0")
        A("  buffer_atomic_umax v64, v3, s[32:35], 0 offen offset:4")
        A("  buffer_atomic_umax v70, v3, s[32:35], 0 offen offset:60")
        A("  s_cmp_eq_u32 s3, 4")
        A("  s_cbranch_scc1 L_dbgh")
        for slot, st in ((2, 8), (3, 9), (4, 1), (5, 13), (6, 14), (7, 2), (8, 10), (9, 5)):
            A(f"  buffer_atomic_umax v{64+st}, v3, s[32:35], 0 offen offset:{4*slot}")
        A("  s_branch L_end")
        A("L_dbgh:")
        for slot, st in ((10, 8), (11, 10), (12, 12), (13, 13), (14, 15)):
            A(f"  buffer_atomic_umax v{64+st}, v3, s[32:35], 0 offen offset:{4*slot}")
    A("L_end:")
    A("  s_endpgm")
    A('.section .rodata,"a"')
    A(".p2align 6")
    A(f".amdhsa_kernel {NAME}")
    A(f"  .amdhsa_next_free_vgpr {NV}")
    A("  .amdhsa_next_free_sgpr %d" % (96 if stamps else 64))
    A(f"  .amdhsa_accum_offset {(NV+3)//4*4}")
    A("  .amdhsa_group_segment_fixed_size 0")
    A("  .amdhsa_kernarg_size 64")
    A("  .amdhsa_user_sgpr_count 2")
    A("  .amdhsa_user_sgpr_kernarg_segment_ptr 1")
    A("  .amdhsa_system_sgpr_workgroup_id_x 1")
    A("  .amdhsa_float_denorm_mode_32 3")
    A(".end_amdhsa_kernel")
    return "\n".join(L) + "\n"

if __name__ == "__main__":
    import json
    cfg = json.loads(sys.argv[1]) if len(sys.argv) > 1 else {}
    sys.stdout.write(gen(**cfg))
```

```python
import math, struct, sys
from gen_full import f2u, SCALE, NAME, HEADER

WS_QG = 0x40000
WS_PG = 0x100000
WS_YG = 0x200000
WS_CNT = 0x300000
WS_TS = 0x1000000
WS_SIZE = 0x2000000

L_Q = 19456
L_FLAG = L_Q + 512
L_ML = L_FLAG + 16
L_O = L_Q + 640
L_P = L_O + 512
L_TOTAL = L_P + 4 * 1024

def gen(E=2, WIN0=8, hyb=26, stamps=False, kvflags="nt", wqflags="nt", woflags="nt",
        qdelay=0, pdelay=0, ydelay=0, psleep=0, prew=True, wo_early=False, pre0=0, skip="", xflags="", qpflags="sc1", tkwait=True, fine=False, notail=False, warm=False, dbg=False, spin=None, wo_late=False, GW=None, GWall=False, xdma=False, pair12=False, prer=False, outflags="", ypipe=False, y2=False, nostampstore=False, endstore=None, endwarm=None, endfull=False):
    U = 4
    D = 2 + E
    PAIRB = 2 * 1024 * 1024
    BLK = 4096
    STEP = 16 * BLK
    L = []
    A = L.append
    dpp = "row_mask:0xf bank_mask:0xf"
    vKoff, vVoff, vT = 1, 2, 3
    vQ, vM, vO = 4, 8, 12
    vm, vl, va, vb = 16, 17, 18, 19
    vS, vD, vB = 20, 24, 24
    vK = 40
    NV = max(vK + 32 * D, 132)
    sTag, sC, sPair, sSplit = 40, 41, 42, 43
    sSlot = 48
    def stamp(i):
        if stamps:
            A(f"  s_memrealtime s[{64+2*i}:{65+2*i}]")
    def tagcheck(regs, label_ok, label_loop, sleep):
        if len(regs) == 1:
            A(f"  v_cmp_eq_u32 vcc, s{sTag}, v{regs[0]}")
        else:
            A(f"  v_min3_u32 v22, v{regs[0]}, v{regs[1]}, v{regs[2]}")
            A(f"  v_max3_u32 v23, v{regs[0]}, v{regs[1]}, v{regs[2]}")
            i = 3
            while i < len(regs):
                if i + 1 < len(regs):
                    A(f"  v_min3_u32 v22, v22, v{regs[i]}, v{regs[i+1]}")
                    A(f"  v_max3_u32 v23, v23, v{regs[i]}, v{regs[i+1]}")
                    i += 2
                else:
                    A(f"  v_min_u32 v22, v22, v{regs[i]}")
                    A(f"  v_max_u32 v23, v23, v{regs[i]}")
                    i += 1
            A(f"  v_cmp_eq_u32 vcc, s{sTag}, v22")
            A(f"  v_cmp_eq_u32 s[62:63], s{sTag}, v23")
            A("  s_and_b64 vcc, vcc, s[62:63]")
        A("  s_cmp_eq_u64 vcc, -1")
        A(f"  s_cbranch_scc1 {label_ok}")
        if sleep: A(f"  s_sleep {sleep}")
        A("  s_sub_u32 s61, s61, 1")
        A(f"  s_cbranch_scc0 {label_loop}")
        A(f"{label_ok}:")
    def yaddr(vdst, vtmp):
        A("  s_mov_b32 s45, 196608")
        A(f"  v_mul_lo_u32 v{vdst}, v9, s45")
        if y2:
            A(f"  v_bfe_u32 v{vtmp}, v0, 3, 1")
            A(f"  v_lshl_add_u32 v{vdst}, v{vtmp}, 13, v{vdst}")
            A(f"  v_and_b32 v{vtmp}, 7, v0")
        else:
            A(f"  v_bfe_u32 v{vtmp}, v0, 2, 2")
            A(f"  v_lshl_add_u32 v{vdst}, v{vtmp}, 12, v{vdst}")
            A(f"  v_and_b32 v{vtmp}, 3, v0")
        A(f"  v_lshl_add_u32 v{vdst}, v{vtmp}, 4, v{vdst}")
        A("  s_lshr_b32 s45, s2, 6")
        A("  s_mul_i32 s58, s45, 49152")
        A("  s_and_b32 s45, s2, 63")
        A(f"  s_lshl_b32 s45, s45, {7 if y2 else 6}")
        A("  s_add_u32 s58, s58, s45")
        A(f"  s_add_u32 s58, s58, {WS_YG}")
    for ln in HEADER.rstrip("\n").split("\n"): A(ln)
    A(f"; @launch grid=(256,1,1) block=(320,1,1) lds={L_TOTAL}")
    A('.amdgcn_target "amdgcn-amd-amdhsa--gfx950"')
    A(".text")
    A(f".globl {NAME}")
    A(".p2align 8")
    A(f".type {NAME},@function")
    A(f"{NAME}:")
    A("  s_cmp_ge_u32 s2, 256")
    A("  s_cbranch_scc1 L_end")
    A("  s_load_dwordx16 s[4:19], s[0:1], 0")
    stamp(0)
    A("  v_lshrrev_b32 v3, 6, v0")
    A("  v_and_b32 v0, 63, v0")
    A("  v_readfirstlane_b32 s3, v3")
    A("  v_lshlrev_b32 v2, 4, v0")
    A(f"  s_lshr_b32 s{sPair}, s2, 2")
    A(f"  s_and_b32 s{sSplit}, s2, 3")
    A(f"  s_mov_b32 s30, {WS_SIZE}")
    A("  s_mov_b32 s31, 0x20000")
    A(f"  s_mov_b32 s{sC}, {hex(f2u(SCALE))}")
    A("  s_mov_b32 s61, 0x40000")
    A("  s_cmp_lg_u32 s3, 0")
    A("  s_cbranch_scc1 L_attn")
    if warm:
        A("  s_getpc_b64 s[52:53]")
        A("L_pc:")
        A("  v_lshlrev_b32 v4, 7, v0")
        A("  v_min_u32 v4, L_end-L_pc, v4")
        A("  global_load_dword v131, v4, s[52:53]")
    A("  s_and_b32 s44, s2, 7")
    A("  s_lshl_b32 s44, s44, 5")
    A("  s_lshr_b32 s45, s2, 3")
    A("  s_add_u32 s44, s44, s45")
    A("  v_lshrrev_b32 v9, 4, v0")
    A("  v_bfe_u32 v4, v0, 2, 2")
    A("  v_lshl_add_u32 v4, v9, 3, v4")
    A("  v_and_b32 v8, 3, v0")
    A("  v_lshlrev_b32 v5, 4, v8")
    A("  v_lshl_add_u32 v6, v4, 13, v5")
    A("  v_mul_u32_u24 v7, 1152, v8")
    A("  v_lshl_add_u32 v7, v9, 4, v7")
    A("  s_mov_b32 s34, 4718592")
    A("  s_mov_b32 s35, 0x20000")
    A("  s_mov_b32 s38, 4608")
    A("  s_mov_b32 s39, 0x20000")
    A("  s_lshr_b32 s45, s44, 1")
    A("  s_lshl_b32 s45, s45, 6")
    A("  s_and_b32 s47, s44, 1")
    A("  s_mul_i32 s46, s47, 2359296")
    A("  s_add_u32 s45, s45, s46")
    A("  s_add_u32 s46, s45, 32768")
    A("  s_mul_i32 s56, s47, 576")
    A("  s_mov_b32 m0, 0")
    A(f"  v_mov_b32 v3, {L_FLAG}")
    A("  v_mov_b32 v12, 0")
    A("  v_mov_b32 v13, 0")
    A("  v_mov_b32 v14, 0")
    A("  v_mov_b32 v15, 0")
    A("  ds_write_b128 v3, v[12:15]")
    A("  s_waitcnt lgkmcnt(0)")
    stamp(8)
    A("  s_mov_b32 s36, s4")
    A("  s_mov_b32 s37, s5")
    A("  s_mov_b32 s32, s10")
    A("  s_mov_b32 s33, s11")
    A("  s_load_dword s60, s[18:19], 0")
    vX = 24; vW = 60
    if xdma:
        A(f"  s_mov_b32 m0, {L_P}")
        A("  s_mov_b32 exec_hi, 15")
        for b in range(4):
            A(f"  buffer_load_dwordx4 v2, s[36:39], s56 offen offset:{b*1152} lds")
        A("  s_mov_b32 exec_hi, -1")
        A("  s_mov_b32 m0, 0")
    for t in range(9):
        if "x" not in skip and not xdma: A(f"  buffer_load_dwordx4 v[{vX+4*t}:{vX+4*t+3}], v7, s[36:39], s56 offen offset:{t*64} {xflags}")
    A("  s_mov_b32 s28, s18")
    A("  s_mov_b32 s29, s19")
    A("  s_and_b32 s56, s44, 15")
    A("  s_cmp_lg_u32 s56, 0")
    A("  s_cbranch_scc1 L_wq")
    A("  v_lshlrev_b32 v5, 12, v0")
    A("  s_lshl_b32 s56, s44, 4")
    A(f"  s_add_u32 s56, s56, {WS_CNT}")
    A("  s_mov_b64 exec, 15")
    A("  buffer_store_dword v12, v5, s[28:31], s56 offen sc1")
    A("  s_mov_b64 exec, -1")
    A("L_wq:")
    if "w" not in skip: A(f"  buffer_load_dwordx4 v6, s[32:35], s45 offen {wqflags} lds")
    A("  s_add_u32 m0, m0, 1024")
    A("  s_add_u32 s45, s45, 0x40000")
    if "w" not in skip: A(f"  buffer_load_dwordx4 v6, s[32:35], s46 offen {wqflags} lds")
    A("  s_add_u32 m0, m0, 1024")
    A("  s_add_u32 s46, s46, 0x40000")
    A("  s_cmp_lt_u32 m0, 18432")
    A("  s_cbranch_scc1 L_wq")
    A("  s_barrier")
    stamp(9)
    A("  v_lshrrev_b32 v10, 2, v0")
    A("  v_lshlrev_b32 v10, 6, v10")
    A("  v_lshl_add_u32 v10, v8, 3, v10")
    A("  v_lshlrev_b32 v4, 16, v8")
    A("  v_lshl_add_u32 v4, v9, 5, v4")
    A("  v_bfe_u32 v5, v0, 3, 1")
    A("  v_lshl_add_u32 v4, v5, 7, v4")
    A("  v_bfe_u32 v5, v0, 2, 1")
    A("  v_lshl_add_u32 v4, v5, 4, v4")
    A("  s_lshr_b32 s45, s44, 4")
    A("  s_lshl_b32 s45, s45, 12")
    A("  s_lshl_b32 s46, s47, 11")
    A("  s_add_u32 s45, s45, s46")
    A("  s_bfe_u32 s46, s44, 0x30001")
    A("  s_lshl_b32 s46, s46, 8")
    A("  s_add_u32 s45, s45, s46")
    A(f"  s_add_u32 s45, s45, {WS_QG}")
    A("  s_mov_b32 s56, 0xf0f0f0f0")
    A("  s_mov_b32 s57, 0xf0f0f0f0")
    A("  s_mov_b32 s58, 0xff00ff00")
    A("  s_mov_b32 s59, 0xff00ff00")
    A("  s_waitcnt lgkmcnt(0)")
    stamp(14)
    A(f"  s_mul_i32 s{sTag}, s60, 0x9e3779b1")
    A(f"  s_add_u32 s{sTag}, s{sTag}, 0x7f4a7c15")
    A(f"  v_mov_b32 v21, s{sTag}")
    A(f"  v_mov_b32 v23, s{sTag}")
    if xdma:
        A("  s_waitcnt vmcnt(18)")
        for t in range(9):
            A(f"  ds_read_b128 v[{vX+4*t}:{vX+4*t+3}], v7 offset:{L_P + t*64}")
    def qmfma(t):
        for j in range(2):
            r = vW + 8 * t + 4 * j
            c = "0" if t == 0 else f"v[{12+4*j}:{15+4*j}]"
            A(f"  v_mfma_f32_16x16x32_bf16 v[{12+4*j}:{15+4*j}], v[{r}:{r+3}], v[{vX+4*t}:{vX+4*t+3}], {c}")
    for t in range(9):
        A(f"  s_waitcnt vmcnt({16-2*t})")
        if t == 8: stamp(10)
        for j in range(2):
            r = vW + 8 * t + 4 * j
            A(f"  ds_read_b64_tr_b16 v[{r}:{r+1}], v10 offset:{t*2048 + j*32}")
            A(f"  ds_read_b64_tr_b16 v[{r+2}:{r+3}], v10 offset:{t*2048 + 1024 + j*32}")
        if t >= 1:
            A("  s_waitcnt lgkmcnt(4)")
            qmfma(t - 1)
    A("  s_waitcnt lgkmcnt(0)")
    qmfma(8)
    A("  s_nop 7")
    A("  v_cndmask_b32 v12, v12, v14, s[56:57]")
    A("  v_cndmask_b32 v13, v13, v15, s[56:57]")
    A("  v_cndmask_b32 v16, v16, v18, s[56:57]")
    A("  v_cndmask_b32 v17, v17, v19, s[56:57]")
    A("  v_cndmask_b32 v20, v12, v16, s[58:59]")
    A("  v_cndmask_b32 v22, v13, v17, s[58:59]")
    if "s" not in skip: A("  buffer_store_dwordx4 v[20:23], v4, s[28:31], s45 offen sc1")
    stamp(1)
    A(f"  s_lshl_b32 s45, s{sPair}, 12")
    A(f"  s_add_u32 s45, s45, {WS_QG}")
    A("  v_lshlrev_b32 v11, 2, v0")
    A(f"  v_add_u32 v11, {L_Q}, v11")
    if qdelay: A(f"  s_sleep {qdelay}")
    if "p" in skip: A("  s_branch L_qdone")
    A("L_qpoll:")
    for j in range(4):
        A(f"  buffer_load_dwordx4 v[{24+4*j}:{27+4*j}], v2, s[28:31], s45 offen offset:{j*1024} {qpflags}")
    A("  s_waitcnt vmcnt(0)")
    tagcheck([25, 27, 29, 31, 33, 35, 37, 39], "L_qdone", "L_qpoll", 0)
    A("  v_add_f32 v24, v24, v32")
    A("  v_add_f32 v26, v26, v34")
    A("  v_add_f32 v28, v28, v36")
    A("  v_add_f32 v30, v30, v38")
    A("  v_cvt_pk_bf16_f32 v24, v24, v26")
    A("  v_cvt_pk_bf16_f32 v28, v28, v30")
    A("  v_mov_b32 v20, 1")
    A("  ds_write_b32 v11, v24")
    A("  ds_write_b32 v11, v28 offset:256")
    A("  ds_write_b64 v3, v[20:21]")
    if stamps: A("  s_mov_b32 s86, s61")
    stamp(12)
    A("  v_bfe_u32 v4, v0, 3, 1")
    A("  v_lshlrev_b32 v8, 9, v4")
    A("  v_lshl_add_u32 v8, v9, 7, v8")
    A("  v_and_b32 v4, 7, v0")
    A("  v_lshl_add_u32 v8, v4, 4, v8")
    A("  s_lshl_b32 s46, s2, 10")
    A(f"  s_add_u32 s46, s46, {WS_PG}")
    if prew:
        yaddr(7, 4)
        A("  v_mov_b32 v15, s60")
        A("  buffer_store_dwordx4 v[12:15], v2, s[28:31], s46 offen sc1")
        for tg in range(3):
            A("  buffer_store_dwordx4 v[12:15], v7, s[28:31], s58 offen sc1")
            if tg < 2: A("  s_add_u32 s58, s58, 16384")
    A("  s_mov_b32 s32, s12")
    A("  s_mov_b32 s33, s13")
    A("  s_and_b32 s44, s2, 63")
    A("  s_mul_i32 s44, s44, 73728")
    A("  s_lshr_b32 s45, s2, 6")
    A("  s_mul_i32 s45, s45, 288")
    A("  s_add_u32 s44, s44, s45")
    A("  v_mul_u32_u24 v4, 57, v0")
    A("  v_lshrrev_b32 v4, 10, v4")
    A("  v_mul_u32_u24 v4, 864, v4")
    A("  v_add_u32 v6, v4, v2")
    A(f"  v_add_u32 v4, {L_P}, v2")
    A("  v_and_b32 v5, 8, v0")
    A(f"  v_add_u32 v5, {L_ML}, v5")
    A(f"  v_mov_b32 v23, s{sTag}")
    if y2:
        A("  s_lshr_b32 s47, s2, 1")
        A("  s_lshl_b32 s47, s47, 13")
        A("  s_and_b32 s45, s2, 1")
        A("  s_lshl_b32 s45, s45, 6")
        A("  s_add_u32 s47, s47, s45")
        A("  v_lshrrev_b32 v1, 2, v0")
        A("  v_lshlrev_b32 v1, 7, v1")
        A("  v_and_b32 v11, 3, v0")
        A("  v_lshl_add_u32 v1, v11, 4, v1")
        A("  v_add_u32 v7, 4096, v1")
    else:
        A("  s_lshl_b32 s47, s2, 12")
    A(f"  s_add_u32 s47, s47, {WS_YG}")
    def yload(j):
        if y2: A(f"  buffer_load_dwordx4 v[{32+4*j}:{35+4*j}], v{7 if j >= 2 else 1}, s[28:31], s47 offen offset:{(j&1)*2048} sc1")
        else: A(f"  buffer_load_dwordx4 v[{32+4*j}:{35+4*j}], v2, s[28:31], s47 offen offset:{j*1024} sc1")
    if prer:
        A("  buffer_load_dwordx4 v[48:51], v2, s[28:31], s46 offen sc1")
        for j in range(4):
            yload(j)
    A("  s_mov_b32 s36, s14")
    A("  s_mov_b32 s37, s15")
    A("  s_lshr_b32 s56, s2, 2")
    A("  s_mul_i32 s56, s56, 96")
    A("  s_and_b32 s57, s2, 3")
    A("  s_lshl_b32 s57, s57, 3")
    A("  s_add_u32 s56, s56, s57")
    A("  v_lshrrev_b32 v10, 5, v0")
    A("  v_bfe_u32 v11, v0, 4, 1")
    A("  v_lshl_add_u32 v10, v11, 1, v10")
    A("  v_lshlrev_b32 v10, 5, v10")
    A("  v_and_b32 v11, 3, v0")
    A("  v_lshl_add_u32 v10, v11, 1, v10")
    A("  s_mov_b32 s3, 4")
    A("  s_mov_b32 m0, 0")
    A("  s_waitcnt vmcnt(0)")
    def wo_issue():
        stamp(13)
        A("  s_mov_b32 exec_hi, 0x3fffff")
        A("L_wo:")
        if "o" not in skip: A(f"  buffer_load_dwordx4 v6, s[32:35], s44 offen {woflags} lds")
        A("  s_add_u32 m0, m0, 864")
        A("  s_add_u32 s44, s44, 3456")
        A("  s_cmp_lt_u32 m0, 18432")
        A("  s_cbranch_scc1 L_wo")
        A("  s_mov_b32 exec_hi, -1")
    if not wo_early and wo_late != 2:
        A("  s_mov_b32 s61, 0x100000")
        A("L_wait_end:")
        A("  s_sleep 2")
        A("  ds_read_b32 v24, v3 offset:8")
        A("  s_waitcnt lgkmcnt(0)")
        A("  v_readfirstlane_b32 s45, v24")
        A("  s_cmp_lg_u32 s45, 0")
        A("  s_cbranch_scc1 L_wo_go")
        A("  s_sub_u32 s61, s61, 1")
        A("  s_cbranch_scc0 L_wait_end")
        A("L_wo_go:")
    if wo_late != 2: wo_issue()
    A("  s_mov_b32 s61, 0x40000")
    A("  s_barrier")
    stamp(3)
    for w in range(4):
        A(f"  ds_read_b64 v[{40+2*w}:{41+2*w}], v5 offset:{w*16}")
    for w in range(4):
        A(f"  ds_read_b128 v[{24+4*w}:{27+4*w}], v4 offset:{w*1024}")
    A("  s_waitcnt lgkmcnt(4)")
    A("  v_max3_f32 v20, v40, v42, v44")
    A("  v_max_f32 v20, v20, v46")
    A(f"  v_mul_f32 v20, s{sC}, v20")
    for w in range(4): A(f"  v_fma_f32 v{40+2*w}, v{40+2*w}, s{sC}, -v20")
    for w in range(4): A(f"  v_exp_f32 v{40+2*w}, v{40+2*w}")
    A("  s_nop 0")
    A("  v_mul_f32 v22, v40, v41")
    for w in range(1, 4): A(f"  v_fmac_f32 v22, v{40+2*w}, v{41+2*w}")
    A("  v_rcp_f32 v21, v22")
    A("  v_log_f32 v22, v22")
    A("  s_waitcnt lgkmcnt(0)")
    for r in range(4): A(f"  v_mul_f32 v{24+r}, v40, v{24+r}")
    for w in range(1, 4):
        for r in range(4): A(f"  v_fmac_f32 v{24+r}, v{40+2*w}, v{24+4*w+r}")
    A("  v_add_f32 v22, v22, v20")
    for r in range(4): A(f"  v_mul_f32 v{24+r}, v21, v{24+r}")
    A("  v_cvt_pk_bf16_f32 v20, v24, v25")
    A("  v_cvt_pk_bf16_f32 v21, v26, v27")
    A("  buffer_store_dwordx4 v[20:23], v8, s[28:31], s46 offen sc1")
    stamp(15)
    if wo_late == 2: wo_issue()
    A(f"  s_waitcnt vmcnt({0 if wo_late == 2 else 1})")
    stamp(2)
    A("  s_barrier")
    stamp(4)
    stamp(5)
    A("  s_cmp_ge_u32 s2, 192")
    A("  s_cbranch_scc1 L_fin")
    if ydelay: A(f"  s_sleep {ydelay}")
    if notail: A("  s_branch L_ydone")
    if not ypipe:
        A("L_ypoll:")
        for j in range(4):
            yload(j)
        A("  s_waitcnt vmcnt(0)")
        tagcheck([35, 39, 43, 47], "L_ydone", "L_ypoll", psleep)
    else:
        for j in range(4):
            yload(j)
        A("L_ypoll:")
        A("  s_waitcnt vmcnt(0)")
        A("  s_mov_b32 s45, 0")
        for j in range(4):
            A(f"  v_cmp_ne_u32 vcc, s{sTag}, v{35+4*j}")
            A(f"  s_cbranch_vccz L_yok{j}")
            yload(j)
            A("  s_mov_b32 s45, 1")
            A(f"L_yok{j}:")
        A("  s_cmp_eq_u32 s45, 0")
        A("  s_cbranch_scc1 L_ydone")
        A("  s_sub_u32 s61, s61, 1")
        A("  s_cbranch_scc0 L_ypoll")
        A("  s_waitcnt vmcnt(0)")
        A("L_ydone:")
    for c in range(3):
        A(f"  v_add_f32 v{32+c}, v{32+c}, v{36+c}")
        A(f"  v_add_f32 v{40+c}, v{40+c}, v{44+c}")
    A("  v_add_f32 v34, v34, v42")
    A("  v_add_f32 v32, v32, v40")
    A("  v_add_f32 v33, v33, v41")
    A("  v_mov_b32 v35, v34")
    A("  s_nop 0")
    A("  v_permlane32_swap_b32 v32, v33")
    A("  v_permlane32_swap_b32 v34, v35")
    A("  v_add_f32 v32, v32, v33")
    A("  v_add_f32 v34, v34, v35")
    A("  s_nop 1")
    A("  v_permlane16_swap_b32 v32, v34")
    A("  v_add_f32 v32, v32, v34")
    A("  s_nop 1")
    A(f"  v_add_f32_dpp v32, v32, v32 row_ror:8 {dpp}")
    A("  s_nop 1")
    A(f"  v_add_f32_dpp v32, v32, v32 row_ror:4 {dpp}")
    A("  s_mov_b32 exec_lo, 0x000f000f")
    A("  s_mov_b32 exec_hi, 0x0000000f")
    A("  v_cvt_pk_bf16_f32 v32, v32, v32")
    A(f"  buffer_store_short v32, v10, s[36:39], s56 offen {outflags}")
    A("  s_cmp_lg_u32 s2, 0")
    A("  s_cbranch_scc1 L_fin")
    A("  s_mov_b64 exec, 1")
    A("  buffer_store_dword v47, v2, s[28:31], 0 offen sc1")
    A("  s_branch L_fin")
    A("L_attn:")
    A("  s_sub_u32 s3, s3, 1")
    def remap(r, tmp):
        if pair12 == 1:
            A(f"  s_and_b32 s{tmp}, s{r}, 4096")
            A(f"  s_lshr_b32 s{tmp}, s{tmp}, 1")
            A(f"  s_sub_u32 s{r}, s{r}, s{tmp}")
        if pair12 == 2:
            A(f"  s_bfe_u32 s{tmp}, s{r}, 0x2000c")
            A(f"  s_mulk_i32 s{tmp}, 3072")
            A(f"  s_sub_u32 s{r}, s{r}, s{tmp}")
    if pair12 == 2:
        A("  v_bfe_u32 v3, v0, 2, 2")
        A("  v_lshlrev_b32 v1, 12, v3")
        A("  v_and_b32 v3, 15, v0")
        A(f"  v_lshlrev_b32 v{vVoff}, 4, v3")
        A("  v_lshrrev_b32 v3, 4, v0")
        A(f"  v_lshl_add_u32 v{vVoff}, v3, 12, v{vVoff}")
    elif pair12:
        A("  v_bfe_u32 v3, v0, 2, 1")
        A("  v_lshlrev_b32 v1, 8, v3")
        A("  v_bfe_u32 v3, v0, 3, 1")
        A("  v_lshl_add_u32 v1, v3, 12, v1")
        A("  v_and_b32 v3, 31, v0")
        A(f"  v_lshlrev_b32 v{vVoff}, 4, v3")
        A("  v_lshrrev_b32 v3, 5, v0")
        A(f"  v_lshl_add_u32 v{vVoff}, v3, 12, v{vVoff}")
    else:
        A("  v_bfe_u32 v3, v0, 2, 2")
        A("  v_lshlrev_b32 v1, 8, v3")
    A("  v_lshrrev_b32 v3, 4, v0")
    A("  v_lshl_add_u32 v1, v3, 6, v1")
    A("  v_and_b32 v3, 3, v0")
    A("  v_lshl_add_u32 v1, v3, 4, v1")
    A(f"  s_lshl_b32 s44, s{sPair}, 21")
    A(f"  s_lshl_b32 s45, s{sSplit}, 2")
    A("  s_add_u32 s45, s45, s3")
    A("  s_lshl_b32 s45, s45, 12")
    remap(45, 46)
    A(f"  s_mov_b32 s22, {PAIRB}")
    A("  s_mov_b32 s23, 0x20000")
    A(f"  s_mov_b32 s26, {PAIRB}")
    A("  s_mov_b32 s27, 0x20000")
    for d in range(D):
        A(f"  s_add_u32 s{sSlot+d}, s45, {d*STEP}")
    A("  s_waitcnt lgkmcnt(0)")
    A("  s_add_u32 s20, s6, s44")
    A("  s_addc_u32 s21, s7, 0")
    A("  s_add_u32 s24, s8, s44")
    A("  s_addc_u32 s25, s9, 0")
    def reg(kind, d, t):
        return vK + 32 * d + (0 if kind == "K" else 16) + 4 * t
    def loads(kind, d, t):
        srd = "s[20:23]" if kind == "K" else "s[24:27]"
        off = vKoff if kind == "K" else vVoff
        r = reg(kind, d, t)
        A(f"  buffer_load_dwordx4 v[{r}:{r+3}], v{off}, {srd}, s{sSlot+d} offen offset:{t*(1024 >> int(pair12))} {kvflags}")
    setup = []
    S = setup.append
    S("  s_mov_b32 s28, s18")
    S("  s_mov_b32 s29, s19")
    S(f"  s_lshl_b32 s44, s{sPair}, 8")
    S(f"  s_add_u32 s44, s44, {WS_CNT}")
    S("  s_add_u32 s46, s18, s44")
    S("  s_addc_u32 s47, s19, 0")
    S(f"  s_add_u32 s59, s45, {D*STEP}")
    S("  s_mov_b32 s57, 1")
    S("  v_and_b32 v3, 1, v0")
    S("  v_mov_b32 v17, 0xffff")
    S("  v_lshlrev_b32 v3, 4, v3")
    S("  v_lshlrev_b32 v17, v3, v17")
    S("  v_bfe_u32 v3, v0, 1, 2")
    for r in range(4):
        S(f"  v_cmp_eq_u32 vcc, {r}, v3")
        S(f"  v_mov_b32 v{vO+r}, 0")
        S("  s_nop 0")
        S(f"  v_cndmask_b32 v{vM+r}, 0, v17, vcc")
    S(f"  v_mov_b32 v{vm}, 0xff800000")
    S(f"  v_mov_b32 v{vl}, 0")
    S("  v_bfe_u32 v3, v0, 3, 1")
    S("  v_lshlrev_b32 v18, 8, v3")
    S("  v_lshrrev_b32 v3, 4, v0")
    S("  v_lshl_add_u32 v18, v3, 6, v18")
    S("  v_and_b32 v3, 3, v0")
    S("  v_lshl_add_u32 v18, v3, 4, v18")
    S(f"  v_add_u32 v18, {L_Q}, v18")
    S(f"  v_mov_b32 v19, {L_FLAG}")
    n = 0
    for d in range(D):
        for kind in "KV":
            for t in range(U):
                if n == pre0:
                    A("  s_barrier")
                    stamp(8)
                if n == min(WIN0, 8 * D - 1):
                    for ln in setup: A(ln)
                if n >= WIN0: A(f"  s_waitcnt vmcnt({WIN0-1})")
                loads(kind, d, t)
                n += 1
    stamp(9)
    A("  s_mov_b32 s61, 0x400000")
    A("L_qwait:")
    A("  ds_read_b64 v[20:21], v19")
    A(f"  ds_read_b128 v[{vQ}:{vQ+3}], v18")
    A("  s_waitcnt lgkmcnt(0)")
    A("  v_readfirstlane_b32 s44, v20")
    A(f"  v_readfirstlane_b32 s{sTag}, v21")
    A("  s_cmp_lg_u32 s44, 0")
    A("  s_cbranch_scc1 L_qgo")
    A("  s_sleep 1")
    A("  s_sub_u32 s61, s61, 1")
    A("  s_cbranch_scc0 L_qwait")
    A("L_qgo:")
    stamp(1)
    STATIC = hyb * STEP
    def gate(tag):
        if GW is None: return
        if not GWall: A(f"  s_cbranch_vccz L_g{tag}")
        A(f"  s_waitcnt vmcnt({GW})")
        A(f"L_g{tag}:")
    A("  s_mov_b64 vcc, 0")
    def body(d, ring):
        for t in range(U):
            r = reg("K", d, t)
            if ring: A(f"  s_waitcnt vmcnt({15 if fine else 15-t})")
            A(f"  v_mfma_f32_16x16x32_bf16 v[{vD+4*t}:{vD+4*t+3}], v[{r}:{r+3}], v[{vQ}:{vQ+3}], 0")
            if ring and fine:
                A(f"  s_cbranch_scc1 L_sk{d}_{t}")
                loads("K", d, t)
                A(f"L_sk{d}_{t}:")
        if ring and not fine:
            A(f"  s_cbranch_scc1 L_sk{d}")
            gate(f"k{d}")
            for t in range(U): loads("K", d, t)
            A(f"L_sk{d}:")
        A("  s_nop 4")
        for j in range(4):
            for t in range(U):
                if j == 0:
                    A(f"  v_mov_b32_dpp v{vS+t}, v{vD+4*t} quad_perm:[0,0,0,0] {dpp}")
                else:
                    A(f"  v_add_f32_dpp v{vS+t}, v{vD+4*t+j}, v{vS+t} quad_perm:[{j},{j},{j},{j}] {dpp}")
        A(f"  v_max3_f32 v{va}, v{vm}, v{vS}, v{vS+1}")
        A(f"  v_max3_f32 v{va}, v{va}, v{vS+2}, v{vS+3}")
        A(f"  v_mov_b32 v{vb}, v{va}")
        A("  s_nop 1")
        A(f"  v_permlane32_swap_b32 v{va}, v{vb}")
        A(f"  v_max_f32 v{va}, v{va}, v{vb}")
        A(f"  v_mov_b32 v{vb}, v{va}")
        A("  s_nop 1")
        A(f"  v_permlane16_swap_b32 v{va}, v{vb}")
        A(f"  v_max_f32 v{va}, v{va}, v{vb}")
        A(f"  v_sub_f32 v{vb}, v{vm}, v{va}")
        A(f"  v_mul_f32 v{vb}, s{sC}, v{vb}")
        A(f"  v_exp_f32 v{vb}, v{vb}")
        A(f"  v_mov_b32 v{vm}, v{va}")
        A(f"  v_mul_f32 v{va}, s{sC}, v{va}")
        for t in range(U):
            A(f"  v_fma_f32 v{vS+t}, v{vS+t}, s{sC}, -v{va}")
        for t in range(U):
            A(f"  v_exp_f32 v{vS+t}, v{vS+t}")
        for r in range(4):
            A(f"  v_mul_f32 v{vO+r}, v{vO+r}, v{vb}")
        A(f"  v_mul_f32 v{vl}, v{vl}, v{vb}")
        for t in range(U):
            A(f"  v_cvt_pk_bf16_f32 v{vT}, v{vS+t}, v{vS+t}")
            for j in range(4):
                A(f"  v_and_b32 v{vB+4*t+j}, v{vT}, v{vM+j}")
            A(f"  v_add_f32 v{vl}, v{vl}, v{vS+t}")
        if ring:
            A(f"  s_cbranch_scc1 L_dw{d}")
            A(f"L_dr{d}:")
        for t in range(U):
            r = reg("V", d, t)
            if ring: A(f"  s_waitcnt vmcnt({15 if fine else 15-t})")
            A(f"  v_mfma_f32_16x16x32_bf16 v[{vO}:{vO+3}], v[{r}:{r+3}], v[{vB+4*t}:{vB+4*t+3}], v[{vO}:{vO+3}]")
            if ring and fine and t < 3:
                A(f"  s_cbranch_scc1 L_sv{d}_{t}")
                loads("V", d, t)
                A(f"L_sv{d}_{t}:")
        if ring:
            A(f"  s_cbranch_scc1 L_sv{d}")
            gate(f"v{d}")
            for t in range(3 if fine else 0, U): loads("V", d, t)
    A("L_loop:")
    for d in range(2):
        A(f"  s_cmp_lt_u32 s59, {STATIC}")
        A(f"  s_cbranch_scc0 L_dy{d}")
        A(f"  s_mov_b32 s{sSlot+d}, s59")
        A(f"  s_add_u32 s59, s59, {STEP}")
        A(f"  s_cmp_ge_u32 s59, {STATIC}")
        A(f"  s_cbranch_scc1 L_tf{d}")
        A(f"L_go{d}:")
        body(d, True)
    A("  s_cmp_eq_u32 s57, 0")
    A("  s_cbranch_scc1 L_loop")
    A("  s_mov_b32 s57, 0")
    stamp(13)
    A("  s_waitcnt vmcnt(16)")
    for e in range(E):
        body(2 + e, False)
    stamp(14)
    A("  s_branch L_loop")
    for d in range(2):
        A(f"L_dy{d}:")
        if tkwait: A("  s_waitcnt vmcnt(15)")
        A("  s_waitcnt lgkmcnt(0)")
        A(f"  s_add_u32 s{sSlot+d}, s60, {STATIC}")
        remap(sSlot + d, 56)
        A(f"  s_cmp_ge_u32 s{sSlot+d}, {PAIRB}")
        A(f"  s_cbranch_scc0 L_tk{d}")
        stamp(15)
        if not wo_late:
            A(f"  v_mov_b32 v{va}, {L_FLAG}")
            A(f"  ds_write_b32 v{va}, v{va} offset:8")
        if fine: A("  s_waitcnt vmcnt(12)")
        A(f"  s_branch L_go{d}")
        A(f"L_tf{d}:")
        A("  s_mov_b64 vcc, -1")
        stamp(12)
        A(f"L_tk{d}:")
        A(f"  s_mov_b32 s60, {BLK}")
        A("  s_atomic_add s60, s[46:47], 0 glc")
        A("  s_cmp_eq_u32 s59, 0")
        A(f"  s_branch L_go{d}")
        A(f"L_dw{d}:")
        A("  s_waitcnt vmcnt(8)")
        A(f"  s_cmp_lt_u32 s{sSlot+1-d}, {PAIRB}")
        A(f"  s_cbranch_scc1 L_dr{d}")
        A("  s_waitcnt vmcnt(0)")
        A("  s_cmp_eq_u32 s59, s59")
        A(f"  s_branch L_dr{d}")
        A(f"L_sv{d}:")
        A(f"  s_cmp_ge_u32 s{sSlot+1-d}, {PAIRB}")
        A("  s_cbranch_scc1 L_done")
        A(f"  s_mov_b32 s{sSlot+1-d}, {PAIRB}")
        A("  s_waitcnt vmcnt(4)")
        if wo_late == 1:
            A(f"  v_mov_b32 v{va}, {L_FLAG}")
            A(f"  ds_write_b32 v{va}, v{va} offset:8")
        A("  s_cmp_eq_u32 s59, s59")
        A(f"  s_branch L_go{1-d}")
    A("L_done:")
    stamp(2)
    A(f"  v_mov_b32 v{vb}, v{vl}")
    A("  s_lshl_b32 s44, s3, 10")
    A("  s_lshl_b32 s45, s3, 4")
    A(f"  v_permlane32_swap_b32 v{vl}, v{vb}")
    A(f"  v_add_f32 v{vl}, v{vl}, v{vb}")
    A(f"  v_mov_b32 v{vb}, v{vl}")
    A(f"  s_add_u32 s44, s44, {L_P}")
    A(f"  s_add_u32 s45, s45, {L_ML}")
    A(f"  v_permlane16_swap_b32 v{vl}, v{vb}")
    A(f"  v_add_f32 v{vl}, v{vl}, v{vb}")
    A("  v_and_b32 v5, 8, v0")
    A("  v_lshl_add_u32 v6, v0, 4, s44")
    A("  v_add_u32 v7, s45, v5")
    A(f"  ds_write_b128 v6, v[{vO}:{vO+3}]")
    A(f"  ds_write_b64 v7, v[{vm}:{vl}]")
    A("  s_waitcnt lgkmcnt(0)")
    A("  s_barrier")
    stamp(3)
    A("  s_and_b32 s44, s2, 60")
    A("  s_lshl_b32 s45, s3, 6")
    A("  s_add_u32 s44, s44, s45")
    A("  s_lshl_b32 s44, s44, 10")
    A(f"  s_lshl_b32 s45, s{sSplit}, 8")
    A("  s_add_u32 s44, s44, s45")
    A(f"  s_add_u32 s44, s44, {WS_PG}")
    A("  v_lshrrev_b32 v9, 4, v0")
    A("  v_and_b32 v3, 15, v0")
    A("  v_lshlrev_b32 v4, 10, v9")
    A("  v_lshl_add_u32 v4, v3, 4, v4")
    A("  s_lshl_b32 s56, s3, 7")
    A(f"  s_add_u32 s56, s56, {L_O}")
    A("  v_lshl_add_u32 v11, v5, 3, s56")
    A("  v_lshrrev_b32 v3, 5, v0")
    A("  v_lshl_add_u32 v11, v3, 4, v11")
    A("  v_bfe_u32 v3, v0, 4, 1")
    A("  v_lshl_add_u32 v11, v3, 5, v11")
    A("  v_and_b32 v3, 7, v0")
    A("  v_lshl_add_u32 v11, v3, 1, v11")
    A("  v_bfe_u32 v3, v0, 2, 2")
    A("  v_lshl_add_u32 v10, v9, 3, v3")
    A("  v_mul_u32_u24 v10, 288, v10")
    A("  v_and_b32 v1, 3, v0")
    A("  v_lshl_add_u32 v10, v1, 3, v10")
    A("  s_mul_i32 s45, s3, 96")
    A("  v_add_u32 v10, s45, v10")
    A("  v_lshlrev_b32 v1, 7, v3")
    A("  v_lshl_add_u32 v1, v9, 4, v1")
    A(f"  v_add_u32 v1, {L_O}, v1")
    yaddr(6, 3)
    A("  s_lshl_b32 s45, s3, 14")
    A("  s_add_u32 s58, s58, s45")
    A("  s_mov_b32 s61, 0x40000")
    if pdelay: A(f"  s_sleep {pdelay}")
    if notail: A("  s_branch L_pdone")
    A("L_ppoll:")
    A("  buffer_load_dwordx4 v[24:27], v4, s[28:31], s44 offen sc1")
    A("  s_waitcnt vmcnt(0)")
    tagcheck([27], "L_pdone", "L_ppoll", psleep)
    if stamps: A("  s_mov_b32 s86, s61")
    stamp(10)
    A("  v_mov_b32 v28, v26")
    A("  v_mov_b32 v29, v26")
    A("  v_lshlrev_b32 v32, 16, v24")
    A("  v_and_b32 v33, 0xffff0000, v24")
    A("  v_permlane32_swap_b32 v28, v29")
    A("  v_max_f32 v28, v28, v29")
    A("  v_mov_b32 v29, v28")
    A("  v_lshlrev_b32 v34, 16, v25")
    A("  v_and_b32 v35, 0xffff0000, v25")
    A("  v_permlane16_swap_b32 v28, v29")
    A("  v_max_f32 v28, v28, v29")
    A("  v_sub_f32 v28, v26, v28")
    A("  v_exp_f32 v28, v28")
    A("  s_nop 0")
    A("  v_mov_b32 v29, v28")
    for r in range(4): A(f"  v_mul_f32 v{32+r}, v28, v{32+r}")
    A("  v_permlane32_swap_b32 v28, v29")
    A("  v_permlane32_swap_b32 v32, v33")
    A("  v_permlane32_swap_b32 v34, v35")
    A("  v_add_f32 v28, v28, v29")
    A("  v_mov_b32 v29, v28")
    A("  v_add_f32 v32, v32, v33")
    A("  v_add_f32 v34, v34, v35")
    A("  v_permlane16_swap_b32 v28, v29")
    A("  v_add_f32 v28, v28, v29")
    A("  v_permlane16_swap_b32 v32, v34")
    A("  v_rcp_f32 v28, v28")
    A("  v_add_f32 v32, v32, v34")
    A("  v_mul_f32 v32, v32, v28")
    A("  v_cvt_pk_bf16_f32 v32, v32, v32")
    A("  ds_write_b16 v11, v32")
    A("  s_waitcnt lgkmcnt(0)")
    A("  s_barrier")
    stamp(4)
    A("  s_cmp_eq_u32 s3, 3")
    A("  s_cbranch_scc1 L_fin5")
    A("  ds_read_b128 v[36:39], v1")
    for tl in range(3):
        A(f"  ds_read_b64_tr_b16 v[{44+4*tl}:{45+4*tl}], v10 offset:{tl*32}")
        A(f"  ds_read_b64_tr_b16 v[{46+4*tl}:{47+4*tl}], v10 offset:{tl*32+1152}")
    A("  ds_read_b128 v[40:43], v1 offset:64")
    for tl in range(3):
        A(f"  ds_read_b64_tr_b16 v[{56+4*tl}:{57+4*tl}], v10 offset:{tl*32+9216}")
        A(f"  ds_read_b64_tr_b16 v[{58+4*tl}:{59+4*tl}], v10 offset:{tl*32+9216+1152}")
    A("  s_waitcnt lgkmcnt(7)")
    for tl in (2, 1, 0):
        A(f"  v_mfma_f32_16x16x32_bf16 v[{24+4*tl}:{27+4*tl}], v[36:39], v[{44+4*tl}:{47+4*tl}], 0")
    A("  s_waitcnt lgkmcnt(0)")
    for tl in (2, 1, 0):
        A(f"  v_mfma_f32_16x16x32_bf16 v[{24+4*tl}:{27+4*tl}], v[40:43], v[{56+4*tl}:{59+4*tl}], v[{24+4*tl}:{27+4*tl}]")
    A("  s_nop 7")
    A("  v_mov_b32 v26, v32")
    A("  v_mov_b32 v25, v28")
    A(f"  v_mov_b32 v27, s{sTag}")
    A("  buffer_store_dwordx4 v[24:27], v6, s[28:31], s58 offen sc1")
    A("L_fin5:")
    stamp(5)
    A("L_fin:")
    if stamps:
        stamp(6)
        A("  s_mul_i32 s44, s2, 5")
        A("  s_add_u32 s44, s44, s3")
        A("  s_lshl_b32 s44, s44, 6")
        A(f"  s_add_u32 s44, s44, {WS_TS}")
        A("  s_mov_b32 s78, s61")
        A("  s_waitcnt lgkmcnt(0)")
        A("  s_mov_b64 exec, 1")
        for i in range(16):
            A(f"  v_mov_b32 v{64+i}, s{64+2*i}")
        A("  v_mov_b32 v3, 0")
        A("  s_mov_b32 s55, s44")
        for j in range(4):
            if not nostampstore: A(f"  buffer_store_dwordx4 v[{64+4*j}:{67+4*j}], v3, s[28:31], s44 offen offset:{16*j}")
    if spin is not None:
        fixed, mult, sa, sb, who = spin[:5]
        if len(spin) > 5:
            A(f"  s_cmp_eq_u32 s2, {spin[5]}")
            A("  s_cbranch_scc0 L_end")
        A(f"  s_cmp_eq_u32 s3, {who}")
        A("  s_cbranch_scc0 L_end")
        A(f"  s_sub_u32 s44, s{64+2*sb}, s{64+2*sa}")
        A(f"  s_mul_i32 s44, s44, {mult}")
        A(f"  s_add_u32 s44, s44, {fixed}")
        A("  s_min_u32 s44, s44, 200000")
        A("  s_lshl_b32 s55, s2, 10")
        A(f"  s_add_u32 s55, s55, {WS_TS}")
        if endwarm == "ld": A("  buffer_load_dword v80, v3, s[28:31], s55 offen sc1")
        if endwarm == "st": A("  buffer_store_short v64, v3, s[28:31], s55 offen sc1")
        if endwarm == "stp": A("  buffer_store_short v64, v3, s[28:31], s55 offen")
        A("L_spin:")
        A("  s_memrealtime s[46:47]")
        A("  s_waitcnt lgkmcnt(0)")
        A("  s_sub_u32 s45, s46, s64")
        A("  s_cmp_lt_u32 s45, s44")
        A("  s_cbranch_scc1 L_spin")
        if endstore is not None:
            if endfull:
                A("  s_mov_b64 exec, 0xff")
                A(f"  buffer_store_dwordx4 v[64:67], v2, s[28:31], s55 offen {endstore}")
            else:
                A(f"  buffer_store_short v64, v3, s[28:31], s55 offen {endstore}")
    if dbg:
        A("  s_mov_b32 s32, s16")
        A("  s_mov_b32 s33, s17")
        A("  s_mov_b32 s34, 256")
        A("  s_mov_b32 s35, 0x20000")
        A("  v_not_b32 v80, v64")
        A("  buffer_atomic_umax v80, v3, s[32:35], 0 offen offset:0")
        A("  buffer_atomic_umax v64, v3, s[32:35], 0 offen offset:4")
        A("  buffer_atomic_umax v70, v3, s[32:35], 0 offen offset:60")
        A("  s_cmp_eq_u32 s3, 4")
        A("  s_cbranch_scc1 L_dbgh")
        for slot, st in ((2, 8), (3, 9), (4, 1), (5, 13), (6, 14), (7, 2), (8, 10), (9, 5)):
            A(f"  buffer_atomic_umax v{64+st}, v3, s[32:35], 0 offen offset:{4*slot}")
        A("  s_branch L_end")
        A("L_dbgh:")
        for slot, st in ((10, 8), (11, 10), (12, 12), (13, 13), (14, 15)):
            A(f"  buffer_atomic_umax v{64+st}, v3, s[32:35], 0 offen offset:{4*slot}")
    A("L_end:")
    A("  s_endpgm")
    A('.section .rodata,"a"')
    A(".p2align 6")
    A(f".amdhsa_kernel {NAME}")
    A(f"  .amdhsa_next_free_vgpr {NV}")
    A("  .amdhsa_next_free_sgpr %d" % (96 if stamps else 64))
    A(f"  .amdhsa_accum_offset {(NV+3)//4*4}")
    A("  .amdhsa_group_segment_fixed_size 0")
    A("  .amdhsa_kernarg_size 64")
    A("  .amdhsa_user_sgpr_count 2")
    A("  .amdhsa_user_sgpr_kernarg_segment_ptr 1")
    A("  .amdhsa_system_sgpr_workgroup_id_x 1")
    A("  .amdhsa_float_denorm_mode_32 3")
    A(".end_amdhsa_kernel")
    return "\n".join(L) + "\n"

if __name__ == "__main__":
    import json
    cfg = json.loads(sys.argv[1]) if len(sys.argv) > 1 else {}
    sys.stdout.write(gen(**cfg))
```

```python
import math, struct, sys
from gen_full import f2u, SCALE, NAME, HEADER

WS_QG = 0x40000
WS_PG = 0x100000
WS_YG = 0x200000
WS_CNT = 0x300000
WS_TS = 0x1000000
WS_SIZE = 0x2000000

L_Q = 19456
L_FLAG = L_Q + 512
L_ML = L_FLAG + 32
L_O = L_Q + 640
L_P = L_O + 512
L_TOTAL = L_P + 4 * 1024

def gen(E=2, WIN0=8, hyb=26, stamps=False, pre0=4, qdelay=0, pdelay=0, ydelay=0, prer=True, late_touch=True,
        wo_late=1, outflags="", warm=True, GW=None, ysleep=0, psleep=0, bar3=True, lazywo=True, rotk=0, GWd=None, tkv=False):
    U = 4
    D = 2 + E
    assert E >= 1
    PAIRB = 2 * 1024 * 1024
    BLK = 4096
    STEP = 16 * BLK
    L = []
    A = L.append
    dpp = "row_mask:0xf bank_mask:0xf"
    vKoff, vVoff, vT = 1, 2, 3
    vQ, vM, vO = 4, 8, 12
    vm, vl, va, vb = 16, 17, 18, 19
    vS, vD, vB = 20, 24, 24
    vK = 40
    NV = max(vK + 32 * D, 132)
    aP, aML, aPr, aMLr, aRec, aPub, aO, aOf, aWo, aY, aFl, aOne = range(104, 116)
    sTag, sC, sPair, sSplit = 40, 41, 42, 43
    sSlot = 48
    def stamp(i):
        if stamps:
            A(f"  s_memrealtime s[{64+2*i}:{65+2*i}]")
    def spin_tail(label_ok, label_loop, sleep):
        A(f"  s_cbranch_scc1 {label_ok}")
        if sleep: A(f"  s_sleep {sleep}")
        A("  s_sub_u32 s61, s61, 1")
        A(f"  s_cbranch_scc0 {label_loop}")
        A(f"{label_ok}:")
    for ln in HEADER.rstrip("\n").split("\n"): A(ln)
    A(f"; @launch grid=(256,1,1) block=(320,1,1) lds={L_TOTAL}")
    A('.amdgcn_target "amdgcn-amd-amdhsa--gfx950"')
    A(".text")
    A(f".globl {NAME}")
    A(".p2align 8")
    A(f".type {NAME},@function")
    A(f"{NAME}:")
    A("  s_cmp_ge_u32 s2, 256")
    A("  s_cbranch_scc1 L_end")
    A("  s_load_dwordx16 s[4:19], s[0:1], 0")
    stamp(0)
    A("  v_lshrrev_b32 v3, 6, v0")
    A("  v_and_b32 v0, 63, v0")
    A("  v_readfirstlane_b32 s3, v3")
    A("  v_lshrrev_b32 v9, 4, v0")
    A("  v_and_b32 v8, 3, v0")
    if rotk:
        A("  s_and_b32 s44, s2, 3")
        A(f"  s_mulk_i32 s44, {8*rotk}")
        A("  s_add_u32 s2, s2, s44")
        A("  s_and_b32 s2, s2, 255")
    A(f"  s_lshr_b32 s{sPair}, s2, 2")
    A(f"  s_and_b32 s{sSplit}, s2, 3")
    A("  s_cmp_lg_u32 s3, 0")
    A("  s_cbranch_scc1 L_attn")
    A("  s_and_b32 s44, s2, 7")
    A("  s_lshl_b32 s44, s44, 5")
    A("  s_lshr_b32 s45, s2, 3")
    A("  s_add_u32 s44, s44, s45")
    A("  v_lshlrev_b32 v2, 4, v0")
    A("  v_bfe_u32 v4, v0, 2, 2")
    A("  v_lshl_add_u32 v4, v9, 3, v4")
    A("  v_lshlrev_b32 v5, 4, v8")
    A("  v_lshl_add_u32 v6, v4, 13, v5")
    A("  s_mov_b32 s34, 4718592")
    A("  s_mov_b32 s35, 0x20000")
    A("  s_movk_i32 s38, 4608")
    A("  s_mov_b32 s39, 0x20000")
    A("  s_lshr_b32 s45, s44, 1")
    A("  s_lshl_b32 s45, s45, 6")
    A("  s_and_b32 s47, s44, 1")
    A("  s_mul_i32 s46, s47, 2359296")
    A("  s_add_u32 s45, s45, s46")
    A("  s_add_u32 s46, s45, 32768")
    A("  s_mul_i32 s56, s47, 576")
    A(f"  s_movk_i32 m0, {L_P}")
    A(f"  v_mov_b32 v3, {L_FLAG}")
    A("  v_mov_b32 v12, 0")
    A("  v_mov_b32 v13, 0")
    A("  ds_write2_b64 v3, v[12:13], v[12:13] offset0:0 offset1:1")
    A("  ds_write_b64 v3, v[12:13] offset:16")
    A("  s_mov_b32 exec_hi, 15")
    A("  s_waitcnt lgkmcnt(0)")
    stamp(8)
    A("  s_mov_b64 s[36:37], s[4:5]")
    A("  s_mov_b64 s[32:33], s[10:11]")
    for b in range(4):
        A(f"  buffer_load_dwordx4 v2, s[36:39], s56 offen offset:{b*1152} lds")
    A("  s_mov_b32 m0, 0")
    A("  s_mov_b32 exec_hi, -1")
    A("L_wq:")
    A("  buffer_load_dwordx4 v6, s[32:35], s45 offen nt lds")
    A("  s_addk_i32 m0, 1024")
    A("  s_add_u32 s45, s45, 0x40000")
    A("  buffer_load_dwordx4 v6, s[32:35], s46 offen nt lds")
    A("  s_addk_i32 m0, 1024")
    A("  s_add_u32 s46, s46, 0x40000")
    A("  s_cmpk_lt_u32 m0, 18432")
    A("  s_cbranch_scc1 L_wq")
    A("  s_load_dword s60, s[18:19], 0")
    A("  s_barrier")
    A("  s_branch L_help")
    A("L_attn:")
    A("  s_sub_u32 s3, s3, 1")
    A("  v_bfe_u32 v3, v0, 2, 1")
    A("  v_lshlrev_b32 v1, 8, v3")
    A("  v_bfe_u32 v3, v0, 3, 1")
    A("  v_lshl_add_u32 v1, v3, 12, v1")
    A("  v_lshl_add_u32 v1, v9, 6, v1")
    A("  v_lshl_add_u32 v1, v8, 4, v1")
    A("  v_and_b32 v3, 31, v0")
    A("  v_lshlrev_b32 v2, 4, v3")
    A("  v_lshrrev_b32 v3, 5, v0")
    A("  v_lshl_add_u32 v2, v3, 12, v2")
    A(f"  s_lshl_b32 s44, s{sPair}, 21")
    A(f"  s_lshl_b32 s45, s{sSplit}, 14")
    A("  s_lshr_b32 s46, s3, 1")
    A("  s_lshl_b32 s46, s46, 13")
    A("  s_add_u32 s45, s45, s46")
    A("  s_and_b32 s46, s3, 1")
    A("  s_lshl_b32 s46, s46, 11")
    A(f"  s_add_u32 s{sSlot}, s45, s46")
    A(f"  s_mov_b32 s22, {PAIRB}")
    A("  s_mov_b32 s23, 0x20000")
    A("  s_mov_b64 s[26:27], s[22:23]")
    A("  s_waitcnt lgkmcnt(0)")
    A("  s_add_u32 s20, s6, s44")
    A("  s_addc_u32 s21, s7, 0")
    A("  s_add_u32 s24, s8, s44")
    A("  s_addc_u32 s25, s9, 0")
    stamp(8)
    def reg(kind, d, t):
        return vK + 32 * d + (0 if kind == "K" else 16) + 4 * t
    def loads(kind, d, t):
        srd = "s[20:23]" if kind == "K" else "s[24:27]"
        off = vKoff if kind == "K" else vVoff
        r = reg(kind, d, t)
        A(f"  buffer_load_dwordx4 v[{r}:{r+3}], v{off}, {srd}, s{sSlot+d} offen offset:{t*512} nt")
    setup = []
    S = setup.append
    S("  s_mov_b64 s[28:29], s[18:19]")
    S(f"  s_mov_b32 s30, {WS_SIZE}")
    S("  s_mov_b32 s31, 0x20000")
    S(f"  s_mov_b32 s{sC}, {hex(f2u(SCALE))}")
    S(f"  s_lshl_b32 s44, s{sPair}, 8")
    S(f"  s_add_u32 s44, s44, {WS_CNT}")
    S("  s_add_u32 s46, s18, s44")
    S("  s_addc_u32 s47, s19, 0")
    S(f"  s_add_u32 s59, s{sSlot}, {D*STEP}")
    S("  s_mov_b32 s57, 1")
    S("  v_bfe_u32 v3, v0, 3, 1")
    S("  v_lshlrev_b32 v18, 8, v3")
    S("  v_lshl_add_u32 v18, v9, 6, v18")
    S("  v_lshl_add_u32 v18, v8, 4, v18")
    S(f"  v_add_u32 v18, {L_Q}, v18")
    S(f"  v_mov_b32 v19, {L_FLAG}")
    S("  v_and_b32 v3, 1, v0")
    S("  v_mov_b32 v17, 0xffff")
    S("  v_lshlrev_b32 v3, 4, v3")
    S("  v_lshlrev_b32 v17, v3, v17")
    S("  v_bfe_u32 v3, v0, 1, 2")
    for r in range(4):
        S(f"  v_cmp_eq_u32 vcc, {r}, v3")
        S(f"  v_mov_b32 v{vO+r}, 0")
        S("  s_nop 0")
        S(f"  v_cndmask_b32 v{vM+r}, 0, v17, vcc")
    S(f"  v_mov_b32 v{vm}, 0xff800000")
    S(f"  v_mov_b32 v{vl}, 0")
    n = 0
    for d in range(D):
        if d: A(f"  s_add_u32 s{sSlot+d}, s{sSlot}, {d*STEP}")
        for kind in "KV":
            for t in range(U):
                if n == pre0: A("  s_barrier")
                if n == WIN0:
                    for ln in setup: A(ln)
                if n >= WIN0: A(f"  s_waitcnt vmcnt({WIN0-1})")
                loads(kind, d, t)
                n += 1
    stamp(9)
    A("  s_mov_b32 s61, 0x400000")
    A("L_qwait:")
    A("  ds_read_b64 v[20:21], v19")
    A(f"  ds_read_b128 v[{vQ}:{vQ+3}], v18")
    A("  s_waitcnt lgkmcnt(0)")
    A("  v_readfirstlane_b32 s44, v20")
    A(f"  v_readfirstlane_b32 s{sTag}, v21")
    A("  s_cmp_lg_u32 s44, 0")
    spin_tail("L_qgo", "L_qwait", 1)
    stamp(1)
    STATIC = hyb * STEP
    def body(d, ring):
        for t in range(U):
            r = reg("K", d, t)
            if ring: A(f"  s_waitcnt vmcnt({15-t})")
            A(f"  v_mfma_f32_16x16x32_bf16 v[{vD+4*t}:{vD+4*t+3}], v[{r}:{r+3}], v[{vQ}:{vQ+3}], 0")
        if ring:
            A(f"  s_cbranch_scc1 L_sk{d}")
            if GW is not None: A(f"  s_waitcnt vmcnt({GW})")
            A(f"  s_cmp_lt_u32 s59, {STATIC}")
            A(f"  s_cbranch_scc0 L_dy{d}")
            A(f"  s_mov_b32 s{sSlot+d}, s59")
            A(f"  s_add_u32 s59, s59, {STEP}")
            A(f"  s_cmp_ge_u32 s59, {STATIC}")
            A(f"  s_cbranch_scc1 L_tf{d}")
            A(f"L_ld{d}:")
            for t in range(U): loads("K", d, t)
            A(f"L_sk{d}:")
        A("  s_nop 4")
        for j in range(4):
            for t in range(U):
                if j == 0:
                    A(f"  v_mov_b32_dpp v{vS+t}, v{vD+4*t} quad_perm:[0,0,0,0] {dpp}")
                else:
                    A(f"  v_add_f32_dpp v{vS+t}, v{vD+4*t+j}, v{vS+t} quad_perm:[{j},{j},{j},{j}] {dpp}")
        A(f"  v_max3_f32 v{va}, v{vm}, v{vS}, v{vS+1}")
        A(f"  v_max3_f32 v{va}, v{va}, v{vS+2}, v{vS+3}")
        A(f"  v_mov_b32 v{vb}, v{va}")
        A("  s_nop 1")
        A(f"  v_permlane32_swap_b32 v{va}, v{vb}")
        A(f"  v_max_f32 v{va}, v{va}, v{vb}")
        A(f"  v_mov_b32 v{vb}, v{va}")
        A("  s_nop 1")
        A(f"  v_permlane16_swap_b32 v{va}, v{vb}")
        A(f"  v_max_f32 v{va}, v{va}, v{vb}")
        A(f"  v_sub_f32 v{vb}, v{vm}, v{va}")
        A(f"  v_mul_f32 v{vb}, s{sC}, v{vb}")
        A(f"  v_exp_f32 v{vb}, v{vb}")
        A(f"  v_mov_b32 v{vm}, v{va}")
        A(f"  v_mul_f32 v{va}, s{sC}, v{va}")
        for t in range(U):
            A(f"  v_fma_f32 v{vS+t}, v{vS+t}, s{sC}, -v{va}")
        for t in range(U):
            A(f"  v_exp_f32 v{vS+t}, v{vS+t}")
        for r in range(4):
            A(f"  v_mul_f32 v{vO+r}, v{vO+r}, v{vb}")
        A(f"  v_mul_f32 v{vl}, v{vl}, v{vb}")
        for t in range(U):
            A(f"  v_cvt_pk_bf16_f32 v{vT}, v{vS+t}, v{vS+t}")
            for j in range(4):
                A(f"  v_and_b32 v{vB+4*t+j}, v{vT}, v{vM+j}")
            A(f"  v_add_f32 v{vl}, v{vl}, v{vS+t}")
        if ring:
            A(f"  s_cbranch_scc1 L_dw{d}")
            A(f"L_dr{d}:")
        for t in range(U):
            r = reg("V", d, t)
            if ring: A(f"  s_waitcnt vmcnt({15-t})")
            A(f"  v_mfma_f32_16x16x32_bf16 v[{vO}:{vO+3}], v[{r}:{r+3}], v[{vB+4*t}:{vB+4*t+3}], v[{vO}:{vO+3}]")
        if ring:
            A(f"  s_cbranch_scc1 L_sv{d}")
            if GW is not None: A(f"  s_waitcnt vmcnt({GW})")
            if GWd is not None or tkv:
                A(f"  s_cbranch_vccz L_gv{d}")
                if GWd is not None: A(f"  s_waitcnt vmcnt({GWd})")
                if tkv:
                    A(f"  s_movk_i32 s60, {BLK}")
                    A("  s_atomic_add s60, s[46:47], 0 glc")
                A(f"L_gv{d}:")
            for t in range(U): loads("V", d, t)
    A("  s_mov_b64 vcc, 0")
    A("  s_cmp_eq_u32 s59, 0")
    A("L_loop:")
    for d in range(2):
        A(f"L_go{d}:")
        body(d, True)
    A("  s_cmp_lg_u32 s57, 0")
    A("  s_cbranch_scc0 L_loop")
    A("  s_mov_b32 s57, 0")
    stamp(13)
    A("  s_waitcnt vmcnt(16)")
    for e in range(E):
        body(2 + e, False)
    stamp(14)
    A("  v_lshrrev_b32 v116, 4, v0")
    A("  v_lshlrev_b32 v117, 4, v0")
    A(f"  v_add_u32 v{aPr}, {L_P}, v117")
    A("  s_lshl_b32 s44, s3, 10")
    A(f"  v_add_u32 v{aP}, s44, v{aPr}")
    A("  v_and_b32 v117, 8, v0")
    A(f"  v_add_u32 v{aMLr}, {L_ML}, v117")
    A("  s_lshl_b32 s44, s3, 4")
    A(f"  v_add_u32 v{aML}, s44, v{aMLr}")
    A(f"  v_lshlrev_b32 v{aPub}, 6, v117")
    A(f"  v_lshl_add_u32 v{aPub}, v116, 7, v{aPub}")
    A("  v_and_b32 v118, 7, v0")
    A(f"  v_lshl_add_u32 v{aPub}, v118, 4, v{aPub}")
    A("  s_lshl_b32 s44, s3, 7")
    A(f"  s_add_u32 s44, s44, {L_O}")
    A(f"  v_lshl_add_u32 v{aO}, v117, 3, s44")
    A(f"  v_lshl_add_u32 v{aO}, v118, 1, v{aO}")
    A("  v_lshrrev_b32 v118, 5, v0")
    A(f"  v_lshl_add_u32 v{aO}, v118, 4, v{aO}")
    A("  v_bfe_u32 v118, v0, 4, 1")
    A(f"  v_lshl_add_u32 v{aO}, v118, 5, v{aO}")
    A("  v_and_b32 v118, 15, v0")
    A(f"  v_lshlrev_b32 v{aRec}, 10, v116")
    A(f"  v_lshl_add_u32 v{aRec}, v118, 4, v{aRec}")
    A("  v_bfe_u32 v117, v0, 2, 2")
    A("  v_and_b32 v118, 3, v0")
    A(f"  v_lshl_add_u32 v{aWo}, v116, 3, v117")
    A(f"  v_mul_u32_u24 v{aWo}, 288, v{aWo}")
    A(f"  v_mad_u32_u24 v{aWo}, v118, 24, v{aWo}")
    A("  s_mul_i32 s44, s3, 96")
    A(f"  v_add_u32 v{aWo}, s44, v{aWo}")
    A(f"  v_lshlrev_b32 v{aOf}, 7, v117")
    A(f"  v_lshl_add_u32 v{aOf}, v116, 4, v{aOf}")
    A(f"  v_add_u32 v{aOf}, {L_O}, v{aOf}")
    A(f"  v_mul_u32_u24 v{aY}, 196608, v116")
    A(f"  v_lshl_add_u32 v{aY}, v117, 12, v{aY}")
    A(f"  v_lshl_add_u32 v{aY}, v118, 4, v{aY}")
    A(f"  v_mov_b32 v{aFl}, {L_FLAG}")
    A(f"  v_mov_b32 v{aOne}, 1")
    A("  s_lshr_b32 s44, s2, 6")
    A("  s_mul_i32 s58, s44, 49152")
    A("  s_and_b32 s44, s2, 63")
    A("  s_lshl_b32 s44, s44, 6")
    A("  s_add_u32 s58, s58, s44")
    A("  s_lshl_b32 s44, s3, 14")
    A("  s_add_u32 s58, s58, s44")
    A(f"  s_add_u32 s58, s58, {WS_YG}")
    A("  s_lshl_b32 s55, s2, 10")
    A(f"  s_add_u32 s55, s55, {WS_PG}")
    A("  s_and_b32 s54, s2, 60")
    A("  s_lshl_b32 s44, s3, 6")
    A("  s_add_u32 s54, s54, s44")
    A("  s_lshl_b32 s54, s54, 10")
    A(f"  s_lshl_b32 s44, s{sSplit}, 8")
    A("  s_add_u32 s54, s54, s44")
    A(f"  s_add_u32 s54, s54, {WS_PG}")
    A("  s_cmp_eq_u32 s59, 0")
    A("  s_branch L_loop")
    for d in range(2):
        A(f"L_dy{d}:")
        if GWd is not None: A(f"  s_waitcnt vmcnt({GWd})")
        A("  s_waitcnt lgkmcnt(0)")
        A("  s_and_b32 s56, s60, 4096")
        A("  s_lshr_b32 s56, s56, 1")
        A(f"  s_add_u32 s{sSlot+d}, s60, {STATIC}")
        A(f"  s_sub_u32 s{sSlot+d}, s{sSlot+d}, s56")
        A(f"  s_cmp_ge_u32 s{sSlot+d}, {PAIRB}")
        A(f"  s_cbranch_scc0 L_tk{d}")
        stamp(15)
        if not wo_late: A(f"  ds_write_b32 v{aFl}, v{aOne} offset:8")
        A(f"  s_branch L_sk{d}")
        A(f"L_tf{d}:")
        A("  s_mov_b64 vcc, -1")
        stamp(12)
        A(f"L_tk{d}:")
        if not tkv:
            A(f"  s_movk_i32 s60, {BLK}")
            A("  s_atomic_add s60, s[46:47], 0 glc")
        A("  s_cmp_eq_u32 s59, 0")
        A(f"  s_branch L_ld{d}")
        A(f"L_sv{d}:")
        A("  s_waitcnt vmcnt(4)")
        if wo_late: A(f"  ds_write_b32 v{aFl}, v{aOne} offset:8")
        A(f"  s_branch L_go{1-d}")
        A(f"L_dw{d}:")
        A("  s_waitcnt vmcnt(8)")
        A(f"  s_cmp_lt_u32 s{sSlot+1-d}, {PAIRB}")
        A(f"  s_cbranch_scc1 L_dr{d}")
        A(f"  v_mov_b32 v{vb}, v{vl}")
        A("  s_nop 1")
        A(f"  v_permlane32_swap_b32 v{vl}, v{vb}")
        A(f"  v_add_f32 v{vl}, v{vl}, v{vb}")
        A(f"  v_mov_b32 v{vb}, v{vl}")
        A("  s_nop 1")
        A(f"  v_permlane16_swap_b32 v{vl}, v{vb}")
        A(f"  v_add_f32 v{vl}, v{vl}, v{vb}")
        A(f"  ds_write_b64 v{aML}, v[{vm}:{vl}]")
        for t in range(U):
            r = reg("V", d, t)
            A(f"  s_waitcnt vmcnt({3-t})")
            A(f"  v_mfma_f32_16x16x32_bf16 v[{vO}:{vO+3}], v[{r}:{r+3}], v[{vB+4*t}:{vB+4*t+3}], v[{vO}:{vO+3}]")
        if d == 0: A("  s_branch L_done")
        else: A("  s_nop 0")
    A("L_done:")
    stamp(2)
    A("  s_nop 6")
    A(f"  ds_write_b128 v{aP}, v[{vO}:{vO+3}]")
    A("  s_mov_b64 exec, 1")
    A(f"  ds_add_rtn_u32 v3, v{aFl}, v{aOne} offset:16")
    A("  s_mov_b64 exec, -1")
    for w in range(4):
        A(f"  ds_read_b64 v[{40+2*w}:{41+2*w}], v{aMLr} offset:{w*16}")
    for w in range(4):
        A(f"  ds_read_b128 v[{24+4*w}:{27+4*w}], v{aPr} offset:{w*1024}")
    A(f"  v_mov_b32 v23, s{sTag}")
    A("  s_mov_b32 s61, 0x400000")
    A("  s_waitcnt lgkmcnt(4)")
    A("  v_readfirstlane_b32 s44, v3")
    A("  v_max3_f32 v20, v40, v42, v44")
    A("  v_max_f32 v20, v20, v46")
    A(f"  v_mul_f32 v20, s{sC}, v20")
    A("  s_cmp_eq_u32 s44, 3")
    A("  s_cbranch_scc0 L_wowait")
    for w in range(4): A(f"  v_fma_f32 v{40+2*w}, v{40+2*w}, s{sC}, -v20")
    for w in range(4): A(f"  v_exp_f32 v{40+2*w}, v{40+2*w}")
    A("  s_nop 0")
    A("  v_mul_f32 v22, v40, v41")
    for w in range(1, 4): A(f"  v_fmac_f32 v22, v{40+2*w}, v{41+2*w}")
    A("  s_waitcnt lgkmcnt(0)")
    A("  v_pk_mul_f32 v[24:25], v[24:25], v[40:41] op_sel_hi:[1,0]")
    A("  v_pk_mul_f32 v[26:27], v[26:27], v[40:41] op_sel_hi:[1,0]")
    A("  v_rcp_f32 v48, v22")
    A("  v_log_f32 v22, v22")
    for w in range(1, 4):
        for h in range(2):
            A(f"  v_pk_fma_f32 v[{24+2*h}:{25+2*h}], v[{24+4*w+2*h}:{25+4*w+2*h}], v[{40+2*w}:{41+2*w}], v[{24+2*h}:{25+2*h}] op_sel_hi:[1,0,1]")
    A("  v_add_f32 v22, v22, v20")
    A("  v_pk_mul_f32 v[24:25], v[24:25], v[48:49] op_sel_hi:[1,0]")
    A("  v_pk_mul_f32 v[26:27], v[26:27], v[48:49] op_sel_hi:[1,0]")
    A("  v_cvt_pk_bf16_f32 v20, v24, v25")
    A("  v_cvt_pk_bf16_f32 v21, v26, v27")
    A(f"  buffer_store_dwordx4 v[20:23], v{aPub}, s[28:31], s55 offen sc1")
    stamp(3)
    def frags():
        for ks in range(2):
            for tl in range(3):
                r = 44 + 12 * ks + 4 * tl
                A(f"  ds_read_b64_tr_b16 v[{r}:{r+1}], v{aWo} offset:{tl*8 + ks*9216}")
                A(f"  ds_read_b64_tr_b16 v[{r+2}:{r+3}], v{aWo} offset:{tl*8 + ks*9216 + 1152}")
    A("L_wowait:")
    if not lazywo:
        A(f"  ds_read_b32 v3, v{aFl} offset:12")
        A("  s_waitcnt lgkmcnt(0)")
        A("  v_readfirstlane_b32 s44, v3")
        A("  s_cmp_lg_u32 s44, 0")
        spin_tail("L_wogo", "L_wowait", 0)
        frags()
    else:
        A("  s_waitcnt lgkmcnt(0)")
    A("  s_mov_b32 s61, 0x40000")
    if pdelay: A(f"  s_sleep {pdelay}")
    A("L_ppoll:")
    A(f"  buffer_load_dwordx4 v[24:27], v{aRec}, s[28:31], s54 offen sc1")
    if lazywo:
        A("  s_cmp_lg_u32 s57, 0")
        A("  s_cbranch_scc1 L_havewo")
        A(f"  ds_read_b32 v3, v{aFl} offset:12")
        frags()
        A("  s_waitcnt lgkmcnt(0)")
        A("  v_readfirstlane_b32 s57, v3")
        A("L_havewo:")
    A("  s_waitcnt vmcnt(0)")
    A(f"  v_cmp_eq_u32 vcc, s{sTag}, v27")
    A("  v_mov_b32 v28, v26")
    A("  v_mov_b32 v29, v26")
    A("  s_cmp_eq_u64 vcc, -1")
    spin_tail("L_pdone", "L_ppoll", psleep)
    if stamps: A("  s_mov_b32 s86, s61")
    stamp(10)
    A("  v_permlane32_swap_b32 v28, v29")
    A("  v_max_f32 v28, v28, v29")
    A("  v_mov_b32 v29, v28")
    A("  v_lshlrev_b32 v32, 16, v24")
    A("  v_and_b32 v33, 0xffff0000, v24")
    A("  v_permlane16_swap_b32 v28, v29")
    A("  v_max_f32 v28, v28, v29")
    A("  v_sub_f32 v28, v26, v28")
    A("  v_exp_f32 v28, v28")
    A("  v_lshlrev_b32 v34, 16, v25")
    A("  v_and_b32 v35, 0xffff0000, v25")
    A("  v_mov_b32 v29, v28")
    A("  v_pk_mul_f32 v[32:33], v[32:33], v[28:29] op_sel_hi:[1,0]")
    A("  v_pk_mul_f32 v[34:35], v[34:35], v[28:29] op_sel_hi:[1,0]")
    A("  v_permlane32_swap_b32 v28, v29")
    A("  v_permlane32_swap_b32 v32, v33")
    A("  v_permlane32_swap_b32 v34, v35")
    A("  v_add_f32 v28, v28, v29")
    A("  v_mov_b32 v29, v28")
    A("  v_add_f32 v32, v32, v33")
    A("  v_add_f32 v34, v34, v35")
    A("  v_permlane16_swap_b32 v28, v29")
    A("  v_add_f32 v28, v28, v29")
    A("  v_permlane16_swap_b32 v32, v34")
    A("  v_rcp_f32 v28, v28")
    A("  v_add_f32 v32, v32, v34")
    A("  v_mul_f32 v32, v32, v28")
    A("  v_cvt_pk_bf16_f32 v32, v32, v32")
    A(f"  ds_write_b16 v{aO}, v32")
    if bar3:
        A("  s_waitcnt lgkmcnt(0)")
        A("  s_barrier")
        stamp(4)
        A("  s_cmp_eq_u32 s3, 3")
        A("  s_cbranch_scc1 L_fin5")
        if lazywo:
            A("  s_cmp_lg_u32 s57, 0")
            A("  s_cbranch_scc1 L_havewo2")
            frags()
            A("L_havewo2:")
        A(f"  ds_read_b128 v[36:39], v{aOf}")
        A(f"  ds_read_b128 v[40:43], v{aOf} offset:64")
        A("  s_waitcnt lgkmcnt(1)")
        for tl in (2, 1, 0):
            A(f"  v_mfma_f32_16x16x32_bf16 v[{24+4*tl}:{27+4*tl}], v[36:39], v[{44+4*tl}:{47+4*tl}], 0")
        A("  s_waitcnt lgkmcnt(0)")
        for tl in (2, 1, 0):
            A(f"  v_mfma_f32_16x16x32_bf16 v[{24+4*tl}:{27+4*tl}], v[40:43], v[{56+4*tl}:{59+4*tl}], v[{24+4*tl}:{27+4*tl}]")
        A("  s_nop 7")
    else:
        A("  s_mov_b64 exec, 1")
        A(f"  ds_add_u32 v{aFl}, v{aOne} offset:20")
        A("  s_mov_b64 exec, -1")
        A("  s_cmp_eq_u32 s3, 3")
        A("  s_cbranch_scc1 L_fin5")
        A("  s_mov_b32 s61, 0x1000000")
        A("L_owait:")
        A(f"  ds_read_b32 v3, v{aFl} offset:20")
        A(f"  ds_read_b128 v[36:39], v{aOf}")
        A(f"  ds_read_b128 v[40:43], v{aOf} offset:64")
        A("  s_waitcnt lgkmcnt(0)")
        A("  v_readfirstlane_b32 s44, v3")
        for tl in (2, 1, 0):
            A(f"  v_mfma_f32_16x16x32_bf16 v[{24+4*tl}:{27+4*tl}], v[36:39], v[{44+4*tl}:{47+4*tl}], 0")
        for tl in (2, 1, 0):
            A(f"  v_mfma_f32_16x16x32_bf16 v[{24+4*tl}:{27+4*tl}], v[40:43], v[{56+4*tl}:{59+4*tl}], v[{24+4*tl}:{27+4*tl}]")
        A("  s_cmp_eq_u32 s44, 4")
        spin_tail("L_ogo", "L_owait", 0)
        stamp(4)
        A("  s_nop 5")
    A("  v_mov_b32 v26, v32")
    A("  v_mov_b32 v25, v28")
    A(f"  v_mov_b32 v27, s{sTag}")
    A(f"  buffer_store_dwordx4 v[24:27], v{aY}, s[28:31], s58 offen sc1")
    A("L_fin5:")
    stamp(5)
    A("  s_branch L_fin")
    A("L_help:")
    stamp(9)
    A("  s_mov_b64 s[28:29], s[18:19]")
    A(f"  s_mov_b32 s30, {WS_SIZE}")
    A("  s_mov_b32 s31, 0x20000")
    A("  s_and_b32 s53, s44, 15")
    A("  s_cmp_lg_u32 s53, 0")
    A("  s_cbranch_scc1 L_nozero")
    A("  v_lshlrev_b32 v5, 12, v0")
    A("  v_mov_b32 v6, 0")
    A("  s_lshl_b32 s53, s44, 4")
    A(f"  s_add_u32 s53, s53, {WS_CNT}")
    A("  s_mov_b64 exec, 15")
    A("  buffer_store_dword v6, v5, s[28:31], s53 offen sc1")
    A("  s_mov_b64 exec, -1")
    A("L_nozero:")
    A("  s_mov_b32 s61, 0x40000")
    A("  v_mul_u32_u24 v7, 1152, v8")
    A("  v_lshl_add_u32 v7, v9, 4, v7")
    A("  v_lshrrev_b32 v10, 2, v0")
    A("  v_lshlrev_b32 v10, 6, v10")
    A("  v_lshl_add_u32 v10, v8, 3, v10")
    A("  v_lshlrev_b32 v4, 15, v8")
    A("  v_lshl_add_u32 v4, v9, 4, v4")
    A("  v_bfe_u32 v5, v0, 2, 1")
    A("  v_lshl_add_u32 v4, v5, 6, v4")
    A("  s_lshr_b32 s45, s44, 4")
    A("  s_lshl_b32 s45, s45, 11")
    A("  s_lshl_b32 s46, s47, 10")
    A("  s_add_u32 s45, s45, s46")
    A("  s_bfe_u32 s46, s44, 0x30001")
    A("  s_lshl_b32 s46, s46, 7")
    A("  s_add_u32 s45, s45, s46")
    A(f"  s_add_u32 s45, s45, {WS_QG}")
    A("  s_mov_b32 s56, 0xf0f0f0f0")
    A("  s_mov_b32 s57, 0xf0f0f0f0")
    A("  s_mov_b32 s50, 0x07060501")
    A("  s_mov_b32 s51, 0x07060502")
    A("  s_mov_b32 s52, 0x07060503")
    A("  s_waitcnt lgkmcnt(0)")
    A(f"  s_mul_i32 s{sTag}, s60, 0x9e3779b1")
    A(f"  s_add_u32 s{sTag}, s{sTag}, 0x7f4a7c15")
    A(f"  v_mov_b32 v23, s{sTag}")
    vX = 24; vW = 60
    A("  s_waitcnt vmcnt(18)")
    for t in range(9):
        A(f"  ds_read_b128 v[{vX+4*t}:{vX+4*t+3}], v7 offset:{L_P + t*64}")
    def qmfma(t):
        for j in range(2):
            r = vW + 8 * t + 4 * j
            c = "0" if t == 0 else f"v[{12+4*j}:{15+4*j}]"
            A(f"  v_mfma_f32_16x16x32_bf16 v[{12+4*j}:{15+4*j}], v[{r}:{r+3}], v[{vX+4*t}:{vX+4*t+3}], {c}")
    for t in range(9):
        A(f"  s_waitcnt vmcnt({16-2*t})")
        if t == 8: stamp(10)
        if t == 1: A("  s_waitcnt lgkmcnt(4)")
        for j in range(2):
            r = vW + 8 * t + 4 * j
            A(f"  ds_read_b64_tr_b16 v[{r}:{r+1}], v10 offset:{t*2048 + j*32}")
            A(f"  ds_read_b64_tr_b16 v[{r+2}:{r+3}], v10 offset:{t*2048 + 1024 + j*32}")
        if t >= 1:
            A("  s_waitcnt lgkmcnt(4)")
            qmfma(t - 1)
    A("  s_waitcnt lgkmcnt(0)")
    qmfma(8)
    A("  s_nop 7")
    for r in range(4):
        A(f"  v_cndmask_b32 v{12+r}, v{12+r}, v{16+r}, s[56:57]")
    for r in range(3):
        A(f"  v_perm_b32 v{20+r}, v{12+r}, v15, s{50+r}")
    A("  s_mov_b32 exec_lo, 0x00ff00ff")
    A("  s_mov_b32 exec_hi, 0x00ff00ff")
    A("  buffer_store_dwordx4 v[20:23], v4, s[28:31], s45 offen sc1")
    A("  s_mov_b64 exec, -1")
    stamp(1)
    A(f"  s_lshl_b32 s45, s{sPair}, 11")
    A(f"  s_add_u32 s45, s45, {WS_QG}")
    A("  v_lshlrev_b32 v11, 3, v0")
    A(f"  v_add_u32 v11, {L_Q}, v11")
    A("  s_mov_b32 s50, 0x0c04000c")
    A("  s_mov_b32 s51, 0x04020100")
    if warm:
        A("  s_getpc_b64 s[52:53]")
        A("L_pc:")
        A("  s_sub_u32 s52, s52, L_pc-L_qwait")
        A("  s_subb_u32 s53, s53, 0")
        A("  v_lshlrev_b32 v5, 7, v0")
        A("  v_min_u32 v5, L_end-L_qwait, v5")
        A("  global_load_dword v131, v5, s[52:53]")
    if qdelay: A(f"  s_sleep {qdelay}")
    A("L_qpoll:")
    for j in range(2):
        A(f"  buffer_load_dwordx4 v[{24+4*j}:{27+4*j}], v2, s[28:31], s45 offen offset:{j*1024} sc1")
    A("  s_waitcnt vmcnt(0)")
    A(f"  v_cmp_eq_u32 vcc, s{sTag}, v27")
    A(f"  v_cmp_eq_u32 s[62:63], s{sTag}, v31")
    A("  s_and_b64 vcc, vcc, s[62:63]")
    A("  s_cmp_eq_u64 vcc, -1")
    spin_tail("L_qdone", "L_qpoll", 0)
    for j in range(2):
        A(f"  v_perm_b32 v{27+4*j}, v{25+4*j}, v{24+4*j}, s50")
        A(f"  v_perm_b32 v{27+4*j}, v{26+4*j}, v{27+4*j}, s51")
    for r in range(4):
        A(f"  v_add_f32 v{24+r}, v{24+r}, v{28+r}")
    A("  v_cvt_pk_bf16_f32 v24, v24, v25")
    A("  v_cvt_pk_bf16_f32 v25, v26, v27")
    A("  v_mov_b32 v22, 1")
    A("  ds_write_b64 v11, v[24:25]")
    A("  ds_write_b64 v3, v[22:23]")
    if stamps: A("  s_mov_b32 s86, s61")
    stamp(12)
    A("  s_mov_b64 s[32:33], s[12:13]")
    A("  s_and_b32 s44, s2, 63")
    A("  s_mul_i32 s44, s44, 73728")
    A("  s_lshr_b32 s45, s2, 6")
    A("  s_mul_i32 s45, s45, 288")
    A("  s_add_u32 s44, s44, s45")
    A("  v_mul_u32_u24 v4, 57, v0")
    A("  v_lshrrev_b32 v4, 10, v4")
    A("  v_mul_u32_u24 v4, 864, v4")
    A("  v_add_u32 v6, v4, v2")
    A("  s_lshl_b32 s47, s2, 12")
    A(f"  s_add_u32 s47, s47, {WS_YG}")
    A("  s_mov_b64 s[36:37], s[14:15]")
    A("  s_mul_i32 s56, s2, 24")
    A("  v_lshrrev_b32 v10, 5, v0")
    A("  v_bfe_u32 v11, v0, 4, 1")
    A("  v_lshl_add_u32 v10, v11, 1, v10")
    A("  v_lshlrev_b32 v10, 3, v10")
    A("  v_lshl_add_u32 v10, v8, 1, v10")
    A("  v_lshrrev_b32 v4, 3, v0")
    A("  v_lshlrev_b32 v4, 16, v4")
    A("  v_bfe_u32 v5, v0, 1, 2")
    A("  v_lshl_add_u32 v4, v5, 10, v4")
    A("  v_and_b32 v5, 1, v0")
    A("  v_lshl_add_u32 v4, v5, 7, v4")
    A("  s_and_b32 s54, s2, 60")
    A("  s_lshl_b32 s54, s54, 10")
    A(f"  s_lshl_b32 s45, s{sSplit}, 8")
    A("  s_add_u32 s54, s54, s45")
    A(f"  s_add_u32 s54, s54, {WS_PG}")
    A("  v_lshlrev_b32 v5, 7, v0")
    def touch():
        A("  s_mov_b32 exec_hi, 0")
        A("  buffer_load_dword v48, v4, s[28:31], s54 offen sc1")
        A("  buffer_load_dword v49, v5, s[28:31], s47 offen sc1")
        A("  buffer_load_ushort v50, v10, s[36:39], s56 offen sc1")
        A("  s_mov_b32 exec_hi, -1")
    if prer:
        touch()
        A("  s_mov_b64 exec, 1")
        A("  buffer_load_dword v51, v6, s[32:35], s44 offen nt")
        A("  s_mov_b64 exec, -1")
    A("  s_mov_b32 s3, 4")
    A("  s_mov_b32 m0, 0")
    A("  s_mov_b32 s61, 0x100000")
    A("L_wait_end:")
    A("  s_sleep 2")
    A("  ds_read_b32 v24, v3 offset:8")
    A("  s_waitcnt lgkmcnt(0)")
    A("  v_readfirstlane_b32 s45, v24")
    A("  s_cmp_lg_u32 s45, 0")
    spin_tail("L_wo_go", "L_wait_end", 0)
    stamp(13)
    if late_touch: touch()
    A("  s_mov_b32 exec_hi, 0x3fffff")
    A("L_wo:")
    A("  buffer_load_dwordx4 v6, s[32:35], s44 offen nt lds")
    A("  s_addk_i32 m0, 864")
    A("  s_addk_i32 s44, 3456")
    A("  s_cmpk_lt_u32 m0, 18432")
    A("  s_cbranch_scc1 L_wo")
    A("  s_mov_b32 exec_hi, -1")
    A("  s_mov_b32 s61, 0x40000")
    A("  s_waitcnt vmcnt(0)")
    A("  ds_write_b32 v3, v22 offset:12")
    stamp(2)
    if bar3: A("  s_barrier")
    stamp(5)
    A("  s_cmp_ge_u32 s2, 192")
    A("  s_cbranch_scc1 L_fin")
    if ydelay: A(f"  s_sleep {ydelay}")
    def yload(j):
        A(f"  buffer_load_dwordx4 v[{32+4*j}:{35+4*j}], v2, s[28:31], s47 offen offset:{j*1024} sc1")
    for j in range(4): yload(j)
    A("L_ypoll:")
    A("  s_waitcnt vmcnt(0)")
    A("  s_mov_b32 s45, 0")
    for j in range(4):
        A(f"  v_cmp_ne_u32 vcc, s{sTag}, v{35+4*j}")
        A(f"  s_cbranch_vccz L_yok{j}")
        yload(j)
        A("  s_mov_b32 s45, 1")
        A(f"L_yok{j}:")
    A("  s_cmp_eq_u32 s45, 0")
    A("  s_cbranch_scc1 L_ydone")
    if ysleep: A(f"  s_sleep {ysleep}")
    A("  s_sub_u32 s61, s61, 1")
    A("  s_cbranch_scc0 L_ypoll")
    A("  s_waitcnt vmcnt(0)")
    A("L_ydone:")
    A("  v_pk_add_f32 v[32:33], v[32:33], v[36:37]")
    A("  v_pk_add_f32 v[40:41], v[40:41], v[44:45]")
    A("  v_add_f32 v34, v34, v38")
    A("  v_add_f32 v42, v42, v46")
    A("  v_pk_add_f32 v[32:33], v[32:33], v[40:41]")
    A("  v_add_f32 v34, v34, v42")
    A("  v_mov_b32 v35, v34")
    A("  v_permlane32_swap_b32 v32, v33")
    A("  v_add_f32 v32, v32, v33")
    A("  v_permlane32_swap_b32 v34, v35")
    A("  v_add_f32 v34, v34, v35")
    A("  s_nop 1")
    A("  v_permlane16_swap_b32 v32, v34")
    A("  v_add_f32 v32, v32, v34")
    A("  s_nop 1")
    A(f"  v_add_f32_dpp v32, v32, v32 row_ror:8 {dpp}")
    A("  s_nop 1")
    A(f"  v_add_f32_dpp v32, v32, v32 row_ror:4 {dpp}")
    A("  s_mov_b32 exec_lo, 0x000f000f")
    A("  s_mov_b32 exec_hi, 0x0000000f")
    A("  v_cvt_pk_bf16_f32 v32, v32, v32")
    A(f"  buffer_store_short v32, v10, s[36:39], s56 offen {outflags}")
    A("  s_cmp_lg_u32 s2, 0")
    A("  s_cbranch_scc1 L_fin")
    A("  s_mov_b64 exec, 1")
    A("  buffer_store_dword v23, v2, s[28:31], 0 offen")
    A("L_fin:")
    if stamps:
        stamp(6)
        A("  s_mul_i32 s44, s2, 5")
        A("  s_add_u32 s44, s44, s3")
        A("  s_lshl_b32 s44, s44, 6")
        A(f"  s_add_u32 s44, s44, {WS_TS}")
        A("  s_mov_b32 s78, s61")
        A("  s_waitcnt lgkmcnt(0)")
        A("  s_mov_b64 exec, 1")
        for i in range(16):
            A(f"  v_mov_b32 v{64+i}, s{64+2*i}")
        A("  v_mov_b32 v3, 0")
        for j in range(4):
            A(f"  buffer_store_dwordx4 v[{64+4*j}:{67+4*j}], v3, s[28:31], s44 offen offset:{16*j}")
    A("L_end:")
    A("  s_endpgm")
    A('.section .rodata,"a"')
    A(".p2align 6")
    A(f".amdhsa_kernel {NAME}")
    A(f"  .amdhsa_next_free_vgpr {NV}")
    A("  .amdhsa_next_free_sgpr %d" % (96 if stamps else 64))
    A(f"  .amdhsa_accum_offset {(NV+3)//4*4}")
    A("  .amdhsa_group_segment_fixed_size 0")
    A("  .amdhsa_kernarg_size 64")
    A("  .amdhsa_user_sgpr_count 2")
    A("  .amdhsa_user_sgpr_kernarg_segment_ptr 1")
    A("  .amdhsa_system_sgpr_workgroup_id_x 1")
    A("  .amdhsa_float_denorm_mode_32 3")
    A(".end_amdhsa_kernel")
    return "\n".join(L) + "\n"

if __name__ == "__main__":
    import json
    cfg = json.loads(sys.argv[1]) if len(sys.argv) > 1 else {}
    sys.stdout.write(gen(**cfg))
```

```python
import math, struct, sys

def f2u(x):
    return struct.unpack('<I', struct.pack('<f', x))[0]

SCALE = math.log2(math.e) / math.sqrt(128.0)
NAME = "standalone__gqa_block_cached__decode_kernel"

HEADER = """; Kernarg layout for this problem (64 bytes, ptrs only, base s[0:1]):
;
"""

WS_POL = 256
WS_QG = 0x40000
WS_PG = 0x100000
WS_YG = 0x140000
WS_CNT = 0x300000
WS_TS = 0x1000000
WS_SIZE = 0x2000000

L_Q = 19456
L_FLAG = L_Q + 512
L_ML = L_FLAG + 32
L_O = L_Q + 640
L_P = L_O + 512
L_TOTAL = L_P + 4 * 1024

def gen(E=2, WIN0=8, hyb=27, stamps=False, pre0=4, probe=12, outflags="", psleep=0):
    U = 4
    D = 2 + E
    assert E >= 1 and WIN0 >= 5
    PAIRB = 2 * 1024 * 1024
    BLK = 4096
    STEP = 16 * BLK
    STATIC = hyb * STEP
    L = []
    A = L.append
    def C(text): A(f"  ; {text}")
    dpp = "row_mask:0xf bank_mask:0xf"
    vKoff, vVoff, vT = 1, 2, 3
    vQ, vM, vO = 4, 8, 12
    vm, vl, va, vb = 16, 17, 18, 19
    vS, vD, vB = 20, 24, 24
    vK = 40
    NV = max(vK + 32 * D, 132)
    aP, aML, aPr, aMLr, aRec, aPub, aO, aOf, aWo, aY, aFl, aOne = range(104, 116)
    sTag, sC = 40, 41
    sSlot = 48
    def stamp(i):
        if stamps:
            A(f"  s_memrealtime s[{64+2*i}:{65+2*i}]")
    def spin_tail(label_ok, label_loop, sleep):
        A(f"  s_cbranch_scc1 {label_ok}")
        if sleep: A(f"  s_sleep {sleep}")
        A("  s_sub_u32 s61, s61, 1")
        A(f"  s_cbranch_scc0 {label_loop}")
        A(f"{label_ok}:")
    def recbase(dst, tmp):
        A(f"  s_and_b32 s{dst}, s2, 48")
        A(f"  s_lshl_b32 s{dst}, s{dst}, 10")
        A(f"  s_and_b32 s{tmp}, s2, 12")
        A(f"  s_lshl_b32 s{tmp}, s{tmp}, 9")
        A(f"  s_add_u32 s{dst}, s{dst}, s{tmp}")
        A(f"  s_and_b32 s{tmp}, s2, 1")
        A(f"  s_lshl_b32 s{tmp}, s{tmp}, 8")
        A(f"  s_add_u32 s{dst}, s{dst}, s{tmp}")
        A(f"  s_and_b32 s{tmp}, s2, 2")
        A(f"  s_lshl_b32 s{tmp}, s{tmp}, 12")
        A(f"  s_add_u32 s{dst}, s{dst}, s{tmp}")
        A(f"  s_add_u32 s{dst}, s{dst}, {WS_PG}")
    for ln in HEADER.rstrip("\n").split("\n"): A(ln)
    A(f"; @launch grid=(256,1,1) block=(320,1,1) lds={L_TOTAL}")
    A('.amdgcn_target "amdgcn-amd-amdhsa--gfx950"')
    A(".text")
    A(f".globl {NAME}")
    A(".p2align 8")
    A(f".type {NAME},@function")
    A(f"{NAME}:")
    A("  s_cmpk_ge_u32 s2, 256")
    A("  s_cbranch_scc1 L_end")
    A("  s_load_dwordx16 s[4:19], s[0:1], 0")
    stamp(0)
    A("  v_lshrrev_b32 v3, 6, v0")
    A("  v_and_b32 v0, 63, v0")
    A("  v_readfirstlane_b32 s3, v3")
    C("permute the low three id bits: x -> parity(x)*4 + (x>>1)")
    A("  s_lshl_b32 s44, s2, 2")
    A("  s_lshr_b32 s44, 0x05722750, s44")
    A("  s_and_b32 s44, s44, 7")
    A("  s_xor_b32 s2, s2, s44")
    A("  v_lshrrev_b32 v9, 4, v0")
    A("  v_and_b32 v8, 3, v0")
    A("  s_cmp_lg_u32 s3, 0")
    A("  s_cbranch_scc1 L_attn")
    C("---- helper wave: issue the x and wq loads (column group (id&7)*16 + (id>>4), row half (id>>3)&1)")
    A("  s_and_b32 s45, s2, 7")
    A("  s_lshl_b32 s45, s45, 10")
    A("  s_lshr_b32 s46, s2, 4")
    A("  s_lshl_b32 s46, s46, 6")
    A("  s_add_u32 s44, s45, s46")
    A("  s_bfe_u32 s47, s2, 0x10003")
    A("  s_mul_i32 s46, s47, 2359296")
    A("  s_add_u32 s45, s44, s46")
    A("  s_add_u32 s46, s45, 32768")
    A("  s_mul_i32 s56, s47, 576")
    A("  v_lshlrev_b32 v2, 4, v0")
    A("  v_bfe_u32 v4, v0, 2, 2")
    A("  v_lshl_add_u32 v4, v9, 3, v4")
    A("  v_lshlrev_b32 v5, 4, v8")
    A("  v_lshl_add_u32 v6, v4, 13, v5")
    A("  s_mov_b32 s34, 4718592")
    A("  s_mov_b32 s35, 0x20000")
    A("  s_movk_i32 s38, 4608")
    A("  s_mov_b32 s39, s35")
    A(f"  s_movk_i32 m0, {L_P}")
    A(f"  v_mov_b32 v3, {L_FLAG}")
    A("  v_mov_b32 v12, 0")
    A("  v_mov_b32 v13, 0")
    A("  ds_write2_b64 v3, v[12:13], v[12:13] offset0:0 offset1:1")
    A("  ds_write2_b64 v3, v[12:13], v[12:13] offset0:2 offset1:3")
    A("  s_mov_b32 exec_hi, 15")
    A("  s_waitcnt lgkmcnt(0)")
    A("  s_mov_b64 s[36:37], s[4:5]")
    A("  s_mov_b64 s[32:33], s[10:11]")
    for b in range(4):
        A(f"  buffer_load_dwordx4 v2, s[36:39], s56 offen offset:{b*1152} lds")
    A("  s_mov_b32 m0, 0")
    A("  s_mov_b32 exec_hi, -1")
    A("L_wq:")
    A("  buffer_load_dwordx4 v6, s[32:35], s45 offen nt lds")
    A("  s_addk_i32 m0, 1024")
    A("  s_add_u32 s45, s45, 0x40000")
    A("  buffer_load_dwordx4 v6, s[32:35], s46 offen nt lds")
    A("  s_addk_i32 m0, 1024")
    A("  s_add_u32 s46, s46, 0x40000")
    A("  s_cmpk_lt_u32 m0, 18432")
    A("  s_cbranch_scc1 L_wq")
    A("  s_barrier")
    A("  s_branch L_help")
    C("---- attention waves")
    A("L_attn:")
    A("  s_sub_u32 s3, s3, 1")
    C("K lane offset: key (lane>>2)&3 -> rows {0,1,16,17}, 16-byte chunk (lane>>4)*4 + (lane&3)")
    A("  v_bfe_u32 v3, v0, 2, 1")
    A("  v_lshlrev_b32 v1, 8, v3")
    A("  v_bfe_u32 v3, v0, 3, 1")
    A("  v_lshl_add_u32 v1, v3, 12, v1")
    A("  v_lshl_add_u32 v1, v9, 6, v1")
    A("  v_lshl_add_u32 v1, v8, 4, v1")
    A("  s_andn2_b32 s44, s2, 3")
    A("  s_lshl_b32 s44, s44, 19")
    C("block n starts at (n>>1)*8192 + (n&1)*2048")
    A("  s_and_b32 s45, s2, 3")
    A("  s_lshl2_add_u32 s45, s45, s3")
    A("  s_and_b32 s46, s45, 1")
    A("  s_lshl_b32 s45, s45, 1")
    A("  s_sub_u32 s45, s45, s46")
    A(f"  s_lshl_b32 s{sSlot}, s45, 11")
    A(f"  s_mov_b32 s22, {PAIRB}")
    A("  s_mov_b32 s23, 0x20000")
    A("  s_waitcnt lgkmcnt(0)")
    A("  s_add_u32 s20, s6, s44")
    A("  s_addc_u32 s21, s7, 0")
    stamp(8)
    def reg(kind, d, t):
        return vK + 32 * d + (0 if kind == "K" else 16) + 4 * t
    def loads(kind, d, t):
        srd = "s[20:23]" if kind == "K" else "s[24:27]"
        off = vKoff if kind == "K" else vVoff
        r = reg(kind, d, t)
        A(f"  buffer_load_dwordx4 v[{r}:{r+3}], v{off}, {srd}, s{sSlot+d} offen offset:{t*512} nt")
    vsetup = ["  v_and_b32 v3, 31, v0", "  v_lshlrev_b32 v2, 4, v3", "  v_lshrrev_b32 v3, 5, v0", "  v_lshl_add_u32 v2, v3, 12, v2",
              "  s_add_u32 s24, s8, s44", "  s_addc_u32 s25, s9, 0", "  s_mov_b64 s[26:27], s[22:23]"]
    setup = []
    S = setup.append
    S("  s_mov_b64 s[28:29], s[18:19]")
    S(f"  s_mov_b32 s30, {WS_SIZE}")
    S("  s_mov_b32 s31, 0x20000")
    S(f"  s_mov_b32 s{sC}, {hex(f2u(SCALE))}")
    S("  s_lshr_b32 s44, s44, 13")
    S(f"  s_add_u32 s44, s44, {WS_CNT}")
    S("  s_add_u32 s46, s18, s44")
    S("  s_addc_u32 s47, s19, 0")
    S(f"  s_add_u32 s59, s{sSlot}, {D*STEP}")
    S("  s_mov_b32 s57, 1")
    S("  v_bfe_u32 v3, v0, 3, 1")
    S("  v_lshlrev_b32 v18, 8, v3")
    S("  v_lshl_add_u32 v18, v9, 6, v18")
    S("  v_lshl_add_u32 v18, v8, 4, v18")
    S(f"  v_add_u32 v18, {L_Q}, v18")
    S(f"  v_mov_b32 v19, {L_FLAG}")
    S("  v_and_b32 v3, 1, v0")
    S("  v_mov_b32 v17, 0xffff")
    S("  v_lshlrev_b32 v3, 4, v3")
    S("  v_lshlrev_b32 v17, v3, v17")
    S("  v_bfe_u32 v3, v0, 1, 2")
    for r in range(4):
        S(f"  v_cmp_eq_u32 vcc, {r}, v3")
        S(f"  v_mov_b32 v{vO+r}, 0")
        S("  s_nop 0")
        S(f"  v_cndmask_b32 v{vM+r}, 0, v17, vcc")
    S(f"  v_mov_b32 v{vm}, 0xff800000")
    S(f"  v_mov_b32 v{vl}, 0")
    n = 0
    for d in range(D):
        if d: A(f"  s_add_u32 s{sSlot+d}, s{sSlot}, {d*STEP}")
        for kind in "KV":
            for t in range(U):
                if n == 4:
                    for ln in vsetup: A(ln)
                if n == pre0: A("  s_barrier")
                if n == WIN0:
                    for ln in setup: A(ln)
                if n >= WIN0: A(f"  s_waitcnt vmcnt({WIN0-1})")
                loads(kind, d, t)
                n += 1
    stamp(9)
    A("  s_mov_b32 s61, 0x400000")
    A("L_qwait:")
    A("  ds_read_b64 v[20:21], v19")
    A(f"  ds_read_b128 v[{vQ}:{vQ+3}], v18")
    A("  s_waitcnt lgkmcnt(0)")
    A("  v_readfirstlane_b32 s44, v20")
    A(f"  v_readfirstlane_b32 s{sTag}, v21")
    A("  s_cmp_lg_u32 s44, 0")
    spin_tail("L_qgo", "L_qwait", 1)
    stamp(1)
    def body(d, ring):
        for t in range(U):
            r = reg("K", d, t)
            if ring: A(f"  s_waitcnt vmcnt({15-t})")
            A(f"  v_mfma_f32_16x16x32_bf16 v[{vD+4*t}:{vD+4*t+3}], v[{r}:{r+3}], v[{vQ}:{vQ+3}], 0")
        if ring:
            A(f"  s_cbranch_scc1 L_sk{d}")
            A(f"  s_cmp_lt_u32 s59, {STATIC}")
            A(f"  s_cbranch_scc0 L_dy{d}")
            A(f"  s_mov_b32 s{sSlot+d}, s59")
            A(f"  s_add_u32 s59, s59, {STEP}")
            A(f"  s_cmp_ge_u32 s59, {STATIC}")
            A(f"  s_cbranch_scc1 L_tf{d}")
            A(f"L_ld{d}:")
            for t in range(U): loads("K", d, t)
            A(f"L_sk{d}:")
        A("  s_nop 4")
        for j in range(4):
            for t in range(U):
                if j == 0:
                    A(f"  v_mov_b32_dpp v{vS+t}, v{vD+4*t} quad_perm:[0,0,0,0] {dpp}")
                else:
                    A(f"  v_add_f32_dpp v{vS+t}, v{vD+4*t+j}, v{vS+t} quad_perm:[{j},{j},{j},{j}] {dpp}")
        A(f"  v_max3_f32 v{va}, v{vm}, v{vS}, v{vS+1}")
        A(f"  v_max3_f32 v{va}, v{va}, v{vS+2}, v{vS+3}")
        A(f"  v_mov_b32 v{vb}, v{va}")
        A("  s_nop 1")
        A(f"  v_permlane32_swap_b32 v{va}, v{vb}")
        A(f"  v_max_f32 v{va}, v{va}, v{vb}")
        A(f"  v_mov_b32 v{vb}, v{va}")
        A("  s_nop 1")
        A(f"  v_permlane16_swap_b32 v{va}, v{vb}")
        A(f"  v_max_f32 v{va}, v{va}, v{vb}")
        A(f"  v_sub_f32 v{vb}, v{vm}, v{va}")
        A(f"  v_mul_f32 v{vb}, s{sC}, v{vb}")
        A(f"  v_exp_f32 v{vb}, v{vb}")
        A(f"  v_mov_b32 v{vm}, v{va}")
        A(f"  v_mul_f32 v{va}, s{sC}, v{va}")
        for t in range(U):
            A(f"  v_fma_f32 v{vS+t}, v{vS+t}, s{sC}, -v{va}")
        for t in range(U):
            A(f"  v_exp_f32 v{vS+t}, v{vS+t}")
        for r in range(4):
            A(f"  v_mul_f32 v{vO+r}, v{vO+r}, v{vb}")
        A(f"  v_mul_f32 v{vl}, v{vl}, v{vb}")
        for t in range(U):
            A(f"  v_cvt_pk_bf16_f32 v{vT}, v{vS+t}, v{vS+t}")
            for j in range(4):
                A(f"  v_and_b32 v{vB+4*t+j}, v{vT}, v{vM+j}")
            A(f"  v_add_f32 v{vl}, v{vl}, v{vS+t}")
        if ring:
            A(f"  s_cbranch_scc1 L_dw{d}")
            A(f"L_dr{d}:")
        for t in range(U):
            r = reg("V", d, t)
            if ring: A(f"  s_waitcnt vmcnt({15-t})")
            A(f"  v_mfma_f32_16x16x32_bf16 v[{vO}:{vO+3}], v[{r}:{r+3}], v[{vB+4*t}:{vB+4*t+3}], v[{vO}:{vO+3}]")
        if ring:
            A(f"  s_cbranch_scc1 L_sv{d}")
            for t in range(U): loads("V", d, t)
    C("main loop over two register buffers; SCC = 1 inside a body means no further block is loaded")
    C("s59: next fixed-share block, s60: ticket in flight, s48/s49: block held by each buffer")
    A("  s_cmp_eq_u32 s59, 0")
    A("L_loop:")
    for d in range(2):
        A(f"L_go{d}:")
        body(d, True)
    A("  s_cmp_lg_u32 s57, 0")
    A("  s_cbranch_scc0 L_loop")
    C("first trip only: the blocks prefetched while q was being produced")
    A("  s_mov_b32 s57, 0")
    stamp(13)
    A("  s_waitcnt vmcnt(16)")
    for e in range(E):
        body(2 + e, False)
    stamp(14)
    C("addresses for the tail, kept in the freed buffer")
    A("  v_lshrrev_b32 v116, 4, v0")
    A("  v_lshlrev_b32 v117, 4, v0")
    A(f"  v_add_u32 v{aPr}, {L_P}, v117")
    A("  s_lshl_b32 s44, s3, 10")
    A(f"  v_add_u32 v{aP}, s44, v{aPr}")
    A("  v_and_b32 v117, 8, v0")
    A(f"  v_add_u32 v{aMLr}, {L_ML}, v117")
    A("  s_lshl_b32 s44, s3, 4")
    A(f"  v_add_u32 v{aML}, s44, v{aMLr}")
    A(f"  v_lshlrev_b32 v{aPub}, 10, v117")
    A(f"  v_lshl_add_u32 v{aPub}, v116, 7, v{aPub}")
    A("  v_and_b32 v118, 7, v0")
    A(f"  v_lshl_add_u32 v{aPub}, v118, 4, v{aPub}")
    A("  s_lshl_b32 s44, s3, 7")
    A(f"  s_add_u32 s44, s44, {L_O}")
    A(f"  v_lshl_add_u32 v{aO}, v117, 3, s44")
    A(f"  v_lshl_add_u32 v{aO}, v118, 1, v{aO}")
    A("  v_lshrrev_b32 v118, 5, v0")
    A(f"  v_lshl_add_u32 v{aO}, v118, 4, v{aO}")
    A("  v_bfe_u32 v118, v0, 4, 1")
    A(f"  v_lshl_add_u32 v{aO}, v118, 5, v{aO}")
    A("  v_and_b32 v118, 15, v0")
    A(f"  v_lshlrev_b32 v{aRec}, 9, v116")
    A(f"  v_lshl_add_u32 v{aRec}, v118, 4, v{aRec}")
    A("  v_bfe_u32 v117, v0, 2, 2")
    A("  v_and_b32 v118, 3, v0")
    A(f"  v_lshl_add_u32 v{aWo}, v116, 3, v117")
    A(f"  v_mul_u32_u24 v{aWo}, 288, v{aWo}")
    A(f"  v_mad_u32_u24 v{aWo}, v118, 24, v{aWo}")
    A("  s_mul_i32 s44, s3, 96")
    A(f"  v_add_u32 v{aWo}, s44, v{aWo}")
    A(f"  v_lshlrev_b32 v{aOf}, 7, v117")
    A(f"  v_lshl_add_u32 v{aOf}, v116, 4, v{aOf}")
    A(f"  v_add_u32 v{aOf}, {L_O}, v{aOf}")
    A(f"  v_mul_u32_u24 v{aY}, 196608, v116")
    A(f"  v_lshl_add_u32 v{aY}, v117, 12, v{aY}")
    A(f"  v_lshl_add_u32 v{aY}, v118, 4, v{aY}")
    A(f"  v_mov_b32 v{aFl}, {L_FLAG}")
    A(f"  v_mov_b32 v{aOne}, 1")
    A("  s_lshr_b32 s44, s2, 6")
    A("  s_mul_i32 s58, s44, 49152")
    A("  s_and_b32 s44, s2, 63")
    A("  s_lshl_b32 s44, s44, 6")
    A("  s_add_u32 s58, s58, s44")
    A("  s_lshl_b32 s44, s3, 14")
    A("  s_add_u32 s58, s58, s44")
    A(f"  s_add_u32 s58, s58, {WS_YG}")
    A("  s_and_b32 s55, s2, 0xf0")
    A("  s_lshl_b32 s55, s55, 10")
    A("  s_and_b32 s44, s2, 15")
    A("  s_lshl_b32 s44, s44, 9")
    A("  s_add_u32 s55, s55, s44")
    A(f"  s_add_u32 s55, s55, {WS_PG}")
    recbase(54, 44)
    A("  s_lshl_b32 s44, s3, 16")
    A("  s_add_u32 s54, s54, s44")
    A("  s_cmp_eq_u32 s59, 0")
    A("  s_branch L_loop")
    for d in range(2):
        A(f"L_dy{d}:")
        A("  s_waitcnt lgkmcnt(0)")
        A("  s_and_b32 s56, s60, 4096")
        A("  s_lshr_b32 s56, s56, 1")
        A(f"  s_add_u32 s{sSlot+d}, s60, {STATIC}")
        A(f"  s_sub_u32 s{sSlot+d}, s{sSlot+d}, s56")
        A(f"  s_cmp_ge_u32 s{sSlot+d}, {PAIRB}")
        A(f"  s_cbranch_scc0 L_tk{d}")
        stamp(15)
        A(f"  ds_write_b32 v{aFl}, v{aOne} offset:8")
        A(f"  s_branch L_sk{d}")
        A(f"L_tf{d}:")
        A(f"  ds_write_b32 v{aFl}, v{aOne} offset:24")
        stamp(12)
        A(f"L_tk{d}:")
        A(f"  s_movk_i32 s60, {BLK}")
        A("  s_atomic_add s60, s[46:47], 0 glc")
        A("  s_cmp_eq_u32 s59, 0")
        A(f"  s_branch L_ld{d}")
        A(f"L_sv{d}:")
        A("  s_waitcnt vmcnt(4)")
        A(f"  s_branch L_go{1-d}")
        A(f"L_dw{d}:")
        A("  s_waitcnt vmcnt(8)")
        A(f"  s_cmp_lt_u32 s{sSlot+1-d}, {PAIRB}")
        A(f"  s_cbranch_scc1 L_dr{d}")
        C("last block of this wave")
        A(f"  v_mov_b32 v{vb}, v{vl}")
        A("  s_mov_b32 s61, 0x1000000")
        A("  s_nop 0")
        A(f"  v_permlane32_swap_b32 v{vl}, v{vb}")
        A(f"  v_add_f32 v{vl}, v{vl}, v{vb}")
        A(f"  v_mov_b32 v{vb}, v{vl}")
        A("  s_nop 1")
        A(f"  v_permlane16_swap_b32 v{vl}, v{vb}")
        A(f"  v_add_f32 v{vl}, v{vl}, v{vb}")
        A(f"  ds_write_b64 v{aML}, v[{vm}:{vl}]")
        A(f"L_sel{d}:")
        A(f"  ds_read_b32 v3, v{aFl} offset:20")
        A("  s_waitcnt lgkmcnt(0)")
        A("  v_readfirstlane_b32 s44, v3")
        A("  s_cmp_lg_u32 s44, 0")
        spin_tail(f"L_selok{d}", f"L_sel{d}", 0)
        A("  s_and_b32 s44, s44, 0x2000")
        A("  s_xor_b32 s54, s54, s44")
        A(f"  v_xor_b32 v{aPub}, s44, v{aPub}")
        for t in range(U):
            r = reg("V", d, t)
            A(f"  s_waitcnt vmcnt({3-t})")
            A(f"  v_mfma_f32_16x16x32_bf16 v[{vO}:{vO+3}], v[{r}:{r+3}], v[{vB+4*t}:{vB+4*t+3}], v[{vO}:{vO+3}]")
        if d == 0: A("  s_branch L_done")
        else: A("  s_nop 0")
    A("L_done:")
    stamp(2)
    C("the last wave to arrive merges the four partial results and publishes the record")
    A("  s_nop 6")
    A(f"  ds_write_b128 v{aP}, v[{vO}:{vO+3}]")
    A("  s_mov_b64 exec, 1")
    A(f"  ds_add_rtn_u32 v3, v{aFl}, v{aOne} offset:16")
    A("  s_mov_b64 exec, -1")
    for w in range(4):
        A(f"  ds_read_b64 v[{40+2*w}:{41+2*w}], v{aMLr} offset:{w*16}")
    for w in range(4):
        A(f"  ds_read_b128 v[{24+4*w}:{27+4*w}], v{aPr} offset:{w*1024}")
    A(f"  v_mov_b32 v23, s{sTag}")
    A("  s_mov_b32 s61, 0x40000")
    A("  s_waitcnt lgkmcnt(4)")
    A("  v_readfirstlane_b32 s44, v3")
    A("  v_max3_f32 v20, v40, v42, v44")
    A("  v_max_f32 v20, v20, v46")
    A(f"  v_mul_f32 v20, s{sC}, v20")
    A("  s_cmp_eq_u32 s44, 3")
    A("  s_cbranch_scc0 L_gather")
    for w in range(4): A(f"  v_fma_f32 v{40+2*w}, v{40+2*w}, s{sC}, -v20")
    for w in range(4): A(f"  v_exp_f32 v{40+2*w}, v{40+2*w}")
    A("  s_nop 0")
    A("  v_mul_f32 v22, v40, v41")
    for w in range(1, 4): A(f"  v_fmac_f32 v22, v{40+2*w}, v{41+2*w}")
    A("  s_waitcnt lgkmcnt(0)")
    A("  v_pk_mul_f32 v[24:25], v[24:25], v[40:41] op_sel_hi:[1,0]")
    A("  v_pk_mul_f32 v[26:27], v[26:27], v[40:41] op_sel_hi:[1,0]")
    A("  v_rcp_f32 v48, v22")
    A("  v_log_f32 v22, v22")
    for w in range(1, 4):
        for h in range(2):
            A(f"  v_pk_fma_f32 v[{24+2*h}:{25+2*h}], v[{24+4*w+2*h}:{25+4*w+2*h}], v[{40+2*w}:{41+2*w}], v[{24+2*h}:{25+2*h}] op_sel_hi:[1,0,1]")
    A("  v_add_f32 v22, v22, v20")
    A("  v_pk_mul_f32 v[24:25], v[24:25], v[48:49] op_sel_hi:[1,0]")
    A("  v_pk_mul_f32 v[26:27], v[26:27], v[48:49] op_sel_hi:[1,0]")
    A("  v_cvt_pk_bf16_f32 v20, v24, v25")
    A("  v_cvt_pk_bf16_f32 v21, v26, v27")
    A(f"  buffer_store_dwordx4 v[20:23], v{aPub}, s[28:31], s55 offen sc1")
    stamp(3)
    def frags():
        for ks in range(2):
            for tl in range(3):
                r = 44 + 12 * ks + 4 * tl
                A(f"  ds_read_b64_tr_b16 v[{r}:{r+1}], v{aWo} offset:{tl*8 + ks*9216}")
                A(f"  ds_read_b64_tr_b16 v[{r+2}:{r+3}], v{aWo} offset:{tl*8 + ks*9216 + 1152}")
    C("wave w gathers 64 columns of o for batch w from the four records of that pair")
    A("L_gather:")
    A("  s_waitcnt lgkmcnt(0)")
    A("L_ppoll:")
    A(f"  buffer_load_dwordx4 v[24:27], v{aRec}, s[28:31], s54 offen sc1")
    A("  s_cmp_lg_u32 s57, 0")
    A("  s_cbranch_scc1 L_havewo")
    A(f"  ds_read_b32 v3, v{aFl} offset:12")
    frags()
    A("  s_waitcnt lgkmcnt(0)")
    A("  v_readfirstlane_b32 s57, v3")
    A("L_havewo:")
    A("  s_waitcnt vmcnt(0)")
    A(f"  v_cmp_eq_u32 vcc, s{sTag}, v27")
    A("  v_mov_b32 v28, v26")
    A("  v_mov_b32 v29, v26")
    A("  s_cmp_eq_u64 vcc, -1")
    spin_tail("L_pdone", "L_ppoll", psleep)
    if stamps: A("  s_mov_b32 s86, s61")
    stamp(10)
    A("  v_permlane32_swap_b32 v28, v29")
    A("  v_max_f32 v28, v28, v29")
    A("  v_mov_b32 v29, v28")
    A("  v_lshlrev_b32 v32, 16, v24")
    A("  v_and_b32 v33, 0xffff0000, v24")
    A("  v_permlane16_swap_b32 v28, v29")
    A("  v_max_f32 v28, v28, v29")
    A("  v_sub_f32 v28, v26, v28")
    A("  v_exp_f32 v28, v28")
    A("  v_lshlrev_b32 v34, 16, v25")
    A("  v_and_b32 v35, 0xffff0000, v25")
    A("  v_mov_b32 v29, v28")
    A("  v_pk_mul_f32 v[32:33], v[32:33], v[28:29] op_sel_hi:[1,0]")
    A("  v_pk_mul_f32 v[34:35], v[34:35], v[28:29] op_sel_hi:[1,0]")
    A("  v_permlane32_swap_b32 v28, v29")
    A("  v_permlane32_swap_b32 v32, v33")
    A("  v_permlane32_swap_b32 v34, v35")
    A("  v_add_f32 v28, v28, v29")
    A("  v_mov_b32 v29, v28")
    A("  v_add_f32 v32, v32, v33")
    A("  v_add_f32 v34, v34, v35")
    A("  v_permlane16_swap_b32 v28, v29")
    A("  v_add_f32 v28, v28, v29")
    A("  v_permlane16_swap_b32 v32, v34")
    A("  v_rcp_f32 v28, v28")
    A("  v_add_f32 v32, v32, v34")
    A("  v_mul_f32 v32, v32, v28")
    A("  v_cvt_pk_bf16_f32 v32, v32, v32")
    A(f"  ds_write_b16 v{aO}, v32")
    A("  s_cmp_eq_u32 s3, 3")
    A("  s_waitcnt lgkmcnt(0)")
    A("  s_barrier")
    stamp(4)
    A("  s_cbranch_scc1 L_fin5")
    C("waves 0-2: 48 columns of o@wo each, all four batches")
    A(f"  ds_read_b128 v[36:39], v{aOf}")
    A(f"  ds_read_b128 v[40:43], v{aOf} offset:64")
    A("  s_cmp_lg_u32 s57, 0")
    A("  s_cbranch_scc1 L_havewo2")
    frags()
    A("  s_waitcnt lgkmcnt(0)")
    A("L_havewo2:")
    A("  s_waitcnt lgkmcnt(1)")
    for tl in (2, 1, 0):
        A(f"  v_mfma_f32_16x16x32_bf16 v[{24+4*tl}:{27+4*tl}], v[36:39], v[{44+4*tl}:{47+4*tl}], 0")
    A("  s_waitcnt lgkmcnt(0)")
    for tl in (2, 1, 0):
        A(f"  v_mfma_f32_16x16x32_bf16 v[{24+4*tl}:{27+4*tl}], v[40:43], v[{56+4*tl}:{59+4*tl}], v[{24+4*tl}:{27+4*tl}]")
    A("  s_nop 5")
    A("  v_mov_b32 v22, v32")
    A("  v_mov_b32 v21, v28")
    A("  v_mov_b32 v20, v24")
    A(f"  buffer_store_dwordx4 v[20:23], v{aY}, s[28:31], s58 offen sc1")
    A("L_fin5:")
    stamp(5)
    if stamps: A("  s_branch L_fin")
    else: A("  s_endpgm")
    C("---- helper wave, continued")
    A("L_help:")
    A("  s_load_dword s60, s[18:19], 0")
    stamp(9)
    A("  s_mov_b64 s[28:29], s[18:19]")
    A(f"  s_mov_b32 s30, {WS_SIZE}")
    A("  s_mov_b32 s31, 0x20000")
    C("one producer of each pair's q clears that pair's ticket counter before it publishes")
    A("  s_and_b32 s53, s2, 0x78")
    A("  s_cmp_lg_u32 s53, 0")
    A("  s_cbranch_scc1 L_nozero")
    A("  v_lshlrev_b32 v5, 12, v0")
    A("  s_lshr_b32 s53, s44, 1")
    A(f"  s_add_u32 s53, s53, {WS_CNT}")
    A("  s_mov_b64 exec, 15")
    A("  buffer_store_dword v12, v5, s[28:31], s53 offen sc1")
    A("  s_mov_b64 exec, -1")
    A("L_nozero:")
    A("  s_mov_b32 s61, 0x40000")
    A("  v_mul_u32_u24 v7, 1152, v8")
    A("  v_lshl_add_u32 v7, v9, 4, v7")
    A("  v_lshrrev_b32 v10, 2, v0")
    A("  v_lshlrev_b32 v10, 6, v10")
    A("  v_lshl_add_u32 v10, v8, 3, v10")
    C("q granule address: (b*16 + hkv)*2048 + half*1024 + ((group&7)*8 + tile*4 + (lane>>4))*16")
    A("  v_lshlrev_b32 v4, 15, v8")
    A("  v_lshl_add_u32 v4, v9, 4, v4")
    A("  v_bfe_u32 v5, v0, 2, 1")
    A("  v_lshl_add_u32 v4, v5, 6, v4")
    A("  s_lshr_b32 s45, s44, 9")
    A("  s_lshl_b32 s45, s45, 11")
    A("  s_lshl_b32 s46, s47, 10")
    A("  s_add_u32 s45, s45, s46")
    A("  s_and_b32 s46, s44, 0x1c0")
    A("  s_lshl_b32 s46, s46, 1")
    A("  s_add_u32 s45, s45, s46")
    A(f"  s_add_u32 s45, s45, {WS_QG}")
    A("  s_mov_b32 s56, 0xf0f0f0f0")
    A("  s_mov_b32 s57, 0xf0f0f0f0")
    A("  s_mov_b32 s50, 0x07060501")
    A("  s_mov_b32 s51, 0x07060502")
    A("  s_mov_b32 s52, 0x07060503")
    A("  s_waitcnt lgkmcnt(0)")
    A(f"  s_mul_i32 s{sTag}, s60, 0x9e3779b1")
    A(f"  s_add_u32 s{sTag}, s{sTag}, 0x7f4a7c15")
    A(f"  v_mov_b32 v23, s{sTag}")
    vX = 24; vW = 60
    A("  s_waitcnt vmcnt(18)")
    for t in range(9):
        A(f"  ds_read_b128 v[{vX+4*t}:{vX+4*t+3}], v7 offset:{L_P + t*64}")
    def qmfma(t):
        for j in range(2):
            r = vW + 8 * t + 4 * j
            c = "0" if t == 0 else f"v[{12+4*j}:{15+4*j}]"
            A(f"  v_mfma_f32_16x16x32_bf16 v[{12+4*j}:{15+4*j}], v[{r}:{r+3}], v[{vX+4*t}:{vX+4*t+3}], {c}")
    for t in range(9):
        A(f"  s_waitcnt vmcnt({16-2*t})")
        if t == 8: stamp(10)
        if t == 1: A("  s_waitcnt lgkmcnt(4)")
        for j in range(2):
            r = vW + 8 * t + 4 * j
            A(f"  ds_read_b64_tr_b16 v[{r}:{r+1}], v10 offset:{t*2048 + j*32}")
            A(f"  ds_read_b64_tr_b16 v[{r+2}:{r+3}], v10 offset:{t*2048 + 1024 + j*32}")
        if t >= 1:
            A("  s_waitcnt lgkmcnt(4)")
            qmfma(t - 1)
    A("  s_waitcnt lgkmcnt(0)")
    qmfma(8)
    A("  s_nop 7")
    C("four partial sums keep their upper 24 bits in three dwords")
    for r in range(4):
        A(f"  v_cndmask_b32 v{12+r}, v{12+r}, v{16+r}, s[56:57]")
    for r in range(3):
        A(f"  v_perm_b32 v{20+r}, v{12+r}, v15, s{50+r}")
    A("  s_mov_b32 exec_lo, 0x00ff00ff")
    A("  s_mov_b32 exec_hi, 0x00ff00ff")
    A("  buffer_store_dwordx4 v[20:23], v4, s[28:31], s45 offen sc1")
    A("  s_mov_b64 exec, -1")
    stamp(1)
    A("  s_lshr_b32 s45, s2, 2")
    A("  s_lshl_b32 s45, s45, 11")
    A(f"  s_add_u32 s45, s45, {WS_QG}")
    A("  v_lshlrev_b32 v11, 3, v0")
    A(f"  v_add_u32 v11, {L_Q}, v11")
    A("  s_mov_b32 s50, 0x0c04000c")
    A("  s_mov_b32 s51, 0x04020100")
    A("  s_mov_b32 s52, 0xffffff00")
    A("L_qpoll:")
    for j in range(2):
        A(f"  buffer_load_dwordx4 v[{24+4*j}:{27+4*j}], v2, s[28:31], s45 offen offset:{j*1024} sc1")
    A("  s_waitcnt vmcnt(0)")
    A(f"  v_cmp_eq_u32 vcc, s{sTag}, v27")
    A(f"  v_cmp_eq_u32 s[62:63], s{sTag}, v31")
    A("  s_and_b64 vcc, vcc, s[62:63]")
    A("  s_cmp_eq_u64 vcc, -1")
    spin_tail("L_qdone", "L_qpoll", 0)
    for j in range(2):
        A(f"  v_perm_b32 v{27+4*j}, v{25+4*j}, v{24+4*j}, s50")
        A(f"  v_perm_b32 v{27+4*j}, v{26+4*j}, v{27+4*j}, s51")
        for r in range(3):
            A(f"  v_and_b32 v{24+4*j+r}, s52, v{24+4*j+r}")
    for r in range(4):
        A(f"  v_add_f32 v{24+r}, v{24+r}, v{28+r}")
    A("  v_cvt_pk_bf16_f32 v24, v24, v25")
    A("  v_cvt_pk_bf16_f32 v25, v26, v27")
    A("  v_mov_b32 v22, 1")
    A("  ds_write_b64 v11, v[24:25]")
    A("  ds_write_b64 v3, v[22:23]")
    if stamps: A("  s_mov_b32 s86, s61")
    stamp(12)
    C("workgroup 0 times both 8 KiB-interleaved halves of the hand-off area and publishes which is closer;")
    C("every workgroup lays out the records and picks its reducer slot with that one bit")
    A("  s_cmp_lg_u32 s2, 0")
    A("  s_cbranch_scc1 L_pwait")
    A(f"  s_movk_i32 s44, {probe}")
    A("  s_mov_b32 s45, -1")
    A("  s_mov_b32 s47, -1")
    A("  s_memtime s[48:49]")
    A("  s_waitcnt lgkmcnt(0)")
    A("L_probe:")
    A("  s_load_dword s46, s[18:19], 0x8000 glc")
    A("  s_waitcnt lgkmcnt(0)")
    A("  s_memtime s[50:51]")
    A("  s_waitcnt lgkmcnt(0)")
    A("  s_load_dword s46, s[18:19], 0xa000 glc")
    A("  s_waitcnt lgkmcnt(0)")
    A("  s_sub_u32 s52, s50, s48")
    A("  s_memtime s[48:49]")
    A("  s_waitcnt lgkmcnt(0)")
    A("  s_sub_u32 s53, s48, s50")
    A("  s_min_u32 s45, s45, s52")
    A("  s_min_u32 s47, s47, s53")
    A("  s_sub_u32 s44, s44, 1")
    A("  s_cmp_lg_u32 s44, 0")
    A("  s_cbranch_scc1 L_probe")
    if stamps:
        A("  s_mov_b32 s70, s45")
        A("  s_mov_b32 s72, s47")
        A("  s_mov_b32 s92, 0")
    A("  s_cmp_gt_u32 s45, s47")
    A("  s_cselect_b32 s45, 0x2001, 1")
    A("  v_mov_b32 v24, s45")
    A("  v_mov_b32 v25, v23")
    A("  s_mov_b64 exec, 1")
    A(f"  buffer_store_dwordx2 v[24:25], v2, s[28:31], 0 offen offset:{WS_POL} sc1")
    A("  s_mov_b64 exec, -1")
    A("L_pwait:")
    A("  s_mov_b32 s61, 0x100000")
    A("L_wait_st:")
    A("  ds_read_b32 v26, v3 offset:24")
    A("  s_waitcnt lgkmcnt(0)")
    A("  v_readfirstlane_b32 s45, v26")
    A("  s_cmp_lg_u32 s45, 0")
    spin_tail("L_st_go", "L_wait_st", 8)
    A("  s_mov_b32 s61, 0x40000")
    A("  v_mov_b32 v4, 0")
    A("L_ppw:")
    A(f"  buffer_load_dwordx2 v[24:25], v4, s[28:31], 0 offen offset:{WS_POL} sc1")
    A("  s_waitcnt vmcnt(0)")
    A("  v_readfirstlane_b32 s45, v25")
    A("  v_readfirstlane_b32 s49, v24")
    A(f"  s_cmp_eq_u32 s45, s{sTag}")
    spin_tail("L_pgot", "L_ppw", 16)
    A("  ds_write_b32 v3, v24 offset:20")
    A("  s_and_b32 s49, s49, 0x2000")
    stamp(15)
    C("wo piece: 64 rows x 288 B, three rows per load")
    A("  s_mov_b64 s[32:33], s[12:13]")
    A("  s_and_b32 s44, s2, 63")
    A("  s_mul_i32 s44, s44, 73728")
    A("  s_lshr_b32 s45, s2, 6")
    A("  s_mul_i32 s45, s45, 288")
    A("  s_add_u32 s44, s44, s45")
    A("  v_mul_u32_u24 v4, 57, v0")
    A("  v_lshrrev_b32 v4, 10, v4")
    A("  v_mul_u32_u24 v4, 864, v4")
    A("  v_add_u32 v6, v4, v2")
    C("reducer slot s55: twelve output columns at byte offset s55*24")
    A("  s_lshr_b32 s55, s49, 12")
    A("  s_xor_b32 s55, s55, s2")
    A("  s_lshl_b32 s47, s55, 12")
    A(f"  s_add_u32 s47, s47, {WS_YG}")
    A("  s_mov_b64 s[36:37], s[14:15]")
    A("  s_mul_i32 s56, s55, 24")
    A("  v_lshrrev_b32 v10, 5, v0")
    A("  v_bfe_u32 v11, v0, 4, 1")
    A("  v_lshl_add_u32 v10, v11, 1, v10")
    A("  v_lshlrev_b32 v10, 3, v10")
    A("  v_lshl_add_u32 v10, v8, 1, v10")
    A("  v_lshrrev_b32 v4, 3, v0")
    A("  v_lshlrev_b32 v4, 16, v4")
    A("  v_bfe_u32 v5, v0, 1, 2")
    A("  v_lshl_add_u32 v4, v5, 9, v4")
    A("  v_and_b32 v5, 1, v0")
    A("  v_lshl_add_u32 v4, v5, 7, v4")
    recbase(54, 45)
    A("  s_xor_b32 s54, s54, s49")
    A("  v_lshlrev_b32 v5, 7, v0")
    A("  s_mov_b32 s3, 4")
    A("  s_mov_b32 m0, 0")
    A("  s_mov_b32 s61, 0x100000")
    A("L_wait_end:")
    A("  ds_read_b32 v24, v3 offset:8")
    A("  s_waitcnt lgkmcnt(0)")
    A("  v_readfirstlane_b32 s45, v24")
    A("  s_cmp_lg_u32 s45, 0")
    spin_tail("L_wo_go", "L_wait_end", 2)
    stamp(13)
    C("prefetch the lines the tail reads and writes (values unused), then load the wo piece")
    A("  s_mov_b32 exec_hi, 0")
    A("  buffer_load_dword v48, v4, s[28:31], s54 offen sc1")
    A("  buffer_load_dword v49, v5, s[28:31], s47 offen sc1")
    A("  buffer_load_ushort v50, v10, s[36:39], s56 offen sc1")
    A("  s_mov_b32 exec_hi, 0x3fffff")
    A("L_wo:")
    A("  buffer_load_dwordx4 v6, s[32:35], s44 offen nt lds")
    A("  s_addk_i32 m0, 864")
    A("  s_addk_i32 s44, 3456")
    A("  s_cmpk_lt_u32 m0, 18432")
    A("  s_cbranch_scc1 L_wo")
    A("  s_mov_b32 exec_hi, -1")
    A("  s_mov_b32 s61, 0x40000")
    A("  s_waitcnt vmcnt(0)")
    A("  ds_write_b32 v3, v22 offset:12")
    stamp(2)
    A("  s_cmpk_ge_u32 s2, 192")
    A("  s_barrier")
    stamp(5)
    A("  s_cbranch_scc1 L_fin")
    def yload(j):
        A(f"  buffer_load_dwordx4 v[{32+4*j}:{35+4*j}], v2, s[28:31], s47 offen offset:{j*1024} sc1")
    for j in range(4): yload(j)
    A("L_ypoll:")
    A("  s_waitcnt vmcnt(0)")
    A("  s_mov_b32 s45, 0")
    for j in range(4):
        A(f"  v_cmp_ne_u32 vcc, s{sTag}, v{35+4*j}")
        A(f"  s_cbranch_vccz L_yok{j}")
        yload(j)
        A("  s_mov_b32 s45, 1")
        A(f"L_yok{j}:")
    A("  s_cmp_eq_u32 s45, 0")
    A("  s_cbranch_scc1 L_ydone")
    A("  s_sub_u32 s61, s61, 1")
    A("  s_cbranch_scc0 L_ypoll")
    A("  s_waitcnt vmcnt(0)")
    A("L_ydone:")
    A("  v_pk_add_f32 v[32:33], v[32:33], v[36:37]")
    A("  v_pk_add_f32 v[40:41], v[40:41], v[44:45]")
    A("  v_add_f32 v34, v34, v38")
    A("  v_add_f32 v42, v42, v46")
    A("  v_pk_add_f32 v[32:33], v[32:33], v[40:41]")
    A("  v_add_f32 v34, v34, v42")
    A("  v_mov_b32 v35, v34")
    A("  v_permlane32_swap_b32 v32, v33")
    A("  v_add_f32 v32, v32, v33")
    A("  v_permlane32_swap_b32 v34, v35")
    A("  v_add_f32 v34, v34, v35")
    A("  s_nop 1")
    A("  v_permlane16_swap_b32 v32, v34")
    A("  v_add_f32 v32, v32, v34")
    A("  s_nop 1")
    A(f"  v_add_f32_dpp v32, v32, v32 row_ror:8 {dpp}")
    A("  s_nop 1")
    A(f"  v_add_f32_dpp v32, v32, v32 row_ror:4 {dpp}")
    A("  s_mov_b32 exec_lo, 0x000f000f")
    A("  s_mov_b32 exec_hi, 0x0000000f")
    A("  v_cvt_pk_bf16_f32 v32, v32, v32")
    A(f"  buffer_store_short v32, v10, s[36:39], s56 offen {outflags}".rstrip())
    C("advance the launch counter once every workgroup has read it")
    A("  s_cmp_lg_u32 s2, 0")
    A("  s_cbranch_scc1 L_fin")
    A("  s_mov_b64 exec, 1")
    A("  buffer_store_dword v23, v2, s[28:31], 0 offen")
    A("L_fin:")
    if stamps:
        stamp(6)
        A("  s_mul_i32 s44, s2, 5")
        A("  s_add_u32 s44, s44, s3")
        A("  s_lshl_b32 s44, s44, 6")
        A(f"  s_add_u32 s44, s44, {WS_TS}")
        A("  s_mov_b32 s78, s61")
        A("  s_waitcnt lgkmcnt(0)")
        A("  s_mov_b64 exec, 1")
        for i in range(16):
            A(f"  v_mov_b32 v{64+i}, s{64+2*i}")
        A("  v_mov_b32 v3, 0")
        for j in range(4):
            A(f"  buffer_store_dwordx4 v[{64+4*j}:{67+4*j}], v3, s[28:31], s44 offen offset:{16*j}")
    A("L_end:")
    A("  s_endpgm")
    A('.section .rodata,"a"')
    A(".p2align 6")
    A(f".amdhsa_kernel {NAME}")
    A(f"  .amdhsa_next_free_vgpr {NV}")
    A("  .amdhsa_next_free_sgpr %d" % (96 if stamps else 64))
    A(f"  .amdhsa_accum_offset {(NV+3)//4*4}")
    A("  .amdhsa_group_segment_fixed_size 0")
    A("  .amdhsa_kernarg_size 64")
    A("  .amdhsa_user_sgpr_count 2")
    A("  .amdhsa_user_sgpr_kernarg_segment_ptr 1")
    A("  .amdhsa_system_sgpr_workgroup_id_x 1")
    A("  .amdhsa_float_denorm_mode_32 3")
    A(".end_amdhsa_kernel")
    return "\n".join(L) + "\n"

if __name__ == "__main__":
    import json
    cfg = json.loads(sys.argv[1]) if len(sys.argv) > 1 else {}
    sys.stdout.write(gen(**cfg))
```

```python
import math, struct, sys

def f2u(x):
    return struct.unpack('<I', struct.pack('<f', x))[0]

SCALE = math.log2(math.e) / math.sqrt(128.0)
NAME = "standalone__gqa_block_cached__decode_kernel"

HEADER = """; Kernarg layout for this problem (64 bytes, ptrs only, base s[0:1]):
;
"""

WS_POL = 256
WS_QG = 0x40000
WS_PG = 0x100000
WS_YG = 0x140000
WS_CNT = 0x300000
WS_TS = 0x1000000
WS_SIZE = 0x2000000

L_Q = 19456
L_FLAG = L_Q + 512
L_ML = L_FLAG + 32
L_O = L_Q + 640
L_P = L_O + 512
L_TOTAL = L_P + 4 * 1024

def gen(E=2, WIN0=8, hyb=27, stamps=False, pre0=2, probe=12, outflags="", psleep=0, early_epoch=True):
    U = 4
    D = 2 + E
    assert E >= 1 and WIN0 >= 5
    PAIRB = 2 * 1024 * 1024
    BLK = 4096
    STEP = 16 * BLK
    STATIC = hyb * STEP
    L = []
    A = L.append
    def C(text): A(f"  ; {text}")
    dpp = "row_mask:0xf bank_mask:0xf"
    vKoff, vVoff, vT = 1, 2, 3
    vQ, vM, vO = 4, 8, 12
    vm, vl, va, vb = 16, 17, 18, 19
    vS, vD, vB = 20, 24, 24
    vK = 40
    NV = max(vK + 32 * D, 132)
    aP, aML, aPr, aMLr, aRec, aPub, aO, aOf, aWo, aY, aFl, aOne = range(104, 116)
    sTag, sC = 40, 41
    sSlot = 48
    def stamp(i):
        if stamps:
            A(f"  s_memrealtime s[{64+2*i}:{65+2*i}]")
    def spin_tail(label_ok, label_loop, sleep):
        A(f"  s_cbranch_scc1 {label_ok}")
        if sleep: A(f"  s_sleep {sleep}")
        A("  s_sub_u32 s61, s61, 1")
        A(f"  s_cbranch_scc0 {label_loop}")
        A(f"{label_ok}:")
    def recbase(dst, tmp):
        A(f"  s_and_b32 s{dst}, s2, 48")
        A(f"  s_lshl_b32 s{dst}, s{dst}, 10")
        A(f"  s_and_b32 s{tmp}, s2, 12")
        A(f"  s_lshl_b32 s{tmp}, s{tmp}, 9")
        A(f"  s_add_u32 s{dst}, s{dst}, s{tmp}")
        A(f"  s_and_b32 s{tmp}, s2, 1")
        A(f"  s_lshl_b32 s{tmp}, s{tmp}, 8")
        A(f"  s_add_u32 s{dst}, s{dst}, s{tmp}")
        A(f"  s_and_b32 s{tmp}, s2, 2")
        A(f"  s_lshl_b32 s{tmp}, s{tmp}, 12")
        A(f"  s_add_u32 s{dst}, s{dst}, s{tmp}")
        A(f"  s_add_u32 s{dst}, s{dst}, {WS_PG}")
    for ln in HEADER.rstrip("\n").split("\n"): A(ln)
    A(f"; @launch grid=(256,1,1) block=(320,1,1) lds={L_TOTAL}")
    A('.amdgcn_target "amdgcn-amd-amdhsa--gfx950"')
    A(".text")
    A(f".globl {NAME}")
    A(".p2align 8")
    A(f".type {NAME},@function")
    A(f"{NAME}:")
    A("  s_cmpk_ge_u32 s2, 256")
    A("  s_cbranch_scc1 L_end")
    A("  s_load_dwordx16 s[4:19], s[0:1], 0")
    stamp(0)
    A("  v_lshrrev_b32 v3, 6, v0")
    A("  v_and_b32 v0, 63, v0")
    A("  v_readfirstlane_b32 s3, v3")
    C("permute the low three id bits: x -> parity(x)*4 + (x>>1)")
    A("  s_lshl_b32 s44, s2, 2")
    A("  s_lshr_b32 s44, 0x05722750, s44")
    A("  s_and_b32 s44, s44, 7")
    A("  s_xor_b32 s2, s2, s44")
    A("  v_lshrrev_b32 v9, 4, v0")
    A("  v_and_b32 v8, 3, v0")
    A("  s_cmp_lg_u32 s3, 0")
    A("  s_cbranch_scc1 L_attn")
    C("---- helper wave: issue the x and wq loads (column group (id&7)*16 + (id>>4), row half (id>>3)&1)")
    A("  s_and_b32 s45, s2, 7")
    A("  s_lshl_b32 s45, s45, 10")
    A("  s_lshr_b32 s46, s2, 4")
    A("  s_lshl_b32 s46, s46, 6")
    A("  s_add_u32 s44, s45, s46")
    A("  s_bfe_u32 s47, s2, 0x10003")
    A("  s_mul_i32 s46, s47, 2359296")
    A("  s_add_u32 s45, s44, s46")
    A("  s_add_u32 s46, s45, 32768")
    A("  s_mul_i32 s56, s47, 576")
    A("  v_lshlrev_b32 v2, 4, v0")
    A("  v_bfe_u32 v4, v0, 2, 2")
    A("  v_lshl_add_u32 v4, v9, 3, v4")
    A("  v_lshlrev_b32 v5, 4, v8")
    A("  v_lshl_add_u32 v6, v4, 13, v5")
    A("  s_mov_b32 s34, 4718592")
    A("  s_mov_b32 s35, 0x20000")
    A("  s_movk_i32 s38, 4608")
    A("  s_mov_b32 s39, s35")
    A(f"  s_movk_i32 m0, {L_P}")
    A(f"  v_mov_b32 v3, {L_FLAG}")
    A("  v_mov_b32 v12, 0")
    A("  v_mov_b32 v13, 0")
    A("  ds_write2_b64 v3, v[12:13], v[12:13] offset0:0 offset1:1")
    A("  ds_write2_b64 v3, v[12:13], v[12:13] offset0:2 offset1:3")
    A("  s_mov_b32 exec_hi, 15")
    A("  s_waitcnt lgkmcnt(0)")
    A("  s_mov_b64 s[36:37], s[4:5]")
    A("  s_mov_b64 s[32:33], s[10:11]")
    for b in range(4):
        A(f"  buffer_load_dwordx4 v2, s[36:39], s56 offen offset:{b*1152} lds")
    A("  s_mov_b32 m0, 0")
    A("  s_mov_b32 exec_hi, -1")
    A("L_wq:")
    A("  buffer_load_dwordx4 v6, s[32:35], s45 offen nt lds")
    A("  s_addk_i32 m0, 1024")
    A("  s_add_u32 s45, s45, 0x40000")
    A("  buffer_load_dwordx4 v6, s[32:35], s46 offen nt lds")
    A("  s_addk_i32 m0, 1024")
    A("  s_add_u32 s46, s46, 0x40000")
    A("  s_cmpk_lt_u32 m0, 18432")
    A("  s_cbranch_scc1 L_wq")
    A("  s_barrier")
    A("  s_branch L_help")
    C("---- attention waves")
    A("L_attn:")
    A("  s_sub_u32 s3, s3, 1")
    C("K lane offset: key (lane>>2)&3 -> rows {0,1,16,17}, 16-byte chunk (lane>>4)*4 + (lane&3)")
    A("  v_bfe_u32 v3, v0, 2, 1")
    A("  v_lshlrev_b32 v1, 8, v3")
    A("  v_bfe_u32 v3, v0, 3, 1")
    A("  v_lshl_add_u32 v1, v3, 12, v1")
    A("  v_lshl_add_u32 v1, v9, 6, v1")
    A("  v_lshl_add_u32 v1, v8, 4, v1")
    A("  s_andn2_b32 s44, s2, 3")
    A("  s_lshl_b32 s44, s44, 19")
    C("block n starts at (n>>1)*8192 + (n&1)*2048")
    A("  s_and_b32 s45, s2, 3")
    A("  s_lshl2_add_u32 s45, s45, s3")
    A("  s_and_b32 s46, s45, 1")
    A("  s_lshl_b32 s45, s45, 1")
    A("  s_sub_u32 s45, s45, s46")
    A(f"  s_lshl_b32 s{sSlot}, s45, 11")
    A(f"  s_mov_b32 s22, {PAIRB}")
    A("  s_mov_b32 s23, 0x20000")
    A("  s_waitcnt lgkmcnt(0)")
    A("  s_add_u32 s20, s6, s44")
    A("  s_addc_u32 s21, s7, 0")
    stamp(8)
    def reg(kind, d, t):
        return vK + 32 * d + (0 if kind == "K" else 16) + 4 * t
    def loads(kind, d, t):
        srd = "s[20:23]" if kind == "K" else "s[24:27]"
        off = vKoff if kind == "K" else vVoff
        r = reg(kind, d, t)
        A(f"  buffer_load_dwordx4 v[{r}:{r+3}], v{off}, {srd}, s{sSlot+d} offen offset:{t*512} nt")
    vsetup = ["  v_and_b32 v3, 31, v0", "  v_lshlrev_b32 v2, 4, v3", "  v_lshrrev_b32 v3, 5, v0", "  v_lshl_add_u32 v2, v3, 12, v2",
              "  s_add_u32 s24, s8, s44", "  s_addc_u32 s25, s9, 0", "  s_mov_b64 s[26:27], s[22:23]"]
    setup = []
    S = setup.append
    S("  s_mov_b64 s[28:29], s[18:19]")
    S(f"  s_mov_b32 s30, {WS_SIZE}")
    S("  s_mov_b32 s31, 0x20000")
    S(f"  s_mov_b32 s{sC}, {hex(f2u(SCALE))}")
    S("  s_lshr_b32 s44, s44, 13")
    S(f"  s_add_u32 s44, s44, {WS_CNT}")
    S("  s_add_u32 s46, s18, s44")
    S("  s_addc_u32 s47, s19, 0")
    S(f"  s_add_u32 s59, s{sSlot}, {D*STEP}")
    S("  s_mov_b32 s57, 1")
    S("  v_bfe_u32 v3, v0, 3, 1")
    S("  v_lshlrev_b32 v18, 8, v3")
    S("  v_lshl_add_u32 v18, v9, 6, v18")
    S("  v_lshl_add_u32 v18, v8, 4, v18")
    S(f"  v_add_u32 v18, {L_Q}, v18")
    S(f"  v_mov_b32 v19, {L_FLAG}")
    S("  v_and_b32 v3, 1, v0")
    S("  v_mov_b32 v17, 0xffff")
    S("  v_lshlrev_b32 v3, 4, v3")
    S("  v_lshlrev_b32 v17, v3, v17")
    S("  v_bfe_u32 v3, v0, 1, 2")
    for r in range(4):
        S(f"  v_cmp_eq_u32 vcc, {r}, v3")
        S(f"  v_mov_b32 v{vO+r}, 0")
        S("  s_nop 0")
        S(f"  v_cndmask_b32 v{vM+r}, 0, v17, vcc")
    S(f"  v_mov_b32 v{vm}, 0xff800000")
    S(f"  v_mov_b32 v{vl}, 0")
    n = 0
    for d in range(D):
        if d: A(f"  s_add_u32 s{sSlot+d}, s{sSlot}, {d*STEP}")
        for kind in "KV":
            for t in range(U):
                if n == 4:
                    for ln in vsetup: A(ln)
                if n == pre0: A("  s_barrier")
                if n == WIN0:
                    for ln in setup: A(ln)
                if n >= WIN0: A(f"  s_waitcnt vmcnt({WIN0-1})")
                loads(kind, d, t)
                n += 1
    stamp(9)
    A("  s_mov_b32 s61, 0x400000")
    A("L_qwait:")
    A("  ds_read_b64 v[20:21], v19")
    A(f"  ds_read_b128 v[{vQ}:{vQ+3}], v18")
    A("  s_waitcnt lgkmcnt(0)")
    A("  v_readfirstlane_b32 s44, v20")
    A(f"  v_readfirstlane_b32 s{sTag}, v21")
    A("  s_cmp_lg_u32 s44, 0")
    spin_tail("L_qgo", "L_qwait", 1)
    stamp(1)
    def body(d, ring):
        for t in range(U):
            r = reg("K", d, t)
            if ring: A(f"  s_waitcnt vmcnt({15-t})")
            A(f"  v_mfma_f32_16x16x32_bf16 v[{vD+4*t}:{vD+4*t+3}], v[{r}:{r+3}], v[{vQ}:{vQ+3}], 0")
        if ring:
            A(f"  s_cbranch_scc1 L_sk{d}")
            A(f"  s_cmp_lt_u32 s59, {STATIC}")
            A(f"  s_cbranch_scc0 L_dy{d}")
            A(f"  s_mov_b32 s{sSlot+d}, s59")
            A(f"  s_add_u32 s59, s59, {STEP}")
            A(f"  s_cmp_ge_u32 s59, {STATIC}")
            A(f"  s_cbranch_scc1 L_tf{d}")
            A(f"L_ld{d}:")
            for t in range(U): loads("K", d, t)
            A(f"L_sk{d}:")
        A("  s_nop 4")
        for j in range(4):
            for t in range(U):
                if j == 0:
                    A(f"  v_mov_b32_dpp v{vS+t}, v{vD+4*t} quad_perm:[0,0,0,0] {dpp}")
                else:
                    A(f"  v_add_f32_dpp v{vS+t}, v{vD+4*t+j}, v{vS+t} quad_perm:[{j},{j},{j},{j}] {dpp}")
        A(f"  v_max3_f32 v{va}, v{vm}, v{vS}, v{vS+1}")
        A(f"  v_max3_f32 v{va}, v{va}, v{vS+2}, v{vS+3}")
        A(f"  v_mov_b32 v{vb}, v{va}")
        A("  s_nop 1")
        A(f"  v_permlane32_swap_b32 v{va}, v{vb}")
        A(f"  v_max_f32 v{va}, v{va}, v{vb}")
        A(f"  v_mov_b32 v{vb}, v{va}")
        A("  s_nop 1")
        A(f"  v_permlane16_swap_b32 v{va}, v{vb}")
        A(f"  v_max_f32 v{va}, v{va}, v{vb}")
        A(f"  v_sub_f32 v{vb}, v{vm}, v{va}")
        A(f"  v_mul_f32 v{vb}, s{sC}, v{vb}")
        A(f"  v_exp_f32 v{vb}, v{vb}")
        A(f"  v_mov_b32 v{vm}, v{va}")
        A(f"  v_mul_f32 v{va}, s{sC}, v{va}")
        for t in range(U):
            A(f"  v_fma_f32 v{vS+t}, v{vS+t}, s{sC}, -v{va}")
        for t in range(U):
            A(f"  v_exp_f32 v{vS+t}, v{vS+t}")
        for r in range(4):
            A(f"  v_mul_f32 v{vO+r}, v{vO+r}, v{vb}")
        A(f"  v_mul_f32 v{vl}, v{vl}, v{vb}")
        for t in range(U):
            A(f"  v_cvt_pk_bf16_f32 v{vT}, v{vS+t}, v{vS+t}")
            for j in range(4):
                A(f"  v_and_b32 v{vB+4*t+j}, v{vT}, v{vM+j}")
            A(f"  v_add_f32 v{vl}, v{vl}, v{vS+t}")
        if ring:
            A(f"  s_cbranch_scc1 L_dw{d}")
            A(f"L_dr{d}:")
        for t in range(U):
            r = reg("V", d, t)
            if ring: A(f"  s_waitcnt vmcnt({15-t})")
            A(f"  v_mfma_f32_16x16x32_bf16 v[{vO}:{vO+3}], v[{r}:{r+3}], v[{vB+4*t}:{vB+4*t+3}], v[{vO}:{vO+3}]")
        if ring:
            A(f"  s_cbranch_scc1 L_sv{d}")
            for t in range(U): loads("V", d, t)
    C("main loop over two register buffers; SCC = 1 inside a body means no further block is loaded")
    C("s59: next fixed-share block, s60: ticket in flight, s48/s49: block held by each buffer")
    A("  s_cmp_eq_u32 s59, 0")
    A("L_loop:")
    for d in range(2):
        A(f"L_go{d}:")
        body(d, True)
    A("  s_cmp_lg_u32 s57, 0")
    A("  s_cbranch_scc0 L_loop")
    C("first trip only: the blocks prefetched while q was being produced")
    A("  s_mov_b32 s57, 0")
    stamp(13)
    A("  s_waitcnt vmcnt(16)")
    for e in range(E):
        body(2 + e, False)
    stamp(14)
    C("addresses for the tail, kept in the freed buffer")
    A("  v_lshrrev_b32 v116, 4, v0")
    A("  v_lshlrev_b32 v117, 4, v0")
    A(f"  v_add_u32 v{aPr}, {L_P}, v117")
    A("  s_lshl_b32 s44, s3, 10")
    A(f"  v_add_u32 v{aP}, s44, v{aPr}")
    A("  v_and_b32 v117, 8, v0")
    A(f"  v_add_u32 v{aMLr}, {L_ML}, v117")
    A("  s_lshl_b32 s44, s3, 4")
    A(f"  v_add_u32 v{aML}, s44, v{aMLr}")
    A(f"  v_lshlrev_b32 v{aPub}, 10, v117")
    A(f"  v_lshl_add_u32 v{aPub}, v116, 7, v{aPub}")
    A("  v_and_b32 v118, 7, v0")
    A(f"  v_lshl_add_u32 v{aPub}, v118, 4, v{aPub}")
    A("  s_lshl_b32 s44, s3, 7")
    A(f"  s_add_u32 s44, s44, {L_O}")
    A(f"  v_lshl_add_u32 v{aO}, v117, 3, s44")
    A(f"  v_lshl_add_u32 v{aO}, v118, 1, v{aO}")
    A("  v_lshrrev_b32 v118, 5, v0")
    A(f"  v_lshl_add_u32 v{aO}, v118, 4, v{aO}")
    A("  v_bfe_u32 v118, v0, 4, 1")
    A(f"  v_lshl_add_u32 v{aO}, v118, 5, v{aO}")
    A("  v_and_b32 v118, 15, v0")
    A(f"  v_lshlrev_b32 v{aRec}, 9, v116")
    A(f"  v_lshl_add_u32 v{aRec}, v118, 4, v{aRec}")
    A("  v_bfe_u32 v117, v0, 2, 2")
    A("  v_and_b32 v118, 3, v0")
    A(f"  v_lshl_add_u32 v{aWo}, v116, 3, v117")
    A(f"  v_mul_u32_u24 v{aWo}, 288, v{aWo}")
    A(f"  v_mad_u32_u24 v{aWo}, v118, 24, v{aWo}")
    A("  s_mul_i32 s44, s3, 96")
    A(f"  v_add_u32 v{aWo}, s44, v{aWo}")
    A(f"  v_lshlrev_b32 v{aOf}, 7, v117")
    A(f"  v_lshl_add_u32 v{aOf}, v116, 4, v{aOf}")
    A(f"  v_add_u32 v{aOf}, {L_O}, v{aOf}")
    A(f"  v_mul_u32_u24 v{aY}, 196608, v116")
    A(f"  v_lshl_add_u32 v{aY}, v117, 12, v{aY}")
    A(f"  v_lshl_add_u32 v{aY}, v118, 4, v{aY}")
    A(f"  v_mov_b32 v{aFl}, {L_FLAG}")
    A(f"  v_mov_b32 v{aOne}, 1")
    A("  s_lshr_b32 s44, s2, 6")
    A("  s_mul_i32 s58, s44, 49152")
    A("  s_and_b32 s44, s2, 63")
    A("  s_lshl_b32 s44, s44, 6")
    A("  s_add_u32 s58, s58, s44")
    A("  s_lshl_b32 s44, s3, 14")
    A("  s_add_u32 s58, s58, s44")
    A(f"  s_add_u32 s58, s58, {WS_YG}")
    A("  s_and_b32 s55, s2, 0xf0")
    A("  s_lshl_b32 s55, s55, 10")
    A("  s_and_b32 s44, s2, 15")
    A("  s_lshl_b32 s44, s44, 9")
    A("  s_add_u32 s55, s55, s44")
    A(f"  s_add_u32 s55, s55, {WS_PG}")
    recbase(54, 44)
    A("  s_lshl_b32 s44, s3, 16")
    A("  s_add_u32 s54, s54, s44")
    A("  s_cmp_eq_u32 s59, 0")
    A("  s_branch L_loop")
    for d in range(2):
        A(f"L_dy{d}:")
        A("  s_waitcnt lgkmcnt(0)")
        A("  s_and_b32 s56, s60, 4096")
        A("  s_lshr_b32 s56, s56, 1")
        A(f"  s_add_u32 s{sSlot+d}, s60, {STATIC}")
        A(f"  s_sub_u32 s{sSlot+d}, s{sSlot+d}, s56")
        A(f"  s_cmp_ge_u32 s{sSlot+d}, {PAIRB}")
        A(f"  s_cbranch_scc0 L_tk{d}")
        stamp(15)
        A(f"  ds_write_b32 v{aFl}, v{aOne} offset:8")
        A(f"  s_branch L_sk{d}")
        A(f"L_tf{d}:")
        A(f"  ds_write_b32 v{aFl}, v{aOne} offset:24")
        stamp(12)
        A(f"L_tk{d}:")
        A(f"  s_movk_i32 s60, {BLK}")
        A("  s_atomic_add s60, s[46:47], 0 glc")
        A("  s_cmp_eq_u32 s59, 0")
        A(f"  s_branch L_ld{d}")
        A(f"L_sv{d}:")
        A("  s_waitcnt vmcnt(4)")
        A(f"  s_branch L_go{1-d}")
        A(f"L_dw{d}:")
        A("  s_waitcnt vmcnt(8)")
        A(f"  s_cmp_lt_u32 s{sSlot+1-d}, {PAIRB}")
        A(f"  s_cbranch_scc1 L_dr{d}")
        C("last block of this wave")
        A(f"  v_mov_b32 v{vb}, v{vl}")
        A("  s_mov_b32 s61, 0x1000000")
        A("  s_nop 0")
        A(f"  v_permlane32_swap_b32 v{vl}, v{vb}")
        A(f"  v_add_f32 v{vl}, v{vl}, v{vb}")
        A(f"  v_mov_b32 v{vb}, v{vl}")
        A("  s_nop 1")
        A(f"  v_permlane16_swap_b32 v{vl}, v{vb}")
        A(f"  v_add_f32 v{vl}, v{vl}, v{vb}")
        A(f"  ds_write_b64 v{aML}, v[{vm}:{vl}]")
        A(f"L_sel{d}:")
        A(f"  ds_read_b32 v3, v{aFl} offset:20")
        A("  s_waitcnt lgkmcnt(0)")
        A("  v_readfirstlane_b32 s44, v3")
        A("  s_cmp_lg_u32 s44, 0")
        spin_tail(f"L_selok{d}", f"L_sel{d}", 0)
        A("  s_and_b32 s44, s44, 0x2000")
        A("  s_xor_b32 s54, s54, s44")
        A(f"  v_xor_b32 v{aPub}, s44, v{aPub}")
        for t in range(U):
            r = reg("V", d, t)
            A(f"  s_waitcnt vmcnt({3-t})")
            A(f"  v_mfma_f32_16x16x32_bf16 v[{vO}:{vO+3}], v[{r}:{r+3}], v[{vB+4*t}:{vB+4*t+3}], v[{vO}:{vO+3}]")
        if d == 0: A("  s_branch L_done")
        else: A("  s_nop 0")
    A("L_done:")
    stamp(2)
    C("the last wave to arrive merges the four partial results and publishes the record")
    A("  s_nop 6")
    A(f"  ds_write_b128 v{aP}, v[{vO}:{vO+3}]")
    A("  s_mov_b64 exec, 1")
    A(f"  ds_add_rtn_u32 v3, v{aFl}, v{aOne} offset:16")
    A("  s_mov_b64 exec, -1")
    for w in range(4):
        A(f"  ds_read_b64 v[{40+2*w}:{41+2*w}], v{aMLr} offset:{w*16}")
    for w in range(4):
        A(f"  ds_read_b128 v[{24+4*w}:{27+4*w}], v{aPr} offset:{w*1024}")
    A(f"  v_mov_b32 v23, s{sTag}")
    A("  s_mov_b32 s61, 0x40000")
    A("  s_waitcnt lgkmcnt(4)")
    A("  v_readfirstlane_b32 s44, v3")
    A("  v_max3_f32 v20, v40, v42, v44")
    A("  v_max_f32 v20, v20, v46")
    A(f"  v_mul_f32 v20, s{sC}, v20")
    A("  s_cmp_eq_u32 s44, 3")
    A("  s_cbranch_scc0 L_gather")
    for w in range(4): A(f"  v_fma_f32 v{40+2*w}, v{40+2*w}, s{sC}, -v20")
    for w in range(4): A(f"  v_exp_f32 v{40+2*w}, v{40+2*w}")
    A("  s_nop 0")
    A("  v_mul_f32 v22, v40, v41")
    for w in range(1, 4): A(f"  v_fmac_f32 v22, v{40+2*w}, v{41+2*w}")
    A("  s_waitcnt lgkmcnt(0)")
    A("  v_pk_mul_f32 v[24:25], v[24:25], v[40:41] op_sel_hi:[1,0]")
    A("  v_pk_mul_f32 v[26:27], v[26:27], v[40:41] op_sel_hi:[1,0]")
    A("  v_rcp_f32 v48, v22")
    A("  v_log_f32 v22, v22")
    for w in range(1, 4):
        for h in range(2):
            A(f"  v_pk_fma_f32 v[{24+2*h}:{25+2*h}], v[{24+4*w+2*h}:{25+4*w+2*h}], v[{40+2*w}:{41+2*w}], v[{24+2*h}:{25+2*h}] op_sel_hi:[1,0,1]")
    A("  v_add_f32 v22, v22, v20")
    A("  v_pk_mul_f32 v[24:25], v[24:25], v[48:49] op_sel_hi:[1,0]")
    A("  v_pk_mul_f32 v[26:27], v[26:27], v[48:49] op_sel_hi:[1,0]")
    A("  v_cvt_pk_bf16_f32 v20, v24, v25")
    A("  v_cvt_pk_bf16_f32 v21, v26, v27")
    A(f"  buffer_store_dwordx4 v[20:23], v{aPub}, s[28:31], s55 offen sc1")
    stamp(3)
    def frags():
        for ks in range(2):
            for tl in range(3):
                r = 44 + 12 * ks + 4 * tl
                A(f"  ds_read_b64_tr_b16 v[{r}:{r+1}], v{aWo} offset:{tl*8 + ks*9216}")
                A(f"  ds_read_b64_tr_b16 v[{r+2}:{r+3}], v{aWo} offset:{tl*8 + ks*9216 + 1152}")
    C("wave w gathers 64 columns of o for batch w from the four records of that pair")
    A("L_gather:")
    A("  s_waitcnt lgkmcnt(0)")
    A("L_ppoll:")
    A(f"  buffer_load_dwordx4 v[24:27], v{aRec}, s[28:31], s54 offen sc1")
    A("  s_cmp_lg_u32 s57, 0")
    A("  s_cbranch_scc1 L_havewo")
    A(f"  ds_read_b32 v3, v{aFl} offset:12")
    frags()
    A("  s_waitcnt lgkmcnt(0)")
    A("  v_readfirstlane_b32 s57, v3")
    A("L_havewo:")
    A("  s_waitcnt vmcnt(0)")
    A(f"  v_cmp_eq_u32 vcc, s{sTag}, v27")
    A("  v_mov_b32 v28, v26")
    A("  v_mov_b32 v29, v26")
    A("  s_cmp_eq_u64 vcc, -1")
    spin_tail("L_pdone", "L_ppoll", psleep)
    if stamps: A("  s_mov_b32 s86, s61")
    stamp(10)
    A("  v_permlane32_swap_b32 v28, v29")
    A("  v_max_f32 v28, v28, v29")
    A("  v_mov_b32 v29, v28")
    A("  v_lshlrev_b32 v32, 16, v24")
    A("  v_and_b32 v33, 0xffff0000, v24")
    A("  v_permlane16_swap_b32 v28, v29")
    A("  v_max_f32 v28, v28, v29")
    A("  v_sub_f32 v28, v26, v28")
    A("  v_exp_f32 v28, v28")
    A("  v_lshlrev_b32 v34, 16, v25")
    A("  v_and_b32 v35, 0xffff0000, v25")
    A("  v_mov_b32 v29, v28")
    A("  v_pk_mul_f32 v[32:33], v[32:33], v[28:29] op_sel_hi:[1,0]")
    A("  v_pk_mul_f32 v[34:35], v[34:35], v[28:29] op_sel_hi:[1,0]")
    A("  v_permlane32_swap_b32 v28, v29")
    A("  v_permlane32_swap_b32 v32, v33")
    A("  v_permlane32_swap_b32 v34, v35")
    A("  v_add_f32 v28, v28, v29")
    A("  v_mov_b32 v29, v28")
    A("  v_add_f32 v32, v32, v33")
    A("  v_add_f32 v34, v34, v35")
    A("  v_permlane16_swap_b32 v28, v29")
    A("  v_add_f32 v28, v28, v29")
    A("  v_permlane16_swap_b32 v32, v34")
    A("  v_rcp_f32 v28, v28")
    A("  v_add_f32 v32, v32, v34")
    A("  v_mul_f32 v32, v32, v28")
    A("  v_cvt_pk_bf16_f32 v32, v32, v32")
    A(f"  ds_write_b16 v{aO}, v32")
    A("  s_cmp_eq_u32 s3, 3")
    A("  s_waitcnt lgkmcnt(0)")
    A("  s_barrier")
    stamp(4)
    A("  s_cbranch_scc1 L_fin5")
    C("waves 0-2: 48 columns of o@wo each, all four batches")
    A(f"  ds_read_b128 v[36:39], v{aOf}")
    A(f"  ds_read_b128 v[40:43], v{aOf} offset:64")
    A("  s_cmp_lg_u32 s57, 0")
    A("  s_cbranch_scc1 L_havewo2")
    frags()
    A("  s_waitcnt lgkmcnt(0)")
    A("L_havewo2:")
    A("  s_waitcnt lgkmcnt(1)")
    for tl in (2, 1, 0):
        A(f"  v_mfma_f32_16x16x32_bf16 v[{24+4*tl}:{27+4*tl}], v[36:39], v[{44+4*tl}:{47+4*tl}], 0")
    A("  s_waitcnt lgkmcnt(0)")
    for tl in (2, 1, 0):
        A(f"  v_mfma_f32_16x16x32_bf16 v[{24+4*tl}:{27+4*tl}], v[40:43], v[{56+4*tl}:{59+4*tl}], v[{24+4*tl}:{27+4*tl}]")
    A("  s_nop 5")
    A("  v_mov_b32 v22, v32")
    A("  v_mov_b32 v21, v28")
    A("  v_mov_b32 v20, v24")
    A(f"  buffer_store_dwordx4 v[20:23], v{aY}, s[28:31], s58 offen sc1")
    A("L_fin5:")
    stamp(5)
    if stamps: A("  s_branch L_fin")
    else: A("  s_endpgm")
    C("---- helper wave, continued")
    A("L_help:")
    A("  s_load_dword s60, s[18:19], 0")
    stamp(9)
    A("  s_mov_b64 s[28:29], s[18:19]")
    A(f"  s_mov_b32 s30, {WS_SIZE}")
    A("  s_mov_b32 s31, 0x20000")
    C("one producer of each pair's q clears that pair's ticket counter before it publishes")
    A("  s_and_b32 s53, s2, 0x78")
    A("  s_cmp_lg_u32 s53, 0")
    A("  s_cbranch_scc1 L_nozero")
    A("  v_lshlrev_b32 v5, 12, v0")
    A("  s_lshr_b32 s53, s44, 1")
    A(f"  s_add_u32 s53, s53, {WS_CNT}")
    A("  s_mov_b64 exec, 15")
    A("  buffer_store_dword v12, v5, s[28:31], s53 offen sc1")
    A("  s_mov_b64 exec, -1")
    A("L_nozero:")
    A("  s_mov_b32 s61, 0x40000")
    A("  v_mul_u32_u24 v7, 1152, v8")
    A("  v_lshl_add_u32 v7, v9, 4, v7")
    A("  v_lshrrev_b32 v10, 2, v0")
    A("  v_lshlrev_b32 v10, 6, v10")
    A("  v_lshl_add_u32 v10, v8, 3, v10")
    C("q granule address: (b*16 + hkv)*2048 + half*1024 + ((group&7)*8 + tile*4 + (lane>>4))*16")
    A("  v_lshlrev_b32 v4, 15, v8")
    A("  v_lshl_add_u32 v4, v9, 4, v4")
    A("  v_bfe_u32 v5, v0, 2, 1")
    A("  v_lshl_add_u32 v4, v5, 6, v4")
    A("  s_lshr_b32 s45, s44, 9")
    A("  s_lshl_b32 s45, s45, 11")
    A("  s_lshl_b32 s46, s47, 10")
    A("  s_add_u32 s45, s45, s46")
    A("  s_and_b32 s46, s44, 0x1c0")
    A("  s_lshl_b32 s46, s46, 1")
    A("  s_add_u32 s45, s45, s46")
    A(f"  s_add_u32 s45, s45, {WS_QG}")
    A("  s_mov_b32 s56, 0xf0f0f0f0")
    A("  s_mov_b32 s57, 0xf0f0f0f0")
    A("  s_mov_b32 s50, 0x07060501")
    A("  s_mov_b32 s51, 0x07060502")
    A("  s_mov_b32 s52, 0x07060503")
    A("  s_waitcnt lgkmcnt(0)")
    A(f"  s_mul_i32 s{sTag}, s60, 0x9e3779b1")
    A(f"  s_add_u32 s{sTag}, s{sTag}, 0x7f4a7c15")
    A(f"  v_mov_b32 v23, s{sTag}")
    vX = 24; vW = 60
    A("  s_waitcnt vmcnt(18)")
    for t in range(9):
        A(f"  ds_read_b128 v[{vX+4*t}:{vX+4*t+3}], v7 offset:{L_P + t*64}")
    def qmfma(t):
        for j in range(2):
            r = vW + 8 * t + 4 * j
            c = "0" if t == 0 else f"v[{12+4*j}:{15+4*j}]"
            A(f"  v_mfma_f32_16x16x32_bf16 v[{12+4*j}:{15+4*j}], v[{r}:{r+3}], v[{vX+4*t}:{vX+4*t+3}], {c}")
    for t in range(9):
        A(f"  s_waitcnt vmcnt({16-2*t})")
        if t == 8: stamp(10)
        if t == 1: A("  s_waitcnt lgkmcnt(4)")
        for j in range(2):
            r = vW + 8 * t + 4 * j
            A(f"  ds_read_b64_tr_b16 v[{r}:{r+1}], v10 offset:{t*2048 + j*32}")
            A(f"  ds_read_b64_tr_b16 v[{r+2}:{r+3}], v10 offset:{t*2048 + 1024 + j*32}")
        if t >= 1:
            A("  s_waitcnt lgkmcnt(4)")
            qmfma(t - 1)
    A("  s_waitcnt lgkmcnt(0)")
    qmfma(8)
    A("  s_nop 7")
    C("four partial sums keep their upper 24 bits in three dwords")
    for r in range(4):
        A(f"  v_cndmask_b32 v{12+r}, v{12+r}, v{16+r}, s[56:57]")
    for r in range(3):
        A(f"  v_perm_b32 v{20+r}, v{12+r}, v15, s{50+r}")
    A("  s_mov_b32 exec_lo, 0x00ff00ff")
    A("  s_mov_b32 exec_hi, 0x00ff00ff")
    A("  buffer_store_dwordx4 v[20:23], v4, s[28:31], s45 offen sc1")
    A("  s_mov_b64 exec, -1")
    stamp(1)
    A("  s_lshr_b32 s45, s2, 2")
    A("  s_lshl_b32 s45, s45, 11")
    A(f"  s_add_u32 s45, s45, {WS_QG}")
    A("  v_lshlrev_b32 v11, 3, v0")
    A(f"  v_add_u32 v11, {L_Q}, v11")
    A("  s_mov_b32 s50, 0x0c04000c")
    A("  s_mov_b32 s51, 0x04020100")
    A("  s_mov_b32 s52, 0xffffff00")
    A("L_qpoll:")
    for j in range(2):
        A(f"  buffer_load_dwordx4 v[{24+4*j}:{27+4*j}], v2, s[28:31], s45 offen offset:{j*1024} sc1")
    A("  s_waitcnt vmcnt(0)")
    A(f"  v_cmp_eq_u32 vcc, s{sTag}, v27")
    A(f"  v_cmp_eq_u32 s[62:63], s{sTag}, v31")
    A("  s_and_b64 vcc, vcc, s[62:63]")
    A("  s_cmp_eq_u64 vcc, -1")
    spin_tail("L_qdone", "L_qpoll", 0)
    for j in range(2):
        A(f"  v_perm_b32 v{27+4*j}, v{25+4*j}, v{24+4*j}, s50")
        A(f"  v_perm_b32 v{27+4*j}, v{26+4*j}, v{27+4*j}, s51")
        for r in range(3):
            A(f"  v_and_b32 v{24+4*j+r}, s52, v{24+4*j+r}")
    for r in range(4):
        A(f"  v_add_f32 v{24+r}, v{24+r}, v{28+r}")
    A("  v_cvt_pk_bf16_f32 v24, v24, v25")
    A("  v_cvt_pk_bf16_f32 v25, v26, v27")
    A("  v_mov_b32 v22, 1")
    A("  ds_write_b64 v11, v[24:25]")
    A("  ds_write_b64 v3, v[22:23]")
    if stamps: A("  s_mov_b32 s86, s61")
    stamp(12)
    C("workgroup 0 times both 8 KiB-interleaved halves of the hand-off area and publishes which is closer;")
    C("every workgroup lays out the records and picks its reducer slot with that one bit")
    A("  s_cmp_lg_u32 s2, 0")
    A("  s_cbranch_scc1 L_pwait")
    A(f"  s_movk_i32 s44, {probe}")
    A("  s_mov_b32 s45, -1")
    A("  s_mov_b32 s47, -1")
    A("  s_memtime s[48:49]")
    A("  s_waitcnt lgkmcnt(0)")
    A("L_probe:")
    A("  s_load_dword s46, s[18:19], 0x8000 glc")
    A("  s_waitcnt lgkmcnt(0)")
    A("  s_memtime s[50:51]")
    A("  s_waitcnt lgkmcnt(0)")
    A("  s_load_dword s46, s[18:19], 0xa000 glc")
    A("  s_waitcnt lgkmcnt(0)")
    A("  s_sub_u32 s52, s50, s48")
    A("  s_memtime s[48:49]")
    A("  s_waitcnt lgkmcnt(0)")
    A("  s_sub_u32 s53, s48, s50")
    A("  s_min_u32 s45, s45, s52")
    A("  s_min_u32 s47, s47, s53")
    A("  s_sub_u32 s44, s44, 1")
    A("  s_cmp_lg_u32 s44, 0")
    A("  s_cbranch_scc1 L_probe")
    if stamps:
        A("  s_mov_b32 s70, s45")
        A("  s_mov_b32 s72, s47")
        A("  s_mov_b32 s92, 0")
    A("  s_cmp_gt_u32 s45, s47")
    A("  s_cselect_b32 s45, 0x2001, 1")
    A("  v_mov_b32 v24, s45")
    A("  v_mov_b32 v25, v23")
    A("  s_mov_b64 exec, 1")
    A(f"  buffer_store_dwordx2 v[24:25], v2, s[28:31], 0 offen offset:{WS_POL} sc1")
    A("  s_mov_b64 exec, -1")
    if early_epoch:
        C("advance the launch counter once all 256 producers have published q, hence read the counter")
        A("  v_lshlrev_b32 v4, 9, v0")
        A(f"  s_mov_b32 s45, {WS_QG}")
        A("  s_mov_b32 s61, 0x40000")
        A("L_allq:")
        for j in range(4):
            A(f"  buffer_load_dword v{28+j}, v4, s[28:31], s45 offen offset:{j*128+12} sc1")
        A("  s_waitcnt vmcnt(0)")
        A("  v_min3_u32 v32, v28, v29, v30")
        A("  v_max3_u32 v33, v28, v29, v30")
        A("  v_min_u32 v32, v32, v31")
        A("  v_max_u32 v33, v33, v31")
        A(f"  v_cmp_eq_u32 vcc, s{sTag}, v32")
        A(f"  v_cmp_eq_u32 s[62:63], s{sTag}, v33")
        A("  s_and_b64 vcc, vcc, s[62:63]")
        A("  s_cmp_eq_u64 vcc, -1")
        spin_tail("L_allq_ok", "L_allq", 16)
        A("  s_mov_b64 exec, 1")
        A("  buffer_store_dword v23, v2, s[28:31], 0 offen sc1")
        A("  s_mov_b64 exec, -1")
    A("L_pwait:")
    A("  s_mov_b32 s61, 0x100000")
    A("L_wait_st:")
    A("  ds_read_b32 v26, v3 offset:24")
    A("  s_waitcnt lgkmcnt(0)")
    A("  v_readfirstlane_b32 s45, v26")
    A("  s_cmp_lg_u32 s45, 0")
    spin_tail("L_st_go", "L_wait_st", 8)
    A("  s_mov_b32 s61, 0x40000")
    A("  v_mov_b32 v4, 0")
    A("L_ppw:")
    A(f"  buffer_load_dwordx2 v[24:25], v4, s[28:31], 0 offen offset:{WS_POL} sc1")
    A("  s_waitcnt vmcnt(0)")
    A("  v_readfirstlane_b32 s45, v25")
    A("  v_readfirstlane_b32 s49, v24")
    A(f"  s_cmp_eq_u32 s45, s{sTag}")
    spin_tail("L_pgot", "L_ppw", 16)
    A("  ds_write_b32 v3, v24 offset:20")
    A("  s_and_b32 s49, s49, 0x2000")
    stamp(15)
    C("wo piece: 64 rows x 288 B, three rows per load")
    A("  s_mov_b64 s[32:33], s[12:13]")
    A("  s_and_b32 s44, s2, 63")
    A("  s_mul_i32 s44, s44, 73728")
    A("  s_lshr_b32 s45, s2, 6")
    A("  s_mul_i32 s45, s45, 288")
    A("  s_add_u32 s44, s44, s45")
    A("  v_mul_u32_u24 v4, 57, v0")
    A("  v_lshrrev_b32 v4, 10, v4")
    A("  v_mul_u32_u24 v4, 864, v4")
    A("  v_add_u32 v6, v4, v2")
    C("reducer slot s55: twelve output columns at byte offset s55*24")
    A("  s_lshr_b32 s55, s49, 12")
    A("  s_xor_b32 s55, s55, s2")
    A("  s_lshl_b32 s47, s55, 12")
    A(f"  s_add_u32 s47, s47, {WS_YG}")
    A("  s_mov_b64 s[36:37], s[14:15]")
    A("  s_mul_i32 s56, s55, 24")
    A("  v_lshrrev_b32 v10, 5, v0")
    A("  v_bfe_u32 v11, v0, 4, 1")
    A("  v_lshl_add_u32 v10, v11, 1, v10")
    A("  v_lshlrev_b32 v10, 3, v10")
    A("  v_lshl_add_u32 v10, v8, 1, v10")
    A("  v_lshrrev_b32 v4, 3, v0")
    A("  v_lshlrev_b32 v4, 16, v4")
    A("  v_bfe_u32 v5, v0, 1, 2")
    A("  v_lshl_add_u32 v4, v5, 9, v4")
    A("  v_and_b32 v5, 1, v0")
    A("  v_lshl_add_u32 v4, v5, 7, v4")
    recbase(54, 45)
    A("  s_xor_b32 s54, s54, s49")
    A("  v_lshlrev_b32 v5, 7, v0")
    A("  s_mov_b32 s3, 4")
    A("  s_mov_b32 m0, 0")
    A("  s_mov_b32 s61, 0x100000")
    A("L_wait_end:")
    A("  ds_read_b32 v24, v3 offset:8")
    A("  s_waitcnt lgkmcnt(0)")
    A("  v_readfirstlane_b32 s45, v24")
    A("  s_cmp_lg_u32 s45, 0")
    spin_tail("L_wo_go", "L_wait_end", 2)
    stamp(13)
    C("prefetch the lines the tail reads and writes (values unused), then load the wo piece")
    A("  s_mov_b32 exec_hi, 0")
    A("  buffer_load_dword v48, v4, s[28:31], s54 offen sc1")
    A("  s_cmpk_ge_u32 s2, 192")
    A("  s_cbranch_scc1 L_notouch")
    A("  buffer_load_dword v49, v5, s[28:31], s47 offen sc1")
    A("  buffer_load_ushort v50, v10, s[36:39], s56 offen sc1")
    A("L_notouch:")
    A("  s_mov_b32 exec_hi, 0x3fffff")
    A("L_wo:")
    A("  buffer_load_dwordx4 v6, s[32:35], s44 offen nt lds")
    A("  s_addk_i32 m0, 864")
    A("  s_addk_i32 s44, 3456")
    A("  s_cmpk_lt_u32 m0, 18144")
    A("  s_cbranch_scc1 L_wo")
    A("  s_mov_b64 exec, 0x3ffff")
    A("  buffer_load_dwordx4 v6, s[32:35], s44 offen nt lds")
    A("  s_mov_b64 exec, -1")
    A("  s_mov_b32 s61, 0x40000")
    A("  s_waitcnt vmcnt(0)")
    A("  ds_write_b32 v3, v22 offset:12")
    stamp(2)
    A("  s_cmpk_ge_u32 s2, 192")
    A("  s_barrier")
    stamp(5)
    A("  s_cbranch_scc1 L_fin")
    def yload(j):
        A(f"  buffer_load_dwordx4 v[{32+4*j}:{35+4*j}], v2, s[28:31], s47 offen offset:{j*1024} sc1")
    for j in range(4): yload(j)
    A("L_ypoll:")
    A("  s_waitcnt vmcnt(0)")
    A("  s_mov_b32 s45, 0")
    for j in range(4):
        A(f"  v_cmp_ne_u32 vcc, s{sTag}, v{35+4*j}")
        A(f"  s_cbranch_vccz L_yok{j}")
        yload(j)
        A("  s_mov_b32 s45, 1")
        A(f"L_yok{j}:")
    A("  s_cmp_eq_u32 s45, 0")
    A("  s_cbranch_scc1 L_ydone")
    A("  s_sub_u32 s61, s61, 1")
    A("  s_cbranch_scc0 L_ypoll")
    A("  s_waitcnt vmcnt(0)")
    A("L_ydone:")
    A("  v_pk_add_f32 v[32:33], v[32:33], v[36:37]")
    A("  v_pk_add_f32 v[40:41], v[40:41], v[44:45]")
    A("  v_add_f32 v34, v34, v38")
    A("  v_add_f32 v42, v42, v46")
    A("  v_pk_add_f32 v[32:33], v[32:33], v[40:41]")
    A("  v_add_f32 v34, v34, v42")
    A("  v_mov_b32 v35, v34")
    A("  v_permlane32_swap_b32 v32, v33")
    A("  v_add_f32 v32, v32, v33")
    A("  v_permlane32_swap_b32 v34, v35")
    A("  v_add_f32 v34, v34, v35")
    A("  s_nop 1")
    A("  v_permlane16_swap_b32 v32, v34")
    A("  v_add_f32 v32, v32, v34")
    A("  s_nop 1")
    A(f"  v_add_f32_dpp v32, v32, v32 row_ror:8 {dpp}")
    A("  s_nop 1")
    A(f"  v_add_f32_dpp v32, v32, v32 row_ror:4 {dpp}")
    A("  s_mov_b32 exec_lo, 0x000f000f")
    A("  s_mov_b32 exec_hi, 0x0000000f")
    A("  v_cvt_pk_bf16_f32 v32, v32, v32")
    A(f"  buffer_store_short v32, v10, s[36:39], s56 offen {outflags}".rstrip())
    if not early_epoch:
        C("advance the launch counter once every workgroup has read it")
        A("  s_cmp_lg_u32 s2, 0")
        A("  s_cbranch_scc1 L_fin")
        A("  s_mov_b64 exec, 1")
        A("  buffer_store_dword v23, v2, s[28:31], 0 offen")
    A("L_fin:")
    if stamps:
        stamp(6)
        A("  s_mul_i32 s44, s2, 5")
        A("  s_add_u32 s44, s44, s3")
        A("  s_lshl_b32 s44, s44, 6")
        A(f"  s_add_u32 s44, s44, {WS_TS}")
        A("  s_mov_b32 s78, s61")
        A("  s_waitcnt lgkmcnt(0)")
        A("  s_mov_b64 exec, 1")
        for i in range(16):
            A(f"  v_mov_b32 v{64+i}, s{64+2*i}")
        A("  v_mov_b32 v3, 0")
        for j in range(4):
            A(f"  buffer_store_dwordx4 v[{64+4*j}:{67+4*j}], v3, s[28:31], s44 offen offset:{16*j}")
    A("L_end:")
    A("  s_endpgm")
    A('.section .rodata,"a"')
    A(".p2align 6")
    A(f".amdhsa_kernel {NAME}")
    A(f"  .amdhsa_next_free_vgpr {NV}")
    A("  .amdhsa_next_free_sgpr %d" % (96 if stamps else 64))
    A(f"  .amdhsa_accum_offset {(NV+3)//4*4}")
    A("  .amdhsa_group_segment_fixed_size 0")
    A("  .amdhsa_kernarg_size 64")
    A("  .amdhsa_user_sgpr_count 2")
    A("  .amdhsa_user_sgpr_kernarg_segment_ptr 1")
    A("  .amdhsa_system_sgpr_workgroup_id_x 1")
    A("  .amdhsa_float_denorm_mode_32 3")
    A(".end_amdhsa_kernel")
    return "\n".join(L) + "\n"

if __name__ == "__main__":
    import json
    cfg = json.loads(sys.argv[1]) if len(sys.argv) > 1 else {}
    sys.stdout.write(gen(**cfg))
```

```python
import math, struct, sys

def f2u(x):
    return struct.unpack('<I', struct.pack('<f', x))[0]

SCALE = math.log2(math.e) / math.sqrt(128.0)
NAME = "standalone__gqa_block_cached__decode_kernel"

HEADER = """; Kernarg layout for this problem (64 bytes, ptrs only, base s[0:1]):
;
"""

WS_POL = 256
WS_QG = 0x40000
WS_PG = 0x100000
WS_YG = 0x140000
WS_CNT = 0x300000
WS_TS = 0x1000000
WS_SIZE = 0x2000000

L_Q = 19456
L_FLAG = L_Q + 512
L_ML = L_FLAG + 32
L_O = L_Q + 640
L_P = L_O + 512
L_TOTAL = L_P + 4 * 1024

def gen(E=2, WIN0=8, hyb=27, stamps=False, pre0=2, probe=12, outflags="", psleep=0, early_epoch=True, outx=True, touch_out=False, align=False, epad=256, cut="", dbl=False, gate=3, ysleep=0, bar4=0, ydelay=0, pdelay=0, gsleep=1, wo_pub=0, wo_split=1, wo_st=0, touch=True, y2=False):
    U = 4
    D = 2 + E
    assert E >= 1 and WIN0 >= 5
    PAIRB = 2 * 1024 * 1024
    BLK = 4096
    STEP = 16 * BLK
    STATIC = hyb * STEP
    L = []
    A = L.append
    def C(text): A(f"  ; {text}")
    dpp = "row_mask:0xf bank_mask:0xf"
    vKoff, vVoff, vT = 1, 2, 3
    vQ, vM, vO = 4, 8, 12
    vm, vl, va, vb = 16, 17, 18, 19
    vS, vD, vB = 20, 24, 24
    vK = 40
    NV = max(vK + 32 * D, 132)
    aP, aML, aPr, aMLr, aRec, aPub, aO, aOf, aWo, aY, aFl, aOne = range(104, 116)
    sTag, sC = 40, 41
    sSlot = 48
    def stamp(i):
        if stamps:
            A(f"  s_memrealtime s[{64+2*i}:{65+2*i}]")
    def spin_tail(label_ok, label_loop, sleep):
        A(f"  s_cbranch_scc1 {label_ok}")
        if sleep: A(f"  s_sleep {sleep}")
        A("  s_sub_u32 s61, s61, 1")
        A(f"  s_cbranch_scc0 {label_loop}")
        A(f"{label_ok}:")
    def recbase(dst, tmp):
        A(f"  s_and_b32 s{dst}, s2, 48")
        A(f"  s_lshl_b32 s{dst}, s{dst}, 10")
        A(f"  s_and_b32 s{tmp}, s2, 12")
        A(f"  s_lshl_b32 s{tmp}, s{tmp}, 9")
        A(f"  s_add_u32 s{dst}, s{dst}, s{tmp}")
        A(f"  s_and_b32 s{tmp}, s2, 1")
        A(f"  s_lshl_b32 s{tmp}, s{tmp}, 8")
        A(f"  s_add_u32 s{dst}, s{dst}, s{tmp}")
        A(f"  s_and_b32 s{tmp}, s2, 2")
        A(f"  s_lshl_b32 s{tmp}, s{tmp}, 12")
        A(f"  s_add_u32 s{dst}, s{dst}, s{tmp}")
        A(f"  s_add_u32 s{dst}, s{dst}, {WS_PG}")
    for ln in HEADER.rstrip("\n").split("\n"): A(ln)
    A(f"; @launch grid=(256,1,1) block=(320,1,1) lds={L_TOTAL}")
    A('.amdgcn_target "amdgcn-amd-amdhsa--gfx950"')
    A(".text")
    A(f".globl {NAME}")
    if epad is not None:
        A(".p2align 9")
        if epad: A(f".fill {epad//4}, 4, 0xbf810000")
    A(".p2align 8")
    A(f".type {NAME},@function")
    A(f"{NAME}:")
    A("  s_cmpk_ge_u32 s2, 256")
    A("  s_cbranch_scc1 L_end")
    A("  s_load_dwordx16 s[4:19], s[0:1], 0")
    stamp(0)
    A("  v_lshrrev_b32 v3, 6, v0")
    A("  v_and_b32 v0, 63, v0")
    A("  v_readfirstlane_b32 s3, v3")
    C("permute the low three id bits: x -> parity(x)*4 + (x>>1)")
    A("  s_lshl_b32 s44, s2, 2")
    A("  s_lshr_b32 s44, 0x05722750, s44")
    A("  s_and_b32 s44, s44, 7")
    A("  s_xor_b32 s2, s2, s44")
    A("  v_lshrrev_b32 v9, 4, v0")
    A("  v_and_b32 v8, 3, v0")
    A("  s_cmp_lg_u32 s3, 0")
    A("  s_cbranch_scc1 L_attn")
    C("---- helper wave: issue the x and wq loads (column group (id&7)*16 + (id>>4), row half (id>>3)&1)")
    A("  s_and_b32 s45, s2, 7")
    A("  s_lshl_b32 s45, s45, 10")
    A("  s_lshr_b32 s46, s2, 4")
    A("  s_lshl_b32 s46, s46, 6")
    A("  s_add_u32 s44, s45, s46")
    A("  s_bfe_u32 s47, s2, 0x10003")
    A("  s_mul_i32 s46, s47, 2359296")
    A("  s_add_u32 s45, s44, s46")
    A("  s_add_u32 s46, s45, 32768")
    A("  s_mul_i32 s56, s47, 576")
    A("  v_lshlrev_b32 v2, 4, v0")
    A("  v_bfe_u32 v4, v0, 2, 2")
    A("  v_lshl_add_u32 v4, v9, 3, v4")
    A("  v_lshlrev_b32 v5, 4, v8")
    A("  v_lshl_add_u32 v6, v4, 13, v5")
    A("  s_mov_b32 s34, 4718592")
    A("  s_mov_b32 s35, 0x20000")
    A("  s_movk_i32 s38, 4608")
    A("  s_mov_b32 s39, s35")
    A(f"  s_movk_i32 m0, {L_P}")
    A(f"  v_mov_b32 v3, {L_FLAG}")
    A("  v_mov_b32 v12, 0")
    A("  v_mov_b32 v13, 0")
    A("  ds_write2_b64 v3, v[12:13], v[12:13] offset0:0 offset1:1")
    A("  ds_write2_b64 v3, v[12:13], v[12:13] offset0:2 offset1:3")
    A("  s_mov_b32 exec_hi, 15")
    A("  s_waitcnt lgkmcnt(0)")
    A("  s_mov_b64 s[36:37], s[4:5]")
    A("  s_mov_b64 s[32:33], s[10:11]")
    for b in range(4):
        A(f"  buffer_load_dwordx4 v2, s[36:39], s56 offen offset:{b*1152} lds")
    A("  s_mov_b32 m0, 0")
    A("  s_mov_b32 exec_hi, -1")
    A("L_wq:")
    A("  buffer_load_dwordx4 v6, s[32:35], s45 offen nt lds")
    A("  s_addk_i32 m0, 1024")
    A("  s_add_u32 s45, s45, 0x40000")
    A("  buffer_load_dwordx4 v6, s[32:35], s46 offen nt lds")
    A("  s_addk_i32 m0, 1024")
    A("  s_add_u32 s46, s46, 0x40000")
    A("  s_cmpk_lt_u32 m0, 18432")
    A("  s_cbranch_scc1 L_wq")
    A("  s_barrier")
    A("  s_branch L_help")
    C("---- attention waves")
    A("L_attn:")
    A("  s_sub_u32 s3, s3, 1")
    C("K lane offset: key (lane>>2)&3 -> rows {0,1,16,17}, 16-byte chunk (lane>>4)*4 + (lane&3)")
    A("  v_bfe_u32 v3, v0, 2, 1")
    A("  v_lshlrev_b32 v1, 8, v3")
    A("  v_bfe_u32 v3, v0, 3, 1")
    A("  v_lshl_add_u32 v1, v3, 12, v1")
    A("  v_lshl_add_u32 v1, v9, 6, v1")
    A("  v_lshl_add_u32 v1, v8, 4, v1")
    A("  s_andn2_b32 s44, s2, 3")
    A("  s_lshl_b32 s44, s44, 19")
    C("block n starts at (n>>1)*8192 + (n&1)*2048")
    A("  s_and_b32 s45, s2, 3")
    A("  s_lshl2_add_u32 s45, s45, s3")
    A("  s_and_b32 s46, s45, 1")
    A("  s_lshl_b32 s45, s45, 1")
    A("  s_sub_u32 s45, s45, s46")
    A(f"  s_lshl_b32 s{sSlot}, s45, 11")
    A(f"  s_mov_b32 s22, {PAIRB}")
    A("  s_mov_b32 s23, 0x20000")
    A("  s_waitcnt lgkmcnt(0)")
    A("  s_add_u32 s20, s6, s44")
    A("  s_addc_u32 s21, s7, 0")
    stamp(8)
    def reg(kind, d, t):
        return vK + 32 * d + (0 if kind == "K" else 16) + 4 * t
    def loads(kind, d, t):
        srd = "s[20:23]" if kind == "K" else "s[24:27]"
        off = vKoff if kind == "K" else vVoff
        r = reg(kind, d, t)
        A(f"  buffer_load_dwordx4 v[{r}:{r+3}], v{off}, {srd}, s{sSlot+d} offen offset:{t*512} nt")
    vsetup = ["  v_and_b32 v3, 31, v0", "  v_lshlrev_b32 v2, 4, v3", "  v_lshrrev_b32 v3, 5, v0", "  v_lshl_add_u32 v2, v3, 12, v2",
              "  s_add_u32 s24, s8, s44", "  s_addc_u32 s25, s9, 0", "  s_mov_b64 s[26:27], s[22:23]"]
    setup = []
    S = setup.append
    S("  s_mov_b64 s[28:29], s[18:19]")
    S(f"  s_mov_b32 s30, {WS_SIZE}")
    S("  s_mov_b32 s31, 0x20000")
    S(f"  s_mov_b32 s{sC}, {hex(f2u(SCALE))}")
    S("  s_lshr_b32 s44, s44, 13")
    S(f"  s_add_u32 s44, s44, {WS_CNT}")
    S("  s_add_u32 s46, s18, s44")
    S("  s_addc_u32 s47, s19, 0")
    S(f"  s_add_u32 s59, s{sSlot}, {D*STEP}")
    S("  s_mov_b32 s57, 1")
    S("  v_bfe_u32 v3, v0, 3, 1")
    S("  v_lshlrev_b32 v18, 8, v3")
    S("  v_lshl_add_u32 v18, v9, 6, v18")
    S("  v_lshl_add_u32 v18, v8, 4, v18")
    S(f"  v_add_u32 v18, {L_Q}, v18")
    S(f"  v_mov_b32 v19, {L_FLAG}")
    S("  v_and_b32 v3, 1, v0")
    S("  v_mov_b32 v17, 0xffff")
    S("  v_lshlrev_b32 v3, 4, v3")
    S("  v_lshlrev_b32 v17, v3, v17")
    S("  v_bfe_u32 v3, v0, 1, 2")
    for r in range(4):
        S(f"  v_cmp_eq_u32 vcc, {r}, v3")
        S(f"  v_mov_b32 v{vO+r}, 0")
        S("  s_nop 0")
        S(f"  v_cndmask_b32 v{vM+r}, 0, v17, vcc")
    S(f"  v_mov_b32 v{vm}, 0xff800000")
    S(f"  v_mov_b32 v{vl}, 0")
    n = 0
    for d in range(D):
        if d: A(f"  s_add_u32 s{sSlot+d}, s{sSlot}, {d*STEP}")
        for kind in "KV":
            for t in range(U):
                if n == 4:
                    for ln in vsetup: A(ln)
                if n == pre0: A("  s_barrier")
                if n == WIN0:
                    for ln in setup: A(ln)
                if n >= WIN0: A(f"  s_waitcnt vmcnt({WIN0-1})")
                loads(kind, d, t)
                n += 1
    stamp(9)
    A("  s_mov_b32 s61, 0x400000")
    A("L_qwait:")
    A("  ds_read_b64 v[20:21], v19")
    A(f"  ds_read_b128 v[{vQ}:{vQ+3}], v18")
    A("  s_waitcnt lgkmcnt(0)")
    A("  v_readfirstlane_b32 s44, v20")
    A(f"  v_readfirstlane_b32 s{sTag}, v21")
    A("  s_cmp_lg_u32 s44, 0")
    spin_tail("L_qgo", "L_qwait", 1)
    stamp(1)
    def body(d, ring):
        for t in range(U):
            r = reg("K", d, t)
            if ring: A(f"  s_waitcnt vmcnt({15-t})")
            A(f"  v_mfma_f32_16x16x32_bf16 v[{vD+4*t}:{vD+4*t+3}], v[{r}:{r+3}], v[{vQ}:{vQ+3}], 0")
        if ring:
            A(f"  s_cbranch_scc1 L_sk{d}")
            A(f"  s_cmp_lt_u32 s59, {STATIC}")
            A(f"  s_cbranch_scc0 L_dy{d}")
            A(f"  s_mov_b32 s{sSlot+d}, s59")
            A(f"  s_add_u32 s59, s59, {STEP}")
            A(f"  s_cmp_ge_u32 s59, {STATIC}")
            A(f"  s_cbranch_scc1 L_tf{d}")
            A(f"L_ld{d}:")
            for t in range(U): loads("K", d, t)
            A(f"L_sk{d}:")
        A("  s_nop 4")
        for j in range(4):
            for t in range(U):
                if j == 0:
                    A(f"  v_mov_b32_dpp v{vS+t}, v{vD+4*t} quad_perm:[0,0,0,0] {dpp}")
                else:
                    A(f"  v_add_f32_dpp v{vS+t}, v{vD+4*t+j}, v{vS+t} quad_perm:[{j},{j},{j},{j}] {dpp}")
        A(f"  v_max3_f32 v{va}, v{vm}, v{vS}, v{vS+1}")
        A(f"  v_max3_f32 v{va}, v{va}, v{vS+2}, v{vS+3}")
        A(f"  v_mov_b32 v{vb}, v{va}")
        A("  s_nop 1")
        A(f"  v_permlane32_swap_b32 v{va}, v{vb}")
        A(f"  v_max_f32 v{va}, v{va}, v{vb}")
        A(f"  v_mov_b32 v{vb}, v{va}")
        A("  s_nop 1")
        A(f"  v_permlane16_swap_b32 v{va}, v{vb}")
        A(f"  v_max_f32 v{va}, v{va}, v{vb}")
        A(f"  v_sub_f32 v{vb}, v{vm}, v{va}")
        A(f"  v_mul_f32 v{vb}, s{sC}, v{vb}")
        A(f"  v_exp_f32 v{vb}, v{vb}")
        A(f"  v_mov_b32 v{vm}, v{va}")
        A(f"  v_mul_f32 v{va}, s{sC}, v{va}")
        for t in range(U):
            A(f"  v_fma_f32 v{vS+t}, v{vS+t}, s{sC}, -v{va}")
        for t in range(U):
            A(f"  v_exp_f32 v{vS+t}, v{vS+t}")
        for r in range(4):
            A(f"  v_mul_f32 v{vO+r}, v{vO+r}, v{vb}")
        A(f"  v_mul_f32 v{vl}, v{vl}, v{vb}")
        for t in range(U):
            A(f"  v_cvt_pk_bf16_f32 v{vT}, v{vS+t}, v{vS+t}")
            for j in range(4):
                A(f"  v_and_b32 v{vB+4*t+j}, v{vT}, v{vM+j}")
            A(f"  v_add_f32 v{vl}, v{vl}, v{vS+t}")
        if ring:
            A(f"  s_cbranch_scc1 L_dw{d}")
            A(f"L_dr{d}:")
        for t in range(U):
            r = reg("V", d, t)
            if ring: A(f"  s_waitcnt vmcnt({15-t})")
            A(f"  v_mfma_f32_16x16x32_bf16 v[{vO}:{vO+3}], v[{r}:{r+3}], v[{vB+4*t}:{vB+4*t+3}], v[{vO}:{vO+3}]")
        if ring:
            A(f"  s_cbranch_scc1 L_sv{d}")
            for t in range(U): loads("V", d, t)
    C("main loop over two register buffers; SCC = 1 inside a body means no further block is loaded")
    C("s59: next fixed-share block, s60: ticket in flight, s48/s49: block held by each buffer")
    A("  s_cmp_eq_u32 s59, 0")
    A("L_loop:")
    for d in range(2):
        A(f"L_go{d}:")
        body(d, True)
    A("  s_cmp_lg_u32 s57, 0")
    A("  s_cbranch_scc0 L_loop")
    C("first trip only: the blocks prefetched while q was being produced")
    A("  s_mov_b32 s57, 0")
    stamp(13)
    A("  s_waitcnt vmcnt(16)")
    for e in range(E):
        body(2 + e, False)
    stamp(14)
    C("addresses for the tail, kept in the freed buffer")
    A("  v_lshrrev_b32 v116, 4, v0")
    A("  v_lshlrev_b32 v117, 4, v0")
    A(f"  v_add_u32 v{aPr}, {L_P}, v117")
    A("  s_lshl_b32 s44, s3, 10")
    A(f"  v_add_u32 v{aP}, s44, v{aPr}")
    A("  v_and_b32 v117, 8, v0")
    A(f"  v_add_u32 v{aMLr}, {L_ML}, v117")
    A("  s_lshl_b32 s44, s3, 4")
    A(f"  v_add_u32 v{aML}, s44, v{aMLr}")
    A(f"  v_lshlrev_b32 v{aPub}, 10, v117")
    A(f"  v_lshl_add_u32 v{aPub}, v116, 7, v{aPub}")
    A("  v_and_b32 v118, 7, v0")
    A(f"  v_lshl_add_u32 v{aPub}, v118, 4, v{aPub}")
    A("  s_lshl_b32 s44, s3, 7")
    A(f"  s_add_u32 s44, s44, {L_O}")
    A(f"  v_lshl_add_u32 v{aO}, v117, 3, s44")
    A(f"  v_lshl_add_u32 v{aO}, v118, 1, v{aO}")
    A("  v_lshrrev_b32 v118, 5, v0")
    A(f"  v_lshl_add_u32 v{aO}, v118, 4, v{aO}")
    A("  v_bfe_u32 v118, v0, 4, 1")
    A(f"  v_lshl_add_u32 v{aO}, v118, 5, v{aO}")
    A("  v_and_b32 v118, 15, v0")
    A(f"  v_lshlrev_b32 v{aRec}, 9, v116")
    A(f"  v_lshl_add_u32 v{aRec}, v118, 4, v{aRec}")
    A("  v_bfe_u32 v117, v0, 2, 2")
    A("  v_and_b32 v118, 3, v0")
    A(f"  v_lshl_add_u32 v{aWo}, v116, 3, v117")
    A(f"  v_mul_u32_u24 v{aWo}, 288, v{aWo}")
    A(f"  v_mad_u32_u24 v{aWo}, v118, 24, v{aWo}")
    A("  s_mul_i32 s44, s3, 96")
    A(f"  v_add_u32 v{aWo}, s44, v{aWo}")
    A(f"  v_lshlrev_b32 v{aOf}, 7, v117")
    A(f"  v_lshl_add_u32 v{aOf}, v116, 4, v{aOf}")
    A(f"  v_add_u32 v{aOf}, {L_O}, v{aOf}")
    if y2:
        A("  v_bfe_u32 v119, v0, 4, 1")
        A(f"  v_lshlrev_b32 v{aY}, 13, v119")
        A("  v_lshrrev_b32 v119, 5, v0")
        A(f"  v_lshl_add_u32 v{aY}, v119, 15, v{aY}")
        A("  v_bfe_u32 v119, v0, 3, 1")
        A(f"  v_lshl_add_u32 v{aY}, v119, 16, v{aY}")
        A("  v_and_b32 v118, 7, v0")
    elif outx:
        A(f"  v_lshlrev_b32 v{aY}, 13, v116")
        A(f"  v_lshl_add_u32 v{aY}, v117, 15, v{aY}")
    else:
        A(f"  v_mul_u32_u24 v{aY}, 196608, v116")
        A(f"  v_lshl_add_u32 v{aY}, v117, 12, v{aY}")
    A(f"  v_lshl_add_u32 v{aY}, v118, 4, v{aY}")
    A(f"  v_mov_b32 v{aFl}, {L_FLAG}")
    A(f"  v_mov_b32 v{aOne}, 1")
    if outx:
        A("  s_bfe_u32 s44, s2, 0x10006")
        A("  s_mul_i32 s58, s44, 3")
        A("  s_add_u32 s58, s58, s3")
        A("  s_lshl_b32 s58, s58, 17")
        A("  s_lshr_b32 s44, s2, 7")
        A(f"  s_lshl_b32 s44, s44, {14 if y2 else 12}")
        A("  s_add_u32 s58, s58, s44")
        A("  s_and_b32 s44, s2, 63")
        A(f"  s_lshl_b32 s44, s44, {7 if y2 else 6}")
        A("  s_add_u32 s58, s58, s44")
    else:
        A("  s_lshr_b32 s44, s2, 6")
        A("  s_mul_i32 s58, s44, 49152")
        A("  s_and_b32 s44, s2, 63")
        A("  s_lshl_b32 s44, s44, 6")
        A("  s_add_u32 s58, s58, s44")
        A("  s_lshl_b32 s44, s3, 14")
        A("  s_add_u32 s58, s58, s44")
    A(f"  s_add_u32 s58, s58, {WS_YG}")
    A("  s_and_b32 s55, s2, 0xf0")
    A("  s_lshl_b32 s55, s55, 10")
    A("  s_and_b32 s44, s2, 15")
    A("  s_lshl_b32 s44, s44, 9")
    A("  s_add_u32 s55, s55, s44")
    A(f"  s_add_u32 s55, s55, {WS_PG}")
    recbase(54, 44)
    A("  s_lshl_b32 s44, s3, 16")
    A("  s_add_u32 s54, s54, s44")
    A("  s_cmp_eq_u32 s59, 0")
    A("  s_branch L_loop")
    for d in range(2):
        A(f"L_dy{d}:")
        A("  s_waitcnt lgkmcnt(0)")
        A("  s_and_b32 s56, s60, 4096")
        A("  s_lshr_b32 s56, s56, 1")
        A(f"  s_add_u32 s{sSlot+d}, s60, {STATIC}")
        A(f"  s_sub_u32 s{sSlot+d}, s{sSlot+d}, s56")
        A(f"  s_cmp_ge_u32 s{sSlot+d}, {PAIRB}")
        A(f"  s_cbranch_scc0 L_tk{d}")
        stamp(15)
        A(f"  ds_write_b32 v{aFl}, v{aOne} offset:8")
        A(f"  s_branch L_sk{d}")
        A(f"L_tf{d}:")
        A(f"  ds_write_b32 v{aFl}, v{aOne} offset:24")
        stamp(12)
        A(f"L_tk{d}:")
        A(f"  s_movk_i32 s60, {BLK}")
        A("  s_atomic_add s60, s[46:47], 0 glc")
        A("  s_cmp_eq_u32 s59, 0")
        A(f"  s_branch L_ld{d}")
        A(f"L_sv{d}:")
        A("  s_waitcnt vmcnt(4)")
        A(f"  s_branch L_go{1-d}")
        A(f"L_dw{d}:")
        A("  s_waitcnt vmcnt(8)")
        A(f"  s_cmp_lt_u32 s{sSlot+1-d}, {PAIRB}")
        A(f"  s_cbranch_scc1 L_dr{d}")
        C("last block of this wave")
        A(f"  v_mov_b32 v{vb}, v{vl}")
        A("  s_mov_b32 s61, 0x1000000")
        A("  s_nop 0")
        A(f"  v_permlane32_swap_b32 v{vl}, v{vb}")
        A(f"  v_add_f32 v{vl}, v{vl}, v{vb}")
        A(f"  v_mov_b32 v{vb}, v{vl}")
        A("  s_nop 1")
        A(f"  v_permlane16_swap_b32 v{vl}, v{vb}")
        A(f"  v_add_f32 v{vl}, v{vl}, v{vb}")
        A(f"  ds_write_b64 v{aML}, v[{vm}:{vl}]")
        A(f"L_sel{d}:")
        A(f"  ds_read_b32 v3, v{aFl} offset:20")
        A("  s_waitcnt lgkmcnt(0)")
        A("  v_readfirstlane_b32 s44, v3")
        A("  s_cmp_lg_u32 s44, 0")
        spin_tail(f"L_selok{d}", f"L_sel{d}", 0)
        A("  s_and_b32 s44, s44, 0x2000")
        A("  s_xor_b32 s54, s54, s44")
        A(f"  v_xor_b32 v{aPub}, s44, v{aPub}")
        for t in range(U):
            r = reg("V", d, t)
            A(f"  s_waitcnt vmcnt({3-t})")
            A(f"  v_mfma_f32_16x16x32_bf16 v[{vO}:{vO+3}], v[{r}:{r+3}], v[{vB+4*t}:{vB+4*t+3}], v[{vO}:{vO+3}]")
        if d == 0 or align: A("  s_branch L_done")
        else: A("  s_nop 0")
    def frags():
        for ks in range(2):
            for tl in range(3):
                r = 44 + 12 * ks + 4 * tl
                A(f"  ds_read_b64_tr_b16 v[{r}:{r+1}], v{aWo} offset:{tl*8 + ks*9216}")
                A(f"  ds_read_b64_tr_b16 v[{r+2}:{r+3}], v{aWo} offset:{tl*8 + ks*9216 + 1152}")
    if align:
        A(".p2align 9")
        A("L_latewo:")
        frags()
        A("  s_waitcnt lgkmcnt(0)")
        A("  s_branch L_havewo2")
    A("L_done:")
    stamp(2)
    C("the last wave to arrive merges the four partial results and publishes the record")
    A("  s_nop 6")
    A(f"  ds_write_b128 v{aP}, v[{vO}:{vO+3}]")
    A("  s_mov_b64 exec, 1")
    A(f"  ds_add_rtn_u32 v3, v{aFl}, v{aOne} offset:16")
    A("  s_mov_b64 exec, -1")
    for w in range(4):
        A(f"  ds_read_b64 v[{40+2*w}:{41+2*w}], v{aMLr} offset:{w*16}")
    for w in range(4):
        A(f"  ds_read_b128 v[{24+4*w}:{27+4*w}], v{aPr} offset:{w*1024}")
    A(f"  v_mov_b32 v23, s{sTag}")
    A("  s_mov_b32 s61, 0x40000")
    A("  s_waitcnt lgkmcnt(4)")
    A("  v_readfirstlane_b32 s44, v3")
    A("  v_max3_f32 v20, v40, v42, v44")
    A("  v_max_f32 v20, v20, v46")
    A(f"  v_mul_f32 v20, s{sC}, v20")
    A("  s_cmp_eq_u32 s44, 3")
    A("  s_cbranch_scc0 L_gather")
    for w in range(4): A(f"  v_fma_f32 v{40+2*w}, v{40+2*w}, s{sC}, -v20")
    for w in range(4): A(f"  v_exp_f32 v{40+2*w}, v{40+2*w}")
    A("  s_nop 0")
    A("  v_mul_f32 v22, v40, v41")
    for w in range(1, 4): A(f"  v_fmac_f32 v22, v{40+2*w}, v{41+2*w}")
    A("  s_waitcnt lgkmcnt(0)")
    A("  v_pk_mul_f32 v[24:25], v[24:25], v[40:41] op_sel_hi:[1,0]")
    A("  v_pk_mul_f32 v[26:27], v[26:27], v[40:41] op_sel_hi:[1,0]")
    A("  v_rcp_f32 v48, v22")
    A("  v_log_f32 v22, v22")
    for w in range(1, 4):
        for h in range(2):
            A(f"  v_pk_fma_f32 v[{24+2*h}:{25+2*h}], v[{24+4*w+2*h}:{25+4*w+2*h}], v[{40+2*w}:{41+2*w}], v[{24+2*h}:{25+2*h}] op_sel_hi:[1,0,1]")
    A("  v_add_f32 v22, v22, v20")
    A("  v_pk_mul_f32 v[24:25], v[24:25], v[48:49] op_sel_hi:[1,0]")
    A("  v_pk_mul_f32 v[26:27], v[26:27], v[48:49] op_sel_hi:[1,0]")
    A("  v_cvt_pk_bf16_f32 v20, v24, v25")
    A("  v_cvt_pk_bf16_f32 v21, v26, v27")
    if "r" not in cut: A(f"  buffer_store_dwordx4 v[20:23], v{aPub}, s[28:31], s55 offen sc1")
    stamp(3)
    if align:
        A("  s_branch L_gather")
        A(".p2align 9")
    C("wave w gathers 64 columns of o for batch w from the four records of that pair")
    if wo_pub == 5: A(f"  ds_write_b32 v{aFl}, v{aOne} offset:28")
    if gate == 3: A("  s_waitcnt vmcnt(0)")
    if gate >= 2:
        A("  s_mov_b64 exec, 1")
        A(f"  ds_add_u32 v{aFl}, v{aOne} offset:16")
        A("  s_mov_b64 exec, -1")
    A("L_gather:")
    if gate:
        A(f"  ds_read_b32 v3, v{aFl} offset:16")
        A("  s_waitcnt lgkmcnt(0)")
        A("  v_readfirstlane_b32 s44, v3")
        A(f"  s_cmp_ge_u32 s44, {3+min(gate,2)}")
        spin_tail("L_gate_ok", "L_gather", gsleep)
        if pdelay: A(f"  s_sleep {pdelay}")
        A("  s_mov_b32 s61, 0x40000")
    else:
        A("  s_waitcnt lgkmcnt(0)")
    if dbl:
        A(f"  buffer_load_dwordx4 v[68:71], v{aRec}, s[28:31], s54 offen sc1")
        A(f"  ds_read_b32 v3, v{aFl} offset:12")
        frags()
        A("  s_waitcnt lgkmcnt(0)")
        A("  v_readfirstlane_b32 s57, v3")
        A("L_ppoll:")
        for a, b in ((68, 72), (72, 68)):
            A(f"  buffer_load_dwordx4 v[{b}:{b+3}], v{aRec}, s[28:31], s54 offen sc1")
            A("  s_waitcnt vmcnt(1)")
            A(f"  v_cmp_eq_u32 vcc, s{sTag}, v{a+3}")
            A(f"  v_mov_b32 v28, v{a+2}")
            A(f"  v_mov_b32 v29, v{a+2}")
            A(f"  v_mov_b32 v26, v{a+2}")
            A("  s_cmp_eq_u64 vcc, -1")
            A(f"  v_lshlrev_b32 v32, 16, v{a}")
            A(f"  v_and_b32 v33, 0xffff0000, v{a}")
            A(f"  v_lshlrev_b32 v34, 16, v{a+1}")
            A(f"  v_and_b32 v35, 0xffff0000, v{a+1}")
            A("  s_cbranch_scc1 L_pdone")
        A("  s_cmp_lg_u32 s57, 0")
        A("  s_cbranch_scc1 L_havewo")
        A(f"  ds_read_b32 v3, v{aFl} offset:12")
        frags()
        A("  s_waitcnt lgkmcnt(0)")
        A("  v_readfirstlane_b32 s57, v3")
        A("L_havewo:")
        A("  s_sub_u32 s61, s61, 1")
        A("  s_cbranch_scc0 L_ppoll")
        A("L_pdone:")
        stamp(10)
        A("  v_permlane32_swap_b32 v28, v29")
        A("  v_max_f32 v28, v28, v29")
        A("  v_mov_b32 v29, v28")
        A("  s_nop 1")
        A("  v_permlane16_swap_b32 v28, v29")
        A("  v_max_f32 v28, v28, v29")
        A("  v_sub_f32 v28, v26, v28")
        A("  v_exp_f32 v28, v28")
        A("  s_nop 0")
    else:
        if "p" in cut: A("  s_branch L_pdone")
        A("L_ppoll:")
        A(f"  buffer_load_dwordx4 v[24:27], v{aRec}, s[28:31], s54 offen sc1")
        A("  s_cmp_lg_u32 s57, 0")
        A("  s_cbranch_scc1 L_havewo")
        A(f"  ds_read_b32 v3, v{aFl} offset:12")
        frags()
        A("  s_waitcnt lgkmcnt(0)")
        A("  v_readfirstlane_b32 s57, v3")
        A("L_havewo:")
        A("  s_waitcnt vmcnt(0)")
        A(f"  v_cmp_eq_u32 vcc, s{sTag}, v27")
        A("  v_mov_b32 v28, v26")
        A("  v_mov_b32 v29, v26")
        A("  s_cmp_eq_u64 vcc, -1")
        spin_tail("L_pdone", "L_ppoll", psleep)
        if stamps: A("  s_mov_b32 s86, s61")
        stamp(10)
        A("  v_permlane32_swap_b32 v28, v29")
        A("  v_max_f32 v28, v28, v29")
        A("  v_mov_b32 v29, v28")
        A("  v_lshlrev_b32 v32, 16, v24")
        A("  v_and_b32 v33, 0xffff0000, v24")
        A("  v_permlane16_swap_b32 v28, v29")
        A("  v_max_f32 v28, v28, v29")
        A("  v_sub_f32 v28, v26, v28")
        A("  v_exp_f32 v28, v28")
        A("  v_lshlrev_b32 v34, 16, v25")
        A("  v_and_b32 v35, 0xffff0000, v25")
    A("  v_mov_b32 v29, v28")
    A("  v_pk_mul_f32 v[32:33], v[32:33], v[28:29] op_sel_hi:[1,0]")
    A("  v_pk_mul_f32 v[34:35], v[34:35], v[28:29] op_sel_hi:[1,0]")
    A("  v_permlane32_swap_b32 v28, v29")
    A("  v_permlane32_swap_b32 v32, v33")
    A("  v_permlane32_swap_b32 v34, v35")
    A("  v_add_f32 v28, v28, v29")
    A("  v_mov_b32 v29, v28")
    A("  v_add_f32 v32, v32, v33")
    A("  v_add_f32 v34, v34, v35")
    A("  v_permlane16_swap_b32 v28, v29")
    A("  v_add_f32 v28, v28, v29")
    A("  v_permlane16_swap_b32 v32, v34")
    A("  v_rcp_f32 v28, v28")
    A("  v_add_f32 v32, v32, v34")
    A("  v_mul_f32 v32, v32, v28")
    A("  v_cvt_pk_bf16_f32 v32, v32, v32")
    A(f"  ds_write_b16 v{aO}, v32")
    A("  s_cmp_eq_u32 s3, 3")
    A("  s_waitcnt lgkmcnt(0)")
    A("  s_barrier")
    stamp(4)
    A("  s_cbranch_scc1 L_fin5")
    C("waves 0-2: 48 columns of o@wo each, all four batches")
    A(f"  ds_read_b128 v[36:39], v{aOf}")
    A(f"  ds_read_b128 v[40:43], v{aOf} offset:64")
    A("  s_cmp_lg_u32 s57, 0")
    if align:
        A("  s_cbranch_scc0 L_latewo")
    else:
        A("  s_cbranch_scc1 L_havewo2")
        frags()
        A("  s_waitcnt lgkmcnt(0)")
    A("L_havewo2:")
    A("  s_waitcnt lgkmcnt(1)")
    for tl in (2, 1, 0):
        A(f"  v_mfma_f32_16x16x32_bf16 v[{24+4*tl}:{27+4*tl}], v[36:39], v[{44+4*tl}:{47+4*tl}], 0")
    A("  s_waitcnt lgkmcnt(0)")
    for tl in (2, 1, 0):
        A(f"  v_mfma_f32_16x16x32_bf16 v[{24+4*tl}:{27+4*tl}], v[40:43], v[{56+4*tl}:{59+4*tl}], v[{24+4*tl}:{27+4*tl}]")
    A("  s_nop 5")
    A("  v_mov_b32 v22, v32")
    A("  v_mov_b32 v21, v28")
    A("  v_mov_b32 v20, v24")
    if "s" not in cut: A(f"  buffer_store_dwordx4 v[20:23], v{aY}, s[28:31], s58 offen sc1")
    if bar4 == 2: A("  s_waitcnt vmcnt(0)")
    if bar4: A("  s_barrier")
    A("L_fin5:")
    stamp(5)
    if stamps: A("  s_branch L_fin")
    else: A("  s_endpgm")
    C("---- helper wave, continued")
    A("L_help:")
    A("  s_load_dword s60, s[18:19], 0")
    stamp(9)
    A("  s_mov_b64 s[28:29], s[18:19]")
    A(f"  s_mov_b32 s30, {WS_SIZE}")
    A("  s_mov_b32 s31, 0x20000")
    C("one producer of each pair's q clears that pair's ticket counter before it publishes")
    A("  s_and_b32 s53, s2, 0x78")
    A("  s_cmp_lg_u32 s53, 0")
    A("  s_cbranch_scc1 L_nozero")
    A("  v_lshlrev_b32 v5, 12, v0")
    A("  s_lshr_b32 s53, s44, 1")
    A(f"  s_add_u32 s53, s53, {WS_CNT}")
    A("  s_mov_b64 exec, 15")
    A("  buffer_store_dword v12, v5, s[28:31], s53 offen sc1")
    A("  s_mov_b64 exec, -1")
    A("L_nozero:")
    A("  s_mov_b32 s61, 0x40000")
    A("  v_mul_u32_u24 v7, 1152, v8")
    A("  v_lshl_add_u32 v7, v9, 4, v7")
    A("  v_lshrrev_b32 v10, 2, v0")
    A("  v_lshlrev_b32 v10, 6, v10")
    A("  v_lshl_add_u32 v10, v8, 3, v10")
    C("q granule address: (b*16 + hkv)*2048 + half*1024 + ((group&7)*8 + tile*4 + (lane>>4))*16")
    A("  v_lshlrev_b32 v4, 15, v8")
    A("  v_lshl_add_u32 v4, v9, 4, v4")
    A("  v_bfe_u32 v5, v0, 2, 1")
    A("  v_lshl_add_u32 v4, v5, 6, v4")
    A("  s_lshr_b32 s45, s44, 9")
    A("  s_lshl_b32 s45, s45, 11")
    A("  s_lshl_b32 s46, s47, 10")
    A("  s_add_u32 s45, s45, s46")
    A("  s_and_b32 s46, s44, 0x1c0")
    A("  s_lshl_b32 s46, s46, 1")
    A("  s_add_u32 s45, s45, s46")
    A(f"  s_add_u32 s45, s45, {WS_QG}")
    A("  s_mov_b32 s56, 0xf0f0f0f0")
    A("  s_mov_b32 s57, 0xf0f0f0f0")
    A("  s_mov_b32 s50, 0x07060501")
    A("  s_mov_b32 s51, 0x07060502")
    A("  s_mov_b32 s52, 0x07060503")
    A("  s_waitcnt lgkmcnt(0)")
    A(f"  s_mul_i32 s{sTag}, s60, 0x9e3779b1")
    A(f"  s_add_u32 s{sTag}, s{sTag}, 0x7f4a7c15")
    A(f"  v_mov_b32 v23, s{sTag}")
    vX = 24; vW = 60
    A("  s_waitcnt vmcnt(18)")
    for t in range(9):
        A(f"  ds_read_b128 v[{vX+4*t}:{vX+4*t+3}], v7 offset:{L_P + t*64}")
    def qmfma(t):
        for j in range(2):
            r = vW + 8 * t + 4 * j
            c = "0" if t == 0 else f"v[{12+4*j}:{15+4*j}]"
            A(f"  v_mfma_f32_16x16x32_bf16 v[{12+4*j}:{15+4*j}], v[{r}:{r+3}], v[{vX+4*t}:{vX+4*t+3}], {c}")
    for t in range(9):
        A(f"  s_waitcnt vmcnt({16-2*t})")
        if t == 8: stamp(10)
        if t == 1: A("  s_waitcnt lgkmcnt(4)")
        for j in range(2):
            r = vW + 8 * t + 4 * j
            A(f"  ds_read_b64_tr_b16 v[{r}:{r+1}], v10 offset:{t*2048 + j*32}")
            A(f"  ds_read_b64_tr_b16 v[{r+2}:{r+3}], v10 offset:{t*2048 + 1024 + j*32}")
        if t >= 1:
            A("  s_waitcnt lgkmcnt(4)")
            qmfma(t - 1)
    A("  s_waitcnt lgkmcnt(0)")
    qmfma(8)
    A("  s_nop 7")
    C("four partial sums keep their upper 24 bits in three dwords")
    for r in range(4):
        A(f"  v_cndmask_b32 v{12+r}, v{12+r}, v{16+r}, s[56:57]")
    for r in range(3):
        A(f"  v_perm_b32 v{20+r}, v{12+r}, v15, s{50+r}")
    A("  s_mov_b32 exec_lo, 0x00ff00ff")
    A("  s_mov_b32 exec_hi, 0x00ff00ff")
    A("  buffer_store_dwordx4 v[20:23], v4, s[28:31], s45 offen sc1")
    A("  s_mov_b64 exec, -1")
    stamp(1)
    A("  s_lshr_b32 s45, s2, 2")
    A("  s_lshl_b32 s45, s45, 11")
    A(f"  s_add_u32 s45, s45, {WS_QG}")
    A("  v_lshlrev_b32 v11, 3, v0")
    A(f"  v_add_u32 v11, {L_Q}, v11")
    A("  s_mov_b32 s50, 0x0c04000c")
    A("  s_mov_b32 s51, 0x04020100")
    A("  s_mov_b32 s52, 0xffffff00")
    A("L_qpoll:")
    for j in range(2):
        A(f"  buffer_load_dwordx4 v[{24+4*j}:{27+4*j}], v2, s[28:31], s45 offen offset:{j*1024} sc1")
    A("  s_waitcnt vmcnt(0)")
    A(f"  v_cmp_eq_u32 vcc, s{sTag}, v27")
    A(f"  v_cmp_eq_u32 s[62:63], s{sTag}, v31")
    A("  s_and_b64 vcc, vcc, s[62:63]")
    A("  s_cmp_eq_u64 vcc, -1")
    spin_tail("L_qdone", "L_qpoll", 0)
    for j in range(2):
        A(f"  v_perm_b32 v{27+4*j}, v{25+4*j}, v{24+4*j}, s50")
        A(f"  v_perm_b32 v{27+4*j}, v{26+4*j}, v{27+4*j}, s51")
        for r in range(3):
            A(f"  v_and_b32 v{24+4*j+r}, s52, v{24+4*j+r}")
    for r in range(4):
        A(f"  v_add_f32 v{24+r}, v{24+r}, v{28+r}")
    A("  v_cvt_pk_bf16_f32 v24, v24, v25")
    A("  v_cvt_pk_bf16_f32 v25, v26, v27")
    A("  v_mov_b32 v22, 1")
    A("  ds_write_b64 v11, v[24:25]")
    A("  ds_write_b64 v3, v[22:23]")
    if stamps: A("  s_mov_b32 s86, s61")
    stamp(12)
    C("workgroup 0 times both 8 KiB-interleaved halves of the hand-off area and publishes which is closer;")
    C("every workgroup lays out the records and picks its reducer slot with that one bit")
    A("  s_cmp_lg_u32 s2, 0")
    A("  s_cbranch_scc1 L_pwait")
    A(f"  s_movk_i32 s44, {probe}")
    A("  s_mov_b32 s45, -1")
    A("  s_mov_b32 s47, -1")
    A("  s_memtime s[48:49]")
    A("  s_waitcnt lgkmcnt(0)")
    A("L_probe:")
    A("  s_load_dword s46, s[18:19], 0x8000 glc")
    A("  s_waitcnt lgkmcnt(0)")
    A("  s_memtime s[50:51]")
    A("  s_waitcnt lgkmcnt(0)")
    A("  s_load_dword s46, s[18:19], 0xa000 glc")
    A("  s_waitcnt lgkmcnt(0)")
    A("  s_sub_u32 s52, s50, s48")
    A("  s_memtime s[48:49]")
    A("  s_waitcnt lgkmcnt(0)")
    A("  s_sub_u32 s53, s48, s50")
    A("  s_min_u32 s45, s45, s52")
    A("  s_min_u32 s47, s47, s53")
    A("  s_sub_u32 s44, s44, 1")
    A("  s_cmp_lg_u32 s44, 0")
    A("  s_cbranch_scc1 L_probe")
    if stamps:
        A("  s_mov_b32 s70, s45")
        A("  s_mov_b32 s72, s47")
        A("  s_mov_b32 s92, 0")
    A("  s_cmp_gt_u32 s45, s47")
    A("  s_cselect_b32 s45, 0x2001, 1")
    A("  v_mov_b32 v24, s45")
    A("  v_mov_b32 v25, v23")
    A("  s_mov_b64 exec, 1")
    A(f"  buffer_store_dwordx2 v[24:25], v2, s[28:31], 0 offen offset:{WS_POL} sc1")
    A("  s_mov_b64 exec, -1")
    if early_epoch:
        C("advance the launch counter once all 256 producers have published q, hence read the counter")
        A("  v_lshlrev_b32 v4, 9, v0")
        A(f"  s_mov_b32 s45, {WS_QG}")
        A("  s_mov_b32 s61, 0x40000")
        A("L_allq:")
        for j in range(4):
            A(f"  buffer_load_dword v{28+j}, v4, s[28:31], s45 offen offset:{j*128+12} sc1")
        A("  s_waitcnt vmcnt(0)")
        A("  v_min3_u32 v32, v28, v29, v30")
        A("  v_max3_u32 v33, v28, v29, v30")
        A("  v_min_u32 v32, v32, v31")
        A("  v_max_u32 v33, v33, v31")
        A(f"  v_cmp_eq_u32 vcc, s{sTag}, v32")
        A(f"  v_cmp_eq_u32 s[62:63], s{sTag}, v33")
        A("  s_and_b64 vcc, vcc, s[62:63]")
        A("  s_cmp_eq_u64 vcc, -1")
        spin_tail("L_allq_ok", "L_allq", 16)
        A("  s_mov_b64 exec, 1")
        A("  buffer_store_dword v23, v2, s[28:31], 0 offen sc1")
        A("  s_mov_b64 exec, -1")
    A("L_pwait:")
    A("  s_mov_b32 s61, 0x100000")
    A("L_wait_st:")
    A("  ds_read_b32 v26, v3 offset:24")
    A("  s_waitcnt lgkmcnt(0)")
    A("  v_readfirstlane_b32 s45, v26")
    A("  s_cmp_lg_u32 s45, 0")
    spin_tail("L_st_go", "L_wait_st", 8)
    A("  s_mov_b32 s61, 0x40000")
    A("  v_mov_b32 v4, 0")
    A("L_ppw:")
    A(f"  buffer_load_dwordx2 v[24:25], v4, s[28:31], 0 offen offset:{WS_POL} sc1")
    A("  s_waitcnt vmcnt(0)")
    A("  v_readfirstlane_b32 s45, v25")
    A("  v_readfirstlane_b32 s49, v24")
    A(f"  s_cmp_eq_u32 s45, s{sTag}")
    spin_tail("L_pgot", "L_ppw", 16)
    A("  ds_write_b32 v3, v24 offset:20")
    A("  s_and_b32 s49, s49, 0x2000")
    stamp(15)
    C("wo piece: 64 rows x 288 B, three rows per load")
    A("  s_mov_b64 s[32:33], s[12:13]")
    A("  s_and_b32 s44, s2, 63")
    A("  s_mul_i32 s44, s44, 73728")
    A("  s_lshr_b32 s45, s2, 6")
    A("  s_mul_i32 s45, s45, 288")
    A("  s_add_u32 s44, s44, s45")
    A("  v_mul_u32_u24 v4, 57, v0")
    A("  v_lshrrev_b32 v4, 10, v4")
    A("  v_mul_u32_u24 v4, 864, v4")
    A("  v_add_u32 v6, v4, v2")
    C("reducer slot s55: twelve output columns at byte offset ((s55&7)*24 + (s55>>3))*24")
    A("  s_lshr_b32 s55, s49, 12")
    A("  s_xor_b32 s55, s55, s2")
    if y2:
        A("  s_lshr_b32 s47, s55, 4")
        A("  s_lshl_b32 s47, s47, 16")
        A("  s_and_b32 s45, s55, 4")
        A("  s_lshl_b32 s45, s45, 13")
        A("  s_add_u32 s47, s47, s45")
        A("  s_and_b32 s45, s55, 1")
        A("  s_lshl_b32 s45, s45, 14")
        A("  s_add_u32 s47, s47, s45")
        A("  s_and_b32 s45, s55, 2")
        A("  s_lshl_b32 s45, s45, 12")
        A("  s_add_u32 s47, s47, s45")
        A("  s_and_b32 s45, s55, 8")
        A("  s_lshl_b32 s46, s45, 9")
        A("  s_lshl_b32 s45, s45, 3")
        A(f"  s_add_u32 s47, s47, {WS_YG}")
        A("  s_add_u32 s46, s46, s47")
        A("  s_add_u32 s47, s47, s45")
        A("  v_lshrrev_b32 v1, 2, v0")
        A("  v_lshlrev_b32 v1, 7, v1")
        A("  v_lshl_add_u32 v1, v8, 4, v1")
        A("  v_add_u32 v7, 4096, v1")
    else:
        A("  s_lshl_b32 s47, s55, 12")
        A(f"  s_add_u32 s47, s47, {WS_YG}")
        A("  s_mov_b32 s46, s47")
    A("  s_mov_b64 s[36:37], s[14:15]")
    if outx:
        A("  s_and_b32 s56, s55, 7")
        A("  s_mul_i32 s56, s56, 24")
        A("  s_lshr_b32 s45, s55, 3")
        A("  s_add_u32 s56, s56, s45")
        A("  s_mul_i32 s56, s56, 24")
    else:
        A("  s_mul_i32 s56, s55, 24")
    A("  v_lshrrev_b32 v10, 5, v0")
    A("  v_bfe_u32 v11, v0, 4, 1")
    A("  v_lshl_add_u32 v10, v11, 1, v10")
    A("  v_lshlrev_b32 v10, 3, v10")
    A("  v_lshl_add_u32 v10, v8, 1, v10")
    A("  v_lshrrev_b32 v4, 3, v0")
    A("  v_lshlrev_b32 v4, 16, v4")
    A("  v_bfe_u32 v5, v0, 1, 2")
    A("  v_lshl_add_u32 v4, v5, 9, v4")
    A("  v_and_b32 v5, 1, v0")
    A("  v_lshl_add_u32 v4, v5, 7, v4")
    recbase(54, 45)
    A("  s_xor_b32 s54, s54, s49")
    A("  v_lshlrev_b32 v5, 7, v0")
    A("  s_mov_b32 s3, 4")
    A("  s_mov_b32 m0, 0")
    A("  s_mov_b32 s61, 0x100000")
    def wait_touch():
        if align:
            A("  s_branch L_wait_end")
            A(".p2align 9")
        A("L_wait_end:")
        A("  ds_read_b32 v24, v3 offset:8")
        A("  s_waitcnt lgkmcnt(0)")
        A("  v_readfirstlane_b32 s45, v24")
        A("  s_cmp_lg_u32 s45, 0")
        spin_tail("L_wo_go", "L_wait_end", 2)
        stamp(13)
        C("prefetch the lines the tail reads and writes (values unused), then load the wo piece")
        A("  s_mov_b32 exec_hi, 0")
        if touch: A("  buffer_load_dword v48, v4, s[28:31], s54 offen sc1")
        A("  s_cmpk_ge_u32 s2, 192")
        A("  s_cbranch_scc1 L_notouch")
        if touch: A("  buffer_load_dword v49, v5, s[28:31], s46 offen sc1")
        if touch_out: A("  buffer_load_ushort v50, v10, s[36:39], s56 offen sc1")
        A("L_notouch:")
    def wo_load():
        A("  s_mov_b32 exec_hi, 0x3fffff")
        if wo_pub:
            A("L_wo1:")
            A("  buffer_load_dwordx4 v6, s[32:35], s44 offen nt lds")
            A("  s_addk_i32 m0, 864")
            A("  s_addk_i32 s44, 3456")
            A(f"  s_cmpk_lt_u32 m0, {864*wo_split}")
            A("  s_cbranch_scc1 L_wo1")
            A("  s_mov_b32 s61, 0x1000000")
            A("L_wait_done:")
            A(f"  ds_read_b32 v24, v3 offset:{28 if wo_pub == 5 else 16}")
            A("  s_waitcnt lgkmcnt(0)")
            A("  v_readfirstlane_b32 s45, v24")
            A(f"  s_cmp_ge_u32 s45, {1 if wo_pub == 5 else wo_pub}")
            spin_tail("L_wo_go2", "L_wait_done", 0)
        A("L_wo:")
        A("  buffer_load_dwordx4 v6, s[32:35], s44 offen nt lds")
        A("  s_addk_i32 m0, 864")
        A("  s_addk_i32 s44, 3456")
        A("  s_cmpk_lt_u32 m0, 18144")
        A("  s_cbranch_scc1 L_wo")
        A("  s_mov_b64 exec, 0x3ffff")
        A("  buffer_load_dwordx4 v6, s[32:35], s44 offen nt lds")
        A("  s_mov_b64 exec, -1")
        A("  s_mov_b32 s61, 0x40000")
        A("  s_waitcnt vmcnt(0)")
        A("  ds_write_b32 v3, v22 offset:12")
    if wo_st:
        wo_load()
        A("  s_mov_b32 s61, 0x100000")
        wait_touch()
        A("  s_mov_b64 exec, -1")
        A("  s_mov_b32 s61, 0x40000")
    else:
        wait_touch()
        wo_load()
    stamp(2)
    A("  s_cmpk_ge_u32 s2, 192")
    A("  s_barrier")
    stamp(5)
    A("  s_cbranch_scc1 L_fin")
    def yload(j):
        if y2: A(f"  buffer_load_dwordx4 v[{32+4*j}:{35+4*j}], v{7 if j >= 2 else 1}, s[28:31], s47 offen offset:{(j&1)*2048} sc1")
        else: A(f"  buffer_load_dwordx4 v[{32+4*j}:{35+4*j}], v2, s[28:31], s47 offen offset:{j*1024} sc1")
    if bar4: A("  s_barrier")
    if ydelay: A(f"  s_sleep {ydelay}")
    if "y" in cut: A("  s_branch L_ydone")
    for j in range(4): yload(j)
    A("L_ypoll:")
    A("  s_waitcnt vmcnt(0)")
    A("  s_mov_b32 s45, 0")
    for j in range(4):
        A(f"  v_cmp_ne_u32 vcc, s{sTag}, v{35+4*j}")
        A(f"  s_cbranch_vccz L_yok{j}")
        yload(j)
        A("  s_mov_b32 s45, 1")
        A(f"L_yok{j}:")
    A("  s_cmp_eq_u32 s45, 0")
    A("  s_cbranch_scc1 L_ydone")
    if ysleep: A(f"  s_sleep {ysleep}")
    A("  s_sub_u32 s61, s61, 1")
    A("  s_cbranch_scc0 L_ypoll")
    A("  s_waitcnt vmcnt(0)")
    A("L_ydone:")
    A("  v_pk_add_f32 v[32:33], v[32:33], v[36:37]")
    A("  v_pk_add_f32 v[40:41], v[40:41], v[44:45]")
    A("  v_add_f32 v34, v34, v38")
    A("  v_add_f32 v42, v42, v46")
    A("  v_pk_add_f32 v[32:33], v[32:33], v[40:41]")
    A("  v_add_f32 v34, v34, v42")
    A("  v_mov_b32 v35, v34")
    A("  v_permlane32_swap_b32 v32, v33")
    A("  v_add_f32 v32, v32, v33")
    A("  v_permlane32_swap_b32 v34, v35")
    A("  v_add_f32 v34, v34, v35")
    A("  s_nop 1")
    A("  v_permlane16_swap_b32 v32, v34")
    A("  v_add_f32 v32, v32, v34")
    A("  s_nop 1")
    A(f"  v_add_f32_dpp v32, v32, v32 row_ror:8 {dpp}")
    A("  s_nop 1")
    A(f"  v_add_f32_dpp v32, v32, v32 row_ror:4 {dpp}")
    A("  s_mov_b32 exec_lo, 0x000f000f")
    A("  s_mov_b32 exec_hi, 0x0000000f")
    A("  v_cvt_pk_bf16_f32 v32, v32, v32")
    if "o" not in cut: A(f"  buffer_store_short v32, v10, s[36:39], s56 offen {outflags}".rstrip())
    if not early_epoch:
        C("advance the launch counter once every workgroup has read it")
        A("  s_cmp_lg_u32 s2, 0")
        A("  s_cbranch_scc1 L_fin")
        A("  s_mov_b64 exec, 1")
        A("  buffer_store_dword v23, v2, s[28:31], 0 offen")
    A("L_fin:")
    if stamps:
        stamp(6)
        A("  s_mul_i32 s44, s2, 5")
        A("  s_add_u32 s44, s44, s3")
        A("  s_lshl_b32 s44, s44, 6")
        A(f"  s_add_u32 s44, s44, {WS_TS}")
        A("  s_mov_b32 s78, s61")
        A("  s_waitcnt lgkmcnt(0)")
        A("  s_mov_b64 exec, 1")
        for i in range(16):
            A(f"  v_mov_b32 v{64+i}, s{64+2*i}")
        A("  v_mov_b32 v3, 0")
        for j in range(4):
            A(f"  buffer_store_dwordx4 v[{64+4*j}:{67+4*j}], v3, s[28:31], s44 offen offset:{16*j}")
    A("L_end:")
    A("  s_endpgm")
    A('.section .rodata,"a"')
    A(".p2align 6")
    A(f".amdhsa_kernel {NAME}")
    A(f"  .amdhsa_next_free_vgpr {NV}")
    A("  .amdhsa_next_free_sgpr %d" % (96 if stamps else 64))
    A(f"  .amdhsa_accum_offset {(NV+3)//4*4}")
    A("  .amdhsa_group_segment_fixed_size 0")
    A("  .amdhsa_kernarg_size 64")
    A("  .amdhsa_user_sgpr_count 2")
    A("  .amdhsa_user_sgpr_kernarg_segment_ptr 1")
    A("  .amdhsa_system_sgpr_workgroup_id_x 1")
    A("  .amdhsa_float_denorm_mode_32 3")
    A(".end_amdhsa_kernel")
    return "\n".join(L) + "\n"

if __name__ == "__main__":
    import json
    cfg = json.loads(sys.argv[1]) if len(sys.argv) > 1 else {}
    sys.stdout.write(gen(**cfg))
```

```python
import math, struct, sys

def f2u(x):
    return struct.unpack('<I', struct.pack('<f', x))[0]

SCALE = math.log2(math.e) / math.sqrt(128.0)
NAME = "standalone__gqa_block_cached__decode_kernel"

HEADER = """; Kernarg layout for this problem (64 bytes, ptrs only, base s[0:1]):
;
"""

WS_POL = 256
WS_QG = 0x40000
WS_PG = 0x100000
WS_YG = 0x140000
WS_CNT = 0x300000
WS_TS = 0x1000000
WS_SIZE = 0x2000000

L_Q = 19456
L_FLAG = L_Q + 512
L_ML = L_FLAG + 32
L_O = L_Q + 640
L_P = L_O + 512
L_TOTAL = L_P + 4 * 1024

def gen(E=2, WIN0=6, hyb=30, stamps=False, pre0=2, probe=12, outflags="", psleep=0, early_epoch=True, outx=True, touch_out=False, align=False, epad=256, cut="", dbl=False, gate=3, ysleep=0, bar4=2, ydelay=0, pdelay=0, gsleep=1, wo_pub=0, wo_split=1, wo_st=0, touch=True, y2=True, inv_n=4, touch_first=False, rotk=0, qack=True, nq=0, qsleep=0, GW=4, GWd=None, tkv=False, early_inv=True, GWv=12, blk=None, Wf=5, near=None, Wv=6):
    U = 4
    D = 2 + E
    assert E >= 1 and WIN0 >= 5
    PAIRB = 2 * 1024 * 1024
    BLK = 4096
    STEP = 16 * BLK
    STATIC = hyb * STEP
    L = []
    A = L.append
    def C(text): A(f"  ; {text}")
    dpp = "row_mask:0xf bank_mask:0xf"
    vKoff, vVoff, vT = 1, 2, 3
    vQ, vM, vO = 4, 8, 12
    vm, vl, va, vb = 16, 17, 18, 19
    vS, vD, vB = 20, 24, 24
    vK = 40
    NV = max(vK + 32 * D, 132)
    aP, aML, aPr, aMLr, aRec, aPub, aO, aOf, aWo, aY, aFl, aOne = range(104, 116)
    sTag, sC = 40, 41
    sSlot = 48
    def stamp(i):
        if stamps:
            A(f"  s_memrealtime s[{64+2*i}:{65+2*i}]")
    def spin_tail(label_ok, label_loop, sleep):
        A(f"  s_cbranch_scc1 {label_ok}")
        if sleep: A(f"  s_sleep {sleep}")
        A("  s_sub_u32 s61, s61, 1")
        A(f"  s_cbranch_scc0 {label_loop}")
        A(f"{label_ok}:")
    def recbase(dst, tmp):
        A(f"  s_and_b32 s{dst}, s2, 48")
        A(f"  s_lshl_b32 s{dst}, s{dst}, 10")
        A(f"  s_and_b32 s{tmp}, s2, 12")
        A(f"  s_lshl_b32 s{tmp}, s{tmp}, 9")
        A(f"  s_add_u32 s{dst}, s{dst}, s{tmp}")
        A(f"  s_and_b32 s{tmp}, s2, 1")
        A(f"  s_lshl_b32 s{tmp}, s{tmp}, 8")
        A(f"  s_add_u32 s{dst}, s{dst}, s{tmp}")
        A(f"  s_and_b32 s{tmp}, s2, 2")
        A(f"  s_lshl_b32 s{tmp}, s{tmp}, 12")
        A(f"  s_add_u32 s{dst}, s{dst}, s{tmp}")
        A(f"  s_add_u32 s{dst}, s{dst}, {WS_PG}")
    for ln in HEADER.rstrip("\n").split("\n"): A(ln)
    A(f"; @launch grid=(256,1,1) block=(320,1,1) lds={L_TOTAL}")
    A('.amdgcn_target "amdgcn-amd-amdhsa--gfx950"')
    A(".text")
    A(f".globl {NAME}")
    if epad is not None:
        A(".p2align 9")
        if epad: A(f".fill {epad//4}, 4, 0xbf810000")
    A(".p2align 8")
    A(f".type {NAME},@function")
    A(f"{NAME}:")
    A("  s_cmpk_ge_u32 s2, 256")
    A("  s_cbranch_scc1 L_end")
    A("  s_load_dwordx16 s[4:19], s[0:1], 0")
    stamp(0)
    A("  v_lshrrev_b32 v3, 6, v0")
    A("  v_and_b32 v0, 63, v0")
    A("  v_readfirstlane_b32 s3, v3")
    C("permute the low three id bits: x -> parity(x)*4 + (x>>1)")
    A("  s_lshl_b32 s44, s2, 2")
    A("  s_lshr_b32 s44, 0x05722750, s44")
    A("  s_and_b32 s44, s44, 7")
    A("  s_xor_b32 s2, s2, s44")
    if rotk:
        A("  s_and_b32 s44, s2, 3")
        A(f"  s_lshl_b32 s44, s44, {rotk}")
        A("  s_xor_b32 s2, s2, s44")
    A("  v_lshrrev_b32 v9, 4, v0")
    A("  v_and_b32 v8, 3, v0")
    A("  s_cmp_lg_u32 s3, 0")
    A("  s_cbranch_scc1 L_attn")
    C("---- helper wave: issue the x and wq loads (64-column group id&63, row quarter id>>6)")
    A("  s_and_b32 s44, s2, 63")
    A("  s_lshr_b32 s47, s2, 6")
    A("  s_mul_i32 s45, s47, 9216")
    A("  s_add_u32 s45, s45, s44")
    A("  s_lshl_b32 s45, s45, 7")
    A("  s_mul_i32 s56, s47, 288")
    A("  v_lshlrev_b32 v2, 4, v0")
    A("  v_lshrrev_b32 v4, 3, v0")
    A("  v_and_b32 v5, 6, v4")
    A("  v_xor_b32 v5, v5, v0")
    A("  v_and_b32 v5, 7, v5")
    A("  v_lshlrev_b32 v5, 4, v5")
    A("  v_lshl_add_u32 v6, v4, 13, v5")
    A("  s_mov_b32 s34, 4718592")
    A("  s_mov_b32 s35, 0x20000")
    A("  s_movk_i32 s38, 4608")
    A("  s_mov_b32 s39, s35")
    A(f"  s_movk_i32 m0, {L_P}")
    A(f"  v_mov_b32 v3, {L_FLAG}")
    A("  v_mov_b32 v12, 0")
    A("  v_mov_b32 v13, 0")
    A("  ds_write2_b64 v3, v[12:13], v[12:13] offset0:0 offset1:1")
    A("  ds_write2_b64 v3, v[12:13], v[12:13] offset0:2 offset1:3")
    C("workgroup 4p is one of the producers of pair p's q: it clears that pair's ticket counter first")
    A("  s_lshl_b32 s46, s2, 6")
    A(f"  s_add_u32 s46, s46, {WS_CNT}")
    A("  v_mov_b32 v4, s46")
    A("  s_mov_b64 exec, 1")
    A("  s_and_b32 s46, s2, 3")
    A("  s_waitcnt lgkmcnt(0)")
    A("  s_cbranch_scc1 L_nozero")
    A("  global_store_dword v4, v12, s[18:19] sc1")
    A("L_nozero:")
    A("  s_mov_b32 exec_lo, 0x3ffff")
    A("  s_mov_b64 s[36:37], s[4:5]")
    A("  s_mov_b64 s[32:33], s[10:11]")
    for b in range(4):
        A(f"  buffer_load_dwordx4 v2, s[36:39], s56 offen offset:{b*1152} lds")
    A("  s_mov_b32 m0, 0")
    A("  s_mov_b64 exec, -1")
    A("L_wq:")
    A("  buffer_load_dwordx4 v6, s[32:35], s45 offen nt lds")
    A("  s_addk_i32 m0, 1024")
    A("  s_add_u32 s45, s45, 0x10000")
    A("  s_cmpk_lt_u32 m0, 18432")
    A("  s_cbranch_scc1 L_wq")
    A("  s_barrier")
    A("  s_branch L_help")
    C("---- attention waves")
    A("L_attn:")
    A("  s_sub_u32 s3, s3, 1")
    C("K lane offset: key (lane>>2)&3 -> rows {0,1,16,17}, 16-byte chunk (lane>>4)*4 + (lane&3)")
    A("  v_bfe_u32 v3, v0, 2, 1")
    A("  v_lshlrev_b32 v1, 8, v3")
    A("  v_bfe_u32 v3, v0, 3, 1")
    A("  v_lshl_add_u32 v1, v3, 12, v1")
    A("  v_lshl_add_u32 v1, v9, 6, v1")
    A("  v_lshl_add_u32 v1, v8, 4, v1")
    A("  s_andn2_b32 s44, s2, 3")
    A("  s_lshl_b32 s44, s44, 19")
    C("block n starts at (n>>1)*8192 + (n&1)*2048")
    A("  s_and_b32 s45, s2, 3")
    A("  s_lshl2_add_u32 s45, s45, s3")
    A("  s_and_b32 s46, s45, 1")
    A("  s_lshl_b32 s45, s45, 1")
    A("  s_sub_u32 s45, s45, s46")
    A(f"  s_lshl_b32 s{sSlot}, s45, 11")
    if near is not None:
        A("  s_lshr_b32 s45, s2, 1")
        A("  s_lshr_b32 s46, s2, 2")
        A("  s_xor_b32 s45, s45, s46")
        A(f"  s_xor_b32 s45, s45, {near}")
        A("  s_and_b32 s45, s45, 1")
        A("  s_lshl_b32 s45, s45, 13")
        A("  s_and_b32 s46, s2, 1")
        A("  s_lshl_b32 s46, s46, 15")
        A("  s_add_u32 s45, s45, s46")
        A("  s_lshr_b32 s46, s3, 1")
        A("  s_lshl_b32 s46, s46, 14")
        A("  s_add_u32 s45, s45, s46")
        A("  s_and_b32 s46, s3, 1")
        A("  s_lshl_b32 s46, s46, 11")
        A(f"  s_add_u32 s{sSlot}, s45, s46")
    A(f"  s_mov_b32 s22, {PAIRB}")
    A("  s_mov_b32 s23, 0x20000")
    A("  s_waitcnt lgkmcnt(0)")
    A("  s_add_u32 s20, s6, s44")
    A("  s_addc_u32 s21, s7, 0")
    stamp(8)
    def reg(kind, d, t):
        return vK + 32 * d + (0 if kind == "K" else 16) + 4 * t
    def loads(kind, d, t):
        srd = "s[20:23]" if kind == "K" else "s[24:27]"
        off = vKoff if kind == "K" else vVoff
        r = reg(kind, d, t)
        A(f"  buffer_load_dwordx4 v[{r}:{r+3}], v{off}, {srd}, s{sSlot+d} offen offset:{t*512} nt")
    vsetup = ["  v_and_b32 v3, 31, v0", "  v_lshlrev_b32 v2, 4, v3", "  v_lshrrev_b32 v3, 5, v0", "  v_lshl_add_u32 v2, v3, 12, v2",
              "  s_add_u32 s24, s8, s44", "  s_addc_u32 s25, s9, 0", "  s_mov_b64 s[26:27], s[22:23]"]
    setup = []
    S = setup.append
    S("  s_mov_b64 s[28:29], s[18:19]")
    S(f"  s_mov_b32 s30, {WS_SIZE}")
    S("  s_mov_b32 s31, 0x20000")
    S(f"  s_mov_b32 s{sC}, {hex(f2u(SCALE))}")
    S("  s_lshr_b32 s44, s44, 13")
    S(f"  s_add_u32 s44, s44, {WS_CNT}")
    S("  s_add_u32 s46, s18, s44")
    S("  s_addc_u32 s47, s19, 0")
    S(f"  s_add_u32 s59, s{sSlot}, {D*STEP}")
    S("  s_mov_b32 s57, 1")
    S("  v_bfe_u32 v3, v0, 3, 1")
    S("  v_lshlrev_b32 v18, 8, v3")
    S("  v_lshl_add_u32 v18, v9, 6, v18")
    S("  v_lshl_add_u32 v18, v8, 4, v18")
    S(f"  v_add_u32 v18, {L_Q}, v18")
    S(f"  v_mov_b32 v19, {L_FLAG}")
    S("  v_and_b32 v3, 1, v0")
    S("  v_mov_b32 v17, 0xffff")
    S("  v_lshlrev_b32 v3, 4, v3")
    S("  v_lshlrev_b32 v17, v3, v17")
    S("  v_bfe_u32 v3, v0, 1, 2")
    for r in range(4):
        S(f"  v_cmp_eq_u32 vcc, {r}, v3")
        S(f"  v_mov_b32 v{vO+r}, 0")
        S("  s_nop 0")
        S(f"  v_cndmask_b32 v{vM+r}, 0, v17, vcc")
    S(f"  v_mov_b32 v{vm}, 0xff800000")
    S(f"  v_mov_b32 v{vl}, 0")
    n = 0
    for d in range(D):
        if d: A(f"  s_add_u32 s{sSlot+d}, s{sSlot}, {d*STEP}")
        for kind in "KV":
            for t in range(U):
                if n == 4:
                    for ln in vsetup: A(ln)
                if n == pre0: A("  s_barrier")
                if n == WIN0:
                    for ln in setup: A(ln)
                if n >= WIN0: A(f"  s_waitcnt vmcnt({WIN0-1})")
                loads(kind, d, t)
                if nq and n == nq: A("  ds_write_b32 v19, v19 offset:28")
                n += 1
    stamp(9)
    A("  s_mov_b32 s61, 0x400000")
    A("L_qwait:")
    A("  ds_read_b64 v[20:21], v19")
    A(f"  ds_read_b128 v[{vQ}:{vQ+3}], v18")
    A("  s_waitcnt lgkmcnt(0)")
    A("  v_readfirstlane_b32 s44, v20")
    A(f"  v_readfirstlane_b32 s{sTag}, v21")
    A("  s_cmp_lg_u32 s44, 0")
    spin_tail("L_qgo", "L_qwait", 1)
    stamp(1)
    def body(d, ring):
        for t in range(U):
            r = reg("K", d, t)
            if ring: A(f"  s_waitcnt vmcnt({15-t})")
            A(f"  v_mfma_f32_16x16x32_bf16 v[{vD+4*t}:{vD+4*t+3}], v[{r}:{r+3}], v[{vQ}:{vQ+3}], 0")
        if ring and blk is None:
            A(f"  s_cbranch_scc1 L_sk{d}")
            if GW is not None and not early_inv: A(f"  s_waitcnt vmcnt({GW})")
            A(f"  s_cmp_lt_u32 s59, {STATIC}")
            A(f"  s_cbranch_scc0 L_dy{d}")
            A(f"  s_mov_b32 s{sSlot+d}, s59")
            A(f"  s_add_u32 s59, s59, {STEP}")
            A(f"  s_cmp_ge_u32 s59, {STATIC}")
            A(f"  s_cbranch_scc1 L_tf{d}")
            if GW is not None and early_inv: A(f"  s_waitcnt vmcnt({GW})")
            A(f"L_ld{d}:")
            for t in range(U):
                if Wf: A(f"  s_waitcnt vmcnt({Wf-1})")
                loads("K", d, t)
            A(f"L_sk{d}:")
        A("  s_nop 4")
        for j in range(4):
            for t in range(U):
                if j == 0:
                    A(f"  v_mov_b32_dpp v{vS+t}, v{vD+4*t} quad_perm:[0,0,0,0] {dpp}")
                else:
                    A(f"  v_add_f32_dpp v{vS+t}, v{vD+4*t+j}, v{vS+t} quad_perm:[{j},{j},{j},{j}] {dpp}")
        A(f"  v_max3_f32 v{va}, v{vm}, v{vS}, v{vS+1}")
        A(f"  v_max3_f32 v{va}, v{va}, v{vS+2}, v{vS+3}")
        A(f"  v_mov_b32 v{vb}, v{va}")
        A("  s_nop 1")
        A(f"  v_permlane32_swap_b32 v{va}, v{vb}")
        A(f"  v_max_f32 v{va}, v{va}, v{vb}")
        A(f"  v_mov_b32 v{vb}, v{va}")
        A("  s_nop 1")
        A(f"  v_permlane16_swap_b32 v{va}, v{vb}")
        A(f"  v_max_f32 v{va}, v{va}, v{vb}")
        A(f"  v_sub_f32 v{vb}, v{vm}, v{va}")
        A(f"  v_mul_f32 v{vb}, s{sC}, v{vb}")
        A(f"  v_exp_f32 v{vb}, v{vb}")
        A(f"  v_mov_b32 v{vm}, v{va}")
        for t in range(U):
            A(f"  v_sub_f32 v{vS+t}, v{vS+t}, v{va}")
        for t in range(U):
            A(f"  v_mul_f32 v{vS+t}, s{sC}, v{vS+t}")
        for t in range(U):
            A(f"  v_exp_f32 v{vS+t}, v{vS+t}")
        for r in range(4):
            A(f"  v_mul_f32 v{vO+r}, v{vO+r}, v{vb}")
        A(f"  v_mul_f32 v{vl}, v{vl}, v{vb}")
        for t in range(U):
            A(f"  v_cvt_pk_bf16_f32 v{vT}, v{vS+t}, v{vS+t}")
            for j in range(4):
                A(f"  v_and_b32 v{vB+4*t+j}, v{vT}, v{vM+j}")
            A(f"  v_add_f32 v{vl}, v{vl}, v{vS+t}")
        if ring:
            A(f"  s_cbranch_scc1 L_dw{d}")
            A(f"L_dr{d}:")
        for t in range(U):
            r = reg("V", d, t)
            if ring: A(f"  s_waitcnt vmcnt({(15 if blk is None else 11)-t})")
            A(f"  v_mfma_f32_16x16x32_bf16 v[{vO}:{vO+3}], v[{r}:{r+3}], v[{vB+4*t}:{vB+4*t+3}], v[{vO}:{vO+3}]")
        if ring and blk is not None:
            A(f"  s_cmp_lt_u32 s59, {STATIC}")
            A(f"  s_cbranch_scc0 L_dy{d}")
            A(f"  s_mov_b32 s{sSlot+d}, s59")
            A(f"  s_add_u32 s59, s59, {STEP}")
            A(f"  s_cmp_ge_u32 s59, {STATIC}")
            A(f"  s_cbranch_scc1 L_tf{d}")
            A(f"  s_waitcnt vmcnt({blk})")
            A(f"L_ld{d}:")
            for t in range(U): loads("K", d, t)
            for t in range(U): loads("V", d, t)
        elif ring:
            A(f"  s_cbranch_scc1 L_sv{d}")
            if GW is not None: A(f"  s_waitcnt vmcnt({GW if GWv is None else GWv})")
            if GWd is not None or tkv:
                A(f"  s_cbranch_vccz L_gv{d}")
                if GWd is not None: A(f"  s_waitcnt vmcnt({GWd})")
                if tkv:
                    A(f"  s_movk_i32 s60, {BLK}")
                    A("  s_atomic_add s60, s[46:47], 0 glc")
                A(f"L_gv{d}:")
            for t in range(U):
                if Wf: A(f"  s_waitcnt vmcnt({(Wv or Wf)-1})")
                loads("V", d, t)
    C("main loop over two register buffers; SCC = 1 inside a body means no further block is loaded")
    C("s59: next fixed-share block, s60: ticket in flight, s48/s49: block held by each buffer")
    if GWd is not None or tkv: A("  s_mov_b64 vcc, 0")
    A("  s_cmp_eq_u32 s59, 0")
    A("L_loop:")
    if blk is not None:
        A("  s_branch L_go0")
        A("L_go1:")
        body(1, True)
        A("L_go0:")
        body(0, True)
        A("  s_cmp_lg_u32 s57, 0")
        A("  s_cbranch_scc0 L_go1")
    else:
        for d in range(2):
            A(f"L_go{d}:")
            body(d, True)
        A("  s_cmp_lg_u32 s57, 0")
        A("  s_cbranch_scc0 L_loop")
    C("first trip only: the blocks prefetched while q was being produced")
    A("  s_mov_b32 s57, 0")
    stamp(13)
    A(f"  s_waitcnt vmcnt({16 if blk is None else 8})")
    for e in range(E):
        body(2 + e, False)
    stamp(14)
    C("addresses for the tail, kept in the freed buffer")
    A("  v_lshrrev_b32 v116, 4, v0")
    A("  v_lshlrev_b32 v117, 4, v0")
    A(f"  v_add_u32 v{aPr}, {L_P}, v117")
    A("  s_lshl_b32 s44, s3, 10")
    A(f"  v_add_u32 v{aP}, s44, v{aPr}")
    A("  v_and_b32 v117, 8, v0")
    A(f"  v_add_u32 v{aMLr}, {L_ML}, v117")
    A("  s_lshl_b32 s44, s3, 4")
    A(f"  v_add_u32 v{aML}, s44, v{aMLr}")
    A(f"  v_lshlrev_b32 v{aPub}, 10, v117")
    A(f"  v_lshl_add_u32 v{aPub}, v116, 7, v{aPub}")
    A("  v_and_b32 v118, 7, v0")
    A(f"  v_lshl_add_u32 v{aPub}, v118, 4, v{aPub}")
    A("  s_lshl_b32 s44, s3, 7")
    A(f"  s_add_u32 s44, s44, {L_O}")
    A(f"  v_lshl_add_u32 v{aO}, v117, 3, s44")
    A(f"  v_lshl_add_u32 v{aO}, v118, 1, v{aO}")
    A("  v_lshrrev_b32 v118, 5, v0")
    A(f"  v_lshl_add_u32 v{aO}, v118, 4, v{aO}")
    A("  v_bfe_u32 v118, v0, 4, 1")
    A(f"  v_lshl_add_u32 v{aO}, v118, 5, v{aO}")
    A("  v_and_b32 v118, 15, v0")
    A(f"  v_lshlrev_b32 v{aRec}, 9, v116")
    A(f"  v_lshl_add_u32 v{aRec}, v118, 4, v{aRec}")
    A("  v_bfe_u32 v117, v0, 2, 2")
    A("  v_and_b32 v118, 3, v0")
    A(f"  v_lshl_add_u32 v{aWo}, v116, 3, v117")
    A(f"  v_mul_u32_u24 v{aWo}, 288, v{aWo}")
    A(f"  v_mad_u32_u24 v{aWo}, v118, 24, v{aWo}")
    A("  s_mul_i32 s44, s3, 96")
    A(f"  v_add_u32 v{aWo}, s44, v{aWo}")
    A(f"  v_lshlrev_b32 v{aOf}, 7, v117")
    A(f"  v_lshl_add_u32 v{aOf}, v116, 4, v{aOf}")
    A(f"  v_add_u32 v{aOf}, {L_O}, v{aOf}")
    if y2:
        A("  v_bfe_u32 v119, v0, 4, 1")
        A(f"  v_lshlrev_b32 v{aY}, 13, v119")
        A("  v_lshrrev_b32 v119, 5, v0")
        A(f"  v_lshl_add_u32 v{aY}, v119, 15, v{aY}")
        A("  v_bfe_u32 v119, v0, 3, 1")
        A(f"  v_lshl_add_u32 v{aY}, v119, 16, v{aY}")
        A("  v_and_b32 v118, 7, v0")
    elif outx:
        A(f"  v_lshlrev_b32 v{aY}, 13, v116")
        A(f"  v_lshl_add_u32 v{aY}, v117, 15, v{aY}")
    else:
        A(f"  v_mul_u32_u24 v{aY}, 196608, v116")
        A(f"  v_lshl_add_u32 v{aY}, v117, 12, v{aY}")
    A(f"  v_lshl_add_u32 v{aY}, v118, 4, v{aY}")
    A(f"  v_mov_b32 v{aFl}, {L_FLAG}")
    A(f"  v_mov_b32 v{aOne}, 1")
    if outx:
        A("  s_bfe_u32 s44, s2, 0x10006")
        A("  s_mul_i32 s58, s44, 3")
        A("  s_add_u32 s58, s58, s3")
        A("  s_lshl_b32 s58, s58, 17")
        A("  s_lshr_b32 s44, s2, 7")
        A(f"  s_lshl_b32 s44, s44, {14 if y2 else 12}")
        A("  s_add_u32 s58, s58, s44")
        A("  s_and_b32 s44, s2, 63")
        A(f"  s_lshl_b32 s44, s44, {7 if y2 else 6}")
        A("  s_add_u32 s58, s58, s44")
    else:
        A("  s_lshr_b32 s44, s2, 6")
        A("  s_mul_i32 s58, s44, 49152")
        A("  s_and_b32 s44, s2, 63")
        A("  s_lshl_b32 s44, s44, 6")
        A("  s_add_u32 s58, s58, s44")
        A("  s_lshl_b32 s44, s3, 14")
        A("  s_add_u32 s58, s58, s44")
    A(f"  s_add_u32 s58, s58, {WS_YG}")
    A("  s_and_b32 s55, s2, 0xf0")
    A("  s_lshl_b32 s55, s55, 10")
    A("  s_and_b32 s44, s2, 15")
    A("  s_lshl_b32 s44, s44, 9")
    A("  s_add_u32 s55, s55, s44")
    A(f"  s_add_u32 s55, s55, {WS_PG}")
    recbase(54, 44)
    A("  s_lshl_b32 s44, s3, 16")
    A("  s_add_u32 s54, s54, s44")
    A("  s_cmp_eq_u32 s59, 0")
    A("  s_branch L_loop" if blk is None else "  s_branch L_go1")
    for d in range(2):
        A(f"L_dy{d}:")
        if GWd is not None: A(f"  s_waitcnt vmcnt({GWd})")
        A("  s_waitcnt lgkmcnt(0)")
        A("  s_and_b32 s56, s60, 4096")
        A("  s_lshr_b32 s56, s56, 1")
        A(f"  s_add_u32 s{sSlot+d}, s60, {STATIC}")
        A(f"  s_sub_u32 s{sSlot+d}, s{sSlot+d}, s56")
        A(f"  s_cmp_ge_u32 s{sSlot+d}, {PAIRB}")
        A(f"  s_cbranch_scc0 L_tk{d}")
        stamp(15)
        A("  s_mov_b64 exec, 1")
        A(f"  ds_add_u32 v{aFl}, v{aOne} offset:8")
        A("  s_mov_b64 exec, -1")
        A(f"  s_branch L_sk{d}" if blk is None else f"  s_branch L_sv{d}")
        A(f"L_tf{d}:")
        if GWd is not None or tkv: A("  s_mov_b64 vcc, -1")
        A(f"  ds_write_b32 v{aFl}, v{aOne} offset:24")
        stamp(12)
        A(f"L_tk{d}:")
        if blk is not None: A(f"  s_waitcnt vmcnt({blk})")
        elif GW is not None and early_inv: A(f"  s_waitcnt vmcnt({GW})")
        if not tkv:
            A(f"  s_movk_i32 s60, {BLK}")
            A("  s_atomic_add s60, s[46:47], 0 glc")
        A("  s_cmp_eq_u32 s59, 0")
        A(f"  s_branch L_ld{d}")
        A(f"L_sv{d}:")
        A("  s_waitcnt vmcnt(4)")
        A(f"  s_branch L_go{1-d}")
        A(f"L_dw{d}:")
        if blk is None:
            A("  s_waitcnt vmcnt(8)")
            A(f"  s_cmp_lt_u32 s{sSlot+1-d}, {PAIRB}")
            A(f"  s_cbranch_scc1 L_dr{d}")
        C("last block of this wave")
        A(f"  v_mov_b32 v{vb}, v{vl}")
        A("  s_mov_b32 s61, 0x1000000")
        A("  s_nop 0")
        A(f"  v_permlane32_swap_b32 v{vl}, v{vb}")
        A(f"  v_add_f32 v{vl}, v{vl}, v{vb}")
        A(f"  v_mov_b32 v{vb}, v{vl}")
        A("  s_nop 1")
        A(f"  v_permlane16_swap_b32 v{vl}, v{vb}")
        A(f"  v_add_f32 v{vl}, v{vl}, v{vb}")
        A(f"  ds_write_b64 v{aML}, v[{vm}:{vl}]")
        A(f"L_sel{d}:")
        A(f"  ds_read_b32 v3, v{aFl} offset:20")
        A("  s_waitcnt lgkmcnt(0)")
        A("  v_readfirstlane_b32 s44, v3")
        A("  s_cmp_lg_u32 s44, 0")
        spin_tail(f"L_selok{d}", f"L_sel{d}", 0)
        A("  s_and_b32 s44, s44, 0x2000")
        A("  s_xor_b32 s54, s54, s44")
        A(f"  v_xor_b32 v{aPub}, s44, v{aPub}")
        for t in range(U):
            r = reg("V", d, t)
            A(f"  s_waitcnt vmcnt({3-t})")
            A(f"  v_mfma_f32_16x16x32_bf16 v[{vO}:{vO+3}], v[{r}:{r+3}], v[{vB+4*t}:{vB+4*t+3}], v[{vO}:{vO+3}]")
        if d == 0 or align: A("  s_branch L_done")
        else: A("  s_nop 0")
    def frags():
        for ks in range(2):
            for tl in range(3):
                r = 44 + 12 * ks + 4 * tl
                A(f"  ds_read_b64_tr_b16 v[{r}:{r+1}], v{aWo} offset:{tl*8 + ks*9216}")
                A(f"  ds_read_b64_tr_b16 v[{r+2}:{r+3}], v{aWo} offset:{tl*8 + ks*9216 + 1152}")
    if align:
        A(".p2align 9")
        A("L_latewo:")
        frags()
        A("  s_waitcnt lgkmcnt(0)")
        A("  s_branch L_havewo2")
    A("L_done:")
    stamp(2)
    C("the last wave to arrive merges the four partial results and publishes the record")
    A("  s_nop 6")
    A(f"  ds_write_b128 v{aP}, v[{vO}:{vO+3}]")
    A("  s_mov_b64 exec, 1")
    A(f"  ds_add_rtn_u32 v3, v{aFl}, v{aOne} offset:16")
    A("  s_mov_b64 exec, -1")
    for w in range(4):
        A(f"  ds_read_b64 v[{40+2*w}:{41+2*w}], v{aMLr} offset:{w*16}")
    for w in range(4):
        A(f"  ds_read_b128 v[{24+4*w}:{27+4*w}], v{aPr} offset:{w*1024}")
    A(f"  v_mov_b32 v23, s{sTag}")
    A("  s_mov_b32 s61, 0x40000")
    A("  s_waitcnt lgkmcnt(4)")
    A("  v_readfirstlane_b32 s44, v3")
    A("  v_max3_f32 v20, v40, v42, v44")
    A("  v_max_f32 v20, v20, v46")
    for w in range(4): A(f"  v_sub_f32 v{40+2*w}, v{40+2*w}, v20")
    A("  s_cmp_eq_u32 s44, 3")
    A("  s_cbranch_scc0 L_gather")
    for w in range(4): A(f"  v_mul_f32 v{40+2*w}, s{sC}, v{40+2*w}")
    for w in range(4): A(f"  v_exp_f32 v{40+2*w}, v{40+2*w}")
    A("  s_nop 0")
    A("  v_mul_f32 v22, v40, v41")
    for w in range(1, 4): A(f"  v_fmac_f32 v22, v{40+2*w}, v{41+2*w}")
    A("  s_waitcnt lgkmcnt(0)")
    A("  v_pk_mul_f32 v[24:25], v[24:25], v[40:41] op_sel_hi:[1,0]")
    A("  v_pk_mul_f32 v[26:27], v[26:27], v[40:41] op_sel_hi:[1,0]")
    A("  v_rcp_f32 v48, v22")
    A("  v_log_f32 v22, v22")
    for w in range(1, 4):
        for h in range(2):
            A(f"  v_pk_fma_f32 v[{24+2*h}:{25+2*h}], v[{24+4*w+2*h}:{25+4*w+2*h}], v[{40+2*w}:{41+2*w}], v[{24+2*h}:{25+2*h}] op_sel_hi:[1,0,1]")
    A(f"  v_fmac_f32 v22, s{sC}, v20")
    A("  v_pk_mul_f32 v[24:25], v[24:25], v[48:49] op_sel_hi:[1,0]")
    A("  v_pk_mul_f32 v[26:27], v[26:27], v[48:49] op_sel_hi:[1,0]")
    A("  v_cvt_pk_bf16_f32 v20, v24, v25")
    A("  v_cvt_pk_bf16_f32 v21, v26, v27")
    if "r" not in cut: A(f"  buffer_store_dwordx4 v[20:23], v{aPub}, s[28:31], s55 offen sc1")
    stamp(3)
    if align:
        A("  s_branch L_gather")
        A(".p2align 9")
    C("wave w gathers 64 columns of o for batch w from the four records of that pair")
    if wo_pub == 5: A(f"  ds_write_b32 v{aFl}, v{aOne} offset:28")
    if gate == 3: A("  s_waitcnt vmcnt(0)")
    if gate >= 2:
        A("  s_mov_b64 exec, 1")
        A(f"  ds_add_u32 v{aFl}, v{aOne} offset:16")
        A("  s_mov_b64 exec, -1")
    A("L_gather:")
    if gate:
        A(f"  ds_read_b32 v3, v{aFl} offset:16")
        A("  s_waitcnt lgkmcnt(0)")
        A("  v_readfirstlane_b32 s44, v3")
        A(f"  s_cmp_ge_u32 s44, {3+min(gate,2)}")
        spin_tail("L_gate_ok", "L_gather", gsleep)
        if pdelay: A(f"  s_sleep {pdelay}")
        A("  s_mov_b32 s61, 0x40000")
    else:
        A("  s_waitcnt lgkmcnt(0)")
    if dbl:
        A(f"  buffer_load_dwordx4 v[68:71], v{aRec}, s[28:31], s54 offen sc1")
        A(f"  ds_read_b32 v3, v{aFl} offset:12")
        frags()
        A("  s_waitcnt lgkmcnt(0)")
        A("  v_readfirstlane_b32 s57, v3")
        A("L_ppoll:")
        for a, b in ((68, 72), (72, 68)):
            A(f"  buffer_load_dwordx4 v[{b}:{b+3}], v{aRec}, s[28:31], s54 offen sc1")
            A("  s_waitcnt vmcnt(1)")
            A(f"  v_cmp_eq_u32 vcc, s{sTag}, v{a+3}")
            A(f"  v_mov_b32 v28, v{a+2}")
            A(f"  v_mov_b32 v29, v{a+2}")
            A(f"  v_mov_b32 v26, v{a+2}")
            A("  s_cmp_eq_u64 vcc, -1")
            A(f"  v_lshlrev_b32 v32, 16, v{a}")
            A(f"  v_and_b32 v33, 0xffff0000, v{a}")
            A(f"  v_lshlrev_b32 v34, 16, v{a+1}")
            A(f"  v_and_b32 v35, 0xffff0000, v{a+1}")
            A("  s_cbranch_scc1 L_pdone")
        A("  s_cmp_lg_u32 s57, 0")
        A("  s_cbranch_scc1 L_havewo")
        A(f"  ds_read_b32 v3, v{aFl} offset:12")
        frags()
        A("  s_waitcnt lgkmcnt(0)")
        A("  v_readfirstlane_b32 s57, v3")
        A("L_havewo:")
        A("  s_sub_u32 s61, s61, 1")
        A("  s_cbranch_scc0 L_ppoll")
        A("L_pdone:")
        stamp(10)
        A("  v_permlane32_swap_b32 v28, v29")
        A("  v_max_f32 v28, v28, v29")
        A("  v_mov_b32 v29, v28")
        A("  s_nop 1")
        A("  v_permlane16_swap_b32 v28, v29")
        A("  v_max_f32 v28, v28, v29")
        A("  v_sub_f32 v28, v26, v28")
        A("  v_exp_f32 v28, v28")
        A("  s_nop 0")
    else:
        if "p" in cut: A("  s_branch L_pdone")
        A("L_ppoll:")
        A(f"  buffer_load_dwordx4 v[24:27], v{aRec}, s[28:31], s54 offen sc1")
        A("  s_cmp_lg_u32 s57, 0")
        A("  s_cbranch_scc1 L_havewo")
        A(f"  ds_read_b32 v3, v{aFl} offset:12")
        frags()
        A("  s_waitcnt lgkmcnt(0)")
        A("  v_readfirstlane_b32 s57, v3")
        A("L_havewo:")
        A("  s_waitcnt vmcnt(0)")
        A(f"  v_cmp_eq_u32 vcc, s{sTag}, v27")
        A("  v_mov_b32 v28, v26")
        A("  v_mov_b32 v29, v26")
        A("  s_cmp_eq_u64 vcc, -1")
        spin_tail("L_pdone", "L_ppoll", psleep)
        if stamps: A("  s_mov_b32 s86, s61")
        stamp(10)
        A("  v_permlane32_swap_b32 v28, v29")
        A("  v_max_f32 v28, v28, v29")
        A("  v_mov_b32 v29, v28")
        A("  v_lshlrev_b32 v32, 16, v24")
        A("  v_and_b32 v33, 0xffff0000, v24")
        A("  v_permlane16_swap_b32 v28, v29")
        A("  v_max_f32 v28, v28, v29")
        A("  v_sub_f32 v28, v26, v28")
        A("  v_exp_f32 v28, v28")
        A("  v_lshlrev_b32 v34, 16, v25")
        A("  v_and_b32 v35, 0xffff0000, v25")
    A("  v_mov_b32 v29, v28")
    A("  v_pk_mul_f32 v[32:33], v[32:33], v[28:29] op_sel_hi:[1,0]")
    A("  v_pk_mul_f32 v[34:35], v[34:35], v[28:29] op_sel_hi:[1,0]")
    A("  v_permlane32_swap_b32 v28, v29")
    A("  v_permlane32_swap_b32 v32, v33")
    A("  v_permlane32_swap_b32 v34, v35")
    A("  v_add_f32 v28, v28, v29")
    A("  v_mov_b32 v29, v28")
    A("  v_add_f32 v32, v32, v33")
    A("  v_add_f32 v34, v34, v35")
    A("  v_permlane16_swap_b32 v28, v29")
    A("  v_add_f32 v28, v28, v29")
    A("  v_permlane16_swap_b32 v32, v34")
    A("  v_rcp_f32 v28, v28")
    A("  v_add_f32 v32, v32, v34")
    A("  v_mul_f32 v32, v32, v28")
    A("  v_cvt_pk_bf16_f32 v32, v32, v32")
    A(f"  ds_write_b16 v{aO}, v32")
    A("  s_cmp_eq_u32 s3, 3")
    A("  s_waitcnt lgkmcnt(0)")
    A("  s_barrier")
    stamp(4)
    A("  s_cbranch_scc1 L_fin5")
    C("waves 0-2: 48 columns of o@wo each, all four batches")
    A(f"  ds_read_b128 v[36:39], v{aOf}")
    A(f"  ds_read_b128 v[40:43], v{aOf} offset:64")
    A("  s_cmp_lg_u32 s57, 0")
    if align:
        A("  s_cbranch_scc0 L_latewo")
    else:
        A("  s_cbranch_scc1 L_havewo2")
        frags()
        A("  s_waitcnt lgkmcnt(0)")
    A("L_havewo2:")
    A("  s_waitcnt lgkmcnt(1)")
    for tl in (2, 1, 0):
        A(f"  v_mfma_f32_16x16x32_bf16 v[{24+4*tl}:{27+4*tl}], v[36:39], v[{44+4*tl}:{47+4*tl}], 0")
    A("  s_waitcnt lgkmcnt(0)")
    for tl in (2, 1, 0):
        A(f"  v_mfma_f32_16x16x32_bf16 v[{24+4*tl}:{27+4*tl}], v[40:43], v[{56+4*tl}:{59+4*tl}], v[{24+4*tl}:{27+4*tl}]")
    A("  s_nop 5")
    A("  v_mov_b32 v22, v32")
    A("  v_mov_b32 v21, v28")
    A("  v_mov_b32 v20, v24")
    if "s" not in cut: A(f"  buffer_store_dwordx4 v[20:23], v{aY}, s[28:31], s58 offen sc1")
    if bar4 == 2: A("  s_waitcnt vmcnt(0)")
    if bar4: A("  s_barrier")
    A("L_fin5:")
    stamp(5)
    if stamps: A("  s_branch L_fin")
    else: A("  s_endpgm")
    C("---- helper wave, continued")
    A("L_help:")
    A("  s_load_dword s60, s[18:19], 0")
    stamp(9)
    A("  s_mov_b64 s[28:29], s[18:19]")
    A(f"  s_mov_b32 s30, {WS_SIZE}")
    A("  s_mov_b32 s31, 0x20000")
    A("  s_mov_b32 s61, 0x40000")
    A("  v_mul_u32_u24 v7, 1152, v8")
    A("  v_lshl_add_u32 v7, v9, 3, v7")
    A("  v_lshrrev_b32 v10, 2, v0")
    A("  v_lshlrev_b32 v10, 7, v10")
    A("  v_lshl_add_u32 v10, v8, 3, v10")
    A("  v_bfe_u32 v5, v0, 3, 2")
    A("  v_lshl_add_u32 v10, v5, 5, v10")
    for j in range(1, 4):
        A(f"  v_xor_b32 v{10+j}, {32*j}, v10")
    C("q granule address: (b*16 + hkv)*4096 + quarter*1024 + ((group&3)*16 + tile*4 + (lane>>4))*16")
    A("  v_lshlrev_b32 v4, 16, v8")
    A("  v_lshl_add_u32 v4, v9, 4, v4")
    A("  v_bfe_u32 v5, v0, 2, 2")
    A("  v_lshl_add_u32 v4, v5, 6, v4")
    A("  s_lshr_b32 s45, s44, 2")
    A("  s_lshl_b32 s45, s45, 12")
    A("  s_lshl_b32 s46, s47, 10")
    A("  s_add_u32 s45, s45, s46")
    A("  s_and_b32 s46, s44, 3")
    A("  s_lshl_b32 s46, s46, 8")
    A("  s_add_u32 s45, s45, s46")
    A(f"  s_add_u32 s45, s45, {WS_QG}")
    A("  s_mov_b32 s56, 0xf0f0f0f0")
    A("  s_mov_b32 s57, 0xf0f0f0f0")
    A("  s_mov_b32 s58, 0xff00ff00")
    A("  s_mov_b32 s59, 0xff00ff00")
    A("  s_mov_b32 s50, 0x07060501")
    A("  s_mov_b32 s51, 0x07060502")
    A("  s_mov_b32 s52, 0x07060503")
    A("  s_waitcnt lgkmcnt(0)")
    A(f"  s_mul_i32 s{sTag}, s60, 0x9e3779b1")
    A(f"  s_add_u32 s{sTag}, s{sTag}, 0x7f4a7c15")
    A(f"  v_mov_b32 v23, s{sTag}")
    vX = 40; vW = 60
    A("  s_waitcnt vmcnt(18)")
    for t in range(9):
        A(f"  ds_read_b64 v[{vX+2*t}:{vX+2*t+1}], v7 offset:{L_P + t*32}")
    def qmfma(t):
        for j in range(4):
            r = vW + 8 * t + 2 * j
            c = "0" if t == 0 else f"v[{24+4*j}:{27+4*j}]"
            A(f"  v_mfma_f32_16x16x16_bf16 v[{24+4*j}:{27+4*j}], v[{r}:{r+1}], v[{vX+2*t}:{vX+2*t+1}], {c}")
    for t in range(9):
        A(f"  s_waitcnt vmcnt({16-2*t})")
        if t == 8: stamp(10)
        if t == 1: A("  s_waitcnt lgkmcnt(4)")
        for j in range(4):
            r = vW + 8 * t + 2 * j
            A(f"  ds_read_b64_tr_b16 v[{r}:{r+1}], v{10+j} offset:{t*2048}")
        if t >= 1:
            A("  s_waitcnt lgkmcnt(4)")
            qmfma(t - 1)
    A("  s_waitcnt lgkmcnt(0)")
    qmfma(8)
    A("  s_nop 5")
    C("four partial sums keep their upper 24 bits in three dwords")
    for r in range(4):
        A(f"  v_cndmask_b32 v{24+r}, v{24+r}, v{28+r}, s[56:57]")
    for r in range(4):
        A(f"  v_cndmask_b32 v{32+r}, v{32+r}, v{36+r}, s[56:57]")
    for r in range(4):
        A(f"  v_cndmask_b32 v{24+r}, v{24+r}, v{32+r}, s[58:59]")
    for r in range(3):
        A(f"  v_perm_b32 v{20+r}, v{24+r}, v27, s{50+r}")
    A("  buffer_store_dwordx4 v[20:23], v4, s[28:31], s45 offen sc1")
    stamp(1)
    A("  s_lshr_b32 s45, s2, 2")
    A("  s_lshl_b32 s45, s45, 12")
    A(f"  s_add_u32 s45, s45, {WS_QG}")
    A("  v_lshlrev_b32 v11, 3, v0")
    A(f"  v_add_u32 v11, {L_Q}, v11")
    A("  s_mov_b32 s50, 0x0c04000c")
    A("  s_mov_b32 s51, 0x04020100")
    A("  s_mov_b32 s52, 0xffffff00")
    if qack: A("  s_waitcnt vmcnt(0)")
    if nq:
        A("L_wait_nq:")
        A("  ds_read_b32 v24, v3 offset:28")
        A("  s_waitcnt lgkmcnt(0)")
        A("  v_readfirstlane_b32 s46, v24")
        A("  s_cmp_lg_u32 s46, 0")
        spin_tail("L_nq_go", "L_wait_nq", 1)
        A("  s_mov_b32 s61, 0x40000")
    def qload(j):
        A(f"  buffer_load_dwordx4 v[{24+4*j}:{27+4*j}], v2, s[28:31], s45 offen offset:{j*1024} sc1")
    for j in range(4): qload(j)
    A("L_qpoll:")
    A("  s_waitcnt vmcnt(0)")
    A("  s_mov_b32 s46, 0")
    for j in range(4):
        A(f"  v_cmp_ne_u32 vcc, s{sTag}, v{27+4*j}")
        A(f"  s_cbranch_vccz L_qok{j}")
        qload(j)
        A("  s_mov_b32 s46, 1")
        A(f"L_qok{j}:")
    A("  s_cmp_eq_u32 s46, 0")
    A("  s_cbranch_scc1 L_qdone")
    A("  s_sub_u32 s61, s61, 1")
    A("  s_cbranch_scc0 L_qpoll")
    A("  s_waitcnt vmcnt(0)")
    A("L_qdone:")
    for j in range(4):
        A(f"  v_perm_b32 v{27+4*j}, v{25+4*j}, v{24+4*j}, s50")
        A(f"  v_perm_b32 v{27+4*j}, v{26+4*j}, v{27+4*j}, s51")
        for r in range(3):
            A(f"  v_and_b32 v{24+4*j+r}, s52, v{24+4*j+r}")
    for r in range(4):
        A(f"  v_add_f32 v{24+r}, v{24+r}, v{28+r}")
        A(f"  v_add_f32 v{32+r}, v{32+r}, v{36+r}")
    for r in range(4):
        A(f"  v_add_f32 v{24+r}, v{24+r}, v{32+r}")
    A("  v_cvt_pk_bf16_f32 v24, v24, v25")
    A("  v_cvt_pk_bf16_f32 v25, v26, v27")
    A("  v_mov_b32 v22, 1")
    A("  ds_write_b64 v11, v[24:25]")
    A("  ds_write_b64 v3, v[22:23]")
    if stamps: A("  s_mov_b32 s86, s61")
    stamp(12)
    C("workgroup 0 times both 8 KiB-interleaved halves of the hand-off area and publishes which is closer;")
    C("every workgroup lays out the records and picks its reducer slot with that one bit")
    A("  s_cmp_lg_u32 s2, 0")
    A("  s_cbranch_scc1 L_pwait")
    A(f"  s_movk_i32 s44, {probe}")
    A("  s_mov_b32 s45, -1")
    A("  s_mov_b32 s47, -1")
    A("  s_memtime s[48:49]")
    A("  s_waitcnt lgkmcnt(0)")
    A("L_probe:")
    A("  s_load_dword s46, s[18:19], 0x8000 glc")
    A("  s_waitcnt lgkmcnt(0)")
    A("  s_memtime s[50:51]")
    A("  s_waitcnt lgkmcnt(0)")
    A("  s_load_dword s46, s[18:19], 0xa000 glc")
    A("  s_waitcnt lgkmcnt(0)")
    A("  s_sub_u32 s52, s50, s48")
    A("  s_memtime s[48:49]")
    A("  s_waitcnt lgkmcnt(0)")
    A("  s_sub_u32 s53, s48, s50")
    A("  s_min_u32 s45, s45, s52")
    A("  s_min_u32 s47, s47, s53")
    A("  s_sub_u32 s44, s44, 1")
    A("  s_cmp_lg_u32 s44, 0")
    A("  s_cbranch_scc1 L_probe")
    if stamps:
        A("  s_mov_b32 s70, s45")
        A("  s_mov_b32 s72, s47")
        A("  s_mov_b32 s92, 0")
    A("  s_cmp_gt_u32 s45, s47")
    A("  s_cselect_b32 s45, 0x2001, 1")
    A("  v_mov_b32 v24, s45")
    A("  v_mov_b32 v25, v23")
    A("  s_mov_b64 exec, 1")
    A(f"  buffer_store_dwordx2 v[24:25], v2, s[28:31], 0 offen offset:{WS_POL} sc1")
    A("  s_mov_b64 exec, -1")
    if early_epoch:
        C("advance the launch counter once all 256 producers have published q, hence read the counter")
        A("  v_lshlrev_b32 v4, 10, v0")
        A(f"  s_mov_b32 s45, {WS_QG}")
        A("  s_mov_b32 s61, 0x40000")
        A("L_allq:")
        for j in range(4):
            A(f"  buffer_load_dword v{28+j}, v4, s[28:31], s45 offen offset:{j*256+12} sc1")
        A("  s_waitcnt vmcnt(0)")
        A("  v_min3_u32 v32, v28, v29, v30")
        A("  v_max3_u32 v33, v28, v29, v30")
        A("  v_min_u32 v32, v32, v31")
        A("  v_max_u32 v33, v33, v31")
        A(f"  v_cmp_eq_u32 vcc, s{sTag}, v32")
        A(f"  v_cmp_eq_u32 s[62:63], s{sTag}, v33")
        A("  s_and_b64 vcc, vcc, s[62:63]")
        A("  s_cmp_eq_u64 vcc, -1")
        spin_tail("L_allq_ok", "L_allq", 16)
        A("  s_mov_b64 exec, 1")
        A("  buffer_store_dword v23, v2, s[28:31], 0 offen sc1")
        A("  s_mov_b64 exec, -1")
    A("L_pwait:")
    A("  s_mov_b32 s61, 0x100000")
    A("L_wait_st:")
    A("  ds_read_b32 v26, v3 offset:24")
    A("  s_waitcnt lgkmcnt(0)")
    A("  v_readfirstlane_b32 s45, v26")
    A("  s_cmp_lg_u32 s45, 0")
    spin_tail("L_st_go", "L_wait_st", 8)
    A("  s_mov_b32 s61, 0x40000")
    A("  v_mov_b32 v4, 0")
    A("L_ppw:")
    A(f"  buffer_load_dwordx2 v[24:25], v4, s[28:31], 0 offen offset:{WS_POL} sc1")
    A("  s_waitcnt vmcnt(0)")
    A("  v_readfirstlane_b32 s45, v25")
    A("  v_readfirstlane_b32 s49, v24")
    A(f"  s_cmp_eq_u32 s45, s{sTag}")
    spin_tail("L_pgot", "L_ppw", 16)
    A("  ds_write_b32 v3, v24 offset:20")
    A("  s_and_b32 s49, s49, 0x2000")
    stamp(15)
    C("wo piece: 64 rows x 288 B, three rows per load")
    A("  s_mov_b64 s[32:33], s[12:13]")
    A("  s_and_b32 s44, s2, 63")
    A("  s_mul_i32 s44, s44, 73728")
    A("  s_lshr_b32 s45, s2, 6")
    A("  s_mul_i32 s45, s45, 288")
    A("  s_add_u32 s44, s44, s45")
    A("  v_mul_u32_u24 v4, 57, v0")
    A("  v_lshrrev_b32 v4, 10, v4")
    A("  v_mul_u32_u24 v4, 864, v4")
    A("  v_add_u32 v6, v4, v2")
    C("reducer slot s55: twelve output columns at byte offset ((s55&7)*24 + (s55>>3))*24")
    A("  s_lshr_b32 s55, s49, 12")
    A("  s_xor_b32 s55, s55, s2")
    if y2:
        A("  s_lshr_b32 s47, s55, 4")
        A("  s_lshl_b32 s47, s47, 16")
        A("  s_and_b32 s45, s55, 4")
        A("  s_lshl_b32 s45, s45, 13")
        A("  s_add_u32 s47, s47, s45")
        A("  s_and_b32 s45, s55, 1")
        A("  s_lshl_b32 s45, s45, 14")
        A("  s_add_u32 s47, s47, s45")
        A("  s_and_b32 s45, s55, 2")
        A("  s_lshl_b32 s45, s45, 12")
        A("  s_add_u32 s47, s47, s45")
        A("  s_and_b32 s45, s55, 8")
        A("  s_lshl_b32 s46, s45, 9")
        A("  s_lshl_b32 s45, s45, 3")
        A(f"  s_add_u32 s47, s47, {WS_YG}")
        A("  s_add_u32 s46, s46, s47")
        A("  s_add_u32 s47, s47, s45")
        A("  v_lshrrev_b32 v1, 2, v0")
        A("  v_lshlrev_b32 v1, 7, v1")
        A("  v_lshl_add_u32 v1, v8, 4, v1")
        A("  v_add_u32 v7, 4096, v1")
    else:
        A("  s_lshl_b32 s47, s55, 12")
        A(f"  s_add_u32 s47, s47, {WS_YG}")
        A("  s_mov_b32 s46, s47")
    A("  s_mov_b64 s[36:37], s[14:15]")
    if outx:
        A("  s_and_b32 s56, s55, 7")
        A("  s_mul_i32 s56, s56, 24")
        A("  s_lshr_b32 s45, s55, 3")
        A("  s_add_u32 s56, s56, s45")
        A("  s_mul_i32 s56, s56, 24")
    else:
        A("  s_mul_i32 s56, s55, 24")
    A("  v_lshrrev_b32 v10, 5, v0")
    A("  v_bfe_u32 v11, v0, 4, 1")
    A("  v_lshl_add_u32 v10, v11, 1, v10")
    A("  v_lshlrev_b32 v10, 3, v10")
    A("  v_lshl_add_u32 v10, v8, 1, v10")
    A("  v_lshrrev_b32 v4, 3, v0")
    A("  v_lshlrev_b32 v4, 16, v4")
    A("  v_bfe_u32 v5, v0, 1, 2")
    A("  v_lshl_add_u32 v4, v5, 9, v4")
    A("  v_and_b32 v5, 1, v0")
    A("  v_lshl_add_u32 v4, v5, 7, v4")
    recbase(54, 45)
    A("  s_xor_b32 s54, s54, s49")
    A("  v_lshlrev_b32 v5, 7, v0")
    A("  s_mov_b32 s3, 4")
    A("  s_mov_b32 m0, 0")
    A("  s_mov_b32 s61, 0x100000")
    def wait_touch():
        if align:
            A("  s_branch L_wait_end")
            A(".p2align 9")
        A("L_wait_end:")
        A("  ds_read_b32 v24, v3 offset:8")
        A("  s_waitcnt lgkmcnt(0)")
        A("  v_readfirstlane_b32 s45, v24")
        A(f"  s_cmp_ge_u32 s45, {1 if touch_first else inv_n}")
        spin_tail("L_wo_go", "L_wait_end", 2)
        stamp(13)
        C("prefetch the lines the tail reads and writes (values unused), then load the wo piece")
        A("  s_mov_b32 exec_hi, 0")
        if touch: A("  buffer_load_dword v48, v4, s[28:31], s54 offen sc1")
        A("  s_cmpk_ge_u32 s2, 192")
        A("  s_cbranch_scc1 L_notouch")
        if touch: A("  buffer_load_dword v49, v5, s[28:31], s46 offen sc1")
        if touch_out: A("  buffer_load_ushort v50, v10, s[36:39], s56 offen sc1")
        A("L_notouch:")
    def wo_load():
        A("  s_mov_b32 exec_hi, 0x3fffff")
        if wo_pub:
            A("L_wo1:")
            A("  buffer_load_dwordx4 v6, s[32:35], s44 offen nt lds")
            A("  s_addk_i32 m0, 864")
            A("  s_addk_i32 s44, 3456")
            A(f"  s_cmpk_lt_u32 m0, {864*wo_split}")
            A("  s_cbranch_scc1 L_wo1")
            A("  s_mov_b32 s61, 0x1000000")
            A("L_wait_done:")
            A(f"  ds_read_b32 v24, v3 offset:{28 if wo_pub == 5 else 16}")
            A("  s_waitcnt lgkmcnt(0)")
            A("  v_readfirstlane_b32 s45, v24")
            A(f"  s_cmp_ge_u32 s45, {1 if wo_pub == 5 else wo_pub}")
            spin_tail("L_wo_go2", "L_wait_done", 0)
        A("L_wo:")
        A("  buffer_load_dwordx4 v6, s[32:35], s44 offen nt lds")
        A("  s_addk_i32 m0, 864")
        A("  s_addk_i32 s44, 3456")
        A("  s_cmpk_lt_u32 m0, 18144")
        A("  s_cbranch_scc1 L_wo")
        A("  s_mov_b64 exec, 0x3ffff")
        A("  buffer_load_dwordx4 v6, s[32:35], s44 offen nt lds")
        A("  s_mov_b64 exec, -1")
        A("  s_mov_b32 s61, 0x40000")
        A("  s_waitcnt vmcnt(0)")
        A("  ds_write_b32 v3, v22 offset:12")
    if wo_st:
        wo_load()
        A("  s_mov_b32 s61, 0x100000")
        wait_touch()
        A("  s_mov_b64 exec, -1")
        A("  s_mov_b32 s61, 0x40000")
    else:
        wait_touch()
        if touch_first:
            A("  s_mov_b32 s61, 0x100000")
            A("L_wait_end2:")
            A("  ds_read_b32 v24, v3 offset:8")
            A("  s_waitcnt lgkmcnt(0)")
            A("  v_readfirstlane_b32 s45, v24")
            A(f"  s_cmp_ge_u32 s45, {inv_n}")
            spin_tail("L_wo_go3", "L_wait_end2", 1)
        wo_load()
    stamp(2)
    A("  s_cmpk_ge_u32 s2, 192")
    A("  s_barrier")
    stamp(5)
    A("  s_cbranch_scc1 L_fin")
    def yload(j):
        if y2: A(f"  buffer_load_dwordx4 v[{32+4*j}:{35+4*j}], v{7 if j >= 2 else 1}, s[28:31], s47 offen offset:{(j&1)*2048} sc1")
        else: A(f"  buffer_load_dwordx4 v[{32+4*j}:{35+4*j}], v2, s[28:31], s47 offen offset:{j*1024} sc1")
    if bar4: A("  s_barrier")
    if ydelay: A(f"  s_sleep {ydelay}")
    if "y" in cut: A("  s_branch L_ydone")
    for j in range(4): yload(j)
    A("L_ypoll:")
    A("  s_waitcnt vmcnt(0)")
    A("  s_mov_b32 s45, 0")
    for j in range(4):
        A(f"  v_cmp_ne_u32 vcc, s{sTag}, v{35+4*j}")
        A(f"  s_cbranch_vccz L_yok{j}")
        yload(j)
        A("  s_mov_b32 s45, 1")
        A(f"L_yok{j}:")
    A("  s_cmp_eq_u32 s45, 0")
    A("  s_cbranch_scc1 L_ydone")
    if ysleep: A(f"  s_sleep {ysleep}")
    A("  s_sub_u32 s61, s61, 1")
    A("  s_cbranch_scc0 L_ypoll")
    A("  s_waitcnt vmcnt(0)")
    A("L_ydone:")
    A("  v_pk_add_f32 v[32:33], v[32:33], v[36:37]")
    A("  v_pk_add_f32 v[40:41], v[40:41], v[44:45]")
    A("  v_add_f32 v34, v34, v38")
    A("  v_add_f32 v42, v42, v46")
    A("  v_pk_add_f32 v[32:33], v[32:33], v[40:41]")
    A("  v_add_f32 v34, v34, v42")
    A("  v_mov_b32 v35, v34")
    A("  v_permlane32_swap_b32 v32, v33")
    A("  v_add_f32 v32, v32, v33")
    A("  v_permlane32_swap_b32 v34, v35")
    A("  v_add_f32 v34, v34, v35")
    A("  s_nop 1")
    A("  v_permlane16_swap_b32 v32, v34")
    A("  v_add_f32 v32, v32, v34")
    A("  s_nop 1")
    A(f"  v_add_f32_dpp v32, v32, v32 row_ror:8 {dpp}")
    A("  s_nop 1")
    A(f"  v_add_f32_dpp v32, v32, v32 row_ror:4 {dpp}")
    A("  s_mov_b32 exec_lo, 0x000f000f")
    A("  s_mov_b32 exec_hi, 0x0000000f")
    A("  v_cvt_pk_bf16_f32 v32, v32, v32")
    if "o" not in cut: A(f"  buffer_store_short v32, v10, s[36:39], s56 offen {outflags}".rstrip())
    if not early_epoch:
        C("advance the launch counter once every workgroup has read it")
        A("  s_cmp_lg_u32 s2, 0")
        A("  s_cbranch_scc1 L_fin")
        A("  s_mov_b64 exec, 1")
        A("  buffer_store_dword v23, v2, s[28:31], 0 offen")
    A("L_fin:")
    if stamps:
        stamp(6)
        A("  s_mul_i32 s44, s2, 5")
        A("  s_add_u32 s44, s44, s3")
        A("  s_lshl_b32 s44, s44, 6")
        A(f"  s_add_u32 s44, s44, {WS_TS}")
        A("  s_mov_b32 s78, s61")
        A("  s_waitcnt lgkmcnt(0)")
        A("  s_mov_b64 exec, 1")
        for i in range(16):
            A(f"  v_mov_b32 v{64+i}, s{64+2*i}")
        A("  v_mov_b32 v3, 0")
        for j in range(4):
            A(f"  buffer_store_dwordx4 v[{64+4*j}:{67+4*j}], v3, s[28:31], s44 offen offset:{16*j}")
    A("L_end:")
    A("  s_endpgm")
    A('.section .rodata,"a"')
    A(".p2align 6")
    A(f".amdhsa_kernel {NAME}")
    A(f"  .amdhsa_next_free_vgpr {NV}")
    A("  .amdhsa_next_free_sgpr %d" % (96 if stamps else 64))
    A(f"  .amdhsa_accum_offset {(NV+3)//4*4}")
    A("  .amdhsa_group_segment_fixed_size 0")
    A("  .amdhsa_kernarg_size 64")
    A("  .amdhsa_user_sgpr_count 2")
    A("  .amdhsa_user_sgpr_kernarg_segment_ptr 1")
    A("  .amdhsa_system_sgpr_workgroup_id_x 1")
    A("  .amdhsa_float_denorm_mode_32 3")
    A(".end_amdhsa_kernel")
    return "\n".join(L) + "\n"

if __name__ == "__main__":
    import json
    cfg = json.loads(sys.argv[1]) if len(sys.argv) > 1 else {}
    sys.stdout.write(gen(**cfg))
```

```python
import math, struct, sys

def f2u(x):
    return struct.unpack('<I', struct.pack('<f', x))[0]

SCALE = math.log2(math.e) / math.sqrt(128.0)
NAME = "standalone__gqa_block_cached__decode_kernel"

HEADER = """; Kernarg layout for this problem (64 bytes, ptrs only, base s[0:1]):
;
"""

WS_POL = 256
WS_QG = 0x40000
WS_PG = 0x100000
WS_YG = 0x140000
WS_CNT = 0x300000
WS_TS = 0x1000000
WS_SIZE = 0x2000000

L_Q = 19456
L_FLAG = L_Q + 512
L_ML = L_FLAG + 32
L_O = L_Q + 640
L_P = L_O + 512
L_S = L_P + 4 * 1024
L_TOTAL = L_S + 4 * 3584

def gen(E=2, WIN0=5, hyb=30, stamps=False, pre0=2, probe=12, outflags="", psleep=0, early_epoch=True, outx=True, touch_out=False, align=False, epad=256, cut="", dbl=False, gate=3, ysleep=0, bar4=2, ydelay=0, pdelay=0, gsleep=1, wo_pub=0, wo_split=1, wo_st=0, touch=True, y2=True, inv_n=4, touch_first=False, rotk=0, qack=True, nq=0, qsleep=0, GW=4, GWd=None, tkv=False, early_inv=True, GWv=12, blk=None, Wf=5, near=None, Wv=6, WK=(5,5,5,5), WV=(6,6,6,6), cuts=(17,35,54), HS=28, vtouch=False, warm=3, warmall=False):
    U = 4
    D = 2 + E
    assert E >= 1 and WIN0 >= 5
    PAIRB = 2 * 1024 * 1024
    BLK = 4096
    STEP = 16 * BLK
    STATIC = hyb * STEP
    L = []
    A = L.append
    def C(text): A(f"  ; {text}")
    dpp = "row_mask:0xf bank_mask:0xf"
    vKoff, vVoff, vT = 1, 2, 3
    vQ, vM, vO = 4, 8, 12
    vm, vl, va, vb = 16, 17, 18, 19
    vS, vD, vB = 20, 24, 24
    vK = 40
    NV = max(vK + 32 * D, 132)
    aP, aML, aPr, aMLr, aRec, aPub, aO, aOf, aWo, aY, aFl, aOne = range(104, 116)
    sTag, sC = 40, 41
    sSlot = 48
    def stamp(i):
        if stamps:
            A(f"  s_memrealtime s[{64+2*i}:{65+2*i}]")
    def spin_tail(label_ok, label_loop, sleep):
        A(f"  s_cbranch_scc1 {label_ok}")
        if sleep: A(f"  s_sleep {sleep}")
        A("  s_sub_u32 s61, s61, 1")
        A(f"  s_cbranch_scc0 {label_loop}")
        A(f"{label_ok}:")
    def recbase(dst, tmp):
        A(f"  s_and_b32 s{dst}, s2, 48")
        A(f"  s_lshl_b32 s{dst}, s{dst}, 10")
        A(f"  s_and_b32 s{tmp}, s2, 12")
        A(f"  s_lshl_b32 s{tmp}, s{tmp}, 9")
        A(f"  s_add_u32 s{dst}, s{dst}, s{tmp}")
        A(f"  s_and_b32 s{tmp}, s2, 1")
        A(f"  s_lshl_b32 s{tmp}, s{tmp}, 8")
        A(f"  s_add_u32 s{dst}, s{dst}, s{tmp}")
        A(f"  s_and_b32 s{tmp}, s2, 2")
        A(f"  s_lshl_b32 s{tmp}, s{tmp}, 12")
        A(f"  s_add_u32 s{dst}, s{dst}, s{tmp}")
        A(f"  s_add_u32 s{dst}, s{dst}, {WS_PG}")
    for ln in HEADER.rstrip("\n").split("\n"): A(ln)
    A(f"; @launch grid=(256,1,1) block=(320,1,1) lds={L_TOTAL}")
    A('.amdgcn_target "amdgcn-amd-amdhsa--gfx950"')
    A(".text")
    A(f".globl {NAME}")
    if epad is not None:
        A(".p2align 9")
        if epad: A(f".fill {epad//4}, 4, 0xbf810000")
    A(".p2align 8")
    A(f".type {NAME},@function")
    A(f"{NAME}:")
    A("  s_cmpk_ge_u32 s2, 256")
    A("  s_cbranch_scc1 L_end")
    A("  s_load_dwordx16 s[4:19], s[0:1], 0")
    stamp(0)
    A("  v_lshrrev_b32 v3, 6, v0")
    A("  v_and_b32 v0, 63, v0")
    A("  v_readfirstlane_b32 s3, v3")
    C("permute the low three id bits: x -> parity(x)*4 + (x>>1)")
    A("  s_lshl_b32 s44, s2, 2")
    A("  s_lshr_b32 s44, 0x05722750, s44")
    A("  s_and_b32 s44, s44, 7")
    A("  s_xor_b32 s2, s2, s44")
    if rotk:
        A("  s_and_b32 s44, s2, 3")
        A(f"  s_lshl_b32 s44, s44, {rotk}")
        A("  s_xor_b32 s2, s2, s44")
    A("  v_lshrrev_b32 v9, 4, v0")
    A("  v_and_b32 v8, 3, v0")
    A("  s_cmp_lg_u32 s3, 0")
    A("  s_cbranch_scc1 L_attn")
    C("---- helper wave: issue the x and wq loads (64-column group id&63, row quarter id>>6)")
    A("  s_and_b32 s44, s2, 63")
    A("  s_lshr_b32 s47, s2, 6")
    A("  s_mul_i32 s45, s47, 9216")
    A("  s_add_u32 s45, s45, s44")
    A("  s_lshl_b32 s45, s45, 7")
    A("  s_mul_i32 s56, s47, 288")
    A("  v_lshlrev_b32 v2, 4, v0")
    A("  v_lshrrev_b32 v4, 3, v0")
    A("  v_and_b32 v5, 6, v4")
    A("  v_xor_b32 v5, v5, v0")
    A("  v_and_b32 v5, 7, v5")
    A("  v_lshlrev_b32 v5, 4, v5")
    A("  v_lshl_add_u32 v6, v4, 13, v5")
    A("  s_mov_b32 s34, 4718592")
    A("  s_mov_b32 s35, 0x20000")
    A("  s_movk_i32 s38, 4608")
    A("  s_mov_b32 s39, s35")
    A(f"  s_movk_i32 m0, {L_P}")
    A(f"  v_mov_b32 v3, {L_FLAG}")
    A("  v_mov_b32 v12, 0")
    A("  v_mov_b32 v13, 0")
    A("  ds_write2_b64 v3, v[12:13], v[12:13] offset0:0 offset1:1")
    A("  ds_write2_b64 v3, v[12:13], v[12:13] offset0:2 offset1:3")
    C("workgroup 4p is one of the producers of pair p's q: it clears that pair's ticket counter first")
    A("  s_lshl_b32 s46, s2, 6")
    A(f"  s_add_u32 s46, s46, {WS_CNT}")
    A("  v_mov_b32 v4, s46")
    A("  s_mov_b64 exec, 1")
    A("  s_and_b32 s46, s2, 3")
    A("  s_waitcnt lgkmcnt(0)")
    A("  s_cbranch_scc1 L_nozero")
    A("  global_store_dword v4, v12, s[18:19] sc1")
    A("L_nozero:")
    A("  s_mov_b32 exec_lo, 0x3ffff")
    A("  s_mov_b64 s[36:37], s[4:5]")
    A("  s_mov_b64 s[32:33], s[10:11]")
    for b in range(4):
        A(f"  buffer_load_dwordx4 v2, s[36:39], s56 offen offset:{b*1152} lds")
    A("  s_mov_b32 m0, 0")
    A("  s_mov_b64 exec, -1")
    A("L_wq:")
    A("  buffer_load_dwordx4 v6, s[32:35], s45 offen nt lds")
    A("  s_addk_i32 m0, 1024")
    A("  s_add_u32 s45, s45, 0x10000")
    A("  s_cmpk_lt_u32 m0, 18432")
    A("  s_cbranch_scc1 L_wq")
    A("  s_barrier")
    A("  s_branch L_help")
    C("---- attention waves")
    A("L_attn:")
    A("  s_sub_u32 s3, s3, 1")
    C("K lane offset: key (lane>>2)&3 -> rows {0,1,16,17}, 16-byte chunk (lane>>4)*4 + (lane&3)")
    A("  v_bfe_u32 v3, v0, 2, 1")
    A("  v_lshlrev_b32 v1, 8, v3")
    A("  v_bfe_u32 v3, v0, 3, 1")
    A("  v_lshl_add_u32 v1, v3, 12, v1")
    A("  v_lshl_add_u32 v1, v9, 6, v1")
    A("  v_lshl_add_u32 v1, v8, 4, v1")
    A("  s_andn2_b32 s44, s2, 3")
    A("  s_lshl_b32 s44, s44, 19")
    C("block n starts at (n>>1)*8192 + (n&1)*2048")
    A("  s_and_b32 s45, s2, 3")
    A("  s_lshl2_add_u32 s45, s45, s3")
    A("  s_and_b32 s46, s45, 1")
    A("  s_lshl_b32 s45, s45, 1")
    A("  s_sub_u32 s45, s45, s46")
    A(f"  s_lshl_b32 s{sSlot}, s45, 11")
    if near is not None:
        A("  s_lshr_b32 s45, s2, 1")
        A("  s_lshr_b32 s46, s2, 2")
        A("  s_xor_b32 s45, s45, s46")
        A(f"  s_xor_b32 s45, s45, {near}")
        A("  s_and_b32 s45, s45, 1")
        A("  s_lshl_b32 s45, s45, 13")
        A("  s_and_b32 s46, s2, 1")
        A("  s_lshl_b32 s46, s46, 15")
        A("  s_add_u32 s45, s45, s46")
        A("  s_lshr_b32 s46, s3, 1")
        A("  s_lshl_b32 s46, s46, 14")
        A("  s_add_u32 s45, s45, s46")
        A("  s_and_b32 s46, s3, 1")
        A("  s_lshl_b32 s46, s46, 11")
        A(f"  s_add_u32 s{sSlot}, s45, s46")
    A(f"  s_mov_b32 s22, {PAIRB}")
    A("  s_mov_b32 s23, 0x20000")
    A("  s_waitcnt lgkmcnt(0)")
    A("  s_add_u32 s20, s6, s44")
    A("  s_addc_u32 s21, s7, 0")
    stamp(8)
    def reg(kind, d, t):
        return vK + 32 * d + (0 if kind == "K" else 16) + 4 * t
    def loads(kind, d, t):
        srd = "s[20:23]" if kind == "K" else "s[24:27]"
        off = vKoff if kind == "K" else vVoff
        r = reg(kind, d, t)
        A(f"  buffer_load_dwordx4 v[{r}:{r+3}], v{off}, {srd}, s{sSlot+d} offen offset:{t*512} nt")
    assert E == 2 and HS % 4 == 0 and HS <= 28
    STATIC = (HS + 2) * STEP
    vKp, vVp, vRp, vS2, vWp = 120, 121, 122, 124, 12
    vsetup = ["  v_mov_b32 v2, v1", f"  s_add_u32 s24, s20, {STEP}", "  s_addc_u32 s25, s21, 0", "  s_mov_b64 s[26:27], s[22:23]"]
    setup = []
    S = setup.append
    S("  s_mov_b64 s[28:29], s[18:19]")
    S(f"  s_mov_b32 s30, {WS_SIZE}")
    S("  s_mov_b32 s31, 0x20000")
    S(f"  s_mov_b32 s{sC}, {hex(f2u(SCALE))}")
    S("  s_mov_b64 s[32:33], s[20:21]")
    S("  s_add_u32 s34, s8, s44")
    S("  s_addc_u32 s35, s9, 0")
    S(f"  s_mov_b32 s36, s{sSlot}")
    S("  s_lshr_b32 s44, s44, 13")
    S(f"  s_add_u32 s44, s44, {WS_CNT}")
    S("  s_add_u32 s46, s18, s44")
    S("  s_addc_u32 s47, s19, 0")
    S(f"  s_add_u32 s59, s{sSlot}, {8*STEP}")
    S(f"  s_mov_b32 s37, {2*STEP}")
    S("  s_mov_b32 s57, 1")
    S(f"  s_movk_i32 s38, {HS//4 - 1}")
    S("  v_bfe_u32 v3, v0, 3, 1")
    S("  v_lshlrev_b32 v18, 8, v3")
    S("  v_lshl_add_u32 v18, v9, 6, v18")
    S("  v_lshl_add_u32 v18, v8, 4, v18")
    S(f"  v_add_u32 v18, {L_Q}, v18")
    S(f"  v_mov_b32 v19, {L_FLAG}")
    S("  s_mul_i32 s44, s3, 3584")
    S(f"  s_add_u32 s44, s44, {L_S}")
    S("  v_lshrrev_b32 v3, 3, v0")
    S(f"  v_lshl_add_u32 v{vWp}, v3, 4, s44")
    S(f"  v_mov_b32 v{vm}, 0xff800000")
    n = 0
    for i, d in enumerate((0, 2, 3, 1)):
        if i: A(f"  s_add_u32 s{sSlot+d}, s{sSlot}, {i*2*STEP}")
        for kind in "KV":
            for t in range(U):
                if n == 4:
                    for ln in vsetup: A(ln)
                if n == pre0: A("  s_barrier")
                if n == WIN0:
                    for ln in setup: A(ln)
                if n >= WIN0: A(f"  s_waitcnt vmcnt({WIN0-1})")
                loads(kind, d, t)
                n += 1
    stamp(9)
    A("  s_mov_b32 s61, 0x400000")
    A("L_qwait:")
    A("  ds_read_b64 v[20:21], v19")
    A(f"  ds_read_b128 v[{vQ}:{vQ+3}], v18")
    A("  s_waitcnt lgkmcnt(0)")
    A("  v_readfirstlane_b32 s44, v20")
    A(f"  v_readfirstlane_b32 s{sTag}, v21")
    A("  s_cmp_lg_u32 s44, 0")
    spin_tail("L_qgo", "L_qwait", 1)
    stamp(1)
    def qk(d, ring, kind="K"):
        for t in range(U):
            r = reg(kind, d, t)
            if ring: A(f"  s_waitcnt vmcnt({15-t})")
            A(f"  v_mfma_f32_16x16x32_bf16 v[{vD+4*t}:{vD+4*t+3}], v[{r}:{r+3}], v[{vQ}:{vQ+3}], 0")
    def reduce_scores():
        X = ["  s_nop 4"]
        for j in range(4):
            for t in range(U):
                if j == 0:
                    X.append(f"  v_mov_b32_dpp v{vS+t}, v{vD+4*t} quad_perm:[0,0,0,0] {dpp}")
                else:
                    X.append(f"  v_add_f32_dpp v{vS+t}, v{vD+4*t+j}, v{vS+t} quad_perm:[{j},{j},{j},{j}] {dpp}")
        return X
    def allmax(r):
        return [f"  v_mov_b32 v{vb}, v{r}", "  s_nop 1", f"  v_permlane32_swap_b32 v{r}, v{vb}", f"  v_max_f32 v{r}, v{r}, v{vb}",
                f"  v_mov_b32 v{vb}, v{r}", "  s_nop 1", f"  v_permlane16_swap_b32 v{r}, v{vb}", f"  v_max_f32 v{r}, v{r}, v{vb}"]
    def probs(S0, mid=()):
        X = [f"  v_sub_f32 v{S0+t}, v{S0+t}, v{vm}" for t in range(U)]
        X += [f"  v_mul_f32 v{S0+t}, s{sC}, v{S0+t}" for t in range(U)]
        X += [f"  v_exp_f32 v{S0+t}, v{S0+t}" for t in range(U)]
        X += list(mid)
        for t in range(U):
            X.append(f"  v_cvt_pk_bf16_f32 v{vT}, v{S0+t}, v{S0+t}")
            X += [f"  v_and_b32 v{vB+4*t+j}, v{vT}, v{vM+j}" for j in range(4)]
            X.append(f"  v_add_f32 v{vl}, v{vl}, v{S0+t}")
        return X
    def softmax():
        X = reduce_scores()
        X += [f"  v_max3_f32 v{va}, v{vm}, v{vS}, v{vS+1}", f"  v_max3_f32 v{va}, v{va}, v{vS+2}, v{vS+3}"]
        X += allmax(va)
        X += [f"  v_sub_f32 v{vb}, v{vm}, v{va}", f"  v_mul_f32 v{vb}, s{sC}, v{vb}", f"  v_exp_f32 v{vb}, v{vb}", f"  v_mov_b32 v{vm}, v{va}"]
        X += probs(vS, [f"  v_mul_f32 v{vO+r}, v{vO+r}, v{vb}" for r in range(4)] + [f"  v_mul_f32 v{vl}, v{vl}, v{vb}"])
        return X
    def keep_scores(off):
        for ln in reduce_scores(): A(ln)
        A(f"  ds_write_b128 v{vWp}, v[{vS}:{vS+3}] offset:{off}")
        A(f"  v_max3_f32 v{vm}, v{vm}, v{vS}, v{vS+1}")
        A(f"  v_max3_f32 v{vm}, v{vm}, v{vS+2}, v{vS+3}")
    def pv(d, ring, kind="V"):
        for t in range(U):
            r = reg(kind, d, t)
            if ring: A(f"  s_waitcnt vmcnt({15-t})")
            A(f"  v_mfma_f32_16x16x32_bf16 v[{vO}:{vO+3}], v[{r}:{r+3}], v[{vB+4*t}:{vB+4*t+3}], v[{vO}:{vO+3}]")
    def paced(kind, d, t):
        A(f"  s_waitcnt vmcnt({(WK if kind == 'K' else WV)[t]-1})")
        loads(kind, d, t)
    def nextblk(d):
        A(f"  s_mov_b32 s{sSlot+d}, s59")
        A("  s_add_u32 s59, s59, s37")
    C("pass 1: two K blocks per buffer; s59: next offset, s37: its step, s38: trips left")
    A("L_kk:")
    A("  s_cmp_lg_u32 s38, 1")
    A("  s_cbranch_scc1 L_kk0")
    C("the last trip refills with V blocks")
    A("  s_mov_b64 s[20:21], s[34:35]")
    A(f"  s_add_u32 s24, s34, {STEP}")
    A("  s_addc_u32 s25, s35, 0")
    A("  s_mov_b32 s59, s36")
    A(f"  v_mov_b32 v1, v{vVp}")
    A(f"  v_mov_b32 v2, v{vVp}")
    for d in range(2):
        A(f"L_kk{d}:")
        qk(d, True, "K")
        nextblk(d)
        paced("K", d, 0)
        keep_scores(d * 256)
        for t in range(1, U): paced("K", d, t)
        qk(d, True, "V")
        paced("V", d, 0)
        keep_scores(d * 256 + 128)
        if d == 0:
            A("  s_cmp_lg_u32 s57, 0")
            A("  s_cbranch_scc1 L_first")
        for t in range(1, U): paced("V", d, t)
    A(f"  v_add_u32 v{vWp}, 512, v{vWp}")
    A("  s_sub_u32 s38, s38, 1")
    A("  s_cmp_lg_u32 s38, 0")
    A("  s_cbranch_scc1 L_kk")
    C("true max of the fixed share per head; accumulators; v[8:11] keeps bf16 element lane&7 of an operand")
    for ln in allmax(vm): A(ln)
    A("  v_and_b32 v3, 1, v0")
    A("  v_mov_b32 v17, 0xffff")
    A("  v_lshlrev_b32 v3, 4, v3")
    A("  v_lshlrev_b32 v17, v3, v17")
    A("  v_bfe_u32 v3, v0, 1, 2")
    for r in range(4):
        A(f"  v_cmp_eq_u32 vcc, {r}, v3")
        A(f"  v_mov_b32 v{vO+r}, 0")
        A("  s_nop 0")
        A(f"  v_cndmask_b32 v{vM+r}, 0, v17, vcc")
    A(f"  v_mov_b32 v{vl}, 0")
    A(f"  s_movk_i32 s38, {HS//4}")
    C("pass 2: two V blocks per buffer")
    A("L_vv:")
    A("  s_cmp_lg_u32 s38, 1")
    A("  s_cbranch_scc1 L_vv0")
    C("the last trip refills with one K and one V block per buffer")
    A("  s_mov_b64 s[20:21], s[32:33]")
    A("  s_mov_b64 s[24:25], s[34:35]")
    A(f"  s_mov_b32 s37, {STEP}")
    A(f"  v_mov_b32 v1, v{vKp}")
    A(f"  ds_write_b32 v{aFl}, v{aOne} offset:24")
    stamp(12)
    for d in range(2):
        A(f"L_vv{d}:")
        A(f"  ds_read_b128 v[{vS}:{vS+3}], v{vRp} offset:{d*256}")
        A(f"  ds_read_b128 v[{vS2}:{vS2+3}], v{vRp} offset:{d*256+128}")
        nextblk(d)
        A("  s_waitcnt lgkmcnt(0)")
        if d == 1:
            A("  s_cmp_lg_u32 s38, 1")
            A("  s_cbranch_scc1 L_vv2")
            A(f"  s_movk_i32 s60, {BLK}")
            A("  s_atomic_add s60, s[46:47], 0 glc")
            A("L_vv2:")
        for ln in probs(vS): A(ln)
        pv(d, True, "K")
        paced("K", d, 0)
        X = probs(vS2)
        for i, ln in enumerate(X):
            if i == len(X) // 2: paced("K", d, 1)
            A(ln)
        paced("K", d, 2)
        paced("K", d, 3)
        pv(d, True, "V")
        for t in range(U): paced("V", d, t)
    A(f"  v_add_u32 v{vRp}, 512, v{vRp}")
    A("  s_sub_u32 s38, s38, 1")
    A("  s_cmp_lg_u32 s38, 0")
    A("  s_cbranch_scc1 L_vv")
    def body(d):
        qk(d, True)
        A(f"  s_cbranch_scc1 L_sk{d}")
        A("  s_waitcnt lgkmcnt(0)")
        A("  s_and_b32 s56, s60, 4096")
        A("  s_lshr_b32 s56, s56, 1")
        A(f"  s_add_u32 s{sSlot+d}, s60, {STATIC}")
        A(f"  s_sub_u32 s{sSlot+d}, s{sSlot+d}, s56")
        A(f"  s_cmp_ge_u32 s{sSlot+d}, {PAIRB}")
        A(f"  s_cbranch_scc1 L_dy{d}")
        A(f"  s_waitcnt vmcnt({WK[0]-1})")
        A(f"  s_movk_i32 s60, {BLK}")
        A("  s_atomic_add s60, s[46:47], 0 glc")
        loads("K", d, 0)
        A(f"L_sk{d}:")
        X = softmax()
        for i, ln in enumerate(X):
            for t in range(1, U):
                if i == cuts[t - 1]:
                    A(f"  s_cbranch_scc1 L_sk{d}_{t}")
                    paced("K", d, t)
                    A(f"L_sk{d}_{t}:")
            A(ln)
        A(f"  s_cbranch_scc1 L_dw{d}")
        A(f"L_dr{d}:")
        pv(d, True)
        A(f"  s_cbranch_scc1 L_sv{d}")
        for t in range(U): paced("V", d, t)
    C("remaining blocks, online softmax; SCC = 1 inside a body means no further block is loaded")
    C("s60: ticket in flight, s48/s49: block held by each buffer")
    for d in range(2):
        A(f"L_go{d}:")
        body(d)
    A("  s_branch L_go0")
    C("first trip only: the blocks prefetched while q was being produced")
    A("L_first:")
    A("  s_mov_b32 s57, 0")
    A(f"  v_mov_b32 v13, v{vWp}")
    stamp(13)
    A("  s_waitcnt vmcnt(13)")
    for e in range(2):
        qk(2 + e, False, "K")
        keep_scores(256 + e * 256)
        qk(2 + e, False, "V")
        keep_scores(384 + e * 256)
        paced("V", 0, 1 + e)
    A(f"  v_add_u32 v{vWp}, 512, v{vWp}")
    A(f"  v_mov_b32 v{vRp}, v13")
    A(f"  v_mov_b32 v{vKp}, v1")
    A("  v_and_b32 v3, 31, v0")
    A(f"  v_lshlrev_b32 v{vVp}, 4, v3")
    A("  v_lshrrev_b32 v3, 5, v0")
    A(f"  v_lshl_add_u32 v{vVp}, v3, 12, v{vVp}")
    stamp(14)
    C("addresses for the tail, kept in the freed buffer")
    A("  v_lshrrev_b32 v116, 4, v0")
    A("  v_lshlrev_b32 v117, 4, v0")
    A(f"  v_add_u32 v{aPr}, {L_P}, v117")
    A("  s_lshl_b32 s44, s3, 10")
    A(f"  v_add_u32 v{aP}, s44, v{aPr}")
    A("  v_and_b32 v117, 8, v0")
    A(f"  v_add_u32 v{aMLr}, {L_ML}, v117")
    A("  s_lshl_b32 s44, s3, 4")
    A(f"  v_add_u32 v{aML}, s44, v{aMLr}")
    A(f"  v_lshlrev_b32 v{aPub}, 10, v117")
    A(f"  v_lshl_add_u32 v{aPub}, v116, 7, v{aPub}")
    A("  v_and_b32 v118, 7, v0")
    A(f"  v_lshl_add_u32 v{aPub}, v118, 4, v{aPub}")
    A("  s_lshl_b32 s44, s3, 7")
    A(f"  s_add_u32 s44, s44, {L_O}")
    A(f"  v_lshl_add_u32 v{aO}, v117, 3, s44")
    A(f"  v_lshl_add_u32 v{aO}, v118, 1, v{aO}")
    A("  v_lshrrev_b32 v118, 5, v0")
    A(f"  v_lshl_add_u32 v{aO}, v118, 4, v{aO}")
    A("  v_bfe_u32 v118, v0, 4, 1")
    A(f"  v_lshl_add_u32 v{aO}, v118, 5, v{aO}")
    A("  v_and_b32 v118, 15, v0")
    A(f"  v_lshlrev_b32 v{aRec}, 9, v116")
    A(f"  v_lshl_add_u32 v{aRec}, v118, 4, v{aRec}")
    A("  v_bfe_u32 v117, v0, 2, 2")
    A("  v_and_b32 v118, 3, v0")
    A(f"  v_lshl_add_u32 v{aWo}, v116, 3, v117")
    A(f"  v_mul_u32_u24 v{aWo}, 288, v{aWo}")
    A(f"  v_mad_u32_u24 v{aWo}, v118, 24, v{aWo}")
    A("  s_mul_i32 s44, s3, 96")
    A(f"  v_add_u32 v{aWo}, s44, v{aWo}")
    A(f"  v_lshlrev_b32 v{aOf}, 7, v117")
    A(f"  v_lshl_add_u32 v{aOf}, v116, 4, v{aOf}")
    A(f"  v_add_u32 v{aOf}, {L_O}, v{aOf}")
    if y2:
        A("  v_bfe_u32 v119, v0, 4, 1")
        A(f"  v_lshlrev_b32 v{aY}, 13, v119")
        A("  v_lshrrev_b32 v119, 5, v0")
        A(f"  v_lshl_add_u32 v{aY}, v119, 15, v{aY}")
        A("  v_bfe_u32 v119, v0, 3, 1")
        A(f"  v_lshl_add_u32 v{aY}, v119, 16, v{aY}")
        A("  v_and_b32 v118, 7, v0")
    elif outx:
        A(f"  v_lshlrev_b32 v{aY}, 13, v116")
        A(f"  v_lshl_add_u32 v{aY}, v117, 15, v{aY}")
    else:
        A(f"  v_mul_u32_u24 v{aY}, 196608, v116")
        A(f"  v_lshl_add_u32 v{aY}, v117, 12, v{aY}")
    A(f"  v_lshl_add_u32 v{aY}, v118, 4, v{aY}")
    A(f"  v_mov_b32 v{aFl}, {L_FLAG}")
    A(f"  v_mov_b32 v{aOne}, 1")
    if outx:
        A("  s_bfe_u32 s44, s2, 0x10006")
        A("  s_mul_i32 s58, s44, 3")
        A("  s_add_u32 s58, s58, s3")
        A("  s_lshl_b32 s58, s58, 17")
        A("  s_lshr_b32 s44, s2, 7")
        A(f"  s_lshl_b32 s44, s44, {14 if y2 else 12}")
        A("  s_add_u32 s58, s58, s44")
        A("  s_and_b32 s44, s2, 63")
        A(f"  s_lshl_b32 s44, s44, {7 if y2 else 6}")
        A("  s_add_u32 s58, s58, s44")
    else:
        A("  s_lshr_b32 s44, s2, 6")
        A("  s_mul_i32 s58, s44, 49152")
        A("  s_and_b32 s44, s2, 63")
        A("  s_lshl_b32 s44, s44, 6")
        A("  s_add_u32 s58, s58, s44")
        A("  s_lshl_b32 s44, s3, 14")
        A("  s_add_u32 s58, s58, s44")
    A(f"  s_add_u32 s58, s58, {WS_YG}")
    A("  s_and_b32 s55, s2, 0xf0")
    A("  s_lshl_b32 s55, s55, 10")
    A("  s_and_b32 s44, s2, 15")
    A("  s_lshl_b32 s44, s44, 9")
    A("  s_add_u32 s55, s55, s44")
    A(f"  s_add_u32 s55, s55, {WS_PG}")
    recbase(54, 44)
    A("  s_lshl_b32 s44, s3, 16")
    A("  s_add_u32 s54, s54, s44")
    paced("V", 0, 3)
    A("  s_branch L_kk1")
    for d in range(2):
        A(f"L_dy{d}:")
        stamp(15)
        A("  s_mov_b64 exec, 1")
        A(f"  ds_add_u32 v{aFl}, v{aOne} offset:8")
        A("  s_mov_b64 exec, -1")
        A(f"  s_branch L_sk{d}")
        A(f"L_sv{d}:")
        A("  s_waitcnt vmcnt(4)")
        A(f"  s_branch L_go{1-d}")
        A(f"L_dw{d}:")
        A("  s_waitcnt vmcnt(8)")
        A(f"  s_cmp_lt_u32 s{sSlot+1-d}, {PAIRB}")
        A(f"  s_cbranch_scc1 L_dr{d}")
        C("last block of this wave")
        A(f"  v_mov_b32 v{vb}, v{vl}")
        A("  s_mov_b32 s61, 0x1000000")
        A("  s_nop 0")
        A(f"  v_permlane32_swap_b32 v{vl}, v{vb}")
        A(f"  v_add_f32 v{vl}, v{vl}, v{vb}")
        A(f"  v_mov_b32 v{vb}, v{vl}")
        A("  s_nop 1")
        A(f"  v_permlane16_swap_b32 v{vl}, v{vb}")
        A(f"  v_add_f32 v{vl}, v{vl}, v{vb}")
        A(f"  ds_write_b64 v{aML}, v[{vm}:{vl}]")
        A(f"L_sel{d}:")
        A(f"  ds_read_b32 v3, v{aFl} offset:20")
        A("  s_waitcnt lgkmcnt(0)")
        A("  v_readfirstlane_b32 s44, v3")
        A("  s_cmp_lg_u32 s44, 0")
        spin_tail(f"L_selok{d}", f"L_sel{d}", 0)
        A("  s_and_b32 s44, s44, 0x2000")
        A("  s_xor_b32 s54, s54, s44")
        A(f"  v_xor_b32 v{aPub}, s44, v{aPub}")
        for t in range(U):
            r = reg("V", d, t)
            A(f"  s_waitcnt vmcnt({3-t})")
            A(f"  v_mfma_f32_16x16x32_bf16 v[{vO}:{vO+3}], v[{r}:{r+3}], v[{vB+4*t}:{vB+4*t+3}], v[{vO}:{vO+3}]")
        if d == 0 or align: A("  s_branch L_done")
        else: A("  s_nop 0")
    def frags():
        for ks in range(2):
            for tl in range(3):
                r = 44 + 12 * ks + 4 * tl
                A(f"  ds_read_b64_tr_b16 v[{r}:{r+1}], v{aWo} offset:{tl*8 + ks*9216}")
                A(f"  ds_read_b64_tr_b16 v[{r+2}:{r+3}], v{aWo} offset:{tl*8 + ks*9216 + 1152}")
    if align:
        A(".p2align 9")
        A("L_latewo:")
        frags()
        A("  s_waitcnt lgkmcnt(0)")
        A("  s_branch L_havewo2")
    A("L_done:")
    stamp(2)
    C("the last wave to arrive merges the four partial results and publishes the record")
    A("  s_nop 6")
    A(f"  ds_write_b128 v{aP}, v[{vO}:{vO+3}]")
    A("  s_mov_b64 exec, 1")
    A(f"  ds_add_rtn_u32 v3, v{aFl}, v{aOne} offset:16")
    A("  s_mov_b64 exec, -1")
    for w in range(4):
        A(f"  ds_read_b64 v[{40+2*w}:{41+2*w}], v{aMLr} offset:{w*16}")
    for w in range(4):
        A(f"  ds_read_b128 v[{24+4*w}:{27+4*w}], v{aPr} offset:{w*1024}")
    A(f"  v_mov_b32 v23, s{sTag}")
    A("  s_mov_b32 s61, 0x40000")
    A("  s_waitcnt lgkmcnt(4)")
    A("  v_readfirstlane_b32 s44, v3")
    A("  v_max3_f32 v20, v40, v42, v44")
    A("  v_max_f32 v20, v20, v46")
    for w in range(4): A(f"  v_sub_f32 v{40+2*w}, v{40+2*w}, v20")
    A("  s_cmp_eq_u32 s44, 3")
    A("  s_cbranch_scc0 L_gather")
    for w in range(4): A(f"  v_mul_f32 v{40+2*w}, s{sC}, v{40+2*w}")
    for w in range(4): A(f"  v_exp_f32 v{40+2*w}, v{40+2*w}")
    A("  s_nop 0")
    A("  v_mul_f32 v22, v40, v41")
    for w in range(1, 4): A(f"  v_fmac_f32 v22, v{40+2*w}, v{41+2*w}")
    A("  s_waitcnt lgkmcnt(0)")
    A("  v_pk_mul_f32 v[24:25], v[24:25], v[40:41] op_sel_hi:[1,0]")
    A("  v_pk_mul_f32 v[26:27], v[26:27], v[40:41] op_sel_hi:[1,0]")
    A("  v_rcp_f32 v48, v22")
    A("  v_log_f32 v22, v22")
    for w in range(1, 4):
        for h in range(2):
            A(f"  v_pk_fma_f32 v[{24+2*h}:{25+2*h}], v[{24+4*w+2*h}:{25+4*w+2*h}], v[{40+2*w}:{41+2*w}], v[{24+2*h}:{25+2*h}] op_sel_hi:[1,0,1]")
    A(f"  v_fmac_f32 v22, s{sC}, v20")
    A("  v_pk_mul_f32 v[24:25], v[24:25], v[48:49] op_sel_hi:[1,0]")
    A("  v_pk_mul_f32 v[26:27], v[26:27], v[48:49] op_sel_hi:[1,0]")
    A("  v_cvt_pk_bf16_f32 v20, v24, v25")
    A("  v_cvt_pk_bf16_f32 v21, v26, v27")
    if "r" not in cut: A(f"  buffer_store_dwordx4 v[20:23], v{aPub}, s[28:31], s55 offen sc1")
    stamp(3)
    if align:
        A("  s_branch L_gather")
        A(".p2align 9")
    C("wave w gathers 64 columns of o for batch w from the four records of that pair")
    if wo_pub == 5: A(f"  ds_write_b32 v{aFl}, v{aOne} offset:28")
    if gate == 3: A("  s_waitcnt vmcnt(0)")
    if gate >= 2:
        A("  s_mov_b64 exec, 1")
        A(f"  ds_add_u32 v{aFl}, v{aOne} offset:16")
        A("  s_mov_b64 exec, -1")
    A("L_gather:")
    if gate:
        A(f"  ds_read_b32 v3, v{aFl} offset:16")
        A("  s_waitcnt lgkmcnt(0)")
        A("  v_readfirstlane_b32 s44, v3")
        A(f"  s_cmp_ge_u32 s44, {3+min(gate,2)}")
        spin_tail("L_gate_ok", "L_gather", gsleep)
        if pdelay: A(f"  s_sleep {pdelay}")
        A("  s_mov_b32 s61, 0x40000")
    else:
        A("  s_waitcnt lgkmcnt(0)")
    if dbl:
        A(f"  buffer_load_dwordx4 v[68:71], v{aRec}, s[28:31], s54 offen sc1")
        A(f"  ds_read_b32 v3, v{aFl} offset:12")
        frags()
        A("  s_waitcnt lgkmcnt(0)")
        A("  v_readfirstlane_b32 s57, v3")
        A("L_ppoll:")
        for a, b in ((68, 72), (72, 68)):
            A(f"  buffer_load_dwordx4 v[{b}:{b+3}], v{aRec}, s[28:31], s54 offen sc1")
            A("  s_waitcnt vmcnt(1)")
            A(f"  v_cmp_eq_u32 vcc, s{sTag}, v{a+3}")
            A(f"  v_mov_b32 v28, v{a+2}")
            A(f"  v_mov_b32 v29, v{a+2}")
            A(f"  v_mov_b32 v26, v{a+2}")
            A("  s_cmp_eq_u64 vcc, -1")
            A(f"  v_lshlrev_b32 v32, 16, v{a}")
            A(f"  v_and_b32 v33, 0xffff0000, v{a}")
            A(f"  v_lshlrev_b32 v34, 16, v{a+1}")
            A(f"  v_and_b32 v35, 0xffff0000, v{a+1}")
            A("  s_cbranch_scc1 L_pdone")
        A("  s_cmp_lg_u32 s57, 0")
        A("  s_cbranch_scc1 L_havewo")
        A(f"  ds_read_b32 v3, v{aFl} offset:12")
        frags()
        A("  s_waitcnt lgkmcnt(0)")
        A("  v_readfirstlane_b32 s57, v3")
        A("L_havewo:")
        A("  s_sub_u32 s61, s61, 1")
        A("  s_cbranch_scc0 L_ppoll")
        A("L_pdone:")
        stamp(10)
        A("  v_permlane32_swap_b32 v28, v29")
        A("  v_max_f32 v28, v28, v29")
        A("  v_mov_b32 v29, v28")
        A("  s_nop 1")
        A("  v_permlane16_swap_b32 v28, v29")
        A("  v_max_f32 v28, v28, v29")
        A("  v_sub_f32 v28, v26, v28")
        A("  v_exp_f32 v28, v28")
        A("  s_nop 0")
    else:
        if "p" in cut: A("  s_branch L_pdone")
        A("L_ppoll:")
        A(f"  buffer_load_dwordx4 v[24:27], v{aRec}, s[28:31], s54 offen sc1")
        A("  s_cmp_lg_u32 s57, 0")
        A("  s_cbranch_scc1 L_havewo")
        A(f"  ds_read_b32 v3, v{aFl} offset:12")
        frags()
        A("  s_waitcnt lgkmcnt(0)")
        A("  v_readfirstlane_b32 s57, v3")
        A("L_havewo:")
        A("  s_waitcnt vmcnt(0)")
        A(f"  v_cmp_eq_u32 vcc, s{sTag}, v27")
        A("  v_mov_b32 v28, v26")
        A("  v_mov_b32 v29, v26")
        A("  s_cmp_eq_u64 vcc, -1")
        spin_tail("L_pdone", "L_ppoll", psleep)
        if stamps: A("  s_mov_b32 s86, s61")
        stamp(10)
        A("  v_permlane32_swap_b32 v28, v29")
        A("  v_max_f32 v28, v28, v29")
        A("  v_mov_b32 v29, v28")
        A("  v_lshlrev_b32 v32, 16, v24")
        A("  v_and_b32 v33, 0xffff0000, v24")
        A("  v_permlane16_swap_b32 v28, v29")
        A("  v_max_f32 v28, v28, v29")
        A("  v_sub_f32 v28, v26, v28")
        A("  v_exp_f32 v28, v28")
        A("  v_lshlrev_b32 v34, 16, v25")
        A("  v_and_b32 v35, 0xffff0000, v25")
    A("  v_mov_b32 v29, v28")
    A("  v_pk_mul_f32 v[32:33], v[32:33], v[28:29] op_sel_hi:[1,0]")
    A("  v_pk_mul_f32 v[34:35], v[34:35], v[28:29] op_sel_hi:[1,0]")
    A("  v_permlane32_swap_b32 v28, v29")
    A("  v_permlane32_swap_b32 v32, v33")
    A("  v_permlane32_swap_b32 v34, v35")
    A("  v_add_f32 v28, v28, v29")
    A("  v_mov_b32 v29, v28")
    A("  v_add_f32 v32, v32, v33")
    A("  v_add_f32 v34, v34, v35")
    A("  v_permlane16_swap_b32 v28, v29")
    A("  v_add_f32 v28, v28, v29")
    A("  v_permlane16_swap_b32 v32, v34")
    A("  v_rcp_f32 v28, v28")
    A("  v_add_f32 v32, v32, v34")
    A("  v_mul_f32 v32, v32, v28")
    A("  v_cvt_pk_bf16_f32 v32, v32, v32")
    A(f"  ds_write_b16 v{aO}, v32")
    A("  s_cmp_eq_u32 s3, 3")
    A("  s_waitcnt lgkmcnt(0)")
    A("  s_barrier")
    stamp(4)
    A("  s_cbranch_scc1 L_fin5")
    C("waves 0-2: 48 columns of o@wo each, all four batches")
    A(f"  ds_read_b128 v[36:39], v{aOf}")
    A(f"  ds_read_b128 v[40:43], v{aOf} offset:64")
    A("  s_cmp_lg_u32 s57, 0")
    if align:
        A("  s_cbranch_scc0 L_latewo")
    else:
        A("  s_cbranch_scc1 L_havewo2")
        frags()
        A("  s_waitcnt lgkmcnt(0)")
    A("L_havewo2:")
    A("  s_waitcnt lgkmcnt(1)")
    for tl in (2, 1, 0):
        A(f"  v_mfma_f32_16x16x32_bf16 v[{24+4*tl}:{27+4*tl}], v[36:39], v[{44+4*tl}:{47+4*tl}], 0")
    A("  s_waitcnt lgkmcnt(0)")
    for tl in (2, 1, 0):
        A(f"  v_mfma_f32_16x16x32_bf16 v[{24+4*tl}:{27+4*tl}], v[40:43], v[{56+4*tl}:{59+4*tl}], v[{24+4*tl}:{27+4*tl}]")
    A("  s_nop 5")
    A("  v_mov_b32 v22, v32")
    A("  v_mov_b32 v21, v28")
    A("  v_mov_b32 v20, v24")
    if "s" not in cut: A(f"  buffer_store_dwordx4 v[20:23], v{aY}, s[28:31], s58 offen sc1")
    if bar4 == 2: A("  s_waitcnt vmcnt(0)")
    if bar4: A("  s_barrier")
    A("L_fin5:")
    stamp(5)
    if stamps: A("  s_branch L_fin")
    else: A("  s_endpgm")
    def warm_code(tag, first):
        C("pull the code that runs later into this die's L2")
        if not warmall:
            A("  s_lshr_b32 s45, s2, 3")
            A("  s_cmp_lg_u32 s45, 1")
            A(f"  s_cbranch_scc1 L_nowarm{tag}")
        A("  s_getpc_b64 s[52:53]")
        A(f"L_pc{tag}:")
        A(f"  s_sub_u32 s52, s52, L_pc{tag}-{first}")
        A("  s_subb_u32 s53, s53, 0")
        A("  v_lshlrev_b32 v5, 7, v0")
        A(f"  v_min_u32 v5, L_end-{first}, v5")
        A("  global_load_dword v133, v5, s[52:53]")
        A(f"L_nowarm{tag}:")
    C("---- helper wave, continued")
    A("L_help:")
    A("  s_load_dword s60, s[18:19], 0")
    stamp(9)
    A("  s_mov_b64 s[28:29], s[18:19]")
    A(f"  s_mov_b32 s30, {WS_SIZE}")
    A("  s_mov_b32 s31, 0x20000")
    if warm & 4: warm_code("c", "L_qwait")
    A("  s_mov_b32 s61, 0x40000")
    A("  v_mul_u32_u24 v7, 1152, v8")
    A("  v_lshl_add_u32 v7, v9, 3, v7")
    A("  v_lshrrev_b32 v10, 2, v0")
    A("  v_lshlrev_b32 v10, 7, v10")
    A("  v_lshl_add_u32 v10, v8, 3, v10")
    A("  v_bfe_u32 v5, v0, 3, 2")
    A("  v_lshl_add_u32 v10, v5, 5, v10")
    for j in range(1, 4):
        A(f"  v_xor_b32 v{10+j}, {32*j}, v10")
    C("q granule address: (b*16 + hkv)*4096 + quarter*1024 + ((group&3)*16 + tile*4 + (lane>>4))*16")
    A("  v_lshlrev_b32 v4, 16, v8")
    A("  v_lshl_add_u32 v4, v9, 4, v4")
    A("  v_bfe_u32 v5, v0, 2, 2")
    A("  v_lshl_add_u32 v4, v5, 6, v4")
    A("  s_lshr_b32 s45, s44, 2")
    A("  s_lshl_b32 s45, s45, 12")
    A("  s_lshl_b32 s46, s47, 10")
    A("  s_add_u32 s45, s45, s46")
    A("  s_and_b32 s46, s44, 3")
    A("  s_lshl_b32 s46, s46, 8")
    A("  s_add_u32 s45, s45, s46")
    A(f"  s_add_u32 s45, s45, {WS_QG}")
    A("  s_mov_b32 s56, 0xf0f0f0f0")
    A("  s_mov_b32 s57, 0xf0f0f0f0")
    A("  s_mov_b32 s58, 0xff00ff00")
    A("  s_mov_b32 s59, 0xff00ff00")
    A("  s_mov_b32 s50, 0x07060501")
    A("  s_mov_b32 s51, 0x07060502")
    A("  s_mov_b32 s52, 0x07060503")
    A("  s_waitcnt lgkmcnt(0)")
    A(f"  s_mul_i32 s{sTag}, s60, 0x9e3779b1")
    A(f"  s_add_u32 s{sTag}, s{sTag}, 0x7f4a7c15")
    A(f"  v_mov_b32 v23, s{sTag}")
    vX = 40; vW = 60
    A("  s_waitcnt vmcnt(18)")
    for t in range(9):
        A(f"  ds_read_b64 v[{vX+2*t}:{vX+2*t+1}], v7 offset:{L_P + t*32}")
    def qmfma(t):
        for j in range(4):
            r = vW + 8 * t + 2 * j
            c = "0" if t == 0 else f"v[{24+4*j}:{27+4*j}]"
            A(f"  v_mfma_f32_16x16x16_bf16 v[{24+4*j}:{27+4*j}], v[{r}:{r+1}], v[{vX+2*t}:{vX+2*t+1}], {c}")
    for t in range(9):
        A(f"  s_waitcnt vmcnt({16-2*t})")
        if t == 8: stamp(10)
        if t == 1: A("  s_waitcnt lgkmcnt(4)")
        for j in range(4):
            r = vW + 8 * t + 2 * j
            A(f"  ds_read_b64_tr_b16 v[{r}:{r+1}], v{10+j} offset:{t*2048}")
        if t >= 1:
            A("  s_waitcnt lgkmcnt(4)")
            qmfma(t - 1)
    A("  s_waitcnt lgkmcnt(0)")
    qmfma(8)
    A("  s_nop 5")
    C("four partial sums keep their upper 24 bits in three dwords")
    for r in range(4):
        A(f"  v_cndmask_b32 v{24+r}, v{24+r}, v{28+r}, s[56:57]")
    for r in range(4):
        A(f"  v_cndmask_b32 v{32+r}, v{32+r}, v{36+r}, s[56:57]")
    for r in range(4):
        A(f"  v_cndmask_b32 v{24+r}, v{24+r}, v{32+r}, s[58:59]")
    for r in range(3):
        A(f"  v_perm_b32 v{20+r}, v{24+r}, v27, s{50+r}")
    A("  buffer_store_dwordx4 v[20:23], v4, s[28:31], s45 offen sc1")
    stamp(1)
    A("  s_lshr_b32 s45, s2, 2")
    A("  s_lshl_b32 s45, s45, 12")
    A(f"  s_add_u32 s45, s45, {WS_QG}")
    A("  v_lshlrev_b32 v11, 3, v0")
    A(f"  v_add_u32 v11, {L_Q}, v11")
    A("  s_mov_b32 s50, 0x0c04000c")
    A("  s_mov_b32 s51, 0x04020100")
    A("  s_mov_b32 s52, 0xffffff00")
    if qack: A("  s_waitcnt vmcnt(0)")
    if nq:
        A("L_wait_nq:")
        A("  ds_read_b32 v24, v3 offset:28")
        A("  s_waitcnt lgkmcnt(0)")
        A("  v_readfirstlane_b32 s46, v24")
        A("  s_cmp_lg_u32 s46, 0")
        spin_tail("L_nq_go", "L_wait_nq", 1)
        A("  s_mov_b32 s61, 0x40000")
    def qload(j):
        A(f"  buffer_load_dwordx4 v[{24+4*j}:{27+4*j}], v2, s[28:31], s45 offen offset:{j*1024} sc1")
    for j in range(4): qload(j)
    A("L_qpoll:")
    A("  s_waitcnt vmcnt(0)")
    A("  s_mov_b32 s46, 0")
    for j in range(4):
        A(f"  v_cmp_ne_u32 vcc, s{sTag}, v{27+4*j}")
        A(f"  s_cbranch_vccz L_qok{j}")
        qload(j)
        A("  s_mov_b32 s46, 1")
        A(f"L_qok{j}:")
    A("  s_cmp_eq_u32 s46, 0")
    A("  s_cbranch_scc1 L_qdone")
    A("  s_sub_u32 s61, s61, 1")
    A("  s_cbranch_scc0 L_qpoll")
    A("  s_waitcnt vmcnt(0)")
    A("L_qdone:")
    for j in range(4):
        A(f"  v_perm_b32 v{27+4*j}, v{25+4*j}, v{24+4*j}, s50")
        A(f"  v_perm_b32 v{27+4*j}, v{26+4*j}, v{27+4*j}, s51")
        for r in range(3):
            A(f"  v_and_b32 v{24+4*j+r}, s52, v{24+4*j+r}")
    for r in range(4):
        A(f"  v_add_f32 v{24+r}, v{24+r}, v{28+r}")
        A(f"  v_add_f32 v{32+r}, v{32+r}, v{36+r}")
    for r in range(4):
        A(f"  v_add_f32 v{24+r}, v{24+r}, v{32+r}")
    A("  v_cvt_pk_bf16_f32 v24, v24, v25")
    A("  v_cvt_pk_bf16_f32 v25, v26, v27")
    A("  v_mov_b32 v22, 1")
    A("  ds_write_b64 v11, v[24:25]")
    A("  ds_write_b64 v3, v[22:23]")
    if stamps: A("  s_mov_b32 s86, s61")
    stamp(12)
    if vtouch:
        A("  s_andn2_b32 s45, s2, 3")
        A("  s_lshl_b32 s45, s45, 19")
        A("  v_mov_b32 v5, s45")
        A("  s_mov_b64 exec, 1")
        A("  global_load_dword v130, v5, s[8:9] nt")
        A("  s_mov_b64 exec, -1")
    if warm & 1: warm_code("a", "L_vv")
    C("workgroup 0 times both 8 KiB-interleaved halves of the hand-off area and publishes which is closer;")
    C("every workgroup lays out the records and picks its reducer slot with that one bit")
    A("  s_cmp_lg_u32 s2, 0")
    A("  s_cbranch_scc1 L_pwait")
    A(f"  s_movk_i32 s44, {probe}")
    A("  s_mov_b32 s45, -1")
    A("  s_mov_b32 s47, -1")
    A("  s_memtime s[48:49]")
    A("  s_waitcnt lgkmcnt(0)")
    A("L_probe:")
    A("  s_load_dword s46, s[18:19], 0x8000 glc")
    A("  s_waitcnt lgkmcnt(0)")
    A("  s_memtime s[50:51]")
    A("  s_waitcnt lgkmcnt(0)")
    A("  s_load_dword s46, s[18:19], 0xa000 glc")
    A("  s_waitcnt lgkmcnt(0)")
    A("  s_sub_u32 s52, s50, s48")
    A("  s_memtime s[48:49]")
    A("  s_waitcnt lgkmcnt(0)")
    A("  s_sub_u32 s53, s48, s50")
    A("  s_min_u32 s45, s45, s52")
    A("  s_min_u32 s47, s47, s53")
    A("  s_sub_u32 s44, s44, 1")
    A("  s_cmp_lg_u32 s44, 0")
    A("  s_cbranch_scc1 L_probe")
    if stamps:
        A("  s_mov_b32 s70, s45")
        A("  s_mov_b32 s72, s47")
        A("  s_mov_b32 s92, 0")
    A("  s_cmp_gt_u32 s45, s47")
    A("  s_cselect_b32 s45, 0x2001, 1")
    A("  v_mov_b32 v24, s45")
    A("  v_mov_b32 v25, v23")
    A("  s_mov_b64 exec, 1")
    A(f"  buffer_store_dwordx2 v[24:25], v2, s[28:31], 0 offen offset:{WS_POL} sc1")
    A("  s_mov_b64 exec, -1")
    if early_epoch:
        C("advance the launch counter once all 256 producers have published q, hence read the counter")
        A("  v_lshlrev_b32 v4, 10, v0")
        A(f"  s_mov_b32 s45, {WS_QG}")
        A("  s_mov_b32 s61, 0x40000")
        A("L_allq:")
        for j in range(4):
            A(f"  buffer_load_dword v{28+j}, v4, s[28:31], s45 offen offset:{j*256+12} sc1")
        A("  s_waitcnt vmcnt(0)")
        A("  v_min3_u32 v32, v28, v29, v30")
        A("  v_max3_u32 v33, v28, v29, v30")
        A("  v_min_u32 v32, v32, v31")
        A("  v_max_u32 v33, v33, v31")
        A(f"  v_cmp_eq_u32 vcc, s{sTag}, v32")
        A(f"  v_cmp_eq_u32 s[62:63], s{sTag}, v33")
        A("  s_and_b64 vcc, vcc, s[62:63]")
        A("  s_cmp_eq_u64 vcc, -1")
        spin_tail("L_allq_ok", "L_allq", 16)
        A("  s_mov_b64 exec, 1")
        A("  buffer_store_dword v23, v2, s[28:31], 0 offen sc1")
        A("  s_mov_b64 exec, -1")
    A("L_pwait:")
    A("  s_mov_b32 s61, 0x100000")
    A("L_wait_st:")
    A("  ds_read_b32 v26, v3 offset:24")
    A("  s_waitcnt lgkmcnt(0)")
    A("  v_readfirstlane_b32 s45, v26")
    A("  s_cmp_lg_u32 s45, 0")
    spin_tail("L_st_go", "L_wait_st", 8)
    if warm & 2: warm_code("b", "L_vv")
    A("  s_mov_b32 s61, 0x40000")
    A("  v_mov_b32 v4, 0")
    A("L_ppw:")
    A(f"  buffer_load_dwordx2 v[24:25], v4, s[28:31], 0 offen offset:{WS_POL} sc1")
    A("  s_waitcnt vmcnt(0)")
    A("  v_readfirstlane_b32 s45, v25")
    A("  v_readfirstlane_b32 s49, v24")
    A(f"  s_cmp_eq_u32 s45, s{sTag}")
    spin_tail("L_pgot", "L_ppw", 16)
    A("  ds_write_b32 v3, v24 offset:20")
    A("  s_and_b32 s49, s49, 0x2000")
    stamp(15)
    C("wo piece: 64 rows x 288 B, three rows per load")
    A("  s_mov_b64 s[32:33], s[12:13]")
    A("  s_and_b32 s44, s2, 63")
    A("  s_mul_i32 s44, s44, 73728")
    A("  s_lshr_b32 s45, s2, 6")
    A("  s_mul_i32 s45, s45, 288")
    A("  s_add_u32 s44, s44, s45")
    A("  v_mul_u32_u24 v4, 57, v0")
    A("  v_lshrrev_b32 v4, 10, v4")
    A("  v_mul_u32_u24 v4, 864, v4")
    A("  v_add_u32 v6, v4, v2")
    C("reducer slot s55: twelve output columns at byte offset ((s55&7)*24 + (s55>>3))*24")
    A("  s_lshr_b32 s55, s49, 12")
    A("  s_xor_b32 s55, s55, s2")
    if y2:
        A("  s_lshr_b32 s47, s55, 4")
        A("  s_lshl_b32 s47, s47, 16")
        A("  s_and_b32 s45, s55, 4")
        A("  s_lshl_b32 s45, s45, 13")
        A("  s_add_u32 s47, s47, s45")
        A("  s_and_b32 s45, s55, 1")
        A("  s_lshl_b32 s45, s45, 14")
        A("  s_add_u32 s47, s47, s45")
        A("  s_and_b32 s45, s55, 2")
        A("  s_lshl_b32 s45, s45, 12")
        A("  s_add_u32 s47, s47, s45")
        A("  s_and_b32 s45, s55, 8")
        A("  s_lshl_b32 s46, s45, 9")
        A("  s_lshl_b32 s45, s45, 3")
        A(f"  s_add_u32 s47, s47, {WS_YG}")
        A("  s_add_u32 s46, s46, s47")
        A("  s_add_u32 s47, s47, s45")
        A("  v_lshrrev_b32 v1, 2, v0")
        A("  v_lshlrev_b32 v1, 7, v1")
        A("  v_lshl_add_u32 v1, v8, 4, v1")
        A("  v_add_u32 v7, 4096, v1")
    else:
        A("  s_lshl_b32 s47, s55, 12")
        A(f"  s_add_u32 s47, s47, {WS_YG}")
        A("  s_mov_b32 s46, s47")
    A("  s_mov_b64 s[36:37], s[14:15]")
    if outx:
        A("  s_and_b32 s56, s55, 7")
        A("  s_mul_i32 s56, s56, 24")
        A("  s_lshr_b32 s45, s55, 3")
        A("  s_add_u32 s56, s56, s45")
        A("  s_mul_i32 s56, s56, 24")
    else:
        A("  s_mul_i32 s56, s55, 24")
    A("  v_lshrrev_b32 v10, 5, v0")
    A("  v_bfe_u32 v11, v0, 4, 1")
    A("  v_lshl_add_u32 v10, v11, 1, v10")
    A("  v_lshlrev_b32 v10, 3, v10")
    A("  v_lshl_add_u32 v10, v8, 1, v10")
    A("  v_lshrrev_b32 v4, 3, v0")
    A("  v_lshlrev_b32 v4, 16, v4")
    A("  v_bfe_u32 v5, v0, 1, 2")
    A("  v_lshl_add_u32 v4, v5, 9, v4")
    A("  v_and_b32 v5, 1, v0")
    A("  v_lshl_add_u32 v4, v5, 7, v4")
    recbase(54, 45)
    A("  s_xor_b32 s54, s54, s49")
    A("  v_lshlrev_b32 v5, 7, v0")
    A("  s_mov_b32 s3, 4")
    A("  s_mov_b32 m0, 0")
    A("  s_mov_b32 s61, 0x100000")
    def wait_touch():
        if align:
            A("  s_branch L_wait_end")
            A(".p2align 9")
        A("L_wait_end:")
        A("  ds_read_b32 v24, v3 offset:8")
        A("  s_waitcnt lgkmcnt(0)")
        A("  v_readfirstlane_b32 s45, v24")
        A(f"  s_cmp_ge_u32 s45, {1 if touch_first else inv_n}")
        spin_tail("L_wo_go", "L_wait_end", 2)
        stamp(13)
        C("prefetch the lines the tail reads and writes (values unused), then load the wo piece")
        A("  s_mov_b32 exec_hi, 0")
        if touch: A("  buffer_load_dword v48, v4, s[28:31], s54 offen sc1")
        A("  s_cmpk_ge_u32 s2, 192")
        A("  s_cbranch_scc1 L_notouch")
        if touch: A("  buffer_load_dword v49, v5, s[28:31], s46 offen sc1")
        if touch_out: A("  buffer_load_ushort v50, v10, s[36:39], s56 offen sc1")
        A("L_notouch:")
    def wo_load():
        A("  s_mov_b32 exec_hi, 0x3fffff")
        if wo_pub:
            A("L_wo1:")
            A("  buffer_load_dwordx4 v6, s[32:35], s44 offen nt lds")
            A("  s_addk_i32 m0, 864")
            A("  s_addk_i32 s44, 3456")
            A(f"  s_cmpk_lt_u32 m0, {864*wo_split}")
            A("  s_cbranch_scc1 L_wo1")
            A("  s_mov_b32 s61, 0x1000000")
            A("L_wait_done:")
            A(f"  ds_read_b32 v24, v3 offset:{28 if wo_pub == 5 else 16}")
            A("  s_waitcnt lgkmcnt(0)")
            A("  v_readfirstlane_b32 s45, v24")
            A(f"  s_cmp_ge_u32 s45, {1 if wo_pub == 5 else wo_pub}")
            spin_tail("L_wo_go2", "L_wait_done", 0)
        A("L_wo:")
        A("  buffer_load_dwordx4 v6, s[32:35], s44 offen nt lds")
        A("  s_addk_i32 m0, 864")
        A("  s_addk_i32 s44, 3456")
        A("  s_cmpk_lt_u32 m0, 18144")
        A("  s_cbranch_scc1 L_wo")
        A("  s_mov_b64 exec, 0x3ffff")
        A("  buffer_load_dwordx4 v6, s[32:35], s44 offen nt lds")
        A("  s_mov_b64 exec, -1")
        A("  s_mov_b32 s61, 0x40000")
        A("  s_waitcnt vmcnt(0)")
        A("  ds_write_b32 v3, v22 offset:12")
    if wo_st:
        wo_load()
        A("  s_mov_b32 s61, 0x100000")
        wait_touch()
        A("  s_mov_b64 exec, -1")
        A("  s_mov_b32 s61, 0x40000")
    else:
        wait_touch()
        if touch_first:
            A("  s_mov_b32 s61, 0x100000")
            A("L_wait_end2:")
            A("  ds_read_b32 v24, v3 offset:8")
            A("  s_waitcnt lgkmcnt(0)")
            A("  v_readfirstlane_b32 s45, v24")
            A(f"  s_cmp_ge_u32 s45, {inv_n}")
            spin_tail("L_wo_go3", "L_wait_end2", 1)
        wo_load()
    stamp(2)
    A("  s_cmpk_ge_u32 s2, 192")
    A("  s_barrier")
    stamp(5)
    A("  s_cbranch_scc1 L_fin")
    def yload(j):
        if y2: A(f"  buffer_load_dwordx4 v[{32+4*j}:{35+4*j}], v{7 if j >= 2 else 1}, s[28:31], s47 offen offset:{(j&1)*2048} sc1")
        else: A(f"  buffer_load_dwordx4 v[{32+4*j}:{35+4*j}], v2, s[28:31], s47 offen offset:{j*1024} sc1")
    if bar4: A("  s_barrier")
    if ydelay: A(f"  s_sleep {ydelay}")
    if "y" in cut: A("  s_branch L_ydone")
    for j in range(4): yload(j)
    A("L_ypoll:")
    A("  s_waitcnt vmcnt(0)")
    A("  s_mov_b32 s45, 0")
    for j in range(4):
        A(f"  v_cmp_ne_u32 vcc, s{sTag}, v{35+4*j}")
        A(f"  s_cbranch_vccz L_yok{j}")
        yload(j)
        A("  s_mov_b32 s45, 1")
        A(f"L_yok{j}:")
    A("  s_cmp_eq_u32 s45, 0")
    A("  s_cbranch_scc1 L_ydone")
    if ysleep: A(f"  s_sleep {ysleep}")
    A("  s_sub_u32 s61, s61, 1")
    A("  s_cbranch_scc0 L_ypoll")
    A("  s_waitcnt vmcnt(0)")
    A("L_ydone:")
    A("  v_pk_add_f32 v[32:33], v[32:33], v[36:37]")
    A("  v_pk_add_f32 v[40:41], v[40:41], v[44:45]")
    A("  v_add_f32 v34, v34, v38")
    A("  v_add_f32 v42, v42, v46")
    A("  v_pk_add_f32 v[32:33], v[32:33], v[40:41]")
    A("  v_add_f32 v34, v34, v42")
    A("  v_mov_b32 v35, v34")
    A("  v_permlane32_swap_b32 v32, v33")
    A("  v_add_f32 v32, v32, v33")
    A("  v_permlane32_swap_b32 v34, v35")
    A("  v_add_f32 v34, v34, v35")
    A("  s_nop 1")
    A("  v_permlane16_swap_b32 v32, v34")
    A("  v_add_f32 v32, v32, v34")
    A("  s_nop 1")
    A(f"  v_add_f32_dpp v32, v32, v32 row_ror:8 {dpp}")
    A("  s_nop 1")
    A(f"  v_add_f32_dpp v32, v32, v32 row_ror:4 {dpp}")
    A("  s_mov_b32 exec_lo, 0x000f000f")
    A("  s_mov_b32 exec_hi, 0x0000000f")
    A("  v_cvt_pk_bf16_f32 v32, v32, v32")
    if "o" not in cut: A(f"  buffer_store_short v32, v10, s[36:39], s56 offen {outflags}".rstrip())
    if not early_epoch:
        C("advance the launch counter once every workgroup has read it")
        A("  s_cmp_lg_u32 s2, 0")
        A("  s_cbranch_scc1 L_fin")
        A("  s_mov_b64 exec, 1")
        A("  buffer_store_dword v23, v2, s[28:31], 0 offen")
    A("L_fin:")
    if stamps:
        stamp(6)
        A("  s_mul_i32 s44, s2, 5")
        A("  s_add_u32 s44, s44, s3")
        A("  s_lshl_b32 s44, s44, 6")
        A(f"  s_add_u32 s44, s44, {WS_TS}")
        A("  s_mov_b32 s78, s61")
        A("  s_waitcnt lgkmcnt(0)")
        A("  s_mov_b64 exec, 1")
        for i in range(16):
            A(f"  v_mov_b32 v{64+i}, s{64+2*i}")
        A("  v_mov_b32 v3, 0")
        for j in range(4):
            A(f"  buffer_store_dwordx4 v[{64+4*j}:{67+4*j}], v3, s[28:31], s44 offen offset:{16*j}")
    A("L_end:")
    A("  s_endpgm")
    A('.section .rodata,"a"')
    A(".p2align 6")
    A(f".amdhsa_kernel {NAME}")
    A(f"  .amdhsa_next_free_vgpr {NV}")
    A("  .amdhsa_next_free_sgpr %d" % (96 if stamps else 64))
    A(f"  .amdhsa_accum_offset {(NV+3)//4*4}")
    A("  .amdhsa_group_segment_fixed_size 0")
    A("  .amdhsa_kernarg_size 64")
    A("  .amdhsa_user_sgpr_count 2")
    A("  .amdhsa_user_sgpr_kernarg_segment_ptr 1")
    A("  .amdhsa_system_sgpr_workgroup_id_x 1")
    A("  .amdhsa_float_denorm_mode_32 3")
    A(".end_amdhsa_kernel")
    return "\n".join(L) + "\n"

if __name__ == "__main__":
    import json
    cfg = json.loads(sys.argv[1]) if len(sys.argv) > 1 else {}
    sys.stdout.write(gen(**cfg))
```

```python
import math, struct, sys

def f2u(x):
    return struct.unpack('<I', struct.pack('<f', x))[0]

SCALE = math.log2(math.e) / math.sqrt(128.0)
NAME = "standalone__gqa_block_cached__decode_kernel"

HEADER = """; Kernarg layout for this problem (64 bytes, ptrs only, base s[0:1]):
;
"""

WS_POL = 256
WS_QG = 0x40000
WS_PG = 0x100000
WS_YG = 0x140000
WS_CNT = 0x300000
WS_TS = 0x1000000
WS_SIZE = 0x2000000

L_Q = 19456
L_FLAG = L_Q + 512
L_ML = L_FLAG + 32
L_O = L_Q + 640
L_P = L_O + 512
L_S = L_P + 4 * 1024
L_TOTAL = L_S + 4 * 3584

def gen(E=2, WIN0=5, hyb=30, stamps=False, pre0=2, probe=12, outflags="", psleep=0, early_epoch=True, outx=True, touch_out=False, align=False, epad=256, cut="", dbl=False, gate=2, ysleep=0, bar4=2, ydelay=0, pdelay=0, gsleep=1, wo_pub=0, wo_split=1, wo_st=0, touch=True, y2=True, inv_n=4, touch_first=False, rotk=0, qack=True, nq=0, qsleep=0, GW=4, GWd=None, tkv=False, early_inv=True, GWv=12, blk=None, Wf=5, near=None, Wv=6, WK=(5,5,5,5), WV=(6,6,6,6), cuts=(17,35,54), HS=28, vtouch=False, warm=3, warmall=False, qspread=True, tspread=True, openN=0, Wo=16, tklate=0, fast=True):
    U = 4
    QG = 0x400000 if qspread else WS_QG
    PG = 0x8000 if tspread else WS_PG
    YG = 0x10000 if tspread else WS_YG
    GS = 13 if tspread else 10
    PRB = (0x4000, 0x6000) if tspread else (0x8000, 0xa000)
    D = 2 + E
    assert E >= 1 and WIN0 >= 5
    PAIRB = 2 * 1024 * 1024
    BLK = 4096
    STEP = 16 * BLK
    STATIC = hyb * STEP
    L = []
    A = L.append
    def C(text): A(f"  ; {text}")
    dpp = "row_mask:0xf bank_mask:0xf"
    vKoff, vVoff, vT = 1, 2, 3
    vQ, vM, vO = 4, 8, 12
    vm, vl, va, vb = 16, 17, 18, 19
    vS, vD, vB = 20, 24, 24
    vK = 40
    NV = max(vK + 32 * D, 132)
    aP, aML, aPr, aMLr, aRec, aPub, aO, aOf, aWo, aY, aFl, aOne = range(104, 116)
    sTag, sC = 40, 41
    sSlot = 48
    def stamp(i):
        if stamps:
            A(f"  s_memrealtime s[{64+2*i}:{65+2*i}]")
    def spin_tail(label_ok, label_loop, sleep):
        A(f"  s_cbranch_scc1 {label_ok}")
        if sleep: A(f"  s_sleep {sleep}")
        A("  s_sub_u32 s61, s61, 1")
        A(f"  s_cbranch_scc0 {label_loop}")
        A(f"{label_ok}:")
    def recbase(dst, tmp):
        A(f"  s_and_b32 s{dst}, s2, 48")
        A(f"  s_lshl_b32 s{dst}, s{dst}, {GS}")
        A(f"  s_and_b32 s{tmp}, s2, 12")
        A(f"  s_lshl_b32 s{tmp}, s{tmp}, 9")
        A(f"  s_add_u32 s{dst}, s{dst}, s{tmp}")
        A(f"  s_and_b32 s{tmp}, s2, 1")
        A(f"  s_lshl_b32 s{tmp}, s{tmp}, 8")
        A(f"  s_add_u32 s{dst}, s{dst}, s{tmp}")
        A(f"  s_and_b32 s{tmp}, s2, 2")
        A(f"  s_lshl_b32 s{tmp}, s{tmp}, 12")
        A(f"  s_add_u32 s{dst}, s{dst}, s{tmp}")
        A(f"  s_add_u32 s{dst}, s{dst}, {PG}")
    for ln in HEADER.rstrip("\n").split("\n"): A(ln)
    A(f"; @launch grid=(256,1,1) block=(320,1,1) lds={L_TOTAL}")
    A('.amdgcn_target "amdgcn-amd-amdhsa--gfx950"')
    A(".text")
    A(f".globl {NAME}")
    if epad is not None:
        A(".p2align 9")
        if epad: A(f".fill {epad//4}, 4, 0xbf810000")
    A(".p2align 8")
    A(f".type {NAME},@function")
    A(f"{NAME}:")
    A("  s_cmpk_ge_u32 s2, 256")
    A("  s_cbranch_scc1 L_end")
    A("  s_load_dwordx16 s[4:19], s[0:1], 0")
    stamp(0)
    A("  v_lshrrev_b32 v3, 6, v0")
    A("  v_and_b32 v0, 63, v0")
    A("  v_readfirstlane_b32 s3, v3")
    C("permute the low three id bits: x -> parity(x)*4 + (x>>1)")
    A("  s_lshl_b32 s44, s2, 2")
    A("  s_lshr_b32 s44, 0x05722750, s44")
    A("  s_and_b32 s44, s44, 7")
    A("  s_xor_b32 s2, s2, s44")
    if rotk:
        A("  s_and_b32 s44, s2, 3")
        A(f"  s_lshl_b32 s44, s44, {rotk}")
        A("  s_xor_b32 s2, s2, s44")
    A("  v_lshrrev_b32 v9, 4, v0")
    A("  v_and_b32 v8, 3, v0")
    A("  s_cmp_lg_u32 s3, 0")
    A("  s_cbranch_scc1 L_attn")
    C("---- helper wave: issue the x and wq loads (64-column group id&63, row quarter id>>6)")
    A("  s_and_b32 s44, s2, 63")
    A("  s_lshr_b32 s47, s2, 6")
    A("  s_mul_i32 s45, s47, 9216")
    A("  s_add_u32 s45, s45, s44")
    A("  s_lshl_b32 s45, s45, 7")
    A("  s_mul_i32 s56, s47, 288")
    A("  v_lshlrev_b32 v2, 4, v0")
    A("  v_lshrrev_b32 v4, 3, v0")
    A("  v_and_b32 v5, 6, v4")
    A("  v_xor_b32 v5, v5, v0")
    A("  v_and_b32 v5, 7, v5")
    A("  v_lshlrev_b32 v5, 4, v5")
    A("  v_lshl_add_u32 v6, v4, 13, v5")
    A("  s_mov_b32 s34, 4718592")
    A("  s_mov_b32 s35, 0x20000")
    A("  s_movk_i32 s38, 4608")
    A("  s_mov_b32 s39, s35")
    A(f"  s_movk_i32 m0, {L_P}")
    A(f"  v_mov_b32 v3, {L_FLAG}")
    A("  v_mov_b32 v12, 0")
    A("  v_mov_b32 v13, 0")
    A("  ds_write2_b64 v3, v[12:13], v[12:13] offset0:0 offset1:1")
    A("  ds_write2_b64 v3, v[12:13], v[12:13] offset0:2 offset1:3")
    C("workgroup 4p is one of the producers of pair p's q: it clears that pair's ticket counter first")
    A("  s_lshl_b32 s46, s2, 6")
    A(f"  s_add_u32 s46, s46, {WS_CNT}")
    A("  v_mov_b32 v4, s46")
    A("  s_mov_b64 exec, 1")
    A("  s_and_b32 s46, s2, 3")
    A("  s_waitcnt lgkmcnt(0)")
    A("  s_cbranch_scc1 L_nozero")
    A("  global_store_dword v4, v12, s[18:19] sc1")
    A("L_nozero:")
    A("  s_mov_b32 exec_lo, 0x3ffff")
    A("  s_mov_b64 s[36:37], s[4:5]")
    A("  s_mov_b64 s[32:33], s[10:11]")
    for b in range(4):
        A(f"  buffer_load_dwordx4 v2, s[36:39], s56 offen offset:{b*1152} lds")
    A("  s_mov_b32 m0, 0")
    A("  s_mov_b64 exec, -1")
    A("L_wq:")
    A("  buffer_load_dwordx4 v6, s[32:35], s45 offen nt lds")
    A("  s_addk_i32 m0, 1024")
    A("  s_add_u32 s45, s45, 0x10000")
    A("  s_cmpk_lt_u32 m0, 18432")
    A("  s_cbranch_scc1 L_wq")
    A("  s_barrier")
    A("  s_branch L_help")
    C("---- attention waves")
    A("L_attn:")
    A("  s_sub_u32 s3, s3, 1")
    C("K lane offset: key (lane>>2)&3 -> rows {0,1,16,17}, 16-byte chunk (lane>>4)*4 + (lane&3)")
    A("  v_bfe_u32 v3, v0, 2, 1")
    A("  v_lshlrev_b32 v1, 8, v3")
    A("  v_bfe_u32 v3, v0, 3, 1")
    A("  v_lshl_add_u32 v1, v3, 12, v1")
    A("  v_lshl_add_u32 v1, v9, 6, v1")
    A("  v_lshl_add_u32 v1, v8, 4, v1")
    A("  s_andn2_b32 s44, s2, 3")
    A("  s_lshl_b32 s44, s44, 19")
    C("block n starts at (n>>1)*8192 + (n&1)*2048")
    A("  s_and_b32 s45, s2, 3")
    A("  s_lshl2_add_u32 s45, s45, s3")
    A("  s_and_b32 s46, s45, 1")
    A("  s_lshl_b32 s45, s45, 1")
    A("  s_sub_u32 s45, s45, s46")
    A(f"  s_lshl_b32 s{sSlot}, s45, 11")
    if near is not None:
        A("  s_lshr_b32 s45, s2, 1")
        A("  s_lshr_b32 s46, s2, 2")
        A("  s_xor_b32 s45, s45, s46")
        A(f"  s_xor_b32 s45, s45, {near}")
        A("  s_and_b32 s45, s45, 1")
        A("  s_lshl_b32 s45, s45, 13")
        A("  s_and_b32 s46, s2, 1")
        A("  s_lshl_b32 s46, s46, 15")
        A("  s_add_u32 s45, s45, s46")
        A("  s_lshr_b32 s46, s3, 1")
        A("  s_lshl_b32 s46, s46, 14")
        A("  s_add_u32 s45, s45, s46")
        A("  s_and_b32 s46, s3, 1")
        A("  s_lshl_b32 s46, s46, 11")
        A(f"  s_add_u32 s{sSlot}, s45, s46")
    A(f"  s_mov_b32 s22, {PAIRB}")
    A("  s_mov_b32 s23, 0x20000")
    A("  s_waitcnt lgkmcnt(0)")
    A("  s_add_u32 s20, s6, s44")
    A("  s_addc_u32 s21, s7, 0")
    stamp(8)
    def reg(kind, d, t):
        return vK + 32 * d + (0 if kind == "K" else 16) + 4 * t
    def loads(kind, d, t):
        srd = "s[20:23]" if kind == "K" else "s[24:27]"
        off = vKoff if kind == "K" else vVoff
        r = reg(kind, d, t)
        A(f"  buffer_load_dwordx4 v[{r}:{r+3}], v{off}, {srd}, s{sSlot+d} offen offset:{t*512} nt")
    assert E == 2 and HS % 4 == 0 and HS <= 28
    STATIC = (HS + 2) * STEP
    vKp, vVp, vRp, vS2, vWp = 120, 121, 122, 124, 12
    vsetup = ["  v_mov_b32 v2, v1", f"  s_add_u32 s24, s20, {STEP}", "  s_addc_u32 s25, s21, 0", "  s_mov_b64 s[26:27], s[22:23]"]
    setup = []
    S = setup.append
    S("  s_mov_b64 s[28:29], s[18:19]")
    S(f"  s_mov_b32 s30, {WS_SIZE}")
    S("  s_mov_b32 s31, 0x20000")
    S(f"  s_mov_b32 s{sC}, {hex(f2u(SCALE))}")
    S("  s_mov_b64 s[32:33], s[20:21]")
    S("  s_add_u32 s34, s8, s44")
    S("  s_addc_u32 s35, s9, 0")
    S(f"  s_mov_b32 s36, s{sSlot}")
    S("  s_lshr_b32 s44, s44, 13")
    S(f"  s_add_u32 s44, s44, {WS_CNT}")
    S("  s_add_u32 s46, s18, s44")
    S("  s_addc_u32 s47, s19, 0")
    S(f"  s_add_u32 s59, s{sSlot}, {8*STEP}")
    S(f"  s_mov_b32 s37, {2*STEP}")
    S("  s_mov_b32 s57, 1")
    S(f"  s_movk_i32 s38, {HS//4 - 1}")
    S("  v_bfe_u32 v3, v0, 3, 1")
    S("  v_lshlrev_b32 v18, 8, v3")
    S("  v_lshl_add_u32 v18, v9, 6, v18")
    S("  v_lshl_add_u32 v18, v8, 4, v18")
    S(f"  v_add_u32 v18, {L_Q}, v18")
    S(f"  v_mov_b32 v19, {L_FLAG}")
    S("  s_mul_i32 s44, s3, 3584")
    S(f"  s_add_u32 s44, s44, {L_S}")
    S("  v_lshrrev_b32 v3, 3, v0")
    S(f"  v_lshl_add_u32 v{vWp}, v3, 4, s44")
    S(f"  v_mov_b32 v{vm}, 0xff800000")
    n = 0
    for i, d in enumerate((0, 2, 3, 1)):
        if i: A(f"  s_add_u32 s{sSlot+d}, s{sSlot}, {i*2*STEP}")
        for kind in "KV":
            for t in range(U):
                if n == 4:
                    for ln in vsetup: A(ln)
                if n == pre0: A("  s_barrier")
                if n == WIN0:
                    for ln in setup: A(ln)
                if n >= WIN0: A(f"  s_waitcnt vmcnt({WIN0-1})")
                loads(kind, d, t)
                if nq and n == nq: A("  ds_write_b32 v19, v19 offset:28")
                n += 1
    stamp(9)
    A("  s_mov_b32 s61, 0x400000")
    A("L_qwait:")
    A("  ds_read_b64 v[20:21], v19")
    A(f"  ds_read_b128 v[{vQ}:{vQ+3}], v18")
    A("  s_waitcnt lgkmcnt(0)")
    A("  v_readfirstlane_b32 s44, v20")
    A(f"  v_readfirstlane_b32 s{sTag}, v21")
    A("  s_cmp_lg_u32 s44, 0")
    spin_tail("L_qgo", "L_qwait", 1)
    stamp(1)
    def qk(d, ring, kind="K"):
        for t in range(U):
            r = reg(kind, d, t)
            if ring: A(f"  s_waitcnt vmcnt({15-t})")
            A(f"  v_mfma_f32_16x16x32_bf16 v[{vD+4*t}:{vD+4*t+3}], v[{r}:{r+3}], v[{vQ}:{vQ+3}], 0")
    def reduce_scores():
        X = ["  s_nop 4"]
        for j in range(4):
            for t in range(U):
                if j == 0:
                    X.append(f"  v_mov_b32_dpp v{vS+t}, v{vD+4*t} quad_perm:[0,0,0,0] {dpp}")
                else:
                    X.append(f"  v_add_f32_dpp v{vS+t}, v{vD+4*t+j}, v{vS+t} quad_perm:[{j},{j},{j},{j}] {dpp}")
        return X
    def allmax(r):
        return [f"  v_mov_b32 v{vb}, v{r}", "  s_nop 1", f"  v_permlane32_swap_b32 v{r}, v{vb}", f"  v_max_f32 v{r}, v{r}, v{vb}",
                f"  v_mov_b32 v{vb}, v{r}", "  s_nop 1", f"  v_permlane16_swap_b32 v{r}, v{vb}", f"  v_max_f32 v{r}, v{r}, v{vb}"]
    def probs(S0, mid=()):
        X = [f"  v_sub_f32 v{S0+t}, v{S0+t}, v{vm}" for t in range(U)]
        X += [f"  v_mul_f32 v{S0+t}, s{sC}, v{S0+t}" for t in range(U)]
        X += [f"  v_exp_f32 v{S0+t}, v{S0+t}" for t in range(U)]
        X += list(mid)
        for t in range(U):
            X.append(f"  v_cvt_pk_bf16_f32 v{vT}, v{S0+t}, v{S0+t}")
            X += [f"  v_and_b32 v{vB+4*t+j}, v{vT}, v{vM+j}" for j in range(4)]
            X.append(f"  v_add_f32 v{vl}, v{vl}, v{S0+t}")
        return X
    def softmax():
        X = reduce_scores()
        X += [f"  v_max3_f32 v{va}, v{vm}, v{vS}, v{vS+1}", f"  v_max3_f32 v{va}, v{va}, v{vS+2}, v{vS+3}"]
        X += allmax(va)
        X += [f"  v_sub_f32 v{vb}, v{vm}, v{va}", f"  v_mul_f32 v{vb}, s{sC}, v{vb}", f"  v_exp_f32 v{vb}, v{vb}", f"  v_mov_b32 v{vm}, v{va}"]
        X += probs(vS, [f"  v_mul_f32 v{vO+r}, v{vO+r}, v{vb}" for r in range(4)] + [f"  v_mul_f32 v{vl}, v{vl}, v{vb}"])
        return X
    def keep_scores(off):
        for ln in reduce_scores(): A(ln)
        A(f"  ds_write_b128 v{vWp}, v[{vS}:{vS+3}] offset:{off}")
        A(f"  v_max3_f32 v{vm}, v{vm}, v{vS}, v{vS+1}")
        A(f"  v_max3_f32 v{vm}, v{vm}, v{vS+2}, v{vS+3}")
    def pv(d, ring, kind="V"):
        for t in range(U):
            r = reg(kind, d, t)
            if ring: A(f"  s_waitcnt vmcnt({15-t})")
            A(f"  v_mfma_f32_16x16x32_bf16 v[{vO}:{vO+3}], v[{r}:{r+3}], v[{vB+4*t}:{vB+4*t+3}], v[{vO}:{vO+3}]")
    def paced(kind, d, t):
        A(f"  s_waitcnt vmcnt({(WK if kind == 'K' else WV)[t]-1})")
        loads(kind, d, t)
    def nextblk(d):
        A(f"  s_mov_b32 s{sSlot+d}, s59")
        A("  s_add_u32 s59, s59, s37")
    C("pass 1: two K blocks per buffer; s59: next offset, s37: its step, s38: trips left")
    A("L_kk:")
    A("  s_cmp_lg_u32 s38, 1")
    A("  s_cbranch_scc1 L_kk0")
    C("the last trip refills with V blocks")
    A("  s_mov_b64 s[20:21], s[34:35]")
    A(f"  s_add_u32 s24, s34, {STEP}")
    A("  s_addc_u32 s25, s35, 0")
    A("  s_mov_b32 s59, s36")
    A(f"  v_mov_b32 v1, v{vVp}")
    A(f"  v_mov_b32 v2, v{vVp}")
    for d in range(2):
        A(f"L_kk{d}:")
        qk(d, True, "K")
        nextblk(d)
        paced("K", d, 0)
        keep_scores(d * 256)
        for t in range(1, U): paced("K", d, t)
        qk(d, True, "V")
        paced("V", d, 0)
        keep_scores(d * 256 + 128)
        if d == 0:
            A("  s_cmp_lg_u32 s57, 0")
            A("  s_cbranch_scc1 L_first")
        for t in range(1, U): paced("V", d, t)
    A(f"  v_add_u32 v{vWp}, 512, v{vWp}")
    A("  s_sub_u32 s38, s38, 1")
    A("  s_cmp_lg_u32 s38, 0")
    A("  s_cbranch_scc1 L_kk")
    C("true max of the fixed share per head; accumulators; v[8:11] keeps bf16 element lane&7 of an operand")
    for ln in allmax(vm): A(ln)
    A("  v_and_b32 v3, 1, v0")
    A("  v_mov_b32 v17, 0xffff")
    A("  v_lshlrev_b32 v3, 4, v3")
    A("  v_lshlrev_b32 v17, v3, v17")
    A("  v_bfe_u32 v3, v0, 1, 2")
    for r in range(4):
        A(f"  v_cmp_eq_u32 vcc, {r}, v3")
        A(f"  v_mov_b32 v{vO+r}, 0")
        A("  s_nop 0")
        A(f"  v_cndmask_b32 v{vM+r}, 0, v17, vcc")
    A(f"  v_mov_b32 v{vl}, 0")
    A(f"  s_movk_i32 s38, {HS//4}")
    C("pass 2: two V blocks per buffer")
    A("L_vv:")
    A("  s_cmp_lg_u32 s38, 1")
    A("  s_cbranch_scc1 L_vv0")
    C("the last trip refills with one K and one V block per buffer")
    A("  s_mov_b64 s[20:21], s[32:33]")
    A("  s_mov_b64 s[24:25], s[34:35]")
    A(f"  s_mov_b32 s37, {STEP}")
    A(f"  v_mov_b32 v1, v{vKp}")
    A(f"  ds_write_b32 v{aFl}, v{aOne} offset:24")
    stamp(12)
    for d in range(2):
        A(f"L_vv{d}:")
        A(f"  ds_read_b128 v[{vS}:{vS+3}], v{vRp} offset:{d*256}")
        A(f"  ds_read_b128 v[{vS2}:{vS2+3}], v{vRp} offset:{d*256+128}")
        nextblk(d)
        A("  s_waitcnt lgkmcnt(0)")
        if d == 1:
            A("  s_cmp_lg_u32 s38, 1")
            A("  s_cbranch_scc1 L_vv2")
            A(f"  s_movk_i32 s60, {BLK}")
            A("  s_atomic_add s60, s[46:47], 0 glc")
            A("L_vv2:")
        for ln in probs(vS): A(ln)
        pv(d, True, "K")
        paced("K", d, 0)
        X = probs(vS2)
        for i, ln in enumerate(X):
            if i == len(X) // 2: paced("K", d, 1)
            A(ln)
        paced("K", d, 2)
        paced("K", d, 3)
        pv(d, True, "V")
        for t in range(U): paced("V", d, t)
    A(f"  v_add_u32 v{vRp}, 512, v{vRp}")
    A("  s_sub_u32 s38, s38, 1")
    A("  s_cmp_lg_u32 s38, 0")
    A("  s_cbranch_scc1 L_vv")
    def opaced(kind, d, t, load=True):
        if openN:
            if Wo < 16: A(f"  s_waitcnt vmcnt({Wo-1})")
            A(f"  s_cbranch_vccnz L_op{kind}{d}{t}")
        A(f"  s_waitcnt vmcnt({(WK if kind == 'K' else WV)[t]-1})")
        if openN: A(f"L_op{kind}{d}{t}:")
        if load: loads(kind, d, t)
    def ticket():
        A(f"  s_movk_i32 s60, {BLK}")
        A("  s_atomic_add s60, s[46:47], 0 glc")
    def body(d):
        qk(d, True)
        A(f"  s_cbranch_scc1 L_sk{d}")
        A("  s_waitcnt lgkmcnt(0)")
        A("  s_and_b32 s56, s60, 4096")
        A("  s_lshr_b32 s56, s56, 1")
        A(f"  s_add_u32 s{sSlot+d}, s60, {STATIC}")
        A(f"  s_sub_u32 s{sSlot+d}, s{sSlot+d}, s56")
        if openN:
            A(f"  s_cmp_ge_u32 s{sSlot+d}, {PAIRB - openN*BLK}")
            A("  s_cselect_b64 vcc, -1, 0")
        A(f"  s_cmp_ge_u32 s{sSlot+d}, {PAIRB}")
        A(f"  s_cbranch_scc1 L_dy{d}")
        opaced("K", d, 0, False)
        if tklate == 0: ticket()
        loads("K", d, 0)
        A(f"L_sk{d}:")
        X = softmax()
        for i, ln in enumerate(X):
            for t in range(1, U):
                if i == cuts[t - 1]:
                    A(f"  s_cbranch_scc1 L_sk{d}_{t}")
                    opaced("K", d, t)
                    if tklate == t: ticket()
                    A(f"L_sk{d}_{t}:")
            A(ln)
        A(f"  s_cbranch_scc1 L_dw{d}")
        A(f"L_dr{d}:")
        pv(d, True)
        A(f"  s_cbranch_scc1 L_sv{d}")
        for t in range(U):
            opaced("V", d, t)
            if tklate == 4 + t: ticket()
    C("remaining blocks, online softmax; SCC = 1 inside a body means no further block is loaded")
    C("s60: ticket in flight, s48/s49: block held by each buffer")
    for d in range(2):
        A(f"L_go{d}:")
        body(d)
    A("  s_branch L_go0")
    C("first trip only: the blocks prefetched while q was being produced")
    A("L_first:")
    A("  s_mov_b32 s57, 0")
    A(f"  v_mov_b32 v13, v{vWp}")
    stamp(13)
    A("  s_waitcnt vmcnt(13)")
    for e in range(2):
        qk(2 + e, False, "K")
        keep_scores(256 + e * 256)
        qk(2 + e, False, "V")
        keep_scores(384 + e * 256)
        paced("V", 0, 1 + e)
    A(f"  v_add_u32 v{vWp}, 512, v{vWp}")
    A(f"  v_mov_b32 v{vRp}, v13")
    A(f"  v_mov_b32 v{vKp}, v1")
    A("  v_and_b32 v3, 31, v0")
    A(f"  v_lshlrev_b32 v{vVp}, 4, v3")
    A("  v_lshrrev_b32 v3, 5, v0")
    A(f"  v_lshl_add_u32 v{vVp}, v3, 12, v{vVp}")
    stamp(14)
    C("addresses for the tail, kept in the freed buffer")
    A("  v_lshrrev_b32 v116, 4, v0")
    A("  v_lshlrev_b32 v117, 4, v0")
    A(f"  v_add_u32 v{aPr}, {L_P}, v117")
    A("  s_lshl_b32 s44, s3, 10")
    A(f"  v_add_u32 v{aP}, s44, v{aPr}")
    A("  v_and_b32 v117, 8, v0")
    A(f"  v_add_u32 v{aMLr}, {L_ML}, v117")
    A("  s_lshl_b32 s44, s3, 4")
    A(f"  v_add_u32 v{aML}, s44, v{aMLr}")
    A(f"  v_lshlrev_b32 v{aPub}, 10, v117")
    A(f"  v_lshl_add_u32 v{aPub}, v116, 7, v{aPub}")
    A("  v_and_b32 v118, 7, v0")
    A(f"  v_lshl_add_u32 v{aPub}, v118, 4, v{aPub}")
    A("  s_lshl_b32 s44, s3, 7")
    A(f"  s_add_u32 s44, s44, {L_O}")
    A(f"  v_lshl_add_u32 v{aO}, v117, 3, s44")
    A(f"  v_lshl_add_u32 v{aO}, v118, 1, v{aO}")
    A("  v_lshrrev_b32 v118, 5, v0")
    A(f"  v_lshl_add_u32 v{aO}, v118, 4, v{aO}")
    A("  v_bfe_u32 v118, v0, 4, 1")
    A(f"  v_lshl_add_u32 v{aO}, v118, 5, v{aO}")
    A("  v_and_b32 v118, 15, v0")
    A(f"  v_lshlrev_b32 v{aRec}, 9, v116")
    A(f"  v_lshl_add_u32 v{aRec}, v118, 4, v{aRec}")
    A("  v_bfe_u32 v117, v0, 2, 2")
    A("  v_and_b32 v118, 3, v0")
    A(f"  v_lshl_add_u32 v{aWo}, v116, 3, v117")
    A(f"  v_mul_u32_u24 v{aWo}, 288, v{aWo}")
    A(f"  v_mad_u32_u24 v{aWo}, v118, 24, v{aWo}")
    A("  s_mul_i32 s44, s3, 96")
    A(f"  v_add_u32 v{aWo}, s44, v{aWo}")
    A(f"  v_lshlrev_b32 v{aOf}, 7, v117")
    A(f"  v_lshl_add_u32 v{aOf}, v116, 4, v{aOf}")
    A(f"  v_add_u32 v{aOf}, {L_O}, v{aOf}")
    if y2:
        A("  v_bfe_u32 v119, v0, 4, 1")
        A(f"  v_lshlrev_b32 v{aY}, 13, v119")
        A("  v_lshrrev_b32 v119, 5, v0")
        A(f"  v_lshl_add_u32 v{aY}, v119, 15, v{aY}")
        A("  v_bfe_u32 v119, v0, 3, 1")
        A(f"  v_lshl_add_u32 v{aY}, v119, {17 if tspread else 16}, v{aY}")
        A("  v_and_b32 v118, 7, v0")
    elif outx:
        A(f"  v_lshlrev_b32 v{aY}, 13, v116")
        A(f"  v_lshl_add_u32 v{aY}, v117, 15, v{aY}")
    else:
        A(f"  v_mul_u32_u24 v{aY}, 196608, v116")
        A(f"  v_lshl_add_u32 v{aY}, v117, 12, v{aY}")
    A(f"  v_lshl_add_u32 v{aY}, v118, 4, v{aY}")
    A(f"  v_mov_b32 v{aFl}, {L_FLAG}")
    A(f"  v_mov_b32 v{aOne}, 1")
    if outx:
        A("  s_bfe_u32 s44, s2, 0x10006")
        A("  s_mul_i32 s58, s44, 3")
        A("  s_add_u32 s58, s58, s3")
        A(f"  s_lshl_b32 s58, s58, {18 if tspread else 17}")
        A("  s_lshr_b32 s44, s2, 7")
        A(f"  s_lshl_b32 s44, s44, {14 if y2 else 12}")
        A("  s_add_u32 s58, s58, s44")
        A("  s_and_b32 s44, s2, 63")
        A(f"  s_lshl_b32 s44, s44, {7 if y2 else 6}")
        A("  s_add_u32 s58, s58, s44")
    else:
        A("  s_lshr_b32 s44, s2, 6")
        A("  s_mul_i32 s58, s44, 49152")
        A("  s_and_b32 s44, s2, 63")
        A("  s_lshl_b32 s44, s44, 6")
        A("  s_add_u32 s58, s58, s44")
        A("  s_lshl_b32 s44, s3, 14")
        A("  s_add_u32 s58, s58, s44")
    A(f"  s_add_u32 s58, s58, {YG}")
    A("  s_and_b32 s55, s2, 0xf0")
    A(f"  s_lshl_b32 s55, s55, {GS}")
    A("  s_and_b32 s44, s2, 15")
    A("  s_lshl_b32 s44, s44, 9")
    A("  s_add_u32 s55, s55, s44")
    A(f"  s_add_u32 s55, s55, {PG}")
    recbase(54, 44)
    A(f"  s_lshl_b32 s44, s3, {GS+6}")
    A("  s_add_u32 s54, s54, s44")
    paced("V", 0, 3)
    A("  s_branch L_kk1")
    for d in range(2):
        A(f"L_dy{d}:")
        stamp(15)
        A("  s_mov_b64 exec, 1")
        A(f"  ds_add_u32 v{aFl}, v{aOne} offset:8")
        A("  s_mov_b64 exec, -1")
        A(f"  s_branch L_sk{d}")
        A(f"L_sv{d}:")
        A("  s_waitcnt vmcnt(4)")
        A(f"  s_branch L_go{1-d}")
        A(f"L_dw{d}:")
        A("  s_waitcnt vmcnt(8)")
        A(f"  s_cmp_lt_u32 s{sSlot+1-d}, {PAIRB}")
        A(f"  s_cbranch_scc1 L_dr{d}")
        A(f"  s_mov_b32 s56, {d}")
        if d == 0: A("  s_branch L_last")
    C("last block of this wave")
    A("L_last:")
    A(f"  v_mov_b32 v{vb}, v{vl}")
    A("  s_mov_b32 s61, 0x1000000")
    A(f"  v_mov_b32 v23, s{sTag}")
    A(f"  v_permlane32_swap_b32 v{vl}, v{vb}")
    A(f"  v_add_f32 v{vl}, v{vl}, v{vb}")
    A(f"  v_mov_b32 v{vb}, v{vl}")
    A("  s_nop 1")
    A(f"  v_permlane16_swap_b32 v{vl}, v{vb}")
    A(f"  v_add_f32 v{vl}, v{vl}, v{vb}")
    A(f"  ds_write_b64 v{aML}, v[{vm}:{vl}]")
    A("L_sel:")
    A(f"  ds_read_b64 v[18:19], v{aFl} offset:16")
    A("  s_waitcnt lgkmcnt(0)")
    A("  v_readfirstlane_b32 s44, v19")
    A("  v_readfirstlane_b32 s39, v18")
    A("  s_cmp_lg_u32 s44, 0")
    spin_tail("L_selok", "L_sel", 0)
    A("  s_and_b32 s44, s44, 0x2000")
    A("  s_xor_b32 s54, s54, s44")
    A(f"  v_xor_b32 v{aPub}, s44, v{aPub}")
    if fast:
        C("the other three waves are done: merge them while the last V rows are still on their way")
        A("  s_cmp_lg_u32 s39, 3")
        A("  s_cbranch_scc1 L_lastpv")
        for r in range(4): A(f"  v_mov_b32 v{128+r}, 0")
        A(f"  ds_write_b128 v{aP}, v[128:131]")
        for w in range(4):
            A(f"  ds_read_b64 v[{144+2*w}:{145+2*w}], v{aMLr} offset:{w*16}")
        for w in range(4):
            A(f"  ds_read_b128 v[{128+4*w}:{131+4*w}], v{aPr} offset:{w*1024}")
        A("  s_waitcnt lgkmcnt(4)")
        A("  v_max3_f32 v20, v144, v146, v148")
        A("  v_max_f32 v20, v20, v150")
        for w in range(4): A(f"  v_sub_f32 v{144+2*w}, v{144+2*w}, v20")
        A(f"  v_sub_f32 v152, v{vm}, v20")
        for w in range(5): A(f"  v_mul_f32 v{144+2*w}, s{sC}, v{144+2*w}")
        for w in range(5): A(f"  v_exp_f32 v{144+2*w}, v{144+2*w}")
        A("  v_mul_f32 v22, v144, v145")
        for w in range(1, 4): A(f"  v_fmac_f32 v22, v{144+2*w}, v{145+2*w}")
        A("  s_waitcnt lgkmcnt(0)")
        A("  v_pk_mul_f32 v[128:129], v[128:129], v[144:145] op_sel_hi:[1,0]")
        A("  v_pk_mul_f32 v[130:131], v[130:131], v[144:145] op_sel_hi:[1,0]")
        A("  v_rcp_f32 v154, v22")
        A("  v_log_f32 v22, v22")
        for w in range(1, 4):
            for h in range(2):
                A(f"  v_pk_fma_f32 v[{128+2*h}:{129+2*h}], v[{128+4*w+2*h}:{129+4*w+2*h}], v[{144+2*w}:{145+2*w}], v[{128+2*h}:{129+2*h}] op_sel_hi:[1,0,1]")
        A(f"  v_fmac_f32 v22, s{sC}, v20")
        A("  v_mul_f32 v152, v152, v154")
        A("  v_pk_mul_f32 v[128:129], v[128:129], v[154:155] op_sel_hi:[1,0]")
        A("  v_pk_mul_f32 v[130:131], v[130:131], v[154:155] op_sel_hi:[1,0]")
        A("L_lastpv:")
    A("  s_cmp_lg_u32 s56, 0")
    A("  s_cbranch_scc1 L_lv1")
    for d in range(2):
        A(f"L_lv{d}:")
        for t in range(U):
            r = reg("V", d, t)
            A(f"  s_waitcnt vmcnt({3-t})")
            A(f"  v_mfma_f32_16x16x32_bf16 v[{vO}:{vO+3}], v[{r}:{r+3}], v[{vB+4*t}:{vB+4*t+3}], v[{vO}:{vO+3}]")
        if d == 0: A("  s_branch L_done")
        else: A("  s_nop 0")
    def frags():
        for ks in range(2):
            for tl in range(3):
                r = 44 + 12 * ks + 4 * tl
                A(f"  ds_read_b64_tr_b16 v[{r}:{r+1}], v{aWo} offset:{tl*8 + ks*9216}")
                A(f"  ds_read_b64_tr_b16 v[{r+2}:{r+3}], v{aWo} offset:{tl*8 + ks*9216 + 1152}")
    if align:
        A(".p2align 9")
        A("L_latewo:")
        frags()
        A("  s_waitcnt lgkmcnt(0)")
        A("  s_branch L_havewo2")
    A("L_done:")
    stamp(2)
    C("the last wave to arrive merges the four partial results and publishes the record")
    if fast:
        A("  s_cmp_lg_u32 s39, 3")
        A("  s_cbranch_scc1 L_slow")
        A("  s_mov_b32 s61, 0x40000")
        A(f"  v_mov_b32 v{aOne}, 2")
        A("  s_nop 2")
        A(f"  v_pk_fma_f32 v[24:25], v[{vO}:{vO+1}], v[152:153], v[128:129] op_sel_hi:[1,0,1]")
        A(f"  v_pk_fma_f32 v[26:27], v[{vO+2}:{vO+3}], v[152:153], v[130:131] op_sel_hi:[1,0,1]")
        A("  s_branch L_pub")
        A("L_slow:")
        A("  s_nop 4")
    else:
        A("  s_nop 6")
    A(f"  ds_write_b128 v{aP}, v[{vO}:{vO+3}]")
    A("  s_mov_b64 exec, 1")
    A(f"  ds_add_rtn_u32 v3, v{aFl}, v{aOne} offset:16")
    A("  s_mov_b64 exec, -1")
    for w in range(4):
        A(f"  ds_read_b64 v[{40+2*w}:{41+2*w}], v{aMLr} offset:{w*16}")
    for w in range(4):
        A(f"  ds_read_b128 v[{24+4*w}:{27+4*w}], v{aPr} offset:{w*1024}")
    A("  s_mov_b32 s61, 0x40000")
    A("  s_waitcnt lgkmcnt(4)")
    A("  v_readfirstlane_b32 s44, v3")
    A("  v_max3_f32 v20, v40, v42, v44")
    A("  v_max_f32 v20, v20, v46")
    for w in range(4): A(f"  v_sub_f32 v{40+2*w}, v{40+2*w}, v20")
    A("  s_cmp_eq_u32 s44, 3")
    A("  s_cbranch_scc0 L_gather")
    for w in range(4): A(f"  v_mul_f32 v{40+2*w}, s{sC}, v{40+2*w}")
    for w in range(4): A(f"  v_exp_f32 v{40+2*w}, v{40+2*w}")
    A("  s_nop 0")
    A("  v_mul_f32 v22, v40, v41")
    for w in range(1, 4): A(f"  v_fmac_f32 v22, v{40+2*w}, v{41+2*w}")
    A("  s_waitcnt lgkmcnt(0)")
    A("  v_pk_mul_f32 v[24:25], v[24:25], v[40:41] op_sel_hi:[1,0]")
    A("  v_pk_mul_f32 v[26:27], v[26:27], v[40:41] op_sel_hi:[1,0]")
    A("  v_rcp_f32 v48, v22")
    A("  v_log_f32 v22, v22")
    for w in range(1, 4):
        for h in range(2):
            A(f"  v_pk_fma_f32 v[{24+2*h}:{25+2*h}], v[{24+4*w+2*h}:{25+4*w+2*h}], v[{40+2*w}:{41+2*w}], v[{24+2*h}:{25+2*h}] op_sel_hi:[1,0,1]")
    A(f"  v_fmac_f32 v22, s{sC}, v20")
    A("  v_pk_mul_f32 v[24:25], v[24:25], v[48:49] op_sel_hi:[1,0]")
    A("  v_pk_mul_f32 v[26:27], v[26:27], v[48:49] op_sel_hi:[1,0]")
    A("L_pub:")
    A("  v_cvt_pk_bf16_f32 v20, v24, v25")
    A("  v_cvt_pk_bf16_f32 v21, v26, v27")
    if "r" not in cut: A(f"  buffer_store_dwordx4 v[20:23], v{aPub}, s[28:31], s55 offen sc1")
    stamp(3)
    if align:
        A("  s_branch L_gather")
        A(".p2align 9")
    C("wave w gathers 64 columns of o for batch w from the four records of that pair")
    if wo_pub == 5: A(f"  ds_write_b32 v{aFl}, v{aOne} offset:28")
    if gate == 3: A("  s_waitcnt vmcnt(0)")
    if gate >= 2:
        A("  s_mov_b64 exec, 1")
        A(f"  ds_add_u32 v{aFl}, v{aOne} offset:16")
        A("  s_mov_b64 exec, -1")
    A("L_gather:")
    if gate:
        A(f"  ds_read_b32 v3, v{aFl} offset:16")
        A("  s_waitcnt lgkmcnt(0)")
        A("  v_readfirstlane_b32 s44, v3")
        A(f"  s_cmp_ge_u32 s44, {3+min(gate,2)}")
        spin_tail("L_gate_ok", "L_gather", gsleep)
        if pdelay: A(f"  s_sleep {pdelay}")
        A("  s_mov_b32 s61, 0x40000")
    else:
        A("  s_waitcnt lgkmcnt(0)")
    if dbl:
        A(f"  buffer_load_dwordx4 v[68:71], v{aRec}, s[28:31], s54 offen sc1")
        A(f"  ds_read_b32 v3, v{aFl} offset:12")
        frags()
        A("  s_waitcnt lgkmcnt(0)")
        A("  v_readfirstlane_b32 s57, v3")
        A("L_ppoll:")
        for a, b in ((68, 72), (72, 68)):
            A(f"  buffer_load_dwordx4 v[{b}:{b+3}], v{aRec}, s[28:31], s54 offen sc1")
            A("  s_waitcnt vmcnt(1)")
            A(f"  v_cmp_eq_u32 vcc, s{sTag}, v{a+3}")
            A(f"  v_mov_b32 v28, v{a+2}")
            A(f"  v_mov_b32 v29, v{a+2}")
            A(f"  v_mov_b32 v26, v{a+2}")
            A("  s_cmp_eq_u64 vcc, -1")
            A(f"  v_lshlrev_b32 v32, 16, v{a}")
            A(f"  v_and_b32 v33, 0xffff0000, v{a}")
            A(f"  v_lshlrev_b32 v34, 16, v{a+1}")
            A(f"  v_and_b32 v35, 0xffff0000, v{a+1}")
            A("  s_cbranch_scc1 L_pdone")
        A("  s_cmp_lg_u32 s57, 0")
        A("  s_cbranch_scc1 L_havewo")
        A(f"  ds_read_b32 v3, v{aFl} offset:12")
        frags()
        A("  s_waitcnt lgkmcnt(0)")
        A("  v_readfirstlane_b32 s57, v3")
        A("L_havewo:")
        A("  s_sub_u32 s61, s61, 1")
        A("  s_cbranch_scc0 L_ppoll")
        A("L_pdone:")
        stamp(10)
        A("  v_permlane32_swap_b32 v28, v29")
        A("  v_max_f32 v28, v28, v29")
        A("  v_mov_b32 v29, v28")
        A("  s_nop 1")
        A("  v_permlane16_swap_b32 v28, v29")
        A("  v_max_f32 v28, v28, v29")
        A("  v_sub_f32 v28, v26, v28")
        A("  v_exp_f32 v28, v28")
        A("  s_nop 0")
    else:
        if "p" in cut: A("  s_branch L_pdone")
        A("L_ppoll:")
        A(f"  buffer_load_dwordx4 v[24:27], v{aRec}, s[28:31], s54 offen sc1")
        A("  s_cmp_lg_u32 s57, 0")
        A("  s_cbranch_scc1 L_havewo")
        A(f"  ds_read_b32 v3, v{aFl} offset:12")
        frags()
        A("  s_waitcnt lgkmcnt(0)")
        A("  v_readfirstlane_b32 s57, v3")
        A("L_havewo:")
        A("  s_waitcnt vmcnt(0)")
        A(f"  v_cmp_eq_u32 vcc, s{sTag}, v27")
        A("  v_mov_b32 v28, v26")
        A("  v_mov_b32 v29, v26")
        A("  s_cmp_eq_u64 vcc, -1")
        spin_tail("L_pdone", "L_ppoll", psleep)
        if stamps: A("  s_mov_b32 s86, s61")
        stamp(10)
        A("  v_permlane32_swap_b32 v28, v29")
        A("  v_max_f32 v28, v28, v29")
        A("  v_mov_b32 v29, v28")
        A("  v_lshlrev_b32 v32, 16, v24")
        A("  v_and_b32 v33, 0xffff0000, v24")
        A("  v_permlane16_swap_b32 v28, v29")
        A("  v_max_f32 v28, v28, v29")
        A("  v_sub_f32 v28, v26, v28")
        A("  v_exp_f32 v28, v28")
        A("  v_lshlrev_b32 v34, 16, v25")
        A("  v_and_b32 v35, 0xffff0000, v25")
    A("  v_mov_b32 v29, v28")
    A("  v_pk_mul_f32 v[32:33], v[32:33], v[28:29] op_sel_hi:[1,0]")
    A("  v_pk_mul_f32 v[34:35], v[34:35], v[28:29] op_sel_hi:[1,0]")
    A("  v_permlane32_swap_b32 v28, v29")
    A("  v_permlane32_swap_b32 v32, v33")
    A("  v_permlane32_swap_b32 v34, v35")
    A("  v_add_f32 v28, v28, v29")
    A("  v_mov_b32 v29, v28")
    A("  v_add_f32 v32, v32, v33")
    A("  v_add_f32 v34, v34, v35")
    A("  v_permlane16_swap_b32 v28, v29")
    A("  v_add_f32 v28, v28, v29")
    A("  v_permlane16_swap_b32 v32, v34")
    A("  v_rcp_f32 v28, v28")
    A("  v_add_f32 v32, v32, v34")
    A("  v_mul_f32 v32, v32, v28")
    A("  v_cvt_pk_bf16_f32 v32, v32, v32")
    A(f"  ds_write_b16 v{aO}, v32")
    A("  s_cmp_eq_u32 s3, 3")
    A("  s_waitcnt lgkmcnt(0)")
    A("  s_barrier")
    stamp(4)
    A("  s_cbranch_scc1 L_fin5")
    C("waves 0-2: 48 columns of o@wo each, all four batches")
    A(f"  ds_read_b128 v[36:39], v{aOf}")
    A(f"  ds_read_b128 v[40:43], v{aOf} offset:64")
    A("  s_cmp_lg_u32 s57, 0")
    if align:
        A("  s_cbranch_scc0 L_latewo")
    else:
        A("  s_cbranch_scc1 L_havewo2")
        frags()
        A("  s_waitcnt lgkmcnt(0)")
    A("L_havewo2:")
    A("  s_waitcnt lgkmcnt(1)")
    for tl in (2, 1, 0):
        A(f"  v_mfma_f32_16x16x32_bf16 v[{24+4*tl}:{27+4*tl}], v[36:39], v[{44+4*tl}:{47+4*tl}], 0")
    A("  s_waitcnt lgkmcnt(0)")
    for tl in (2, 1, 0):
        A(f"  v_mfma_f32_16x16x32_bf16 v[{24+4*tl}:{27+4*tl}], v[40:43], v[{56+4*tl}:{59+4*tl}], v[{24+4*tl}:{27+4*tl}]")
    A("  s_nop 5")
    A("  v_mov_b32 v22, v32")
    A("  v_mov_b32 v21, v28")
    A("  v_mov_b32 v20, v24")
    if "s" not in cut: A(f"  buffer_store_dwordx4 v[20:23], v{aY}, s[28:31], s58 offen sc1")
    if bar4 == 2: A("  s_waitcnt vmcnt(0)")
    if bar4: A("  s_barrier")
    A("L_fin5:")
    stamp(5)
    if stamps: A("  s_branch L_fin")
    else: A("  s_endpgm")
    def warm_code(tag, first):
        C("pull the code that runs later into this die's L2")
        if not warmall:
            A("  s_lshr_b32 s45, s2, 3")
            A("  s_cmp_lg_u32 s45, 1")
            A(f"  s_cbranch_scc1 L_nowarm{tag}")
        A("  s_getpc_b64 s[52:53]")
        A(f"L_pc{tag}:")
        A(f"  s_sub_u32 s52, s52, L_pc{tag}-{first}")
        A("  s_subb_u32 s53, s53, 0")
        A("  v_lshlrev_b32 v5, 7, v0")
        A(f"  v_min_u32 v5, L_end-{first}, v5")
        A("  global_load_dword v133, v5, s[52:53]")
        A(f"L_nowarm{tag}:")
    C("---- helper wave, continued")
    A("L_help:")
    A("  s_load_dword s60, s[18:19], 0")
    stamp(9)
    A("  s_mov_b64 s[28:29], s[18:19]")
    A(f"  s_mov_b32 s30, {WS_SIZE}")
    A("  s_mov_b32 s31, 0x20000")
    if warm & 4: warm_code("c", "L_qwait")
    A("  s_mov_b32 s61, 0x40000")
    A("  v_mul_u32_u24 v7, 1152, v8")
    A("  v_lshl_add_u32 v7, v9, 3, v7")
    A("  v_lshrrev_b32 v10, 2, v0")
    A("  v_lshlrev_b32 v10, 7, v10")
    A("  v_lshl_add_u32 v10, v8, 3, v10")
    A("  v_bfe_u32 v5, v0, 3, 2")
    A("  v_lshl_add_u32 v10, v5, 5, v10")
    for j in range(1, 4):
        A(f"  v_xor_b32 v{10+j}, {32*j}, v10")
    C("q granule address: hkv*0x24000 + b*4096 + quarter*1024 + ((group&3)*16 + tile*4 + (lane>>4))*16")
    A(f"  v_lshlrev_b32 v4, {12 if qspread else 16}, v8")
    A("  v_lshl_add_u32 v4, v9, 4, v4")
    A("  v_bfe_u32 v5, v0, 2, 2")
    A("  v_lshl_add_u32 v4, v5, 6, v4")
    A("  s_lshr_b32 s45, s44, 2")
    if qspread: A("  s_mul_i32 s45, s45, 0x24000")
    else: A("  s_lshl_b32 s45, s45, 12")
    A("  s_mov_b32 s53, s45")
    A("  s_lshl_b32 s46, s47, 10")
    A("  s_add_u32 s45, s45, s46")
    A("  s_and_b32 s46, s44, 3")
    A("  s_lshl_b32 s46, s46, 8")
    A("  s_add_u32 s45, s45, s46")
    A(f"  s_add_u32 s45, s45, {QG}")
    A("  s_mov_b32 s56, 0xf0f0f0f0")
    A("  s_mov_b32 s57, 0xf0f0f0f0")
    A("  s_mov_b32 s58, 0xff00ff00")
    A("  s_mov_b32 s59, 0xff00ff00")
    A("  s_mov_b32 s50, 0x07060501")
    A("  s_mov_b32 s51, 0x07060502")
    A("  s_mov_b32 s52, 0x07060503")
    A("  s_waitcnt lgkmcnt(0)")
    A(f"  s_mul_i32 s{sTag}, s60, 0x9e3779b1")
    A(f"  s_add_u32 s{sTag}, s{sTag}, 0x7f4a7c15")
    A(f"  v_mov_b32 v23, s{sTag}")
    vX = 40; vW = 60
    A("  s_waitcnt vmcnt(18)")
    for t in range(9):
        A(f"  ds_read_b64 v[{vX+2*t}:{vX+2*t+1}], v7 offset:{L_P + t*32}")
    def qmfma(t):
        for j in range(4):
            r = vW + 8 * t + 2 * j
            c = "0" if t == 0 else f"v[{24+4*j}:{27+4*j}]"
            A(f"  v_mfma_f32_16x16x16_bf16 v[{24+4*j}:{27+4*j}], v[{r}:{r+1}], v[{vX+2*t}:{vX+2*t+1}], {c}")
    for t in range(9):
        A(f"  s_waitcnt vmcnt({16-2*t})")
        if t == 8: stamp(10)
        if t == 1: A("  s_waitcnt lgkmcnt(4)")
        for j in range(4):
            r = vW + 8 * t + 2 * j
            A(f"  ds_read_b64_tr_b16 v[{r}:{r+1}], v{10+j} offset:{t*2048}")
        if t >= 1:
            A("  s_waitcnt lgkmcnt(4)")
            qmfma(t - 1)
    A("  s_waitcnt lgkmcnt(0)")
    qmfma(8)
    A("  s_nop 5")
    C("four partial sums keep their upper 24 bits in three dwords")
    for r in range(4):
        A(f"  v_cndmask_b32 v{24+r}, v{24+r}, v{28+r}, s[56:57]")
    for r in range(4):
        A(f"  v_cndmask_b32 v{32+r}, v{32+r}, v{36+r}, s[56:57]")
    for r in range(4):
        A(f"  v_cndmask_b32 v{24+r}, v{24+r}, v{32+r}, s[58:59]")
    for r in range(3):
        A(f"  v_perm_b32 v{20+r}, v{24+r}, v27, s{50+r}")
    A("  buffer_store_dwordx4 v[20:23], v4, s[28:31], s45 offen sc1")
    stamp(1)
    A(f"  s_lshl_b32 s45, s47, {12 if qspread else 16}")
    A("  s_add_u32 s45, s45, s53")
    A(f"  s_add_u32 s45, s45, {QG}")
    A("  v_lshlrev_b32 v11, 3, v0")
    A(f"  v_add_u32 v11, {L_Q}, v11")
    A("  s_mov_b32 s50, 0x0c04000c")
    A("  s_mov_b32 s51, 0x04020100")
    A("  s_mov_b32 s52, 0xffffff00")
    if qack: A("  s_waitcnt vmcnt(0)")
    if nq:
        A("L_wait_nq:")
        A("  ds_read_b32 v24, v3 offset:28")
        A("  s_waitcnt lgkmcnt(0)")
        A("  v_readfirstlane_b32 s46, v24")
        A("  s_cmp_lg_u32 s46, 0")
        spin_tail("L_nq_go", "L_wait_nq", 1)
        A("  s_mov_b32 s61, 0x40000")
    def qload(j):
        A(f"  buffer_load_dwordx4 v[{24+4*j}:{27+4*j}], v2, s[28:31], s45 offen offset:{j*1024} sc1")
    for j in range(4): qload(j)
    A("L_qpoll:")
    A("  s_waitcnt vmcnt(0)")
    A("  s_mov_b32 s46, 0")
    for j in range(4):
        A(f"  v_cmp_ne_u32 vcc, s{sTag}, v{27+4*j}")
        A(f"  s_cbranch_vccz L_qok{j}")
        qload(j)
        A("  s_mov_b32 s46, 1")
        A(f"L_qok{j}:")
    A("  s_cmp_eq_u32 s46, 0")
    A("  s_cbranch_scc1 L_qdone")
    A("  s_sub_u32 s61, s61, 1")
    A("  s_cbranch_scc0 L_qpoll")
    A("  s_waitcnt vmcnt(0)")
    A("L_qdone:")
    for j in range(4):
        A(f"  v_perm_b32 v{27+4*j}, v{25+4*j}, v{24+4*j}, s50")
        A(f"  v_perm_b32 v{27+4*j}, v{26+4*j}, v{27+4*j}, s51")
        for r in range(3):
            A(f"  v_and_b32 v{24+4*j+r}, s52, v{24+4*j+r}")
    for r in range(4):
        A(f"  v_add_f32 v{24+r}, v{24+r}, v{28+r}")
        A(f"  v_add_f32 v{32+r}, v{32+r}, v{36+r}")
    for r in range(4):
        A(f"  v_add_f32 v{24+r}, v{24+r}, v{32+r}")
    A("  v_cvt_pk_bf16_f32 v24, v24, v25")
    A("  v_cvt_pk_bf16_f32 v25, v26, v27")
    A("  v_mov_b32 v22, 1")
    A("  ds_write_b64 v11, v[24:25]")
    A("  ds_write_b64 v3, v[22:23]")
    if stamps: A("  s_mov_b32 s86, s61")
    stamp(12)
    if vtouch:
        A("  s_andn2_b32 s45, s2, 3")
        A("  s_lshl_b32 s45, s45, 19")
        A("  v_mov_b32 v5, s45")
        A("  s_mov_b64 exec, 1")
        A("  global_load_dword v130, v5, s[8:9] nt")
        A("  s_mov_b64 exec, -1")
    if warm & 1: warm_code("a", "L_vv")
    C("workgroup 0 times both 8 KiB-interleaved halves of the hand-off area and publishes which is closer;")
    C("every workgroup lays out the records and picks its reducer slot with that one bit")
    A("  s_cmp_lg_u32 s2, 0")
    A("  s_cbranch_scc1 L_pwait")
    A(f"  s_movk_i32 s44, {probe}")
    A("  s_mov_b32 s45, -1")
    A("  s_mov_b32 s47, -1")
    A("  s_memtime s[48:49]")
    A("  s_waitcnt lgkmcnt(0)")
    A("L_probe:")
    A(f"  s_load_dword s46, s[18:19], {hex(PRB[0])} glc")
    A("  s_waitcnt lgkmcnt(0)")
    A("  s_memtime s[50:51]")
    A("  s_waitcnt lgkmcnt(0)")
    A(f"  s_load_dword s46, s[18:19], {hex(PRB[1])} glc")
    A("  s_waitcnt lgkmcnt(0)")
    A("  s_sub_u32 s52, s50, s48")
    A("  s_memtime s[48:49]")
    A("  s_waitcnt lgkmcnt(0)")
    A("  s_sub_u32 s53, s48, s50")
    A("  s_min_u32 s45, s45, s52")
    A("  s_min_u32 s47, s47, s53")
    A("  s_sub_u32 s44, s44, 1")
    A("  s_cmp_lg_u32 s44, 0")
    A("  s_cbranch_scc1 L_probe")
    if stamps:
        A("  s_mov_b32 s70, s45")
        A("  s_mov_b32 s72, s47")
        A("  s_mov_b32 s92, 0")
    A("  s_cmp_gt_u32 s45, s47")
    A("  s_cselect_b32 s45, 0x2001, 1")
    A("  v_mov_b32 v24, s45")
    A("  v_mov_b32 v25, v23")
    A("  s_mov_b64 exec, 1")
    A(f"  buffer_store_dwordx2 v[24:25], v2, s[28:31], 0 offen offset:{WS_POL} sc1")
    A("  s_mov_b64 exec, -1")
    if early_epoch:
        C("advance the launch counter once all 256 producers have published q, hence read the counter")
        if qspread:
            A("  v_lshrrev_b32 v4, 2, v0")
            A("  v_mul_u32_u24 v4, 0x24000, v4")
            A("  v_lshl_add_u32 v4, v8, 10, v4")
        else:
            A("  v_lshlrev_b32 v4, 10, v0")
        A(f"  s_mov_b32 s45, {QG}")
        A("  s_mov_b32 s61, 0x40000")
        A("L_allq:")
        for j in range(4):
            A(f"  buffer_load_dword v{28+j}, v4, s[28:31], s45 offen offset:{j*256+12} sc1")
        A("  s_waitcnt vmcnt(0)")
        A("  v_min3_u32 v32, v28, v29, v30")
        A("  v_max3_u32 v33, v28, v29, v30")
        A("  v_min_u32 v32, v32, v31")
        A("  v_max_u32 v33, v33, v31")
        A(f"  v_cmp_eq_u32 vcc, s{sTag}, v32")
        A(f"  v_cmp_eq_u32 s[62:63], s{sTag}, v33")
        A("  s_and_b64 vcc, vcc, s[62:63]")
        A("  s_cmp_eq_u64 vcc, -1")
        spin_tail("L_allq_ok", "L_allq", 16)
        A("  s_mov_b64 exec, 1")
        A("  buffer_store_dword v23, v2, s[28:31], 0 offen sc1")
        A("  s_mov_b64 exec, -1")
    A("L_pwait:")
    A("  s_mov_b32 s61, 0x100000")
    A("L_wait_st:")
    A("  ds_read_b32 v26, v3 offset:24")
    A("  s_waitcnt lgkmcnt(0)")
    A("  v_readfirstlane_b32 s45, v26")
    A("  s_cmp_lg_u32 s45, 0")
    spin_tail("L_st_go", "L_wait_st", 8)
    if warm & 2: warm_code("b", "L_vv")
    A("  s_mov_b32 s61, 0x40000")
    A("  v_mov_b32 v4, 0")
    A("L_ppw:")
    A(f"  buffer_load_dwordx2 v[24:25], v4, s[28:31], 0 offen offset:{WS_POL} sc1")
    A("  s_waitcnt vmcnt(0)")
    A("  v_readfirstlane_b32 s45, v25")
    A("  v_readfirstlane_b32 s49, v24")
    A(f"  s_cmp_eq_u32 s45, s{sTag}")
    spin_tail("L_pgot", "L_ppw", 16)
    A("  ds_write_b32 v3, v24 offset:20")
    A("  s_and_b32 s49, s49, 0x2000")
    stamp(15)
    C("wo piece: 64 rows x 288 B, three rows per load")
    A("  s_mov_b64 s[32:33], s[12:13]")
    A("  s_and_b32 s44, s2, 63")
    A("  s_mul_i32 s44, s44, 73728")
    A("  s_lshr_b32 s45, s2, 6")
    A("  s_mul_i32 s45, s45, 288")
    A("  s_add_u32 s44, s44, s45")
    A("  v_mul_u32_u24 v4, 57, v0")
    A("  v_lshrrev_b32 v4, 10, v4")
    A("  v_mul_u32_u24 v4, 864, v4")
    A("  v_add_u32 v6, v4, v2")
    C("reducer slot s55: twelve output columns at byte offset ((s55&7)*24 + (s55>>3))*24")
    A("  s_lshr_b32 s55, s49, 12")
    A("  s_xor_b32 s55, s55, s2")
    if y2:
        A("  s_lshr_b32 s47, s55, 4")
        A(f"  s_lshl_b32 s47, s47, {17 if tspread else 16}")
        A("  s_and_b32 s45, s55, 4")
        A("  s_lshl_b32 s45, s45, 13")
        A("  s_add_u32 s47, s47, s45")
        A("  s_and_b32 s45, s55, 1")
        A("  s_lshl_b32 s45, s45, 14")
        A("  s_add_u32 s47, s47, s45")
        A("  s_and_b32 s45, s55, 2")
        A("  s_lshl_b32 s45, s45, 12")
        A("  s_add_u32 s47, s47, s45")
        A("  s_and_b32 s45, s55, 8")
        A("  s_lshl_b32 s46, s45, 9")
        A("  s_lshl_b32 s45, s45, 3")
        A(f"  s_add_u32 s47, s47, {YG}")
        A("  s_add_u32 s46, s46, s47")
        A("  s_add_u32 s47, s47, s45")
        A("  v_lshrrev_b32 v1, 2, v0")
        A("  v_lshlrev_b32 v1, 7, v1")
        A("  v_lshl_add_u32 v1, v8, 4, v1")
        A("  v_add_u32 v7, 4096, v1")
    else:
        A("  s_lshl_b32 s47, s55, 12")
        A(f"  s_add_u32 s47, s47, {WS_YG}")
        A("  s_mov_b32 s46, s47")
    A("  s_mov_b64 s[36:37], s[14:15]")
    if outx:
        A("  s_and_b32 s56, s55, 7")
        A("  s_mul_i32 s56, s56, 24")
        A("  s_lshr_b32 s45, s55, 3")
        A("  s_add_u32 s56, s56, s45")
        A("  s_mul_i32 s56, s56, 24")
    else:
        A("  s_mul_i32 s56, s55, 24")
    A("  v_lshrrev_b32 v10, 5, v0")
    A("  v_bfe_u32 v11, v0, 4, 1")
    A("  v_lshl_add_u32 v10, v11, 1, v10")
    A("  v_lshlrev_b32 v10, 3, v10")
    A("  v_lshl_add_u32 v10, v8, 1, v10")
    A("  v_lshrrev_b32 v4, 3, v0")
    A(f"  v_lshlrev_b32 v4, {GS+6}, v4")
    A("  v_bfe_u32 v5, v0, 1, 2")
    A("  v_lshl_add_u32 v4, v5, 9, v4")
    A("  v_and_b32 v5, 1, v0")
    A("  v_lshl_add_u32 v4, v5, 7, v4")
    recbase(54, 45)
    A("  s_xor_b32 s54, s54, s49")
    A("  v_lshlrev_b32 v5, 7, v0")
    A("  s_mov_b32 s3, 4")
    A("  s_mov_b32 m0, 0")
    A("  s_mov_b32 s61, 0x100000")
    def wait_touch():
        if align:
            A("  s_branch L_wait_end")
            A(".p2align 9")
        A("L_wait_end:")
        A("  ds_read_b32 v24, v3 offset:8")
        A("  s_waitcnt lgkmcnt(0)")
        A("  v_readfirstlane_b32 s45, v24")
        A(f"  s_cmp_ge_u32 s45, {1 if touch_first else inv_n}")
        spin_tail("L_wo_go", "L_wait_end", 2)
        stamp(13)
        C("prefetch the lines the tail reads and writes (values unused), then load the wo piece")
        A("  s_mov_b32 exec_hi, 0")
        if touch: A("  buffer_load_dword v48, v4, s[28:31], s54 offen sc1")
        A("  s_cmpk_ge_u32 s2, 192")
        A("  s_cbranch_scc1 L_notouch")
        if touch: A("  buffer_load_dword v49, v5, s[28:31], s46 offen sc1")
        if touch_out: A("  buffer_load_ushort v50, v10, s[36:39], s56 offen sc1")
        A("L_notouch:")
    def wo_load():
        A("  s_mov_b32 exec_hi, 0x3fffff")
        if wo_pub:
            A("L_wo1:")
            A("  buffer_load_dwordx4 v6, s[32:35], s44 offen nt lds")
            A("  s_addk_i32 m0, 864")
            A("  s_addk_i32 s44, 3456")
            A(f"  s_cmpk_lt_u32 m0, {864*wo_split}")
            A("  s_cbranch_scc1 L_wo1")
            A("  s_mov_b32 s61, 0x1000000")
            A("L_wait_done:")
            A(f"  ds_read_b32 v24, v3 offset:{28 if wo_pub == 5 else 16}")
            A("  s_waitcnt lgkmcnt(0)")
            A("  v_readfirstlane_b32 s45, v24")
            A(f"  s_cmp_ge_u32 s45, {1 if wo_pub == 5 else wo_pub}")
            spin_tail("L_wo_go2", "L_wait_done", 0)
        A("L_wo:")
        A("  buffer_load_dwordx4 v6, s[32:35], s44 offen nt lds")
        A("  s_addk_i32 m0, 864")
        A("  s_addk_i32 s44, 3456")
        A("  s_cmpk_lt_u32 m0, 18144")
        A("  s_cbranch_scc1 L_wo")
        A("  s_mov_b64 exec, 0x3ffff")
        A("  buffer_load_dwordx4 v6, s[32:35], s44 offen nt lds")
        A("  s_mov_b64 exec, -1")
        A("  s_mov_b32 s61, 0x40000")
        A("  s_waitcnt vmcnt(0)")
        A("  ds_write_b32 v3, v22 offset:12")
    if wo_st:
        wo_load()
        A("  s_mov_b32 s61, 0x100000")
        wait_touch()
        A("  s_mov_b64 exec, -1")
        A("  s_mov_b32 s61, 0x40000")
    else:
        wait_touch()
        if touch_first:
            A("  s_mov_b32 s61, 0x100000")
            A("L_wait_end2:")
            A("  ds_read_b32 v24, v3 offset:8")
            A("  s_waitcnt lgkmcnt(0)")
            A("  v_readfirstlane_b32 s45, v24")
            A(f"  s_cmp_ge_u32 s45, {inv_n}")
            spin_tail("L_wo_go3", "L_wait_end2", 1)
        wo_load()
    stamp(2)
    A("  s_cmpk_ge_u32 s2, 192")
    A("  s_barrier")
    stamp(5)
    A("  s_cbranch_scc1 L_fin")
    def yload(j):
        if y2: A(f"  buffer_load_dwordx4 v[{32+4*j}:{35+4*j}], v{7 if j >= 2 else 1}, s[28:31], s47 offen offset:{(j&1)*2048} sc1")
        else: A(f"  buffer_load_dwordx4 v[{32+4*j}:{35+4*j}], v2, s[28:31], s47 offen offset:{j*1024} sc1")
    if bar4: A("  s_barrier")
    if ydelay: A(f"  s_sleep {ydelay}")
    if "y" in cut: A("  s_branch L_ydone")
    for j in range(4): yload(j)
    A("L_ypoll:")
    A("  s_waitcnt vmcnt(0)")
    A("  s_mov_b32 s45, 0")
    for j in range(4):
        A(f"  v_cmp_ne_u32 vcc, s{sTag}, v{35+4*j}")
        A(f"  s_cbranch_vccz L_yok{j}")
        yload(j)
        A("  s_mov_b32 s45, 1")
        A(f"L_yok{j}:")
    A("  s_cmp_eq_u32 s45, 0")
    A("  s_cbranch_scc1 L_ydone")
    if ysleep: A(f"  s_sleep {ysleep}")
    A("  s_sub_u32 s61, s61, 1")
    A("  s_cbranch_scc0 L_ypoll")
    A("  s_waitcnt vmcnt(0)")
    A("L_ydone:")
    A("  v_pk_add_f32 v[32:33], v[32:33], v[36:37]")
    A("  v_pk_add_f32 v[40:41], v[40:41], v[44:45]")
    A("  v_add_f32 v34, v34, v38")
    A("  v_add_f32 v42, v42, v46")
    A("  v_pk_add_f32 v[32:33], v[32:33], v[40:41]")
    A("  v_add_f32 v34, v34, v42")
    A("  v_mov_b32 v35, v34")
    A("  v_permlane32_swap_b32 v32, v33")
    A("  v_add_f32 v32, v32, v33")
    A("  v_permlane32_swap_b32 v34, v35")
    A("  v_add_f32 v34, v34, v35")
    A("  s_nop 1")
    A("  v_permlane16_swap_b32 v32, v34")
    A("  v_add_f32 v32, v32, v34")
    A("  s_nop 1")
    A(f"  v_add_f32_dpp v32, v32, v32 row_ror:8 {dpp}")
    A("  s_nop 1")
    A(f"  v_add_f32_dpp v32, v32, v32 row_ror:4 {dpp}")
    A("  s_mov_b32 exec_lo, 0x000f000f")
    A("  s_mov_b32 exec_hi, 0x0000000f")
    A("  v_cvt_pk_bf16_f32 v32, v32, v32")
    if "o" not in cut: A(f"  buffer_store_short v32, v10, s[36:39], s56 offen {outflags}".rstrip())
    if not early_epoch:
        C("advance the launch counter once every workgroup has read it")
        A("  s_cmp_lg_u32 s2, 0")
        A("  s_cbranch_scc1 L_fin")
        A("  s_mov_b64 exec, 1")
        A("  buffer_store_dword v23, v2, s[28:31], 0 offen")
    A("L_fin:")
    if stamps:
        stamp(6)
        A("  s_mul_i32 s44, s2, 5")
        A("  s_add_u32 s44, s44, s3")
        A("  s_lshl_b32 s44, s44, 6")
        A(f"  s_add_u32 s44, s44, {WS_TS}")
        A("  s_mov_b32 s78, s61")
        A("  s_waitcnt lgkmcnt(0)")
        A("  s_mov_b64 exec, 1")
        for i in range(16):
            A(f"  v_mov_b32 v{64+i}, s{64+2*i}")
        A("  v_mov_b32 v3, 0")
        for j in range(4):
            A(f"  buffer_store_dwordx4 v[{64+4*j}:{67+4*j}], v3, s[28:31], s44 offen offset:{16*j}")
    A("L_end:")
    A("  s_endpgm")
    A('.section .rodata,"a"')
    A(".p2align 6")
    A(f".amdhsa_kernel {NAME}")
    A(f"  .amdhsa_next_free_vgpr {NV}")
    A("  .amdhsa_next_free_sgpr %d" % (96 if stamps else 64))
    A(f"  .amdhsa_accum_offset {(NV+3)//4*4}")
    A("  .amdhsa_group_segment_fixed_size 0")
    A("  .amdhsa_kernarg_size 64")
    A("  .amdhsa_user_sgpr_count 2")
    A("  .amdhsa_user_sgpr_kernarg_segment_ptr 1")
    A("  .amdhsa_system_sgpr_workgroup_id_x 1")
    A("  .amdhsa_float_denorm_mode_32 3")
    A(".end_amdhsa_kernel")
    return "\n".join(L) + "\n"

if __name__ == "__main__":
    import json
    cfg = json.loads(sys.argv[1]) if len(sys.argv) > 1 else {}
    sys.stdout.write(gen(**cfg))
```

```python
import math, struct, sys

def f2u(x):
    return struct.unpack('<I', struct.pack('<f', x))[0]

SCALE = math.log2(math.e) / math.sqrt(128.0)
NAME = "standalone__gqa_block_cached__decode_kernel"

HEADER = """; Kernarg layout for this problem (64 bytes, ptrs only, base s[0:1]):
;
"""

WS_POL = 256
WS_PRB = (0x4000, 0x6000)
WS_PG = 0x8000
WS_YG = 0x10000
WS_QG = 0x400000
WS_TS = 0x1000000
WS_SIZE = 0x2000000

L_Q = 18432
L_FLAG = L_Q + 512
L_ML = L_FLAG + 32
L_O = L_Q + 640
L_P = L_O + 512
L_S = L_P + 4096
L_TOTAL = L_S + 4 * 4096

def gen(stamps=False, WIN0=5, pre0=2, probe=12, W=(5, 6, 8, 10), T0=765, B=108, T1=(20, 3), T2=(40, 6), fast=False, warm=3):
    U = 4
    PAIRB = 2 * 1024 * 1024
    STEP = 65536
    L = []
    A = L.append
    def C(text): A(f"  ; {text}")
    dpp = "row_mask:0xf bank_mask:0xf"
    vT = 3
    vQ, vM, vO = 4, 8, 12
    vm, vl, va, vb = 16, 17, 18, 19
    vS, vD, vB = 20, 24, 24
    vK = 40
    NV = 168
    aP, aML, aPr, aMLr, aRec, aPub, aO, aOf, aWo, aY, aFl, aOne = range(104, 116)
    vS2, vSp = 124, 2
    sTag, sC = 40, 41
    sSlot = 48
    def stamp(i):
        if stamps:
            A(f"  s_memrealtime s[{64+2*i}:{65+2*i}]")
    def spin_tail(label_ok, label_loop, sleep):
        A(f"  s_cbranch_scc1 {label_ok}")
        if sleep: A(f"  s_sleep {sleep}")
        A("  s_sub_u32 s61, s61, 1")
        A(f"  s_cbranch_scc0 {label_loop}")
        A(f"{label_ok}:")
    def lds_wait(name, addr, off, least, sleep):
        A(f"{name}:")
        A(f"  ds_read_b32 v24, v{addr} offset:{off}")
        A("  s_waitcnt lgkmcnt(0)")
        A("  v_readfirstlane_b32 s45, v24")
        A(f"  s_cmp_ge_u32 s45, {least}")
        spin_tail(name + "_ok", name, sleep)
    def recbase(dst, tmp):
        A(f"  s_and_b32 s{dst}, s2, 48")
        A(f"  s_lshl_b32 s{dst}, s{dst}, 13")
        for mask, sh in ((12, 9), (1, 8), (2, 12)):
            A(f"  s_and_b32 s{tmp}, s2, {mask}")
            A(f"  s_lshl_b32 s{tmp}, s{tmp}, {sh}")
            A(f"  s_add_u32 s{dst}, s{dst}, s{tmp}")
        A(f"  s_add_u32 s{dst}, s{dst}, {WS_PG}")
    for ln in HEADER.rstrip("\n").split("\n"): A(ln)
    A(f"; @launch grid=(256,1,1) block=(320,1,1) lds={L_TOTAL}")
    A('.amdgcn_target "amdgcn-amd-amdhsa--gfx950"')
    A(".text")
    A(f".globl {NAME}")
    A(".p2align 9")
    A(".fill 64, 4, 0xbf810000")
    A(".p2align 8")
    A(f".type {NAME},@function")
    A(f"{NAME}:")
    A("  s_cmpk_ge_u32 s2, 256")
    A("  s_cbranch_scc1 L_end")
    A("  s_load_dwordx16 s[4:19], s[0:1], 0")
    stamp(0)
    A("  v_lshrrev_b32 v3, 6, v0")
    A("  v_and_b32 v0, 63, v0")
    A("  v_readfirstlane_b32 s3, v3")
    C("permute the low three id bits: x -> parity(x)*4 + (x>>1)")
    A("  s_lshl_b32 s44, s2, 2")
    A("  s_lshr_b32 s44, 0x05722750, s44")
    A("  s_and_b32 s44, s44, 7")
    A("  s_xor_b32 s2, s2, s44")
    A("  v_lshrrev_b32 v9, 4, v0")
    A("  v_and_b32 v8, 3, v0")
    A("  s_cmp_lg_u32 s3, 0")
    A("  s_cbranch_scc1 L_attn")
    C("---- helper wave: issue the x and wq loads (64-column group id&63, row quarter id>>6)")
    A("  s_and_b32 s44, s2, 63")
    A("  s_lshr_b32 s47, s2, 6")
    A("  s_mul_i32 s45, s47, 9216")
    A("  s_add_u32 s45, s45, s44")
    A("  s_lshl_b32 s45, s45, 7")
    A("  s_mul_i32 s56, s47, 288")
    A("  v_lshlrev_b32 v2, 4, v0")
    A("  v_lshrrev_b32 v4, 3, v0")
    A("  v_and_b32 v5, 6, v4")
    A("  v_xor_b32 v5, v5, v0")
    A("  v_and_b32 v5, 7, v5")
    A("  v_lshlrev_b32 v5, 4, v5")
    A("  v_lshl_add_u32 v6, v4, 13, v5")
    A("  s_mov_b32 s34, 4718592")
    A("  s_mov_b32 s35, 0x20000")
    A("  s_movk_i32 s38, 4608")
    A("  s_mov_b32 s39, s35")
    A(f"  s_movk_i32 m0, {L_P}")
    A(f"  v_mov_b32 v3, {L_FLAG}")
    A("  v_mov_b32 v12, 0")
    A("  v_mov_b32 v13, 0")
    A("  ds_write2_b64 v3, v[12:13], v[12:13] offset0:0 offset1:1")
    A("  ds_write2_b64 v3, v[12:13], v[12:13] offset0:2 offset1:3")
    A("  s_mov_b64 exec, 0x3ffff")
    A("  s_waitcnt lgkmcnt(0)")
    A("  s_mov_b64 s[36:37], s[4:5]")
    A("  s_mov_b64 s[32:33], s[10:11]")
    for b in range(4):
        A(f"  buffer_load_dwordx4 v2, s[36:39], s56 offen offset:{b*1152} lds")
    A("  s_mov_b32 m0, 0")
    A("  s_mov_b64 exec, -1")
    A("L_wq:")
    A("  buffer_load_dwordx4 v6, s[32:35], s45 offen nt lds")
    A("  s_addk_i32 m0, 1024")
    A("  s_add_u32 s45, s45, 0x10000")
    A("  s_cmpk_lt_u32 m0, 18432")
    A("  s_cbranch_scc1 L_wq")
    A("  s_barrier")
    A("  s_branch L_help")
    C("---- attention waves")
    A("L_attn:")
    A("  s_memrealtime s[62:63]")
    A("  s_sub_u32 s3, s3, 1")
    C("K lane offset: key (lane>>2)&3 -> rows {0,1,16,17}, 16-byte chunk (lane>>4)*4 + (lane&3)")
    A("  v_bfe_u32 v3, v0, 2, 1")
    A("  v_lshlrev_b32 v1, 8, v3")
    A("  v_bfe_u32 v3, v0, 3, 1")
    A("  v_lshl_add_u32 v1, v3, 12, v1")
    A("  v_lshl_add_u32 v1, v9, 6, v1")
    A("  v_lshl_add_u32 v1, v8, 4, v1")
    A("  s_andn2_b32 s44, s2, 3")
    A("  s_lshl_b32 s44, s44, 19")
    C("block r of wave n = split*4 + wave starts at r*65536 + (n>>1)*8192 + (n&1)*2048")
    A("  s_and_b32 s45, s2, 3")
    A("  s_lshl2_add_u32 s45, s45, s3")
    A("  s_and_b32 s46, s45, 1")
    A("  s_lshl_b32 s45, s45, 1")
    A("  s_sub_u32 s45, s45, s46")
    A("  s_lshl_b32 s59, s45, 11")
    A(f"  s_mov_b32 s22, {PAIRB}")
    A("  s_mov_b32 s23, 0x20000")
    A("  s_waitcnt lgkmcnt(0)")
    A("  s_add_u32 s20, s6, s44")
    A("  s_addc_u32 s21, s7, 0")
    stamp(8)
    def reg(q, t):
        return vK + 16 * q + 4 * t
    def load(q, t, so):
        r = reg(q, t)
        A(f"  buffer_load_dwordx4 v[{r}:{r+3}], v1, s[20:23], s{so} offen offset:{t*512} nt")
    setup = []
    S = setup.append
    S("  s_mov_b64 s[28:29], s[18:19]")
    S(f"  s_mov_b32 s30, {WS_SIZE}")
    S("  s_mov_b32 s31, 0x20000")
    S(f"  s_mov_b32 s{sC}, {hex(f2u(SCALE))}")
    S("  s_add_u32 s34, s8, s44")
    S("  s_addc_u32 s35, s9, 0")
    S(f"  s_add_u32 s42, s62, {T0 - 2*B}")
    S(f"  s_movk_i32 s52, {T1[0]}")
    S(f"  s_movk_i32 s53, {T2[0]}")
    S("  s_mov_b32 s57, 1")
    S("  s_mov_b32 s38, 7")
    S("  v_bfe_u32 v3, v0, 3, 1")
    S("  v_lshlrev_b32 v18, 8, v3")
    S("  v_lshl_add_u32 v18, v9, 6, v18")
    S("  v_lshl_add_u32 v18, v8, 4, v18")
    S(f"  v_add_u32 v18, {L_Q}, v18")
    S(f"  v_mov_b32 v19, {L_FLAG}")
    S("  s_lshl_b32 s44, s3, 12")
    S(f"  s_add_u32 s44, s44, {L_S}")
    S("  v_lshrrev_b32 v3, 3, v0")
    S(f"  v_lshl_add_u32 v{vSp}, v3, 4, s44")
    S("  v_and_b32 v3, 1, v0")
    S("  v_mov_b32 v17, 0xffff")
    S("  v_lshlrev_b32 v3, 4, v3")
    S("  v_lshlrev_b32 v17, v3, v17")
    S("  v_bfe_u32 v3, v0, 1, 2")
    for r in range(4):
        S(f"  v_cmp_eq_u32 vcc, {r}, v3")
        S(f"  v_mov_b32 v{vO+r}, 0")
        S("  s_nop 0")
        S(f"  v_cndmask_b32 v{vM+r}, 0, v17, vcc")
    S(f"  v_mov_b32 v{vm}, 0xff800000")
    S(f"  v_mov_b32 v{vl}, 0")
    n = 0
    for q in (0, 1, 4, 5, 6, 7, 2, 3):
        for t in range(U):
            if n == pre0: A("  s_barrier")
            if n == WIN0:
                for ln in setup: A(ln)
            if n >= WIN0: A(f"  s_waitcnt vmcnt({WIN0-1})")
            load(q, t, 59)
            n += 1
        A(f"  s_add_u32 s59, s59, {STEP}")
    stamp(9)
    A("  s_mov_b32 s61, 0x400000")
    A("L_qwait:")
    A("  ds_read_b64 v[20:21], v19")
    A(f"  ds_read_b128 v[{vQ}:{vQ+3}], v18")
    A("  s_waitcnt lgkmcnt(0)")
    A("  v_readfirstlane_b32 s44, v20")
    A(f"  v_readfirstlane_b32 s{sTag}, v21")
    A("  s_cmp_lg_u32 s44, 0")
    spin_tail("L_qgo", "L_qwait", 1)
    stamp(1)
    def qk(q, w0):
        for t in range(U):
            r = reg(q, t)
            if w0 is not None: A(f"  s_waitcnt vmcnt({w0-t})")
            A(f"  v_mfma_f32_16x16x32_bf16 v[{vD+4*t}:{vD+4*t+3}], v[{r}:{r+3}], v[{vQ}:{vQ+3}], 0")
    def keep_scores(off):
        A("  s_nop 4")
        for j in range(4):
            for t in range(U):
                if j == 0:
                    A(f"  v_mov_b32_dpp v{vS+t}, v{vD+4*t} quad_perm:[0,0,0,0] {dpp}")
                else:
                    A(f"  v_add_f32_dpp v{vS+t}, v{vD+4*t+j}, v{vS+t} quad_perm:[{j},{j},{j},{j}] {dpp}")
        A(f"  ds_write_b128 v{vSp}, v[{vS}:{vS+3}] offset:{off}")
        A(f"  v_max3_f32 v{vm}, v{vm}, v{vS}, v{vS+1}")
        A(f"  v_max3_f32 v{vm}, v{vm}, v{vS+2}, v{vS+3}")
    def probs(S0):
        X = [f"  v_sub_f32 v{S0+t}, v{S0+t}, v{vm}" for t in range(U)]
        X += [f"  v_mul_f32 v{S0+t}, s{sC}, v{S0+t}" for t in range(U)]
        X += [f"  v_exp_f32 v{S0+t}, v{S0+t}" for t in range(U)]
        for t in range(U):
            X.append(f"  v_cvt_pk_bf16_f32 v{vT}, v{S0+t}, v{S0+t}")
            X += [f"  v_and_b32 v{vB+4*t+j}, v{vT}, v{vM+j}" for j in range(4)]
            X.append(f"  v_add_f32 v{vl}, v{vl}, v{S0+t}")
        return X
    def pv(q, w0):
        for t in range(U):
            r = reg(q, t)
            A(f"  s_waitcnt vmcnt({w0-t})")
            A(f"  v_mfma_f32_16x16x32_bf16 v[{vO}:{vO+3}], v[{r}:{r+3}], v[{vB+4*t}:{vB+4*t+3}], v[{vO}:{vO+3}]")
    npc = [0]
    def paced(q, t):
        npc[0] += 1
        k = npc[0]
        A(f"  s_waitcnt vmcnt({W[3]-1})")
        A(f"  s_cbranch_vccz L_wl{k}")
        A(f"  s_cbranch_scc1 L_wd{k}")
        A(f"  s_waitcnt vmcnt({W[2]-1})")
        A(f"  s_branch L_wd{k}")
        A(f"L_wl{k}:")
        A(f"  s_waitcnt vmcnt({W[1]-1})")
        A(f"  s_cbranch_scc1 L_wd{k}")
        A(f"  s_waitcnt vmcnt({W[0]-1})")
        A(f"L_wd{k}:")
        load(q, t, sSlot + (q & 1))
    def plain(q, t):
        A(f"  s_waitcnt vmcnt({W[0]-1})")
        load(q, t, sSlot + (q & 1))
    def clock(): A("  s_memrealtime s[62:63]")
    def control():
        A(f"  s_mov_b32 s{sSlot}, s59")
        A(f"  s_add_u32 s{sSlot+1}, s59, {STEP}")
        A(f"  s_add_u32 s59, s59, {2*STEP}")
        A("  s_waitcnt lgkmcnt(0)")
        A("  s_sub_u32 s43, s62, s42")
        A("  s_cmp_gt_i32 s43, 0")
        A("  s_cselect_b32 s46, 1, 0")
        A("  s_cmp_gt_i32 s43, s53")
        A("  s_addc_u32 s46, s46, 0")
        A("  s_cmp_gt_i32 s43, s52")
        A("  s_cselect_b64 vcc, -1, 0")
        A("  s_addc_u32 s46, s46, 0")
        A(f"  s_addk_i32 s42, {B}")
        A(f"  s_addk_i32 s52, {T1[1]}")
        A(f"  s_addk_i32 s53, {T2[1]}")
        A("  s_bitcmp1_b32 s46, 0")
    C("pass 1 over four register quarters; s59: next block, s38: trips left")
    C("s42: expected time of this point, s46 = {VCC != 0, SCC}: how far behind it the wave is (0..3)")
    A("L_kk:")
    A("  s_cmp_lg_u32 s38, 1")
    A("  s_cbranch_scc1 L_kk0")
    C("the last trip refills with V blocks: key lane>>4 -> rows {0,1,16,17}, 16-byte chunk lane&15")
    A("  s_mov_b64 s[20:21], s[34:35]")
    A("  s_and_b32 s59, s59, 0xffff")
    A("  v_and_b32 v3, 31, v0")
    A("  v_lshlrev_b32 v1, 4, v3")
    A("  v_lshrrev_b32 v3, 5, v0")
    A("  v_lshl_add_u32 v1, v3, 12, v1")
    for d in range(2):
        A(f"L_kk{d}:")
        control()
        qk(2 * d, 15)
        paced(2 * d, 0)
        keep_scores(d * 256)
        for t in range(1, U): paced(2 * d, t)
        qk(2 * d + 1, 15)
        paced(2 * d + 1, 0)
        keep_scores(d * 256 + 128)
        if d == 0:
            A("  s_cmp_lg_u32 s57, 0")
            A("  s_cbranch_scc1 L_first")
            A("  s_bitcmp1_b32 s46, 0")
        for t in range(1, U):
            if t == U - 1: clock()
            paced(2 * d + 1, t)
    A(f"  v_add_u32 v{vSp}, 512, v{vSp}")
    A("  s_sub_u32 s38, s38, 1")
    A("  s_cmp_lg_u32 s38, 0")
    A("  s_cbranch_scc1 L_kk")
    C("true max per head over the wave's keys")
    A(f"  v_mov_b32 v{vb}, v{vm}")
    A(f"  v_subrev_u32 v{vSp}, 4096, v{vSp}")
    A("  s_mov_b32 s38, 7")
    A(f"  v_permlane32_swap_b32 v{vm}, v{vb}")
    A(f"  v_max_f32 v{vm}, v{vm}, v{vb}")
    A(f"  v_mov_b32 v{vb}, v{vm}")
    A(f"  ds_write_b32 v{aFl}, v{aOne} offset:24")
    A("  s_nop 0")
    A(f"  v_permlane16_swap_b32 v{vm}, v{vb}")
    A(f"  v_max_f32 v{vm}, v{vm}, v{vb}")
    stamp(12)
    def scores(d):
        A(f"  ds_read_b128 v[{vS}:{vS+3}], v{vSp} offset:{d*256}")
        A(f"  ds_read_b128 v[{vS2}:{vS2+3}], v{vSp} offset:{d*256+128}")
    C("pass 2")
    A("L_vv:")
    for d in range(2):
        scores(d)
        control()
        for ln in probs(vS): A(ln)
        pv(2 * d, 15)
        paced(2 * d, 0)
        X = probs(vS2)
        for i, ln in enumerate(X):
            if i == len(X) // 2: paced(2 * d, 1)
            A(ln)
        paced(2 * d, 2)
        paced(2 * d, 3)
        pv(2 * d + 1, 15)
        for t in range(U):
            if t == U - 1: clock()
            paced(2 * d + 1, t)
    A(f"  v_add_u32 v{vSp}, 512, v{vSp}")
    A("  s_sub_u32 s38, s38, 1")
    A("  s_cmp_lg_u32 s38, 0")
    A("  s_cbranch_scc1 L_vv")
    C("last four blocks, nothing left to load")
    stamp(15)
    A("  s_mov_b64 exec, 1")
    A(f"  ds_add_u32 v{aFl}, v{aOne} offset:8")
    A("  s_mov_b64 exec, -1")
    for d in range(2):
        scores(d)
        A("  s_waitcnt lgkmcnt(0)")
        for ln in probs(vS): A(ln)
        pv(2 * d, 15 - 8 * d)
        for ln in probs(vS2): A(ln)
        if d == 0: pv(1, 11)
    A(f"  v_mov_b32 v{vb}, v{vl}")
    A("  s_mov_b32 s61, 0x1000000")
    A(f"  v_mov_b32 v23, s{sTag}")
    A(f"  v_permlane32_swap_b32 v{vl}, v{vb}")
    A(f"  v_add_f32 v{vl}, v{vl}, v{vb}")
    A(f"  v_mov_b32 v{vb}, v{vl}")
    A("  s_nop 1")
    A(f"  v_permlane16_swap_b32 v{vl}, v{vb}")
    A(f"  v_add_f32 v{vl}, v{vl}, v{vb}")
    A(f"  ds_write_b64 v{aML}, v[{vm}:{vl}]")
    A("L_sel:")
    A(f"  ds_read_b64 v[18:19], v{aFl} offset:16")
    A("  s_waitcnt lgkmcnt(0)")
    A("  v_readfirstlane_b32 s44, v19")
    A("  v_readfirstlane_b32 s39, v18")
    A("  s_cmp_lg_u32 s44, 0")
    spin_tail("L_selok", "L_sel", 0)
    A("  s_and_b32 s44, s44, 0x2000")
    A("  s_xor_b32 s54, s54, s44")
    A(f"  v_xor_b32 v{aPub}, s44, v{aPub}")
    def merge(P, M, R, extra):
        nw = 5 if extra else 4
        for w in range(nw): A(f"  v_mul_f32 v{M+2*w}, s{sC}, v{M+2*w}")
        for w in range(nw): A(f"  v_exp_f32 v{M+2*w}, v{M+2*w}")
        A(f"  v_mul_f32 v22, v{M}, v{M+1}")
        for w in range(1, 4): A(f"  v_fmac_f32 v22, v{M+2*w}, v{M+1+2*w}")
        A("  s_waitcnt lgkmcnt(0)")
        for h in range(2): A(f"  v_pk_mul_f32 v[{P+2*h}:{P+1+2*h}], v[{P+2*h}:{P+1+2*h}], v[{M}:{M+1}] op_sel_hi:[1,0]")
        A(f"  v_rcp_f32 v{R}, v22")
        A("  v_log_f32 v22, v22")
        for w in range(1, 4):
            for h in range(2):
                A(f"  v_pk_fma_f32 v[{P+2*h}:{P+1+2*h}], v[{P+4*w+2*h}:{P+1+4*w+2*h}], v[{M+2*w}:{M+1+2*w}], v[{P+2*h}:{P+1+2*h}] op_sel_hi:[1,0,1]")
        A(f"  v_fmac_f32 v22, s{sC}, v20")
        for h in range(2): A(f"  v_pk_mul_f32 v[{P+2*h}:{P+1+2*h}], v[{P+2*h}:{P+1+2*h}], v[{R}:{R+1}] op_sel_hi:[1,0]")
    def merge_reads(P, M):
        for w in range(4): A(f"  ds_read_b64 v[{M+2*w}:{M+1+2*w}], v{aMLr} offset:{w*16}")
        for w in range(4): A(f"  ds_read_b128 v[{P+4*w}:{P+3+4*w}], v{aPr} offset:{w*1024}")
    def merge_max(M):
        A(f"  v_max3_f32 v20, v{M}, v{M+2}, v{M+4}")
        A(f"  v_max_f32 v20, v20, v{M+6}")
        for w in range(4): A(f"  v_sub_f32 v{M+2*w}, v{M+2*w}, v20")
    if fast:
        C("the other three waves are done: merge them while the last V rows are still on their way")
        A("  s_cmp_lg_u32 s39, 3")
        A("  s_cbranch_scc1 L_lastpv")
        for r in range(4): A(f"  v_mov_b32 v{128+r}, 0")
        A(f"  ds_write_b128 v{aP}, v[128:131]")
        merge_reads(128, 144)
        A("  s_waitcnt lgkmcnt(4)")
        merge_max(144)
        A(f"  v_sub_f32 v152, v{vm}, v20")
        merge(128, 144, 154, True)
        A("  v_mul_f32 v152, v152, v154")
        A("L_lastpv:")
    pv(3, 3)
    stamp(2)
    C("the last wave to arrive merges the four partial results and publishes the record")
    A("  s_mov_b32 s61, 0x40000")
    if fast:
        A("  s_cmp_lg_u32 s39, 3")
        A("  s_cbranch_scc1 L_slow")
        A(f"  v_mov_b32 v{aOne}, 2")
        A("  s_nop 3")
        A(f"  v_pk_fma_f32 v[24:25], v[{vO}:{vO+1}], v[152:153], v[128:129] op_sel_hi:[1,0,1]")
        A(f"  v_pk_fma_f32 v[26:27], v[{vO+2}:{vO+3}], v[152:153], v[130:131] op_sel_hi:[1,0,1]")
        A("  s_branch L_pub")
        A("L_slow:")
        A("  s_nop 4")
    else:
        A("  s_nop 6")
    A(f"  ds_write_b128 v{aP}, v[{vO}:{vO+3}]")
    A("  s_mov_b64 exec, 1")
    A(f"  ds_add_rtn_u32 v3, v{aFl}, v{aOne} offset:16")
    A("  s_mov_b64 exec, -1")
    merge_reads(24, 40)
    A("  s_waitcnt lgkmcnt(4)")
    A("  v_readfirstlane_b32 s44, v3")
    merge_max(40)
    A("  s_cmp_eq_u32 s44, 3")
    A("  s_cbranch_scc0 L_gather")
    merge(24, 40, 48, False)
    A("L_pub:")
    A("  v_cvt_pk_bf16_f32 v20, v24, v25")
    A("  v_cvt_pk_bf16_f32 v21, v26, v27")
    A(f"  buffer_store_dwordx4 v[20:23], v{aPub}, s[28:31], s55 offen sc1")
    stamp(3)
    A("  s_mov_b64 exec, 1")
    A(f"  ds_add_u32 v{aFl}, v{aOne} offset:16")
    A("  s_mov_b64 exec, -1")
    def frags():
        for ks in range(2):
            for tl in range(3):
                r = 44 + 12 * ks + 4 * tl
                A(f"  ds_read_b64_tr_b16 v[{r}:{r+1}], v{aWo} offset:{tl*8 + ks*9216}")
                A(f"  ds_read_b64_tr_b16 v[{r+2}:{r+3}], v{aWo} offset:{tl*8 + ks*9216 + 1152}")
    C("once the record is out, wave w gathers 64 columns of o for batch w from the four records of that pair")
    lds_wait("L_gather", aFl, 16, 5, 1)
    A("  s_mov_b32 s61, 0x40000")
    A("L_ppoll:")
    A(f"  buffer_load_dwordx4 v[24:27], v{aRec}, s[28:31], s54 offen sc1")
    A("  s_cmp_lg_u32 s57, 0")
    A("  s_cbranch_scc1 L_havewo")
    A(f"  ds_read_b32 v3, v{aFl} offset:12")
    frags()
    A("  s_waitcnt lgkmcnt(0)")
    A("  v_readfirstlane_b32 s57, v3")
    A("L_havewo:")
    A("  s_waitcnt vmcnt(0)")
    A(f"  v_cmp_eq_u32 vcc, s{sTag}, v27")
    A("  v_mov_b32 v28, v26")
    A("  v_mov_b32 v29, v26")
    A("  s_cmp_eq_u64 vcc, -1")
    spin_tail("L_pdone", "L_ppoll", 0)
    if stamps: A("  s_mov_b32 s86, s61")
    stamp(10)
    for ln in ["v_permlane32_swap_b32 v28, v29", "v_max_f32 v28, v28, v29", "v_mov_b32 v29, v28", "v_lshlrev_b32 v32, 16, v24",
               "v_and_b32 v33, 0xffff0000, v24", "v_permlane16_swap_b32 v28, v29", "v_max_f32 v28, v28, v29", "v_sub_f32 v28, v26, v28",
               "v_exp_f32 v28, v28", "v_lshlrev_b32 v34, 16, v25", "v_and_b32 v35, 0xffff0000, v25", "v_mov_b32 v29, v28",
               "v_pk_mul_f32 v[32:33], v[32:33], v[28:29] op_sel_hi:[1,0]", "v_pk_mul_f32 v[34:35], v[34:35], v[28:29] op_sel_hi:[1,0]",
               "v_permlane32_swap_b32 v28, v29", "v_permlane32_swap_b32 v32, v33", "v_permlane32_swap_b32 v34, v35",
               "v_add_f32 v28, v28, v29", "v_mov_b32 v29, v28", "v_add_f32 v32, v32, v33", "v_add_f32 v34, v34, v35",
               "v_permlane16_swap_b32 v28, v29", "v_add_f32 v28, v28, v29", "v_permlane16_swap_b32 v32, v34", "v_rcp_f32 v28, v28",
               "v_add_f32 v32, v32, v34", "v_mul_f32 v32, v32, v28", "v_cvt_pk_bf16_f32 v32, v32, v32"]:
        A("  " + ln)
    A(f"  ds_write_b16 v{aO}, v32")
    A("  s_cmp_eq_u32 s3, 3")
    A("  s_waitcnt lgkmcnt(0)")
    A("  s_barrier")
    stamp(4)
    A("  s_cbranch_scc1 L_fin5")
    C("waves 0-2: 48 columns of o@wo each, all four batches")
    A(f"  ds_read_b128 v[36:39], v{aOf}")
    A(f"  ds_read_b128 v[40:43], v{aOf} offset:64")
    A("  s_cmp_lg_u32 s57, 0")
    A("  s_cbranch_scc1 L_havewo2")
    frags()
    A("  s_waitcnt lgkmcnt(0)")
    A("L_havewo2:")
    A("  s_waitcnt lgkmcnt(1)")
    for tl in (2, 1, 0):
        A(f"  v_mfma_f32_16x16x32_bf16 v[{24+4*tl}:{27+4*tl}], v[36:39], v[{44+4*tl}:{47+4*tl}], 0")
    A("  s_waitcnt lgkmcnt(0)")
    for tl in (2, 1, 0):
        A(f"  v_mfma_f32_16x16x32_bf16 v[{24+4*tl}:{27+4*tl}], v[40:43], v[{56+4*tl}:{59+4*tl}], v[{24+4*tl}:{27+4*tl}]")
    A("  s_nop 5")
    A("  v_mov_b32 v22, v32")
    A("  v_mov_b32 v21, v28")
    A("  v_mov_b32 v20, v24")
    A(f"  buffer_store_dwordx4 v[20:23], v{aY}, s[28:31], s58 offen sc1")
    if stamps:
        A("L_fin5:")
        stamp(5)
    A("  s_waitcnt vmcnt(0)")
    A("  s_barrier")
    if stamps:
        A("  s_branch L_fin")
    else:
        A("L_fin5:")
        A("  s_endpgm")
    C("first trip only: the blocks prefetched while q was being produced")
    A("L_first:")
    A("  s_mov_b32 s57, 0")
    stamp(13)
    A("  s_waitcnt vmcnt(13)")
    for e in range(2):
        qk(4 + 2 * e, None)
        keep_scores(256 + e * 256)
        qk(5 + 2 * e, None)
        keep_scores(384 + e * 256)
        plain(1, 1 + e)
    A(f"  v_add_u32 v{vSp}, 512, v{vSp}")
    stamp(14)
    C("addresses for the tail, kept in the freed registers")
    for ln in ["v_lshrrev_b32 v116, 4, v0", "v_lshlrev_b32 v117, 4, v0", f"v_add_u32 v{aPr}, {L_P}, v117", "s_lshl_b32 s44, s3, 10",
               f"v_add_u32 v{aP}, s44, v{aPr}", "v_and_b32 v117, 8, v0", f"v_add_u32 v{aMLr}, {L_ML}, v117", "s_lshl_b32 s44, s3, 4",
               f"v_add_u32 v{aML}, s44, v{aMLr}", f"v_lshlrev_b32 v{aPub}, 10, v117", f"v_lshl_add_u32 v{aPub}, v116, 7, v{aPub}",
               "v_and_b32 v118, 7, v0", f"v_lshl_add_u32 v{aPub}, v118, 4, v{aPub}", "s_lshl_b32 s44, s3, 7", f"s_add_u32 s44, s44, {L_O}",
               f"v_lshl_add_u32 v{aO}, v117, 3, s44", f"v_lshl_add_u32 v{aO}, v118, 1, v{aO}",
               f"v_lshlrev_b32 v{aY}, 14, v117", f"v_lshl_add_u32 v{aY}, v118, 4, v{aY}",
               "v_lshrrev_b32 v118, 5, v0", f"v_lshl_add_u32 v{aO}, v118, 4, v{aO}", f"v_lshl_add_u32 v{aY}, v118, 15, v{aY}",
               "v_bfe_u32 v118, v0, 4, 1", f"v_lshl_add_u32 v{aO}, v118, 5, v{aO}", f"v_lshl_add_u32 v{aY}, v118, 13, v{aY}",
               "v_and_b32 v118, 15, v0", f"v_lshlrev_b32 v{aRec}, 9, v116", f"v_lshl_add_u32 v{aRec}, v118, 4, v{aRec}",
               "v_bfe_u32 v117, v0, 2, 2", "v_and_b32 v118, 3, v0", f"v_lshl_add_u32 v{aWo}, v116, 3, v117",
               f"v_mul_u32_u24 v{aWo}, 288, v{aWo}", f"v_mad_u32_u24 v{aWo}, v118, 24, v{aWo}", "s_mul_i32 s44, s3, 96",
               f"v_add_u32 v{aWo}, s44, v{aWo}", f"v_lshlrev_b32 v{aOf}, 7, v117", f"v_lshl_add_u32 v{aOf}, v116, 4, v{aOf}",
               f"v_add_u32 v{aOf}, {L_O}, v{aOf}", f"v_mov_b32 v{aFl}, {L_FLAG}", f"v_mov_b32 v{aOne}, 1",
               "s_bfe_u32 s44, s2, 0x10006", "s_mul_i32 s58, s44, 3", "s_add_u32 s58, s58, s3", "s_lshl_b32 s58, s58, 18",
               "s_lshr_b32 s44, s2, 7", "s_lshl_b32 s44, s44, 14", "s_add_u32 s58, s58, s44", "s_and_b32 s44, s2, 63",
               "s_lshl_b32 s44, s44, 7", "s_add_u32 s58, s58, s44", f"s_add_u32 s58, s58, {WS_YG}",
               "s_and_b32 s55, s2, 0xf0", "s_lshl_b32 s55, s55, 13", "s_and_b32 s44, s2, 15", "s_lshl_b32 s44, s44, 9",
               "s_add_u32 s55, s55, s44", f"s_add_u32 s55, s55, {WS_PG}"]:
        A("  " + ln)
    recbase(54, 44)
    A("  s_lshl_b32 s44, s3, 19")
    A("  s_add_u32 s54, s54, s44")
    clock()
    plain(1, 3)
    A("  s_branch L_kk1")
    def warm_code(tag, first):
        C("pull the code that runs later into this die's L2")
        A("  s_lshr_b32 s45, s2, 3")
        A("  s_cmp_lg_u32 s45, 1")
        A(f"  s_cbranch_scc1 L_nowarm{tag}")
        A("  s_getpc_b64 s[52:53]")
        A(f"L_pc{tag}:")
        A(f"  s_sub_u32 s52, s52, L_pc{tag}-{first}")
        A("  s_subb_u32 s53, s53, 0")
        A("  v_lshlrev_b32 v5, 7, v0")
        A(f"  v_min_u32 v5, L_end-{first}, v5")
        A("  global_load_dword v133, v5, s[52:53]")
        A(f"L_nowarm{tag}:")
    C("---- helper wave, continued")
    A("L_help:")
    A("  s_load_dword s60, s[18:19], 0")
    stamp(9)
    A("  s_mov_b64 s[28:29], s[18:19]")
    A(f"  s_mov_b32 s30, {WS_SIZE}")
    A("  s_mov_b32 s31, 0x20000")
    A("  s_mov_b32 s61, 0x40000")
    A("  v_mul_u32_u24 v7, 1152, v8")
    A("  v_lshl_add_u32 v7, v9, 3, v7")
    A("  v_lshrrev_b32 v10, 2, v0")
    A("  v_lshlrev_b32 v10, 7, v10")
    A("  v_lshl_add_u32 v10, v8, 3, v10")
    A("  v_bfe_u32 v5, v0, 3, 2")
    A("  v_lshl_add_u32 v10, v5, 5, v10")
    for j in range(1, 4):
        A(f"  v_xor_b32 v{10+j}, {32*j}, v10")
    C("q granule address: hkv*0x24000 + b*4096 + quarter*1024 + ((group&3)*16 + tile*4 + (lane>>4))*16")
    A("  v_lshlrev_b32 v4, 12, v8")
    A("  v_lshl_add_u32 v4, v9, 4, v4")
    A("  v_bfe_u32 v5, v0, 2, 2")
    A("  v_lshl_add_u32 v4, v5, 6, v4")
    A("  s_lshr_b32 s53, s44, 2")
    A("  s_mul_i32 s53, s53, 0x24000")
    A(f"  s_add_u32 s53, s53, {WS_QG}")
    A("  s_lshl_b32 s46, s47, 10")
    A("  s_add_u32 s45, s53, s46")
    A("  s_and_b32 s46, s44, 3")
    A("  s_lshl_b32 s46, s46, 8")
    A("  s_add_u32 s45, s45, s46")
    A("  s_mov_b32 s56, 0xf0f0f0f0")
    A("  s_mov_b32 s57, 0xf0f0f0f0")
    A("  s_mov_b32 s58, 0xff00ff00")
    A("  s_mov_b32 s59, 0xff00ff00")
    A("  s_mov_b32 s50, 0x07060501")
    A("  s_mov_b32 s51, 0x07060502")
    A("  s_mov_b32 s52, 0x07060503")
    A("  s_waitcnt lgkmcnt(0)")
    A(f"  s_mul_i32 s{sTag}, s60, 0x9e3779b1")
    A(f"  s_add_u32 s{sTag}, s{sTag}, 0x7f4a7c15")
    A(f"  v_mov_b32 v23, s{sTag}")
    vX = 40; vW = 60
    A("  s_waitcnt vmcnt(18)")
    for t in range(9):
        A(f"  ds_read_b64 v[{vX+2*t}:{vX+2*t+1}], v7 offset:{L_P + t*32}")
    def qmfma(t):
        for j in range(4):
            r = vW + 8 * t + 2 * j
            c = "0" if t == 0 else f"v[{24+4*j}:{27+4*j}]"
            A(f"  v_mfma_f32_16x16x16_bf16 v[{24+4*j}:{27+4*j}], v[{r}:{r+1}], v[{vX+2*t}:{vX+2*t+1}], {c}")
    for t in range(9):
        A(f"  s_waitcnt vmcnt({16-2*t})")
        if t == 8: stamp(10)
        if t == 1: A("  s_waitcnt lgkmcnt(4)")
        for j in range(4):
            r = vW + 8 * t + 2 * j
            A(f"  ds_read_b64_tr_b16 v[{r}:{r+1}], v{10+j} offset:{t*2048}")
        if t >= 1:
            A("  s_waitcnt lgkmcnt(4)")
            qmfma(t - 1)
    A("  s_waitcnt lgkmcnt(0)")
    qmfma(8)
    A("  s_nop 5")
    C("four partial sums keep their upper 24 bits in three dwords")
    for r in range(4): A(f"  v_cndmask_b32 v{24+r}, v{24+r}, v{28+r}, s[56:57]")
    for r in range(4): A(f"  v_cndmask_b32 v{32+r}, v{32+r}, v{36+r}, s[56:57]")
    for r in range(4): A(f"  v_cndmask_b32 v{24+r}, v{24+r}, v{32+r}, s[58:59]")
    for r in range(3): A(f"  v_perm_b32 v{20+r}, v{24+r}, v27, s{50+r}")
    A("  buffer_store_dwordx4 v[20:23], v4, s[28:31], s45 offen sc1")
    stamp(1)
    A("  s_lshl_b32 s45, s47, 12")
    A("  s_add_u32 s45, s45, s53")
    A("  v_lshlrev_b32 v11, 3, v0")
    A(f"  v_add_u32 v11, {L_Q}, v11")
    A("  s_mov_b32 s50, 0x0c04000c")
    A("  s_mov_b32 s51, 0x04020100")
    A("  s_mov_b32 s52, 0xffffff00")
    def poll4(name, ld, r0):
        for j in range(4): ld(j)
        A(f"L_{name}poll:")
        A("  s_waitcnt vmcnt(0)")
        A("  s_mov_b32 s44, 0")
        for j in range(4):
            A(f"  v_cmp_ne_u32 vcc, s{sTag}, v{r0+3+4*j}")
            A(f"  s_cbranch_vccz L_{name}ok{j}")
            ld(j)
            A("  s_mov_b32 s44, 1")
            A(f"L_{name}ok{j}:")
        A("  s_cmp_eq_u32 s44, 0")
        A(f"  s_cbranch_scc1 L_{name}done")
        A("  s_sub_u32 s61, s61, 1")
        A(f"  s_cbranch_scc0 L_{name}poll")
        A("  s_waitcnt vmcnt(0)")
        A(f"L_{name}done:")
    A("  s_waitcnt vmcnt(0)")
    poll4("q", lambda j: A(f"  buffer_load_dwordx4 v[{24+4*j}:{27+4*j}], v2, s[28:31], s45 offen offset:{j*1024} sc1"), 24)
    for j in range(4):
        A(f"  v_perm_b32 v{27+4*j}, v{25+4*j}, v{24+4*j}, s50")
        A(f"  v_perm_b32 v{27+4*j}, v{26+4*j}, v{27+4*j}, s51")
        for r in range(3): A(f"  v_and_b32 v{24+4*j+r}, s52, v{24+4*j+r}")
    for r in range(4):
        A(f"  v_add_f32 v{24+r}, v{24+r}, v{28+r}")
        A(f"  v_add_f32 v{32+r}, v{32+r}, v{36+r}")
    for r in range(4): A(f"  v_add_f32 v{24+r}, v{24+r}, v{32+r}")
    A("  v_cvt_pk_bf16_f32 v24, v24, v25")
    A("  v_cvt_pk_bf16_f32 v25, v26, v27")
    A("  v_mov_b32 v22, 1")
    A("  ds_write_b64 v11, v[24:25]")
    A("  ds_write_b64 v3, v[22:23]")
    if stamps: A("  s_mov_b32 s86, s61")
    stamp(12)
    if warm & 1: warm_code("a", "L_vv")
    C("workgroup 0 times both 8 KiB-interleaved halves of the hand-off area and publishes which is closer;")
    C("every workgroup lays out the records and picks its reducer slot with that one bit")
    A("  s_cmp_lg_u32 s2, 0")
    A("  s_cbranch_scc1 L_pwait")
    A(f"  s_movk_i32 s44, {probe}")
    A("  s_mov_b32 s45, -1")
    A("  s_mov_b32 s47, -1")
    A("  s_memtime s[48:49]")
    A("  s_waitcnt lgkmcnt(0)")
    A("L_probe:")
    A(f"  s_load_dword s46, s[18:19], {hex(WS_PRB[0])} glc")
    A("  s_waitcnt lgkmcnt(0)")
    A("  s_memtime s[50:51]")
    A("  s_waitcnt lgkmcnt(0)")
    A(f"  s_load_dword s46, s[18:19], {hex(WS_PRB[1])} glc")
    A("  s_waitcnt lgkmcnt(0)")
    A("  s_sub_u32 s52, s50, s48")
    A("  s_memtime s[48:49]")
    A("  s_waitcnt lgkmcnt(0)")
    A("  s_sub_u32 s53, s48, s50")
    A("  s_min_u32 s45, s45, s52")
    A("  s_min_u32 s47, s47, s53")
    A("  s_sub_u32 s44, s44, 1")
    A("  s_cmp_lg_u32 s44, 0")
    A("  s_cbranch_scc1 L_probe")
    A("  s_cmp_gt_u32 s45, s47")
    A("  s_cselect_b32 s45, 0x2001, 1")
    A("  v_mov_b32 v24, s45")
    A("  v_mov_b32 v25, v23")
    A("  s_mov_b64 exec, 1")
    A(f"  buffer_store_dwordx2 v[24:25], v2, s[28:31], 0 offen offset:{WS_POL} sc1")
    A("  s_mov_b64 exec, -1")
    C("advance the launch counter once all 256 producers have published q, hence read the counter")
    A("  v_lshrrev_b32 v4, 2, v0")
    A("  v_mul_u32_u24 v4, 0x24000, v4")
    A("  v_lshl_add_u32 v4, v8, 10, v4")
    A(f"  s_mov_b32 s45, {WS_QG}")
    A("  s_mov_b32 s61, 0x40000")
    A("L_allq:")
    for j in range(4):
        A(f"  buffer_load_dword v{28+j}, v4, s[28:31], s45 offen offset:{j*256+12} sc1")
    A("  s_waitcnt vmcnt(0)")
    A("  v_min3_u32 v32, v28, v29, v30")
    A("  v_max3_u32 v33, v28, v29, v30")
    A("  v_min_u32 v32, v32, v31")
    A("  v_max_u32 v33, v33, v31")
    A(f"  v_cmp_eq_u32 vcc, s{sTag}, v32")
    A(f"  v_cmp_eq_u32 s[62:63], s{sTag}, v33")
    A("  s_and_b64 vcc, vcc, s[62:63]")
    A("  s_cmp_eq_u64 vcc, -1")
    spin_tail("L_allq_ok", "L_allq", 16)
    A("  s_mov_b64 exec, 1")
    A("  buffer_store_dword v23, v2, s[28:31], 0 offen sc1")
    A("  s_mov_b64 exec, -1")
    A("L_pwait:")
    A("  s_mov_b32 s61, 0x100000")
    lds_wait("L_wait_mid", 3, 24, 1, 8)
    if warm & 2: warm_code("b", "L_vv")
    A("  s_mov_b32 s61, 0x40000")
    A("  v_mov_b32 v4, 0")
    A("L_ppw:")
    A(f"  buffer_load_dwordx2 v[24:25], v4, s[28:31], 0 offen offset:{WS_POL} sc1")
    A("  s_waitcnt vmcnt(0)")
    A("  v_readfirstlane_b32 s45, v25")
    A("  v_readfirstlane_b32 s49, v24")
    A(f"  s_cmp_eq_u32 s45, s{sTag}")
    spin_tail("L_pgot", "L_ppw", 16)
    A("  ds_write_b32 v3, v24 offset:20")
    A("  s_and_b32 s49, s49, 0x2000")
    stamp(15)
    C("wo piece: 64 rows x 288 B, three rows per load")
    for ln in ["s_mov_b64 s[32:33], s[12:13]", "s_and_b32 s48, s2, 63", "s_mul_i32 s48, s48, 73728", "s_lshr_b32 s45, s2, 6",
               "s_mul_i32 s45, s45, 288", "s_add_u32 s48, s48, s45", "v_mul_u32_u24 v4, 57, v0", "v_lshrrev_b32 v4, 10, v4",
               "v_mul_u32_u24 v4, 864, v4", "v_add_u32 v6, v4, v2"]:
        A("  " + ln)
    C("reducer slot s55: twelve output columns at byte offset ((s55&7)*24 + (s55>>3))*24")
    for ln in ["s_lshr_b32 s55, s49, 12", "s_xor_b32 s55, s55, s2", "s_lshr_b32 s47, s55, 4", "s_lshl_b32 s47, s47, 17",
               "s_and_b32 s45, s55, 4", "s_lshl_b32 s45, s45, 13", "s_add_u32 s47, s47, s45", "s_and_b32 s45, s55, 1",
               "s_lshl_b32 s45, s45, 14", "s_add_u32 s47, s47, s45", "s_and_b32 s45, s55, 2", "s_lshl_b32 s45, s45, 12",
               "s_add_u32 s47, s47, s45", "s_and_b32 s45, s55, 8", "s_lshl_b32 s46, s45, 9", "s_lshl_b32 s45, s45, 3",
               f"s_add_u32 s47, s47, {WS_YG}", "s_add_u32 s46, s46, s47", "s_add_u32 s47, s47, s45",
               "v_lshrrev_b32 v1, 2, v0", "v_lshlrev_b32 v1, 7, v1", "v_lshl_add_u32 v1, v8, 4, v1", "v_add_u32 v7, 4096, v1",
               "s_mov_b64 s[36:37], s[14:15]", "s_and_b32 s56, s55, 7", "s_mul_i32 s56, s56, 24", "s_lshr_b32 s45, s55, 3",
               "s_add_u32 s56, s56, s45", "s_mul_i32 s56, s56, 24",
               "v_lshrrev_b32 v10, 5, v0", "v_bfe_u32 v11, v0, 4, 1", "v_lshl_add_u32 v10, v11, 1, v10", "v_lshlrev_b32 v10, 3, v10",
               "v_lshl_add_u32 v10, v8, 1, v10", "v_lshrrev_b32 v4, 3, v0", "v_lshlrev_b32 v4, 19, v4", "v_bfe_u32 v5, v0, 1, 2",
               "v_lshl_add_u32 v4, v5, 9, v4", "v_and_b32 v5, 1, v0", "v_lshl_add_u32 v4, v5, 7, v4"]:
        A("  " + ln)
    recbase(54, 45)
    A("  s_xor_b32 s54, s54, s49")
    A("  v_lshlrev_b32 v5, 7, v0")
    A("  s_mov_b32 s3, 4")
    A("  s_mov_b32 m0, 0")
    A("  s_mov_b32 s61, 0x400000")
    lds_wait("L_wait_end", 3, 8, 4, 2)
    stamp(13)
    C("prefetch the hand-off lines this workgroup will read (values unused), then load the wo piece")
    A("  s_mov_b32 exec_hi, 0")
    A("  buffer_load_dword v48, v4, s[28:31], s54 offen sc1")
    A("  s_cmpk_ge_u32 s2, 192")
    A("  s_cbranch_scc1 L_notouch")
    A("  buffer_load_dword v49, v5, s[28:31], s46 offen sc1")
    A("L_notouch:")
    A("  s_mov_b32 exec_hi, 0x3fffff")
    A("L_wo:")
    A("  buffer_load_dwordx4 v6, s[32:35], s48 offen nt lds")
    A("  s_addk_i32 m0, 864")
    A("  s_addk_i32 s48, 3456")
    A("  s_cmpk_lt_u32 m0, 18144")
    A("  s_cbranch_scc1 L_wo")
    A("  s_mov_b64 exec, 0x3ffff")
    A("  buffer_load_dwordx4 v6, s[32:35], s48 offen nt lds")
    A("  s_mov_b64 exec, -1")
    A("  s_mov_b32 s61, 0x40000")
    A("  s_waitcnt vmcnt(0)")
    A("  ds_write_b32 v3, v22 offset:12")
    stamp(2)
    A("  s_cmpk_ge_u32 s2, 192")
    A("  s_barrier")
    stamp(5)
    if stamps: A("  s_barrier")
    A("  s_cbranch_scc1 L_fin")
    if not stamps: A("  s_barrier")
    poll4("y", lambda j: A(f"  buffer_load_dwordx4 v[{32+4*j}:{35+4*j}], v{7 if j >= 2 else 1}, s[28:31], s47 offen offset:{(j&1)*2048} sc1"), 32)
    for ln in ["v_pk_add_f32 v[32:33], v[32:33], v[36:37]", "v_pk_add_f32 v[40:41], v[40:41], v[44:45]", "v_add_f32 v34, v34, v38",
               "v_add_f32 v42, v42, v46", "v_pk_add_f32 v[32:33], v[32:33], v[40:41]", "v_add_f32 v34, v34, v42", "v_mov_b32 v35, v34",
               "v_permlane32_swap_b32 v32, v33", "v_add_f32 v32, v32, v33", "v_permlane32_swap_b32 v34, v35", "v_add_f32 v34, v34, v35",
               "s_nop 1", "v_permlane16_swap_b32 v32, v34", "v_add_f32 v32, v32, v34", "s_nop 1",
               f"v_add_f32_dpp v32, v32, v32 row_ror:8 {dpp}", "s_nop 1", f"v_add_f32_dpp v32, v32, v32 row_ror:4 {dpp}",
               "s_mov_b32 exec_lo, 0x000f000f", "s_mov_b32 exec_hi, 0x0000000f", "v_cvt_pk_bf16_f32 v32, v32, v32",
               "buffer_store_short v32, v10, s[36:39], s56 offen"]:
        A("  " + ln)
    A("L_fin:")
    if stamps:
        stamp(6)
        A("  s_mul_i32 s44, s2, 5")
        A("  s_add_u32 s44, s44, s3")
        A("  s_lshl_b32 s44, s44, 6")
        A(f"  s_add_u32 s44, s44, {WS_TS}")
        A("  s_mov_b32 s78, s61")
        A("  s_waitcnt lgkmcnt(0)")
        A("  s_mov_b64 exec, 1")
        for i in range(16):
            A(f"  v_mov_b32 v{64+i}, s{64+2*i}")
        A("  v_mov_b32 v3, 0")
        for j in range(4):
            A(f"  buffer_store_dwordx4 v[{64+4*j}:{67+4*j}], v3, s[28:31], s44 offen offset:{16*j}")
    A("L_end:")
    A("  s_endpgm")
    A('.section .rodata,"a"')
    A(".p2align 6")
    A(f".amdhsa_kernel {NAME}")
    A(f"  .amdhsa_next_free_vgpr {NV}")
    A("  .amdhsa_next_free_sgpr %d" % (96 if stamps else 64))
    A(f"  .amdhsa_accum_offset {NV}")
    A("  .amdhsa_group_segment_fixed_size 0")
    A("  .amdhsa_kernarg_size 64")
    A("  .amdhsa_user_sgpr_count 2")
    A("  .amdhsa_user_sgpr_kernarg_segment_ptr 1")
    A("  .amdhsa_system_sgpr_workgroup_id_x 1")
    A("  .amdhsa_float_denorm_mode_32 3")
    A(".end_amdhsa_kernel")
    return "\n".join(L) + "\n"

if __name__ == "__main__":
    import json
    cfg = json.loads(sys.argv[1]) if len(sys.argv) > 1 else {}
    sys.stdout.write(gen(**cfg))
```

```python
import math, struct, sys

def f2u(x):
    return struct.unpack('<I', struct.pack('<f', x))[0]

SCALE = math.log2(math.e) / math.sqrt(128.0)
NAME = "standalone__gqa_block_cached__decode_kernel"

HEADER = """; Kernarg layout for this problem (64 bytes, ptrs only, base s[0:1]):
;
"""

WS_POL = 256
WS_PRB = (0x4000, 0x6000)
WS_PG = 0x8000
WS_YG = 0x10000
WS_QG = 0x400000
WS_TS = 0x1000000
WS_SIZE = 0x2000000

L_Q = 18432
L_FLAG = L_Q + 512
L_ML = L_FLAG + 32
L_O = L_Q + 640
L_P = L_O + 512
L_S = L_P + 4096
L_TOTAL = L_S + 4 * 4096

def gen(stamps=False, WIN0=5, pre0=2, probe=12, W=(5, 6, 8, 10), T0=765, B=108, T1=(20, 3), T2=(40, 6), warm=3, local=True, rtouch=True, qlocal=False, fb=2, ytouch=1, wo_n=4, bar4=True):
    U = 4
    PAIRB = 2 * 1024 * 1024
    STEP = 65536
    L = []
    A = L.append
    def C(text): A(f"  ; {text}")
    dpp = "row_mask:0xf bank_mask:0xf"
    vT = 3
    vQ, vM, vO = 4, 8, 12
    vm, vl, va, vb = 16, 17, 18, 19
    vS, vD, vB = 20, 24, 24
    vK = 40
    NV = 168
    aP, aML, aPr, aMLr, aRec, aPub, aO, aOf, aWo, aY, aFl, aOne = range(104, 116)
    vS2, vSp = 124, 2
    sTag, sC = 40, 41
    sSlot = 48
    def stamp(i):
        if stamps:
            A(f"  s_memrealtime s[{64+2*i}:{65+2*i}]")
    def spin_tail(label_ok, label_loop, sleep):
        A(f"  s_cbranch_scc1 {label_ok}")
        if sleep: A(f"  s_sleep {sleep}")
        A("  s_sub_u32 s61, s61, 1")
        A(f"  s_cbranch_scc0 {label_loop}")
        A(f"{label_ok}:")
    def lds_wait(name, addr, off, least, sleep):
        A(f"{name}:")
        A(f"  ds_read_b32 v24, v{addr} offset:{off}")
        A("  s_waitcnt lgkmcnt(0)")
        A("  v_readfirstlane_b32 s45, v24")
        A(f"  s_cmp_ge_u32 s45, {least}")
        spin_tail(name + "_ok", name, sleep)
    def recbase(dst, tmp):
        A(f"  s_and_b32 s{dst}, s2, 48")
        A(f"  s_lshl_b32 s{dst}, s{dst}, 13")
        for mask, sh in ((12, 9), (1, 8), (2, 12)):
            A(f"  s_and_b32 s{tmp}, s2, {mask}")
            A(f"  s_lshl_b32 s{tmp}, s{tmp}, {sh}")
            A(f"  s_add_u32 s{dst}, s{dst}, s{tmp}")
        A(f"  s_add_u32 s{dst}, s{dst}, {WS_PG}")
    for ln in HEADER.rstrip("\n").split("\n"): A(ln)
    A(f"; @launch grid=(256,1,1) block=(320,1,1) lds={L_TOTAL}")
    A('.amdgcn_target "amdgcn-amd-amdhsa--gfx950"')
    A(".text")
    A(f".globl {NAME}")
    A(".p2align 9")
    A(".fill 64, 4, 0xbf810000")
    A(".p2align 8")
    A(f".type {NAME},@function")
    A(f"{NAME}:")
    A("  s_cmpk_ge_u32 s2, 256")
    A("  s_cbranch_scc1 L_end")
    A("  s_load_dwordx16 s[4:19], s[0:1], 0")
    stamp(0)
    A("  v_lshrrev_b32 v3, 6, v0")
    A("  v_and_b32 v0, 63, v0")
    A("  v_readfirstlane_b32 s3, v3")
    C("role id: workgroups on one die (equal id&7) share two kv heads; s24 keeps the dispatch id")
    A("  s_mov_b32 s24, s2")
    A("  s_and_b32 s44, s2, 7")
    A("  s_bfe_u32 s45, s2, 0x30003")
    A("  s_andn2_b32 s2, s2, 63")
    A("  s_lshl3_add_u32 s2, s44, s2")
    A("  s_add_u32 s2, s2, s45")
    if fb:
        A(f"  s_lshr_b32 s44, s2, {fb}")
        A("  s_xor_b32 s44, s44, s2")
        A("  s_and_b32 s44, s44, 4")
        A(f"  s_mulk_i32 s44, {1 + (1 << fb)}")
        A("  s_xor_b32 s2, s2, s44")
    A("  v_lshrrev_b32 v9, 4, v0")
    A("  v_and_b32 v8, 3, v0")
    A("  s_cmp_lg_u32 s3, 0")
    A("  s_cbranch_scc1 L_attn")
    C("---- helper wave: issue the x and wq loads (64-column group id&63, row quarter id>>6)")
    A("  s_and_b32 s44, s2, 63")
    A("  s_lshr_b32 s47, s2, 6")
    A("  s_mul_i32 s45, s47, 9216")
    A("  s_add_u32 s45, s45, s44")
    A("  s_lshl_b32 s45, s45, 7")
    A("  s_mul_i32 s56, s47, 288")
    A("  v_lshlrev_b32 v2, 4, v0")
    A("  v_lshrrev_b32 v4, 3, v0")
    A("  v_and_b32 v5, 6, v4")
    A("  v_xor_b32 v5, v5, v0")
    A("  v_and_b32 v5, 7, v5")
    A("  v_lshlrev_b32 v5, 4, v5")
    A("  v_lshl_add_u32 v6, v4, 13, v5")
    A("  s_mov_b32 s34, 4718592")
    A("  s_mov_b32 s35, 0x20000")
    A("  s_movk_i32 s38, 4608")
    A("  s_mov_b32 s39, s35")
    A(f"  s_movk_i32 m0, {L_P}")
    A(f"  v_mov_b32 v3, {L_FLAG}")
    A("  v_mov_b32 v12, 0")
    A("  v_mov_b32 v13, 0")
    A("  ds_write2_b64 v3, v[12:13], v[12:13] offset0:0 offset1:1")
    A("  ds_write2_b64 v3, v[12:13], v[12:13] offset0:2 offset1:3")
    A("  s_mov_b64 exec, 0x3ffff")
    A("  s_waitcnt lgkmcnt(0)")
    A("  s_mov_b64 s[36:37], s[4:5]")
    A("  s_mov_b64 s[32:33], s[10:11]")
    for b in range(4):
        A(f"  buffer_load_dwordx4 v2, s[36:39], s56 offen offset:{b*1152} lds")
    A("  s_mov_b32 m0, 0")
    A("  s_mov_b64 exec, -1")
    A("L_wq:")
    A("  buffer_load_dwordx4 v6, s[32:35], s45 offen nt lds")
    A("  s_addk_i32 m0, 1024")
    A("  s_add_u32 s45, s45, 0x10000")
    A("  s_cmpk_lt_u32 m0, 18432")
    A("  s_cbranch_scc1 L_wq")
    A("  s_barrier")
    A("  s_branch L_help")
    C("---- attention waves")
    A("L_attn:")
    A("  s_memrealtime s[62:63]")
    A("  s_sub_u32 s3, s3, 1")
    C("K lane offset: key (lane>>2)&3 -> rows {0,1,16,17}, 16-byte chunk (lane>>4)*4 + (lane&3)")
    A("  v_bfe_u32 v3, v0, 2, 1")
    A("  v_lshlrev_b32 v1, 8, v3")
    A("  v_bfe_u32 v3, v0, 3, 1")
    A("  v_lshl_add_u32 v1, v3, 12, v1")
    A("  v_lshl_add_u32 v1, v9, 6, v1")
    A("  v_lshl_add_u32 v1, v8, 4, v1")
    A("  s_andn2_b32 s44, s2, 3")
    A("  s_lshl_b32 s44, s44, 19")
    C("block r of wave n = split*4 + wave starts at r*65536 + (n>>1)*8192 + (n&1)*2048")
    A("  s_and_b32 s45, s2, 3")
    A("  s_lshl2_add_u32 s45, s45, s3")
    A("  s_and_b32 s46, s45, 1")
    A("  s_lshl_b32 s45, s45, 1")
    A("  s_sub_u32 s45, s45, s46")
    A("  s_lshl_b32 s59, s45, 11")
    A(f"  s_mov_b32 s22, {PAIRB}")
    A("  s_mov_b32 s23, 0x20000")
    A("  s_waitcnt lgkmcnt(0)")
    A("  s_add_u32 s20, s6, s44")
    A("  s_addc_u32 s21, s7, 0")
    stamp(8)
    def reg(q, t):
        return vK + 16 * q + 4 * t
    def load(q, t, so):
        r = reg(q, t)
        A(f"  buffer_load_dwordx4 v[{r}:{r+3}], v1, s[20:23], s{so} offen offset:{t*512} nt")
    setup = []
    S = setup.append
    S("  s_mov_b64 s[28:29], s[18:19]")
    S(f"  s_mov_b32 s30, {WS_SIZE}")
    S("  s_mov_b32 s31, 0x20000")
    S(f"  s_mov_b32 s{sC}, {hex(f2u(SCALE))}")
    S("  s_add_u32 s34, s8, s44")
    S("  s_addc_u32 s35, s9, 0")
    S(f"  s_add_u32 s42, s62, {T0 - 2*B}")
    S(f"  s_movk_i32 s52, {T1[0]}")
    S(f"  s_movk_i32 s53, {T2[0]}")
    S("  s_mov_b32 s57, 1")
    S("  s_mov_b32 s38, 7")
    S("  v_bfe_u32 v3, v0, 3, 1")
    S("  v_lshlrev_b32 v18, 8, v3")
    S("  v_lshl_add_u32 v18, v9, 6, v18")
    S("  v_lshl_add_u32 v18, v8, 4, v18")
    S(f"  v_add_u32 v18, {L_Q}, v18")
    S(f"  v_mov_b32 v19, {L_FLAG}")
    S("  s_lshl_b32 s44, s3, 12")
    S(f"  s_add_u32 s44, s44, {L_S}")
    S("  v_lshrrev_b32 v3, 3, v0")
    S(f"  v_lshl_add_u32 v{vSp}, v3, 4, s44")
    S("  v_and_b32 v3, 1, v0")
    S("  v_mov_b32 v17, 0xffff")
    S("  v_lshlrev_b32 v3, 4, v3")
    S("  v_lshlrev_b32 v17, v3, v17")
    S("  v_bfe_u32 v3, v0, 1, 2")
    for r in range(4):
        S(f"  v_cmp_eq_u32 vcc, {r}, v3")
        S(f"  v_mov_b32 v{vO+r}, 0")
        S("  s_nop 0")
        S(f"  v_cndmask_b32 v{vM+r}, 0, v17, vcc")
    S(f"  v_mov_b32 v{vm}, 0xff800000")
    S(f"  v_mov_b32 v{vl}, 0")
    n = 0
    for q in (0, 1, 4, 5, 6, 7, 2, 3):
        for t in range(U):
            if n == pre0: A("  s_barrier")
            if n == WIN0:
                for ln in setup: A(ln)
            if n >= WIN0: A(f"  s_waitcnt vmcnt({WIN0-1})")
            load(q, t, 59)
            n += 1
        A(f"  s_add_u32 s59, s59, {STEP}")
    stamp(9)
    A("  s_mov_b32 s61, 0x400000")
    A("L_qwait:")
    A("  ds_read_b64 v[20:21], v19")
    A(f"  ds_read_b128 v[{vQ}:{vQ+3}], v18")
    A("  s_waitcnt lgkmcnt(0)")
    A("  v_readfirstlane_b32 s39, v20")
    A(f"  v_readfirstlane_b32 s{sTag}, v21")
    A("  s_cmp_lg_u32 s39, 0")
    spin_tail("L_qgo", "L_qwait", 1)
    stamp(1)
    def qk(q, w0):
        for t in range(U):
            r = reg(q, t)
            if w0 is not None: A(f"  s_waitcnt vmcnt({w0-t})")
            A(f"  v_mfma_f32_16x16x32_bf16 v[{vD+4*t}:{vD+4*t+3}], v[{r}:{r+3}], v[{vQ}:{vQ+3}], 0")
    def keep_scores(off):
        A("  s_nop 4")
        for j in range(4):
            for t in range(U):
                if j == 0:
                    A(f"  v_mov_b32_dpp v{vS+t}, v{vD+4*t} quad_perm:[0,0,0,0] {dpp}")
                else:
                    A(f"  v_add_f32_dpp v{vS+t}, v{vD+4*t+j}, v{vS+t} quad_perm:[{j},{j},{j},{j}] {dpp}")
        A(f"  ds_write_b128 v{vSp}, v[{vS}:{vS+3}] offset:{off}")
        A(f"  v_max3_f32 v{vm}, v{vm}, v{vS}, v{vS+1}")
        A(f"  v_max3_f32 v{vm}, v{vm}, v{vS+2}, v{vS+3}")
    def probs(S0):
        X = [f"  v_sub_f32 v{S0+t}, v{S0+t}, v{vm}" for t in range(U)]
        X += [f"  v_mul_f32 v{S0+t}, s{sC}, v{S0+t}" for t in range(U)]
        X += [f"  v_exp_f32 v{S0+t}, v{S0+t}" for t in range(U)]
        for t in range(U):
            X.append(f"  v_cvt_pk_bf16_f32 v{vT}, v{S0+t}, v{S0+t}")
            X += [f"  v_and_b32 v{vB+4*t+j}, v{vT}, v{vM+j}" for j in range(4)]
            X.append(f"  v_add_f32 v{vl}, v{vl}, v{S0+t}")
        return X
    def pv(q, w0):
        for t in range(U):
            r = reg(q, t)
            A(f"  s_waitcnt vmcnt({w0-t})")
            A(f"  v_mfma_f32_16x16x32_bf16 v[{vO}:{vO+3}], v[{r}:{r+3}], v[{vB+4*t}:{vB+4*t+3}], v[{vO}:{vO+3}]")
    npc = [0]
    def paced(q, t):
        npc[0] += 1
        k = npc[0]
        A(f"  s_waitcnt vmcnt({W[3]-1})")
        A(f"  s_cbranch_vccz L_wl{k}")
        A(f"  s_cbranch_scc1 L_wd{k}")
        A(f"  s_waitcnt vmcnt({W[2]-1})")
        A(f"  s_branch L_wd{k}")
        A(f"L_wl{k}:")
        A(f"  s_waitcnt vmcnt({W[1]-1})")
        A(f"  s_cbranch_scc1 L_wd{k}")
        A(f"  s_waitcnt vmcnt({W[0]-1})")
        A(f"L_wd{k}:")
        load(q, t, sSlot + (q & 1))
    def plain(q, t):
        A(f"  s_waitcnt vmcnt({W[0]-1})")
        load(q, t, sSlot + (q & 1))
    def clock(): A("  s_memrealtime s[62:63]")
    def control():
        A(f"  s_mov_b32 s{sSlot}, s59")
        A(f"  s_add_u32 s{sSlot+1}, s59, {STEP}")
        A(f"  s_add_u32 s59, s59, {2*STEP}")
        A("  s_waitcnt lgkmcnt(0)")
        A("  s_sub_u32 s43, s62, s42")
        A("  s_cmp_gt_i32 s43, 0")
        A("  s_cselect_b32 s46, 1, 0")
        A("  s_cmp_gt_i32 s43, s53")
        A("  s_addc_u32 s46, s46, 0")
        A("  s_cmp_gt_i32 s43, s52")
        A("  s_cselect_b64 vcc, -1, 0")
        A("  s_addc_u32 s46, s46, 0")
        A(f"  s_addk_i32 s42, {B}")
        A(f"  s_addk_i32 s52, {T1[1]}")
        A(f"  s_addk_i32 s53, {T2[1]}")
        A("  s_bitcmp1_b32 s46, 0")
    C("pass 1 over four register quarters; s59: next block, s38: trips left")
    C("s42: expected time of this point, s46 = {VCC != 0, SCC}: how far behind it the wave is (0..3)")
    A("L_kk:")
    A("  s_cmp_lg_u32 s38, 1")
    A("  s_cbranch_scc1 L_kk0")
    C("the last trip refills with V blocks: key lane>>4 -> rows {0,1,16,17}, 16-byte chunk lane&15")
    A("  s_mov_b64 s[20:21], s[34:35]")
    A("  s_and_b32 s59, s59, 0xffff")
    A("  v_and_b32 v3, 31, v0")
    A("  v_lshlrev_b32 v1, 4, v3")
    A("  v_lshrrev_b32 v3, 5, v0")
    A("  v_lshl_add_u32 v1, v3, 12, v1")
    for d in range(2):
        A(f"L_kk{d}:")
        control()
        qk(2 * d, 15)
        paced(2 * d, 0)
        keep_scores(d * 256)
        for t in range(1, U): paced(2 * d, t)
        qk(2 * d + 1, 15)
        paced(2 * d + 1, 0)
        keep_scores(d * 256 + 128)
        if d == 0:
            A("  s_cmp_lg_u32 s57, 0")
            A("  s_cbranch_scc1 L_first")
            A("  s_bitcmp1_b32 s46, 0")
        for t in range(1, U):
            if t == U - 1: clock()
            paced(2 * d + 1, t)
    A(f"  v_add_u32 v{vSp}, 512, v{vSp}")
    A("  s_sub_u32 s38, s38, 1")
    A("  s_cmp_lg_u32 s38, 0")
    A("  s_cbranch_scc1 L_kk")
    C("true max per head over the wave's keys")
    A(f"  v_mov_b32 v{vb}, v{vm}")
    A(f"  v_subrev_u32 v{vSp}, 4096, v{vSp}")
    A("  s_mov_b32 s38, 7")
    A(f"  v_permlane32_swap_b32 v{vm}, v{vb}")
    A(f"  v_max_f32 v{vm}, v{vm}, v{vb}")
    A(f"  v_mov_b32 v{vb}, v{vm}")
    A(f"  ds_write_b32 v{aFl}, v{aOne} offset:24")
    A("  s_nop 0")
    A(f"  v_permlane16_swap_b32 v{vm}, v{vb}")
    A(f"  v_max_f32 v{vm}, v{vm}, v{vb}")
    stamp(12)
    def scores(d):
        A(f"  ds_read_b128 v[{vS}:{vS+3}], v{vSp} offset:{d*256}")
        A(f"  ds_read_b128 v[{vS2}:{vS2+3}], v{vSp} offset:{d*256+128}")
    C("pass 2")
    A("L_vv:")
    for d in range(2):
        scores(d)
        control()
        for ln in probs(vS): A(ln)
        pv(2 * d, 15)
        paced(2 * d, 0)
        X = probs(vS2)
        for i, ln in enumerate(X):
            if i == len(X) // 2: paced(2 * d, 1)
            A(ln)
        paced(2 * d, 2)
        paced(2 * d, 3)
        pv(2 * d + 1, 15)
        for t in range(U):
            if t == U - 1: clock()
            paced(2 * d + 1, t)
    A(f"  v_add_u32 v{vSp}, 512, v{vSp}")
    A("  s_sub_u32 s38, s38, 1")
    A("  s_cmp_lg_u32 s38, 0")
    A("  s_cbranch_scc1 L_vv")
    C("last four blocks, nothing left to load")
    stamp(15)
    A("  s_mov_b64 exec, 1")
    A(f"  ds_add_u32 v{aFl}, v{aOne} offset:8")
    A("  s_mov_b64 exec, -1")
    for d in range(2):
        scores(d)
        A("  s_waitcnt lgkmcnt(0)")
        for ln in probs(vS): A(ln)
        pv(2 * d, 15 - 8 * d)
        for ln in probs(vS2): A(ln)
        if d == 0: pv(1, 11)
    A(f"  v_mov_b32 v{vb}, v{vl}")
    A("  s_nop 0")
    A(f"  v_mov_b32 v23, s{sTag}")
    A(f"  v_permlane32_swap_b32 v{vl}, v{vb}")
    A(f"  v_add_f32 v{vl}, v{vl}, v{vb}")
    A(f"  v_mov_b32 v{vb}, v{vl}")
    A("  s_nop 1")
    A(f"  v_permlane16_swap_b32 v{vl}, v{vb}")
    A(f"  v_add_f32 v{vl}, v{vl}, v{vb}")
    A(f"  ds_write_b64 v{aML}, v[{vm}:{vl}]")
    def merge(P, M, R, extra):
        nw = 5 if extra else 4
        for w in range(nw): A(f"  v_mul_f32 v{M+2*w}, s{sC}, v{M+2*w}")
        for w in range(nw): A(f"  v_exp_f32 v{M+2*w}, v{M+2*w}")
        A(f"  v_mul_f32 v22, v{M}, v{M+1}")
        for w in range(1, 4): A(f"  v_fmac_f32 v22, v{M+2*w}, v{M+1+2*w}")
        A("  s_waitcnt lgkmcnt(0)")
        for h in range(2): A(f"  v_pk_mul_f32 v[{P+2*h}:{P+1+2*h}], v[{P+2*h}:{P+1+2*h}], v[{M}:{M+1}] op_sel_hi:[1,0]")
        A(f"  v_rcp_f32 v{R}, v22")
        A("  v_log_f32 v22, v22")
        for w in range(1, 4):
            for h in range(2):
                A(f"  v_pk_fma_f32 v[{P+2*h}:{P+1+2*h}], v[{P+4*w+2*h}:{P+1+4*w+2*h}], v[{M+2*w}:{M+1+2*w}], v[{P+2*h}:{P+1+2*h}] op_sel_hi:[1,0,1]")
        A(f"  v_fmac_f32 v22, s{sC}, v20")
        for h in range(2): A(f"  v_pk_mul_f32 v[{P+2*h}:{P+1+2*h}], v[{P+2*h}:{P+1+2*h}], v[{R}:{R+1}] op_sel_hi:[1,0]")
    def merge_reads(P, M):
        for w in range(4): A(f"  ds_read_b64 v[{M+2*w}:{M+1+2*w}], v{aMLr} offset:{w*16}")
        for w in range(4): A(f"  ds_read_b128 v[{P+4*w}:{P+3+4*w}], v{aPr} offset:{w*1024}")
    def merge_max(M):
        A(f"  v_max3_f32 v20, v{M}, v{M+2}, v{M+4}")
        A(f"  v_max_f32 v20, v20, v{M+6}")
        for w in range(4): A(f"  v_sub_f32 v{M+2*w}, v{M+2*w}, v20")
    pv(3, 3)
    stamp(2)
    C("the last wave to arrive merges the four partial results and publishes the record")
    A("  s_mov_b32 s61, 0x40000")
    A("  s_nop 6")
    A(f"  ds_write_b128 v{aP}, v[{vO}:{vO+3}]")
    A("  s_mov_b64 exec, 1")
    A(f"  ds_add_rtn_u32 v3, v{aFl}, v{aOne} offset:16")
    A("  s_mov_b64 exec, -1")
    merge_reads(24, 40)
    A("  s_waitcnt lgkmcnt(4)")
    A("  v_readfirstlane_b32 s44, v3")
    merge_max(40)
    A("  s_cmp_eq_u32 s44, 3")
    A("  s_cbranch_scc0 L_gather")
    merge(24, 40, 48, False)
    A("  v_cvt_pk_bf16_f32 v20, v24, v25")
    A("  v_cvt_pk_bf16_f32 v21, v26, v27")
    if local:
        C("all readers of this record run on this die: its L2 is enough")
        A("  s_cmp_eq_u32 s39, 2")
        A("  s_cbranch_scc0 L_pubfar")
        A(f"  buffer_store_dwordx4 v[20:23], v{aPub}, s[28:31], s55 offen")
        A("  s_branch L_pubdone")
        A("L_pubfar:")
    A(f"  buffer_store_dwordx4 v[20:23], v{aPub}, s[28:31], s55 offen sc1")
    A("L_pubdone:")
    stamp(3)
    A("  s_mov_b64 exec, 1")
    A(f"  ds_add_u32 v{aFl}, v{aOne} offset:16")
    A("  s_mov_b64 exec, -1")
    def frags():
        for ks in range(2):
            for tl in range(3):
                r = 44 + 12 * ks + 4 * tl
                A(f"  ds_read_b64_tr_b16 v[{r}:{r+1}], v{aWo} offset:{tl*8 + ks*9216}")
                A(f"  ds_read_b64_tr_b16 v[{r+2}:{r+3}], v{aWo} offset:{tl*8 + ks*9216 + 1152}")
    C("once the record is out, wave w gathers 64 columns of o for batch w from the four records of that pair")
    lds_wait("L_gather", aFl, 16, 5, 1)
    A("  s_mov_b32 s61, 0x40000")
    A("L_ppoll:")
    A(f"  buffer_load_dwordx4 v[24:27], v{aRec}, s[28:31], s54 offen sc1")
    A("  s_cmp_lg_u32 s57, 0")
    A("  s_cbranch_scc1 L_havewo")
    A(f"  ds_read_b32 v3, v{aFl} offset:12")
    frags()
    A("  s_waitcnt lgkmcnt(0)")
    A("  v_readfirstlane_b32 s57, v3")
    A("L_havewo:")
    A("  s_waitcnt vmcnt(0)")
    A(f"  v_cmp_eq_u32 vcc, s{sTag}, v27")
    A("  v_mov_b32 v28, v26")
    A("  v_mov_b32 v29, v26")
    A("  s_cmp_eq_u64 vcc, -1")
    spin_tail("L_pdone", "L_ppoll", 0)
    if stamps: A("  s_mov_b32 s86, s61")
    stamp(10)
    for ln in ["v_permlane32_swap_b32 v28, v29", "v_max_f32 v28, v28, v29", "v_mov_b32 v29, v28", "v_lshlrev_b32 v32, 16, v24",
               "v_and_b32 v33, 0xffff0000, v24", "v_permlane16_swap_b32 v28, v29", "v_max_f32 v28, v28, v29", "v_sub_f32 v28, v26, v28",
               "v_exp_f32 v28, v28", "v_lshlrev_b32 v34, 16, v25", "v_and_b32 v35, 0xffff0000, v25", "v_mov_b32 v29, v28",
               "v_pk_mul_f32 v[32:33], v[32:33], v[28:29] op_sel_hi:[1,0]", "v_pk_mul_f32 v[34:35], v[34:35], v[28:29] op_sel_hi:[1,0]",
               "v_permlane32_swap_b32 v28, v29", "v_permlane32_swap_b32 v32, v33", "v_permlane32_swap_b32 v34, v35",
               "v_add_f32 v28, v28, v29", "v_mov_b32 v29, v28", "v_add_f32 v32, v32, v33", "v_add_f32 v34, v34, v35",
               "v_permlane16_swap_b32 v28, v29", "v_add_f32 v28, v28, v29", "v_permlane16_swap_b32 v32, v34", "v_rcp_f32 v28, v28",
               "v_add_f32 v32, v32, v34", "v_mul_f32 v32, v32, v28", "v_cvt_pk_bf16_f32 v32, v32, v32"]:
        A("  " + ln)
    A(f"  ds_write_b16 v{aO}, v32")
    A("  s_cmp_eq_u32 s3, 3")
    A("  s_waitcnt lgkmcnt(0)")
    A("  s_barrier")
    stamp(4)
    A("  s_cbranch_scc1 L_fin5")
    C("waves 0-2: 48 columns of o@wo each, all four batches")
    A(f"  ds_read_b128 v[36:39], v{aOf}")
    A(f"  ds_read_b128 v[40:43], v{aOf} offset:64")
    A("  s_cmp_lg_u32 s57, 0")
    A("  s_cbranch_scc1 L_havewo2")
    frags()
    A("  s_waitcnt lgkmcnt(0)")
    A("L_havewo2:")
    A("  s_waitcnt lgkmcnt(1)")
    for tl in (2, 1, 0):
        A(f"  v_mfma_f32_16x16x32_bf16 v[{24+4*tl}:{27+4*tl}], v[36:39], v[{44+4*tl}:{47+4*tl}], 0")
    A("  s_waitcnt lgkmcnt(0)")
    for tl in (2, 1, 0):
        A(f"  v_mfma_f32_16x16x32_bf16 v[{24+4*tl}:{27+4*tl}], v[40:43], v[{56+4*tl}:{59+4*tl}], v[{24+4*tl}:{27+4*tl}]")
    A("  s_nop 5")
    A("  v_mov_b32 v22, v32")
    A("  v_mov_b32 v21, v28")
    A("  v_mov_b32 v20, v24")
    A(f"  buffer_store_dwordx4 v[20:23], v{aY}, s[28:31], s58 offen sc1")
    if stamps:
        A("L_fin5:")
        stamp(5)
    if bar4:
        A("  s_waitcnt vmcnt(0)")
        A("  s_barrier")
    if stamps:
        A("  s_branch L_fin")
    else:
        A("L_fin5:")
        A("  s_endpgm")
    C("first trip only: the blocks prefetched while q was being produced")
    A("L_first:")
    A("  s_mov_b32 s57, 0")
    stamp(13)
    A("  s_waitcnt vmcnt(13)")
    for e in range(2):
        qk(4 + 2 * e, None)
        keep_scores(256 + e * 256)
        qk(5 + 2 * e, None)
        keep_scores(384 + e * 256)
        plain(1, 1 + e)
    A(f"  v_add_u32 v{vSp}, 512, v{vSp}")
    stamp(14)
    C("addresses for the tail, kept in the freed registers")
    for ln in ["v_lshrrev_b32 v116, 4, v0", "v_lshlrev_b32 v117, 4, v0", f"v_add_u32 v{aPr}, {L_P}, v117", "s_lshl_b32 s44, s3, 10",
               f"v_add_u32 v{aP}, s44, v{aPr}", "v_and_b32 v117, 8, v0", f"v_add_u32 v{aMLr}, {L_ML}, v117", "s_lshl_b32 s44, s3, 4",
               f"v_add_u32 v{aML}, s44, v{aMLr}", f"v_lshlrev_b32 v{aPub}, 10, v117", f"v_lshl_add_u32 v{aPub}, v116, 7, v{aPub}",
               "v_and_b32 v118, 7, v0", f"v_lshl_add_u32 v{aPub}, v118, 4, v{aPub}", "s_lshl_b32 s44, s3, 7", f"s_add_u32 s44, s44, {L_O}",
               f"v_lshl_add_u32 v{aO}, v117, 3, s44", f"v_lshl_add_u32 v{aO}, v118, 1, v{aO}",
               f"v_lshlrev_b32 v{aY}, 14, v117", f"v_lshl_add_u32 v{aY}, v118, 4, v{aY}",
               "v_lshrrev_b32 v118, 5, v0", f"v_lshl_add_u32 v{aO}, v118, 4, v{aO}", f"v_lshl_add_u32 v{aY}, v118, 13, v{aY}",
               "v_bfe_u32 v118, v0, 4, 1", f"v_lshl_add_u32 v{aO}, v118, 5, v{aO}", f"v_lshl_add_u32 v{aY}, v118, 15, v{aY}",
               "v_and_b32 v118, 15, v0", f"v_lshlrev_b32 v{aRec}, 9, v116", f"v_lshl_add_u32 v{aRec}, v118, 4, v{aRec}",
               "v_bfe_u32 v117, v0, 2, 2", "v_and_b32 v118, 3, v0", f"v_lshl_add_u32 v{aWo}, v116, 3, v117",
               f"v_mul_u32_u24 v{aWo}, 288, v{aWo}", f"v_mad_u32_u24 v{aWo}, v118, 24, v{aWo}", "s_mul_i32 s44, s3, 96",
               f"v_add_u32 v{aWo}, s44, v{aWo}", f"v_lshlrev_b32 v{aOf}, 7, v117", f"v_lshl_add_u32 v{aOf}, v116, 4, v{aOf}",
               f"v_add_u32 v{aOf}, {L_O}, v{aOf}", f"v_mov_b32 v{aFl}, {L_FLAG}", f"v_mov_b32 v{aOne}, 1",
               "s_bfe_u32 s44, s2, 0x10006", "s_mul_i32 s58, s44, 3", "s_add_u32 s58, s58, s3", "s_lshl_b32 s58, s58, 18",
               "s_lshr_b32 s44, s2, 7", "s_lshl_b32 s44, s44, 14", "s_add_u32 s58, s58, s44", "s_and_b32 s44, s2, 63",
               "s_lshl_b32 s44, s44, 7", "s_add_u32 s58, s58, s44", f"s_add_u32 s58, s58, {WS_YG}",
               "s_and_b32 s55, s2, 0xf0", "s_lshl_b32 s55, s55, 13", "s_and_b32 s44, s2, 15", "s_lshl_b32 s44, s44, 9",
               "s_add_u32 s55, s55, s44", f"s_add_u32 s55, s55, {WS_PG}"]:
        A("  " + ln)
    recbase(54, 44)
    A("  s_lshl_b32 s44, s3, 19")
    A("  s_add_u32 s54, s54, s44")
    clock()
    plain(1, 3)
    A("  s_branch L_kk1")
    def warm_code(tag, first):
        C("pull the code that runs later into this die's L2")
        A("  s_lshr_b32 s45, s24, 3")
        A("  s_cmp_lg_u32 s45, 1")
        A(f"  s_cbranch_scc1 L_nowarm{tag}")
        A("  s_getpc_b64 s[52:53]")
        A(f"L_pc{tag}:")
        A(f"  s_sub_u32 s52, s52, L_pc{tag}-{first}")
        A("  s_subb_u32 s53, s53, 0")
        A("  v_lshlrev_b32 v5, 7, v0")
        A(f"  v_min_u32 v5, L_end-{first}, v5")
        A("  global_load_dword v133, v5, s[52:53]")
        A(f"L_nowarm{tag}:")
    C("---- helper wave, continued")
    A("L_help:")
    A("  s_load_dword s60, s[18:19], 0")
    stamp(9)
    A("  s_mov_b64 s[28:29], s[18:19]")
    A(f"  s_mov_b32 s30, {WS_SIZE}")
    A("  s_mov_b32 s31, 0x20000")
    A("  s_mov_b32 s61, 0x40000")
    A("  v_mul_u32_u24 v7, 1152, v8")
    A("  v_lshl_add_u32 v7, v9, 3, v7")
    A("  v_lshrrev_b32 v10, 2, v0")
    A("  v_lshlrev_b32 v10, 7, v10")
    A("  v_lshl_add_u32 v10, v8, 3, v10")
    A("  v_bfe_u32 v5, v0, 3, 2")
    A("  v_lshl_add_u32 v10, v5, 5, v10")
    for j in range(1, 4):
        A(f"  v_xor_b32 v{10+j}, {32*j}, v10")
    C("q granule address: hkv*0x24000 + b*4096 + quarter*1024 + ((group&3)*16 + tile*4 + (lane>>4))*16")
    A("  v_lshlrev_b32 v4, 12, v8")
    A("  v_lshl_add_u32 v4, v9, 4, v4")
    A("  v_bfe_u32 v5, v0, 2, 2")
    A("  v_lshl_add_u32 v4, v5, 6, v4")
    A("  s_lshr_b32 s53, s44, 2")
    A("  s_mul_i32 s53, s53, 0x24000")
    A(f"  s_add_u32 s53, s53, {WS_QG}")
    A("  s_lshl_b32 s46, s47, 10")
    A("  s_add_u32 s45, s53, s46")
    A("  s_and_b32 s46, s44, 3")
    A("  s_lshl_b32 s46, s46, 8")
    A("  s_add_u32 s45, s45, s46")
    A("  s_mov_b32 s56, 0xf0f0f0f0")
    A("  s_mov_b32 s57, 0xf0f0f0f0")
    A("  s_mov_b32 s58, 0xff00ff00")
    A("  s_mov_b32 s59, 0xff00ff00")
    A("  s_mov_b32 s50, 0x07060501")
    A("  s_mov_b32 s51, 0x07060502")
    A("  s_mov_b32 s52, 0x07060503")
    A("  s_waitcnt lgkmcnt(0)")
    A(f"  s_mul_i32 s{sTag}, s60, 0x9e3779b1")
    A(f"  s_add_u32 s{sTag}, s{sTag}, 0x7f4a7c15")
    C("q granules are tagged with tag*16 + the producer's die")
    A("  s_getreg_b32 s42, hwreg(HW_REG_XCC_ID, 0, 4)")
    A(f"  s_lshl_b32 s43, s{sTag}, 4")
    A("  s_or_b32 s42, s42, s43")
    A("  v_mov_b32 v23, s42")
    vX = 40; vW = 60
    A("  s_waitcnt vmcnt(18)")
    for t in range(9):
        A(f"  ds_read_b64 v[{vX+2*t}:{vX+2*t+1}], v7 offset:{L_P + t*32}")
    def qmfma(t):
        for j in range(4):
            r = vW + 8 * t + 2 * j
            c = "0" if t == 0 else f"v[{24+4*j}:{27+4*j}]"
            A(f"  v_mfma_f32_16x16x16_bf16 v[{24+4*j}:{27+4*j}], v[{r}:{r+1}], v[{vX+2*t}:{vX+2*t+1}], {c}")
    for t in range(9):
        A(f"  s_waitcnt vmcnt({16-2*t})")
        if t == 8: stamp(10)
        if t == 1: A("  s_waitcnt lgkmcnt(4)")
        for j in range(4):
            r = vW + 8 * t + 2 * j
            A(f"  ds_read_b64_tr_b16 v[{r}:{r+1}], v{10+j} offset:{t*2048}")
        if t >= 1:
            A("  s_waitcnt lgkmcnt(4)")
            qmfma(t - 1)
    A("  s_waitcnt lgkmcnt(0)")
    qmfma(8)
    A("  s_nop 5")
    C("four partial sums keep their upper 24 bits in three dwords")
    for r in range(4): A(f"  v_cndmask_b32 v{24+r}, v{24+r}, v{28+r}, s[56:57]")
    for r in range(4): A(f"  v_cndmask_b32 v{32+r}, v{32+r}, v{36+r}, s[56:57]")
    for r in range(4): A(f"  v_cndmask_b32 v{24+r}, v{24+r}, v{32+r}, s[58:59]")
    for r in range(3): A(f"  v_perm_b32 v{20+r}, v{24+r}, v27, s{50+r}")
    A("  buffer_store_dwordx4 v[20:23], v4, s[28:31], s45 offen" + ("" if qlocal else " sc1"))
    stamp(1)
    A("  s_lshl_b32 s45, s47, 12")
    A("  s_add_u32 s45, s45, s53")
    A("  v_lshlrev_b32 v11, 3, v0")
    A(f"  v_add_u32 v11, {L_Q}, v11")
    A("  s_mov_b32 s50, 0x0c04000c")
    A("  s_mov_b32 s51, 0x04020100")
    A("  s_mov_b32 s52, 0xffffff00")
    def poll4(name, ld, r0, masked=False):
        for j in range(4): ld(j)
        A(f"L_{name}poll:")
        A("  s_waitcnt vmcnt(0)")
        A("  s_mov_b32 s44, 0")
        for j in range(4):
            if masked:
                A(f"  v_and_b32 v5, -16, v{r0+3+4*j}")
                A("  v_cmp_ne_u32 vcc, s43, v5")
            else:
                A(f"  v_cmp_ne_u32 vcc, s{sTag}, v{r0+3+4*j}")
            A(f"  s_cbranch_vccz L_{name}ok{j}")
            ld(j)
            A("  s_mov_b32 s44, 1")
            A(f"L_{name}ok{j}:")
        A("  s_cmp_eq_u32 s44, 0")
        A(f"  s_cbranch_scc1 L_{name}done")
        A("  s_sub_u32 s61, s61, 1")
        A(f"  s_cbranch_scc0 L_{name}poll")
        A("  s_waitcnt vmcnt(0)")
        A(f"L_{name}done:")
    A("  s_waitcnt vmcnt(0)")
    poll4("q", lambda j: A(f"  buffer_load_dwordx4 v[{24+4*j}:{27+4*j}], v2, s[28:31], s45 offen offset:{j*1024} sc1"), 24, True)
    A("  v_min3_u32 v5, v27, v31, v35")
    A("  v_max3_u32 v6, v27, v31, v35")
    A("  v_min_u32 v5, v5, v39")
    A("  v_max_u32 v6, v6, v39")
    A("  v_cmp_eq_u32 vcc, s42, v5")
    A("  v_cmp_eq_u32 s[62:63], s42, v6")
    A("  s_and_b64 vcc, vcc, s[62:63]")
    A("  s_cmp_eq_u64 vcc, -1")
    A("  s_cselect_b32 s44, 2, 1")
    A(f"  v_mov_b32 v23, s{sTag}")
    for j in range(4):
        A(f"  v_perm_b32 v{27+4*j}, v{25+4*j}, v{24+4*j}, s50")
        A(f"  v_perm_b32 v{27+4*j}, v{26+4*j}, v{27+4*j}, s51")
        for r in range(3): A(f"  v_and_b32 v{24+4*j+r}, s52, v{24+4*j+r}")
    for r in range(4):
        A(f"  v_add_f32 v{24+r}, v{24+r}, v{28+r}")
        A(f"  v_add_f32 v{32+r}, v{32+r}, v{36+r}")
    for r in range(4): A(f"  v_add_f32 v{24+r}, v{24+r}, v{32+r}")
    A("  v_cvt_pk_bf16_f32 v24, v24, v25")
    A("  v_cvt_pk_bf16_f32 v25, v26, v27")
    A("  v_mov_b32 v22, s44")
    A("  ds_write_b64 v11, v[24:25]")
    A("  ds_write_b64 v3, v[22:23]")
    if stamps: A("  s_mov_b32 s86, s61")
    stamp(12)
    if warm & 1: warm_code("a", "L_vv")
    C("workgroup 0 times both 8 KiB-interleaved halves of the hand-off area and publishes which is closer;")
    C("every workgroup picks its reducer slot with that one bit")
    A("  s_cmp_lg_u32 s2, 0")
    A("  s_cbranch_scc1 L_pwait")
    A(f"  s_movk_i32 s44, {probe}")
    A("  s_mov_b32 s45, -1")
    A("  s_mov_b32 s47, -1")
    A("  s_memtime s[48:49]")
    A("  s_waitcnt lgkmcnt(0)")
    A("L_probe:")
    A(f"  s_load_dword s46, s[18:19], {hex(WS_PRB[0])} glc")
    A("  s_waitcnt lgkmcnt(0)")
    A("  s_memtime s[50:51]")
    A("  s_waitcnt lgkmcnt(0)")
    A(f"  s_load_dword s46, s[18:19], {hex(WS_PRB[1])} glc")
    A("  s_waitcnt lgkmcnt(0)")
    A("  s_sub_u32 s52, s50, s48")
    A("  s_memtime s[48:49]")
    A("  s_waitcnt lgkmcnt(0)")
    A("  s_sub_u32 s53, s48, s50")
    A("  s_min_u32 s45, s45, s52")
    A("  s_min_u32 s47, s47, s53")
    A("  s_sub_u32 s44, s44, 1")
    A("  s_cmp_lg_u32 s44, 0")
    A("  s_cbranch_scc1 L_probe")
    A("  s_cmp_gt_u32 s45, s47")
    A("  s_cselect_b32 s45, 0x2001, 1")
    A("  v_mov_b32 v24, s45")
    A("  v_mov_b32 v25, v23")
    A("  s_mov_b64 exec, 1")
    A(f"  buffer_store_dwordx2 v[24:25], v2, s[28:31], 0 offen offset:{WS_POL} sc1")
    A("  s_mov_b64 exec, -1")
    if qlocal: A("  s_branch L_pwait")
    C("advance the launch counter once all 256 producers have published q, hence read the counter")
    A("  v_lshrrev_b32 v4, 2, v0")
    A("  v_mul_u32_u24 v4, 0x24000, v4")
    A("  v_lshl_add_u32 v4, v8, 10, v4")
    A(f"  s_mov_b32 s45, {WS_QG}")
    A("  s_mov_b32 s61, 0x40000")
    A("L_allq:")
    for j in range(4):
        A(f"  buffer_load_dword v{28+j}, v4, s[28:31], s45 offen offset:{j*256+12} sc1")
    A("  s_waitcnt vmcnt(0)")
    A("  v_min3_u32 v32, v28, v29, v30")
    A("  v_max3_u32 v33, v28, v29, v30")
    A("  v_min_u32 v32, v32, v31")
    A("  v_max_u32 v33, v33, v31")
    A("  v_and_b32 v32, -16, v32")
    A("  v_and_b32 v33, -16, v33")
    A("  v_cmp_eq_u32 vcc, s43, v32")
    A("  v_cmp_eq_u32 s[62:63], s43, v33")
    A("  s_and_b64 vcc, vcc, s[62:63]")
    A("  s_cmp_eq_u64 vcc, -1")
    spin_tail("L_allq_ok", "L_allq", 16)
    A("  s_mov_b64 exec, 1")
    A("  buffer_store_dword v23, v2, s[28:31], 0 offen sc1")
    A("  s_mov_b64 exec, -1")
    A("L_pwait:")
    A("  s_mov_b32 s61, 0x100000")
    lds_wait("L_wait_mid", 3, 24, 1, 8)
    if warm & 2: warm_code("b", "L_vv")
    A("  s_mov_b32 s61, 0x40000")
    A("  v_mov_b32 v4, 0")
    A("L_ppw:")
    A(f"  buffer_load_dwordx2 v[24:25], v4, s[28:31], 0 offen offset:{WS_POL} sc1")
    A("  s_waitcnt vmcnt(0)")
    A("  v_readfirstlane_b32 s45, v25")
    A("  v_readfirstlane_b32 s49, v24")
    A(f"  s_cmp_eq_u32 s45, s{sTag}")
    spin_tail("L_pgot", "L_ppw", 16)
    A("  s_and_b32 s49, s49, 0x2000")
    stamp(15)
    C("wo piece: 64 rows x 288 B, three rows per load")
    for ln in ["s_mov_b64 s[32:33], s[12:13]", "s_and_b32 s48, s2, 63", "s_mul_i32 s48, s48, 73728", "s_lshr_b32 s45, s2, 6",
               "s_mul_i32 s45, s45, 288", "s_add_u32 s48, s48, s45", "v_mul_u32_u24 v4, 57, v0", "v_lshrrev_b32 v4, 10, v4",
               "v_mul_u32_u24 v4, 864, v4", "v_add_u32 v6, v4, v2"]:
        A("  " + ln)
    C("reducer slot s55: twelve output columns at byte offset ((s55&7)*24 + (s55>>3))*24")
    for ln in ["s_lshr_b32 s55, s49, 11", "s_xor_b32 s55, s55, s24", "s_lshr_b32 s47, s55, 4", "s_lshl_b32 s47, s47, 17",
               "s_and_b32 s45, s55, 3", "s_lshl_b32 s45, s45, 14", "s_add_u32 s47, s47, s45",
               "s_and_b32 s45, s55, 4", "s_lshl_b32 s45, s45, 11",
               "s_add_u32 s47, s47, s45", "s_and_b32 s45, s55, 8", "s_lshl_b32 s46, s45, 9", "s_lshl_b32 s45, s45, 3",
               f"s_add_u32 s47, s47, {WS_YG}", "s_add_u32 s46, s46, s47", "s_add_u32 s47, s47, s45",
               "v_lshrrev_b32 v1, 2, v0", "v_lshlrev_b32 v1, 7, v1", "v_lshl_add_u32 v1, v8, 4, v1", "v_add_u32 v7, 4096, v1",
               "s_mov_b64 s[36:37], s[14:15]", "s_and_b32 s56, s55, 7", "s_mul_i32 s56, s56, 24", "s_lshr_b32 s45, s55, 3",
               "s_add_u32 s56, s56, s45", "s_mul_i32 s56, s56, 24",
               "v_lshrrev_b32 v10, 5, v0", "v_bfe_u32 v11, v0, 4, 1", "v_lshl_add_u32 v10, v11, 1, v10", "v_lshlrev_b32 v10, 3, v10",
               "v_lshl_add_u32 v10, v8, 1, v10", "v_lshrrev_b32 v4, 3, v0", "v_lshlrev_b32 v4, 19, v4", "v_bfe_u32 v5, v0, 1, 2",
               "v_lshl_add_u32 v4, v5, 9, v4", "v_and_b32 v5, 1, v0", "v_lshl_add_u32 v4, v5, 7, v4"]:
        A("  " + ln)
    recbase(54, 45)
    A("  v_lshlrev_b32 v5, 7, v0")
    A("  s_mov_b32 s3, 4")
    A("  s_mov_b32 m0, 0")
    A("  s_mov_b32 s61, 0x400000")
    lds_wait("L_wait_end", 3, 8, wo_n, 2)
    stamp(13)
    C("prefetch the hand-off lines this workgroup will read (values unused), then load the wo piece")
    A("  s_mov_b32 exec_hi, 0")
    if rtouch: A("  buffer_load_dword v48, v4, s[28:31], s54 offen sc1")
    def yt():
        A("  s_cmpk_ge_u32 s24, 192")
        A("  s_cbranch_scc1 L_notouch")
        A("  buffer_load_dword v49, v5, s[28:31], s46 offen sc1")
        A("L_notouch:")
    if ytouch == 1: yt()
    A("  s_mov_b32 exec_hi, 0x3fffff")
    A("L_wo:")
    A("  buffer_load_dwordx4 v6, s[32:35], s48 offen nt lds")
    A("  s_addk_i32 m0, 864")
    A("  s_addk_i32 s48, 3456")
    A("  s_cmpk_lt_u32 m0, 18144")
    A("  s_cbranch_scc1 L_wo")
    A("  s_mov_b64 exec, 0x3ffff")
    A("  buffer_load_dwordx4 v6, s[32:35], s48 offen nt lds")
    A("  s_mov_b64 exec, -1")
    A("  s_mov_b32 s61, 0x40000")
    A("  s_waitcnt vmcnt(0)")
    A("  ds_write_b32 v3, v22 offset:12")
    if ytouch == 3:
        A("  s_mov_b32 exec_hi, 0")
        yt()
        A("  s_mov_b32 exec_hi, -1")
    stamp(2)
    A("  s_cmpk_ge_u32 s24, 192")
    A("  s_barrier")
    stamp(5)
    if stamps and bar4: A("  s_barrier")
    A("  s_cbranch_scc1 L_fin")
    if not stamps and bar4: A("  s_barrier")
    poll4("y", lambda j: A(f"  buffer_load_dwordx4 v[{32+4*j}:{35+4*j}], v{7 if j >= 2 else 1}, s[28:31], s47 offen offset:{(j&1)*2048} sc1"), 32)
    for ln in ["v_pk_add_f32 v[32:33], v[32:33], v[36:37]", "v_pk_add_f32 v[40:41], v[40:41], v[44:45]", "v_add_f32 v34, v34, v38",
               "v_add_f32 v42, v42, v46", "v_pk_add_f32 v[32:33], v[32:33], v[40:41]", "v_add_f32 v34, v34, v42", "v_mov_b32 v35, v34",
               "v_permlane32_swap_b32 v32, v33", "v_add_f32 v32, v32, v33", "v_permlane32_swap_b32 v34, v35", "v_add_f32 v34, v34, v35",
               "s_nop 1", "v_permlane16_swap_b32 v32, v34", "v_add_f32 v32, v32, v34", "s_nop 1",
               f"v_add_f32_dpp v32, v32, v32 row_ror:8 {dpp}", "s_nop 1", f"v_add_f32_dpp v32, v32, v32 row_ror:4 {dpp}",
               "s_mov_b32 exec_lo, 0x000f000f", "s_mov_b32 exec_hi, 0x0000000f", "v_cvt_pk_bf16_f32 v32, v32, v32",
               "buffer_store_short v32, v10, s[36:39], s56 offen"]:
        A("  " + ln)
    if qlocal:
        A("  s_cmp_lg_u32 s2, 0")
        A("  s_cbranch_scc1 L_fin")
        A("  s_mov_b64 exec, 1")
        A("  buffer_store_dword v23, v2, s[28:31], 0 offen")
    A("L_fin:")
    if stamps:
        stamp(6)
        A("  s_mul_i32 s44, s2, 5")
        A("  s_add_u32 s44, s44, s3")
        A("  s_lshl_b32 s44, s44, 6")
        A(f"  s_add_u32 s44, s44, {WS_TS}")
        A("  s_mov_b32 s78, s61")
        A("  s_waitcnt lgkmcnt(0)")
        A("  s_mov_b64 exec, 1")
        for i in range(16):
            A(f"  v_mov_b32 v{64+i}, s{64+2*i}")
        A("  v_mov_b32 v3, 0")
        for j in range(4):
            A(f"  buffer_store_dwordx4 v[{64+4*j}:{67+4*j}], v3, s[28:31], s44 offen offset:{16*j}")
    A("L_end:")
    A("  s_endpgm")
    A('.section .rodata,"a"')
    A(".p2align 6")
    A(f".amdhsa_kernel {NAME}")
    A(f"  .amdhsa_next_free_vgpr {NV}")
    A("  .amdhsa_next_free_sgpr %d" % (96 if stamps else 64))
    A(f"  .amdhsa_accum_offset {NV}")
    A("  .amdhsa_group_segment_fixed_size 0")
    A("  .amdhsa_kernarg_size 64")
    A("  .amdhsa_user_sgpr_count 2")
    A("  .amdhsa_user_sgpr_kernarg_segment_ptr 1")
    A("  .amdhsa_system_sgpr_workgroup_id_x 1")
    A("  .amdhsa_float_denorm_mode_32 3")
    A(".end_amdhsa_kernel")
    return "\n".join(L) + "\n"

if __name__ == "__main__":
    import json
    cfg = json.loads(sys.argv[1]) if len(sys.argv) > 1 else {}
    sys.stdout.write(gen(**cfg))
```

```python
import math, struct, sys

def f2u(x):
    return struct.unpack('<I', struct.pack('<f', x))[0]

SCALE = math.log2(math.e) / math.sqrt(128.0)
NAME = "standalone__gqa_block_cached__decode_kernel"

HEADER = """; Kernarg layout for this problem (64 bytes, ptrs only, base s[0:1]):
;
"""

WS_POL = 256
WS_PRB = (0x4000, 0x6000)
WS_PG = 0x8000
WS_YG = 0x10000
WS_QG = 0x400000
WS_TS = 0x1000000
WS_SIZE = 0x2000000

L_Q = 18432
L_FLAG = L_Q + 512
L_ML = L_FLAG + 32
L_O = L_Q + 640
L_P = L_O + 512
L_S = L_P + 4096
L_TOTAL = L_S + 4 * 4096

def gen(stamps=False, WIN0=6, pre0=2, probe=12, W=(5, 6, 7, 8), T0=750, B=108, T1=(25, 3), T2=(60, 7)):
    U = 4
    PAIRB = 2 * 1024 * 1024
    STEP = 65536
    L = []
    A = L.append
    def C(text): A(f"  ; {text}")
    dpp = "row_mask:0xf bank_mask:0xf"
    vT = 3
    vQ, vM, vO = 4, 8, 12
    vm, vl, va, vb = 16, 17, 18, 19
    vS, vD, vB = 20, 24, 24
    vK = 40
    NV = 168
    aP, aML, aPr, aMLr, aRec, aPub, aO, aOf, aWo, aY, aFl, aOne = range(104, 116)
    vS2, vSp = 124, 2
    sTag, sC = 40, 41
    sSlot = 48
    def stamp(i):
        if stamps:
            A(f"  s_memrealtime s[{64+2*i}:{65+2*i}]")
    def spin_tail(label_ok, label_loop, sleep):
        A(f"  s_cbranch_scc1 {label_ok}")
        if sleep: A(f"  s_sleep {sleep}")
        A("  s_sub_u32 s61, s61, 1")
        A(f"  s_cbranch_scc0 {label_loop}")
        A(f"{label_ok}:")
    def lds_wait(name, addr, off, least, sleep):
        A(f"{name}:")
        A(f"  ds_read_b32 v24, v{addr} offset:{off}")
        A("  s_waitcnt lgkmcnt(0)")
        A("  v_readfirstlane_b32 s45, v24")
        A(f"  s_cmp_ge_u32 s45, {least}")
        spin_tail(name + "_ok", name, sleep)
    def recbase(dst, tmp):
        A(f"  s_and_b32 s{dst}, s2, 48")
        A(f"  s_lshl_b32 s{dst}, s{dst}, 13")
        for mask, sh in ((12, 9), (1, 8), (2, 12)):
            A(f"  s_and_b32 s{tmp}, s2, {mask}")
            A(f"  s_lshl_b32 s{tmp}, s{tmp}, {sh}")
            A(f"  s_add_u32 s{dst}, s{dst}, s{tmp}")
        A(f"  s_add_u32 s{dst}, s{dst}, {WS_PG}")
    for ln in HEADER.rstrip("\n").split("\n"): A(ln)
    A(f"; @launch grid=(256,1,1) block=(320,1,1) lds={L_TOTAL}")
    A('.amdgcn_target "amdgcn-amd-amdhsa--gfx950"')
    A(".text")
    A(f".globl {NAME}")
    A(".p2align 9")
    A(".fill 64, 4, 0xbf810000")
    A(".p2align 8")
    A(f".type {NAME},@function")
    A(f"{NAME}:")
    A("  s_cmpk_ge_u32 s2, 256")
    A("  s_cbranch_scc1 L_end")
    A("  s_load_dwordx16 s[4:19], s[0:1], 0")
    stamp(0)
    A("  v_lshrrev_b32 v3, 6, v0")
    A("  v_and_b32 v0, 63, v0")
    A("  v_readfirstlane_b32 s3, v3")
    C("role id: workgroups on one die (equal id&7) share two kv heads; s24 keeps the dispatch id")
    A("  s_mov_b32 s24, s2")
    A("  s_and_b32 s44, s2, 7")
    A("  s_bfe_u32 s45, s2, 0x30003")
    A("  s_andn2_b32 s2, s2, 63")
    A("  s_lshl3_add_u32 s2, s44, s2")
    A("  s_add_u32 s2, s2, s45")
    A("  v_lshrrev_b32 v9, 4, v0")
    A("  v_and_b32 v8, 3, v0")
    A("  s_cmp_lg_u32 s3, 0")
    A("  s_cbranch_scc1 L_attn")
    C("---- helper wave: issue the x and wq loads (64-column group id&63, row quarter id>>6)")
    A("  s_and_b32 s44, s2, 63")
    A("  s_lshr_b32 s47, s2, 6")
    A("  s_mul_i32 s45, s47, 9216")
    A("  s_add_u32 s45, s45, s44")
    A("  s_lshl_b32 s45, s45, 7")
    A("  s_mul_i32 s56, s47, 288")
    A("  v_lshlrev_b32 v2, 4, v0")
    A("  v_lshrrev_b32 v4, 3, v0")
    A("  v_and_b32 v5, 6, v4")
    A("  v_xor_b32 v5, v5, v0")
    A("  v_and_b32 v5, 7, v5")
    A("  v_lshlrev_b32 v5, 4, v5")
    A("  v_lshl_add_u32 v6, v4, 13, v5")
    A("  s_mov_b32 s34, 4718592")
    A("  s_mov_b32 s35, 0x20000")
    A("  s_movk_i32 s38, 4608")
    A("  s_mov_b32 s39, s35")
    A(f"  s_movk_i32 m0, {L_P}")
    A(f"  v_mov_b32 v3, {L_FLAG}")
    A("  v_mov_b32 v12, 0")
    A("  v_mov_b32 v13, 0")
    A("  ds_write2_b64 v3, v[12:13], v[12:13] offset0:0 offset1:1")
    A("  ds_write2_b64 v3, v[12:13], v[12:13] offset0:2 offset1:3")
    A("  s_mov_b64 exec, 0x3ffff")
    A("  s_waitcnt lgkmcnt(0)")
    A("  s_mov_b64 s[36:37], s[4:5]")
    A("  s_mov_b64 s[32:33], s[10:11]")
    for b in range(4):
        A(f"  buffer_load_dwordx4 v2, s[36:39], s56 offen offset:{b*1152} lds")
    A("  s_mov_b32 m0, 0")
    A("  s_mov_b64 exec, -1")
    A("L_wq:")
    A("  buffer_load_dwordx4 v6, s[32:35], s45 offen nt lds")
    A("  s_addk_i32 m0, 1024")
    A("  s_add_u32 s45, s45, 0x10000")
    A("  s_cmpk_lt_u32 m0, 18432")
    A("  s_cbranch_scc1 L_wq")
    A("  s_barrier")
    A("  s_branch L_help")
    C("---- attention waves")
    A("L_attn:")
    A("  s_memrealtime s[62:63]")
    A("  s_sub_u32 s3, s3, 1")
    C("K lane offset: key (lane>>2)&3 -> rows {0,1,16,17}, 16-byte chunk (lane>>4)*4 + (lane&3)")
    A("  v_bfe_u32 v3, v0, 2, 1")
    A("  v_lshlrev_b32 v1, 8, v3")
    A("  v_bfe_u32 v3, v0, 3, 1")
    A("  v_lshl_add_u32 v1, v3, 12, v1")
    A("  v_lshl_add_u32 v1, v9, 6, v1")
    A("  v_lshl_add_u32 v1, v8, 4, v1")
    A("  s_andn2_b32 s44, s2, 3")
    A("  s_lshl_b32 s44, s44, 19")
    C("block r of wave n = split*4 + wave starts at r*65536 + (n>>1)*8192 + (n&1)*2048")
    A("  s_and_b32 s45, s2, 3")
    A("  s_lshl2_add_u32 s45, s45, s3")
    A("  s_and_b32 s46, s45, 1")
    A("  s_lshl_b32 s45, s45, 1")
    A("  s_sub_u32 s45, s45, s46")
    A("  s_lshl_b32 s59, s45, 11")
    A(f"  s_mov_b32 s22, {PAIRB}")
    A("  s_mov_b32 s23, 0x20000")
    A("  s_waitcnt lgkmcnt(0)")
    A("  s_add_u32 s20, s6, s44")
    A("  s_addc_u32 s21, s7, 0")
    stamp(8)
    def reg(q, t):
        return vK + 16 * q + 4 * t
    def load(q, t, so):
        r = reg(q, t)
        A(f"  buffer_load_dwordx4 v[{r}:{r+3}], v1, s[20:23], s{so} offen offset:{t*512} nt")
    setup = []
    S = setup.append
    S("  s_mov_b64 s[28:29], s[18:19]")
    S(f"  s_mov_b32 s30, {WS_SIZE}")
    S("  s_mov_b32 s31, 0x20000")
    S(f"  s_mov_b32 s{sC}, {hex(f2u(SCALE))}")
    S("  s_add_u32 s34, s8, s44")
    S("  s_addc_u32 s35, s9, 0")
    S(f"  s_add_u32 s42, s62, {T0 - 2*B}")
    S(f"  s_movk_i32 s52, {T1[0]}")
    S(f"  s_movk_i32 s53, {T2[0]}")
    S("  s_mov_b32 s57, 1")
    S("  s_mov_b32 s38, 7")
    S("  v_bfe_u32 v3, v0, 3, 1")
    S("  v_lshlrev_b32 v18, 8, v3")
    S("  v_lshl_add_u32 v18, v9, 6, v18")
    S("  v_lshl_add_u32 v18, v8, 4, v18")
    S(f"  v_add_u32 v18, {L_Q}, v18")
    S(f"  v_mov_b32 v19, {L_FLAG}")
    S("  s_lshl_b32 s44, s3, 12")
    S(f"  s_add_u32 s44, s44, {L_S}")
    S("  v_lshrrev_b32 v3, 3, v0")
    S(f"  v_lshl_add_u32 v{vSp}, v3, 4, s44")
    S("  v_and_b32 v3, 1, v0")
    S("  v_mov_b32 v17, 0xffff")
    S("  v_lshlrev_b32 v3, 4, v3")
    S("  v_lshlrev_b32 v17, v3, v17")
    S("  v_bfe_u32 v3, v0, 1, 2")
    for r in range(4):
        S(f"  v_cmp_eq_u32 vcc, {r}, v3")
        S(f"  v_mov_b32 v{vO+r}, 0")
        S("  s_nop 0")
        S(f"  v_cndmask_b32 v{vM+r}, 0, v17, vcc")
    S(f"  v_mov_b32 v{vm}, 0xff800000")
    S(f"  v_mov_b32 v{vl}, 0")
    n = 0
    for q in (0, 1, 4, 5, 6, 7, 2, 3):
        for t in range(U):
            if n == pre0: A("  s_barrier")
            if n == WIN0:
                for ln in setup: A(ln)
            if n >= WIN0: A(f"  s_waitcnt vmcnt({WIN0-1})")
            load(q, t, 59)
            n += 1
        A(f"  s_add_u32 s59, s59, {STEP}")
    stamp(9)
    A("  s_mov_b32 s61, 0x400000")
    A("L_qwait:")
    A("  ds_read_b64 v[20:21], v19")
    A(f"  ds_read_b128 v[{vQ}:{vQ+3}], v18")
    A("  s_waitcnt lgkmcnt(0)")
    A("  v_readfirstlane_b32 s39, v20")
    A(f"  v_readfirstlane_b32 s{sTag}, v21")
    A("  s_cmp_lg_u32 s39, 0")
    spin_tail("L_qgo", "L_qwait", 1)
    stamp(1)
    def qk(q, w0):
        for t in range(U):
            r = reg(q, t)
            if w0 is not None: A(f"  s_waitcnt vmcnt({w0-t})")
            A(f"  v_mfma_f32_16x16x32_bf16 v[{vD+4*t}:{vD+4*t+3}], v[{r}:{r+3}], v[{vQ}:{vQ+3}], 0")
    def keep_scores(off):
        A("  s_nop 4")
        for j in range(4):
            for t in range(U):
                if j == 0:
                    A(f"  v_mov_b32_dpp v{vS+t}, v{vD+4*t} quad_perm:[0,0,0,0] {dpp}")
                else:
                    A(f"  v_add_f32_dpp v{vS+t}, v{vD+4*t+j}, v{vS+t} quad_perm:[{j},{j},{j},{j}] {dpp}")
        A(f"  ds_write_b128 v{vSp}, v[{vS}:{vS+3}] offset:{off}")
        A(f"  v_max3_f32 v{vm}, v{vm}, v{vS}, v{vS+1}")
        A(f"  v_max3_f32 v{vm}, v{vm}, v{vS+2}, v{vS+3}")
    def probs(S0):
        X = [f"  v_sub_f32 v{S0+t}, v{S0+t}, v{vm}" for t in range(U)]
        X += [f"  v_mul_f32 v{S0+t}, s{sC}, v{S0+t}" for t in range(U)]
        X += [f"  v_exp_f32 v{S0+t}, v{S0+t}" for t in range(U)]
        for t in range(U):
            X.append(f"  v_cvt_pk_bf16_f32 v{vT}, v{S0+t}, v{S0+t}")
            X += [f"  v_and_b32 v{vB+4*t+j}, v{vT}, v{vM+j}" for j in range(4)]
            X.append(f"  v_add_f32 v{vl}, v{vl}, v{S0+t}")
        return X
    def pv(q, w0):
        for t in range(U):
            r = reg(q, t)
            A(f"  s_waitcnt vmcnt({w0-t})")
            A(f"  v_mfma_f32_16x16x32_bf16 v[{vO}:{vO+3}], v[{r}:{r+3}], v[{vB+4*t}:{vB+4*t+3}], v[{vO}:{vO+3}]")
    npc = [0]
    def paced(q, t):
        npc[0] += 1
        k = npc[0]
        A(f"  s_waitcnt vmcnt({W[3]-1})")
        A(f"  s_cbranch_vccz L_wl{k}")
        A(f"  s_cbranch_scc1 L_wd{k}")
        A(f"  s_waitcnt vmcnt({W[2]-1})")
        A(f"  s_branch L_wd{k}")
        A(f"L_wl{k}:")
        A(f"  s_waitcnt vmcnt({W[1]-1})")
        A(f"  s_cbranch_scc1 L_wd{k}")
        A(f"  s_waitcnt vmcnt({W[0]-1})")
        A(f"L_wd{k}:")
        load(q, t, sSlot + (q & 1))
    def plain(q, t):
        A(f"  s_waitcnt vmcnt({W[0]-1})")
        load(q, t, sSlot + (q & 1))
    def clock(): A("  s_memrealtime s[62:63]")
    def control():
        A(f"  s_mov_b32 s{sSlot}, s59")
        A(f"  s_add_u32 s{sSlot+1}, s59, {STEP}")
        A(f"  s_add_u32 s59, s59, {2*STEP}")
        A("  s_waitcnt lgkmcnt(0)")
        A("  s_sub_u32 s43, s62, s42")
        A("  s_cmp_gt_i32 s43, 0")
        A("  s_cselect_b32 s46, 1, 0")
        A("  s_cmp_gt_i32 s43, s53")
        A("  s_addc_u32 s46, s46, 0")
        A("  s_cmp_gt_i32 s43, s52")
        A("  s_cselect_b64 vcc, -1, 0")
        A("  s_addc_u32 s46, s46, 0")
        A(f"  s_addk_i32 s42, {B}")
        A(f"  s_addk_i32 s52, {T1[1]}")
        A(f"  s_addk_i32 s53, {T2[1]}")
        A("  s_bitcmp1_b32 s46, 0")
    C("pass 1 over four register quarters; s59: next block, s38: trips left")
    C("s42: expected time of this point, s46 = {VCC != 0, SCC}: how far behind it the wave is (0..3)")
    A("L_kk:")
    A("  s_cmp_lg_u32 s38, 1")
    A("  s_cbranch_scc1 L_kk0")
    C("the last trip refills with V blocks: key lane>>4 -> rows {0,1,16,17}, 16-byte chunk lane&15")
    A("  s_mov_b64 s[20:21], s[34:35]")
    A("  s_and_b32 s59, s59, 0xffff")
    A("  v_and_b32 v3, 31, v0")
    A("  v_lshlrev_b32 v1, 4, v3")
    A("  v_lshrrev_b32 v3, 5, v0")
    A("  v_lshl_add_u32 v1, v3, 12, v1")
    for d in range(2):
        A(f"L_kk{d}:")
        control()
        qk(2 * d, 15)
        paced(2 * d, 0)
        keep_scores(d * 256)
        for t in range(1, U): paced(2 * d, t)
        qk(2 * d + 1, 15)
        paced(2 * d + 1, 0)
        keep_scores(d * 256 + 128)
        if d == 0:
            A("  s_cmp_lg_u32 s57, 0")
            A("  s_cbranch_scc1 L_first")
            A("  s_bitcmp1_b32 s46, 0")
        for t in range(1, U):
            if t == U - 1: clock()
            paced(2 * d + 1, t)
    A(f"  v_add_u32 v{vSp}, 512, v{vSp}")
    A("  s_sub_u32 s38, s38, 1")
    A("  s_cmp_lg_u32 s38, 0")
    A("  s_cbranch_scc1 L_kk")
    C("true max per head over the wave's keys")
    A(f"  v_mov_b32 v{vb}, v{vm}")
    A(f"  v_subrev_u32 v{vSp}, 4096, v{vSp}")
    A("  s_mov_b32 s38, 7")
    A(f"  v_permlane32_swap_b32 v{vm}, v{vb}")
    A(f"  v_max_f32 v{vm}, v{vm}, v{vb}")
    A(f"  v_mov_b32 v{vb}, v{vm}")
    A(f"  ds_write_b32 v{aFl}, v{aOne} offset:24")
    A("  s_nop 0")
    A(f"  v_permlane16_swap_b32 v{vm}, v{vb}")
    A(f"  v_max_f32 v{vm}, v{vm}, v{vb}")
    stamp(12)
    def scores(d):
        A(f"  ds_read_b128 v[{vS}:{vS+3}], v{vSp} offset:{d*256}")
        A(f"  ds_read_b128 v[{vS2}:{vS2+3}], v{vSp} offset:{d*256+128}")
    C("pass 2")
    A("L_vv:")
    for d in range(2):
        scores(d)
        control()
        for ln in probs(vS): A(ln)
        pv(2 * d, 15)
        paced(2 * d, 0)
        X = probs(vS2)
        for i, ln in enumerate(X):
            if i == len(X) // 2: paced(2 * d, 1)
            A(ln)
        paced(2 * d, 2)
        paced(2 * d, 3)
        pv(2 * d + 1, 15)
        for t in range(U):
            if t == U - 1: clock()
            paced(2 * d + 1, t)
    A(f"  v_add_u32 v{vSp}, 512, v{vSp}")
    A("  s_sub_u32 s38, s38, 1")
    A("  s_cmp_lg_u32 s38, 0")
    A("  s_cbranch_scc1 L_vv")
    C("last four blocks, nothing left to load")
    stamp(15)
    A("  s_mov_b64 exec, 1")
    A(f"  ds_add_u32 v{aFl}, v{aOne} offset:8")
    A("  s_mov_b64 exec, -1")
    for d in range(2):
        scores(d)
        A("  s_waitcnt lgkmcnt(0)")
        for ln in probs(vS): A(ln)
        pv(2 * d, 15 - 8 * d)
        for ln in probs(vS2): A(ln)
        if d == 0: pv(1, 11)
    A(f"  v_mov_b32 v{vb}, v{vl}")
    A("  s_nop 0")
    A(f"  v_mov_b32 v23, s{sTag}")
    A(f"  v_permlane32_swap_b32 v{vl}, v{vb}")
    A(f"  v_add_f32 v{vl}, v{vl}, v{vb}")
    A(f"  v_mov_b32 v{vb}, v{vl}")
    A("  s_nop 1")
    A(f"  v_permlane16_swap_b32 v{vl}, v{vb}")
    A(f"  v_add_f32 v{vl}, v{vl}, v{vb}")
    A(f"  ds_write_b64 v{aML}, v[{vm}:{vl}]")
    def merge(P, M, R):
        nw = 4
        for w in range(nw): A(f"  v_mul_f32 v{M+2*w}, s{sC}, v{M+2*w}")
        for w in range(nw): A(f"  v_exp_f32 v{M+2*w}, v{M+2*w}")
        A(f"  v_mul_f32 v22, v{M}, v{M+1}")
        for w in range(1, 4): A(f"  v_fmac_f32 v22, v{M+2*w}, v{M+1+2*w}")
        A("  s_waitcnt lgkmcnt(0)")
        for h in range(2): A(f"  v_pk_mul_f32 v[{P+2*h}:{P+1+2*h}], v[{P+2*h}:{P+1+2*h}], v[{M}:{M+1}] op_sel_hi:[1,0]")
        A(f"  v_rcp_f32 v{R}, v22")
        A("  v_log_f32 v22, v22")
        for w in range(1, 4):
            for h in range(2):
                A(f"  v_pk_fma_f32 v[{P+2*h}:{P+1+2*h}], v[{P+4*w+2*h}:{P+1+4*w+2*h}], v[{M+2*w}:{M+1+2*w}], v[{P+2*h}:{P+1+2*h}] op_sel_hi:[1,0,1]")
        A(f"  v_fmac_f32 v22, s{sC}, v20")
        for h in range(2): A(f"  v_pk_mul_f32 v[{P+2*h}:{P+1+2*h}], v[{P+2*h}:{P+1+2*h}], v[{R}:{R+1}] op_sel_hi:[1,0]")
    def merge_reads(P, M):
        for w in range(4): A(f"  ds_read_b64 v[{M+2*w}:{M+1+2*w}], v{aMLr} offset:{w*16}")
        for w in range(4): A(f"  ds_read_b128 v[{P+4*w}:{P+3+4*w}], v{aPr} offset:{w*1024}")
    def merge_max(M):
        A(f"  v_max3_f32 v20, v{M}, v{M+2}, v{M+4}")
        A(f"  v_max_f32 v20, v20, v{M+6}")
        for w in range(4): A(f"  v_sub_f32 v{M+2*w}, v{M+2*w}, v20")
    pv(3, 3)
    stamp(2)
    C("the last wave to arrive merges the four partial results and publishes the record")
    A("  s_mov_b32 s61, 0x40000")
    A("  s_nop 6")
    A(f"  ds_write_b128 v{aP}, v[{vO}:{vO+3}]")
    A("  s_mov_b64 exec, 1")
    A(f"  ds_add_rtn_u32 v3, v{aFl}, v{aOne} offset:16")
    A("  s_mov_b64 exec, -1")
    merge_reads(24, 40)
    A("  s_waitcnt lgkmcnt(4)")
    A("  v_readfirstlane_b32 s44, v3")
    merge_max(40)
    A("  s_cmp_eq_u32 s44, 3")
    A("  s_cbranch_scc0 L_gather")
    merge(24, 40, 48)
    A("  v_cvt_pk_bf16_f32 v20, v24, v25")
    A("  v_cvt_pk_bf16_f32 v21, v26, v27")
    C("s39 == 2: all sixteen readers of this record were seen on this die, so its L2 is enough")
    A("  s_cmp_eq_u32 s39, 2")
    A("  s_cbranch_scc0 L_pubfar")
    A(f"  buffer_store_dwordx4 v[20:23], v{aPub}, s[28:31], s55 offen")
    A("  s_branch L_pubdone")
    A("L_pubfar:")
    A(f"  buffer_store_dwordx4 v[20:23], v{aPub}, s[28:31], s55 offen sc1")
    A("L_pubdone:")
    stamp(3)
    A("  s_mov_b64 exec, 1")
    A(f"  ds_add_u32 v{aFl}, v{aOne} offset:16")
    A("  s_mov_b64 exec, -1")
    def frags():
        for ks in range(2):
            for tl in range(3):
                r = 44 + 12 * ks + 4 * tl
                A(f"  ds_read_b64_tr_b16 v[{r}:{r+1}], v{aWo} offset:{tl*8 + ks*9216}")
                A(f"  ds_read_b64_tr_b16 v[{r+2}:{r+3}], v{aWo} offset:{tl*8 + ks*9216 + 1152}")
    C("once the record is out, wave w gathers 64 columns of o for batch w from the four records of that pair")
    lds_wait("L_gather", aFl, 16, 5, 1)
    A("  s_mov_b32 s61, 0x40000")
    A("L_ppoll:")
    A(f"  buffer_load_dwordx4 v[24:27], v{aRec}, s[28:31], s54 offen sc1")
    A("  s_cmp_lg_u32 s57, 0")
    A("  s_cbranch_scc1 L_havewo")
    A(f"  ds_read_b32 v3, v{aFl} offset:12")
    frags()
    A("  s_waitcnt lgkmcnt(0)")
    A("  v_readfirstlane_b32 s57, v3")
    A("L_havewo:")
    A("  s_waitcnt vmcnt(0)")
    A(f"  v_cmp_eq_u32 vcc, s{sTag}, v27")
    A("  v_mov_b32 v28, v26")
    A("  v_mov_b32 v29, v26")
    A("  s_cmp_eq_u64 vcc, -1")
    spin_tail("L_pdone", "L_ppoll", 0)
    if stamps: A("  s_mov_b32 s86, s61")
    stamp(10)
    for ln in ["v_permlane32_swap_b32 v28, v29", "v_max_f32 v28, v28, v29", "v_mov_b32 v29, v28", "v_lshlrev_b32 v32, 16, v24",
               "v_and_b32 v33, 0xffff0000, v24", "v_permlane16_swap_b32 v28, v29", "v_max_f32 v28, v28, v29", "v_sub_f32 v28, v26, v28",
               "v_exp_f32 v28, v28", "v_lshlrev_b32 v34, 16, v25", "v_and_b32 v35, 0xffff0000, v25", "v_mov_b32 v29, v28",
               "v_pk_mul_f32 v[32:33], v[32:33], v[28:29] op_sel_hi:[1,0]", "v_pk_mul_f32 v[34:35], v[34:35], v[28:29] op_sel_hi:[1,0]",
               "v_permlane32_swap_b32 v28, v29", "v_permlane32_swap_b32 v32, v33", "v_permlane32_swap_b32 v34, v35",
               "v_add_f32 v28, v28, v29", "v_mov_b32 v29, v28", "v_add_f32 v32, v32, v33", "v_add_f32 v34, v34, v35",
               "v_permlane16_swap_b32 v28, v29", "v_add_f32 v28, v28, v29", "v_permlane16_swap_b32 v32, v34", "v_rcp_f32 v28, v28",
               "v_add_f32 v32, v32, v34", "v_mul_f32 v32, v32, v28", "v_cvt_pk_bf16_f32 v32, v32, v32"]:
        A("  " + ln)
    A(f"  ds_write_b16 v{aO}, v32")
    A("  s_cmp_eq_u32 s3, 3")
    A("  s_waitcnt lgkmcnt(0)")
    A("  s_barrier")
    stamp(4)
    A("  s_cbranch_scc1 L_fin5")
    C("waves 0-2: 48 columns of o@wo each, all four batches")
    A(f"  ds_read_b128 v[36:39], v{aOf}")
    A(f"  ds_read_b128 v[40:43], v{aOf} offset:64")
    A("  s_cmp_lg_u32 s57, 0")
    A("  s_cbranch_scc1 L_havewo2")
    frags()
    A("  s_waitcnt lgkmcnt(0)")
    A("L_havewo2:")
    A("  s_waitcnt lgkmcnt(1)")
    for tl in (2, 1, 0):
        A(f"  v_mfma_f32_16x16x32_bf16 v[{24+4*tl}:{27+4*tl}], v[36:39], v[{44+4*tl}:{47+4*tl}], 0")
    A("  s_waitcnt lgkmcnt(0)")
    for tl in (2, 1, 0):
        A(f"  v_mfma_f32_16x16x32_bf16 v[{24+4*tl}:{27+4*tl}], v[40:43], v[{56+4*tl}:{59+4*tl}], v[{24+4*tl}:{27+4*tl}]")
    A("  s_nop 5")
    A("  v_mov_b32 v22, v32")
    A("  v_mov_b32 v21, v28")
    A("  v_mov_b32 v20, v24")
    A(f"  buffer_store_dwordx4 v[20:23], v{aY}, s[28:31], s58 offen sc1")
    if stamps:
        A("L_fin5:")
        stamp(5)
    A("  s_waitcnt vmcnt(0)")
    A("  s_barrier")
    if stamps:
        A("  s_branch L_fin")
    else:
        A("L_fin5:")
        A("  s_endpgm")
    C("first trip only: the blocks prefetched while q was being produced")
    A("L_first:")
    A("  s_mov_b32 s57, 0")
    stamp(13)
    A("  s_waitcnt vmcnt(13)")
    for e in range(2):
        qk(4 + 2 * e, None)
        keep_scores(256 + e * 256)
        qk(5 + 2 * e, None)
        keep_scores(384 + e * 256)
        plain(1, 1 + e)
    A(f"  v_add_u32 v{vSp}, 512, v{vSp}")
    stamp(14)
    C("addresses for the tail, kept in the freed registers")
    for ln in ["v_lshrrev_b32 v116, 4, v0", "v_lshlrev_b32 v117, 4, v0", f"v_add_u32 v{aPr}, {L_P}, v117", "s_lshl_b32 s44, s3, 10",
               f"v_add_u32 v{aP}, s44, v{aPr}", "v_and_b32 v117, 8, v0", f"v_add_u32 v{aMLr}, {L_ML}, v117", "s_lshl_b32 s44, s3, 4",
               f"v_add_u32 v{aML}, s44, v{aMLr}", f"v_lshlrev_b32 v{aPub}, 10, v117", f"v_lshl_add_u32 v{aPub}, v116, 7, v{aPub}",
               "v_and_b32 v118, 7, v0", f"v_lshl_add_u32 v{aPub}, v118, 4, v{aPub}", "s_lshl_b32 s44, s3, 7", f"s_add_u32 s44, s44, {L_O}",
               f"v_lshl_add_u32 v{aO}, v117, 3, s44", f"v_lshl_add_u32 v{aO}, v118, 1, v{aO}",
               f"v_lshlrev_b32 v{aY}, 14, v117", f"v_lshl_add_u32 v{aY}, v118, 4, v{aY}",
               "v_lshrrev_b32 v118, 5, v0", f"v_lshl_add_u32 v{aO}, v118, 4, v{aO}", f"v_lshl_add_u32 v{aY}, v118, 13, v{aY}",
               "v_bfe_u32 v118, v0, 4, 1", f"v_lshl_add_u32 v{aO}, v118, 5, v{aO}", f"v_lshl_add_u32 v{aY}, v118, 15, v{aY}",
               "v_and_b32 v118, 15, v0", f"v_lshlrev_b32 v{aRec}, 9, v116", f"v_lshl_add_u32 v{aRec}, v118, 4, v{aRec}",
               "v_bfe_u32 v117, v0, 2, 2", "v_and_b32 v118, 3, v0", f"v_lshl_add_u32 v{aWo}, v116, 3, v117",
               f"v_mul_u32_u24 v{aWo}, 288, v{aWo}", f"v_mad_u32_u24 v{aWo}, v118, 24, v{aWo}", "s_mul_i32 s44, s3, 96",
               f"v_add_u32 v{aWo}, s44, v{aWo}", f"v_lshlrev_b32 v{aOf}, 7, v117", f"v_lshl_add_u32 v{aOf}, v116, 4, v{aOf}",
               f"v_add_u32 v{aOf}, {L_O}, v{aOf}", f"v_mov_b32 v{aFl}, {L_FLAG}", f"v_mov_b32 v{aOne}, 1",
               "s_bfe_u32 s44, s2, 0x10006", "s_mul_i32 s58, s44, 3", "s_add_u32 s58, s58, s3", "s_lshl_b32 s58, s58, 18",
               "s_lshr_b32 s44, s2, 7", "s_lshl_b32 s44, s44, 14", "s_add_u32 s58, s58, s44", "s_and_b32 s44, s2, 63",
               "s_lshl_b32 s44, s44, 7", "s_add_u32 s58, s58, s44", f"s_add_u32 s58, s58, {WS_YG}",
               "s_and_b32 s55, s2, 0xf0", "s_lshl_b32 s55, s55, 13", "s_and_b32 s44, s2, 15", "s_lshl_b32 s44, s44, 9",
               "s_add_u32 s55, s55, s44", f"s_add_u32 s55, s55, {WS_PG}"]:
        A("  " + ln)
    recbase(54, 44)
    A("  s_lshl_b32 s44, s3, 19")
    A("  s_add_u32 s54, s54, s44")
    clock()
    plain(1, 3)
    A("  s_branch L_kk1")
    C("---- helper wave, continued")
    A("L_help:")
    A("  s_load_dword s60, s[18:19], 0")
    stamp(9)
    A("  s_mov_b64 s[28:29], s[18:19]")
    A(f"  s_mov_b32 s30, {WS_SIZE}")
    A("  s_mov_b32 s31, 0x20000")
    A("  s_mov_b32 s61, 0x40000")
    A("  v_mul_u32_u24 v7, 1152, v8")
    A("  v_lshl_add_u32 v7, v9, 3, v7")
    A("  v_lshrrev_b32 v10, 2, v0")
    A("  v_lshlrev_b32 v10, 7, v10")
    A("  v_lshl_add_u32 v10, v8, 3, v10")
    A("  v_bfe_u32 v5, v0, 3, 2")
    A("  v_lshl_add_u32 v10, v5, 5, v10")
    for j in range(1, 4):
        A(f"  v_xor_b32 v{10+j}, {32*j}, v10")
    C("q granule address: hkv*0x24000 + b*4096 + quarter*1024 + ((group&3)*16 + tile*4 + (lane>>4))*16")
    A("  v_lshlrev_b32 v4, 12, v8")
    A("  v_lshl_add_u32 v4, v9, 4, v4")
    A("  v_bfe_u32 v5, v0, 2, 2")
    A("  v_lshl_add_u32 v4, v5, 6, v4")
    A("  s_lshr_b32 s53, s44, 2")
    A("  s_mul_i32 s53, s53, 0x24000")
    A(f"  s_add_u32 s53, s53, {WS_QG}")
    A("  s_lshl_b32 s46, s47, 10")
    A("  s_add_u32 s45, s53, s46")
    A("  s_and_b32 s46, s44, 3")
    A("  s_lshl_b32 s46, s46, 8")
    A("  s_add_u32 s45, s45, s46")
    A("  s_mov_b32 s56, 0xf0f0f0f0")
    A("  s_mov_b32 s57, 0xf0f0f0f0")
    A("  s_mov_b32 s58, 0xff00ff00")
    A("  s_mov_b32 s59, 0xff00ff00")
    A("  s_mov_b32 s50, 0x07060501")
    A("  s_mov_b32 s51, 0x07060502")
    A("  s_mov_b32 s52, 0x07060503")
    A("  s_waitcnt lgkmcnt(0)")
    A(f"  s_mul_i32 s{sTag}, s60, 0x9e3779b1")
    A(f"  s_add_u32 s{sTag}, s{sTag}, 0x7f4a7c15")
    C("q granules are tagged with tag*16 + the producer's die")
    A("  s_getreg_b32 s42, hwreg(HW_REG_XCC_ID, 0, 4)")
    A(f"  s_lshl_b32 s43, s{sTag}, 4")
    A("  s_or_b32 s42, s42, s43")
    A("  v_mov_b32 v23, s42")
    vX = 40; vW = 60
    A("  s_waitcnt vmcnt(18)")
    for t in range(9):
        A(f"  ds_read_b64 v[{vX+2*t}:{vX+2*t+1}], v7 offset:{L_P + t*32}")
    def qmfma(t):
        for j in range(4):
            r = vW + 8 * t + 2 * j
            c = "0" if t == 0 else f"v[{24+4*j}:{27+4*j}]"
            A(f"  v_mfma_f32_16x16x16_bf16 v[{24+4*j}:{27+4*j}], v[{r}:{r+1}], v[{vX+2*t}:{vX+2*t+1}], {c}")
    for t in range(9):
        A(f"  s_waitcnt vmcnt({16-2*t})")
        if t == 8: stamp(10)
        if t == 1: A("  s_waitcnt lgkmcnt(4)")
        for j in range(4):
            r = vW + 8 * t + 2 * j
            A(f"  ds_read_b64_tr_b16 v[{r}:{r+1}], v{10+j} offset:{t*2048}")
        if t >= 1:
            A("  s_waitcnt lgkmcnt(4)")
            qmfma(t - 1)
    A("  s_waitcnt lgkmcnt(0)")
    qmfma(8)
    A("  s_nop 5")
    C("four partial sums keep their upper 24 bits in three dwords")
    for r in range(4): A(f"  v_cndmask_b32 v{24+r}, v{24+r}, v{28+r}, s[56:57]")
    for r in range(4): A(f"  v_cndmask_b32 v{32+r}, v{32+r}, v{36+r}, s[56:57]")
    for r in range(4): A(f"  v_cndmask_b32 v{24+r}, v{24+r}, v{32+r}, s[58:59]")
    for r in range(3): A(f"  v_perm_b32 v{20+r}, v{24+r}, v27, s{50+r}")
    A("  buffer_store_dwordx4 v[20:23], v4, s[28:31], s45 offen sc1")
    stamp(1)
    A("  s_lshl_b32 s45, s47, 12")
    A("  s_add_u32 s45, s45, s53")
    A("  v_lshlrev_b32 v11, 3, v0")
    A(f"  v_add_u32 v11, {L_Q}, v11")
    A("  s_mov_b32 s50, 0x0c04000c")
    A("  s_mov_b32 s51, 0x04020100")
    A("  s_mov_b32 s52, 0xffffff00")
    def poll4(name, ld, r0, masked=False):
        for j in range(4): ld(j)
        A(f"L_{name}poll:")
        A("  s_waitcnt vmcnt(0)")
        A("  s_mov_b32 s44, 0")
        for j in range(4):
            if masked:
                A(f"  v_and_b32 v5, -16, v{r0+3+4*j}")
                A("  v_cmp_ne_u32 vcc, s43, v5")
            else:
                A(f"  v_cmp_ne_u32 vcc, s{sTag}, v{r0+3+4*j}")
            A(f"  s_cbranch_vccz L_{name}ok{j}")
            ld(j)
            A("  s_mov_b32 s44, 1")
            A(f"L_{name}ok{j}:")
        A("  s_cmp_eq_u32 s44, 0")
        A(f"  s_cbranch_scc1 L_{name}done")
        A("  s_sub_u32 s61, s61, 1")
        A(f"  s_cbranch_scc0 L_{name}poll")
        A("  s_waitcnt vmcnt(0)")
        A(f"L_{name}done:")
    A("  s_waitcnt vmcnt(0)")
    poll4("q", lambda j: A(f"  buffer_load_dwordx4 v[{24+4*j}:{27+4*j}], v2, s[28:31], s45 offen offset:{j*1024} sc1"), 24, True)
    A("  v_min3_u32 v5, v27, v31, v35")
    A("  v_max3_u32 v6, v27, v31, v35")
    A("  v_min_u32 v5, v5, v39")
    A("  v_max_u32 v6, v6, v39")
    A("  v_cmp_eq_u32 vcc, s42, v5")
    A("  v_cmp_eq_u32 s[62:63], s42, v6")
    A("  s_and_b64 vcc, vcc, s[62:63]")
    A("  s_cmp_eq_u64 vcc, -1")
    A("  s_cselect_b32 s44, 2, 1")
    A(f"  v_mov_b32 v23, s{sTag}")
    for j in range(4):
        A(f"  v_perm_b32 v{27+4*j}, v{25+4*j}, v{24+4*j}, s50")
        A(f"  v_perm_b32 v{27+4*j}, v{26+4*j}, v{27+4*j}, s51")
        for r in range(3): A(f"  v_and_b32 v{24+4*j+r}, s52, v{24+4*j+r}")
    for r in range(4):
        A(f"  v_add_f32 v{24+r}, v{24+r}, v{28+r}")
        A(f"  v_add_f32 v{32+r}, v{32+r}, v{36+r}")
    for r in range(4): A(f"  v_add_f32 v{24+r}, v{24+r}, v{32+r}")
    A("  v_cvt_pk_bf16_f32 v24, v24, v25")
    A("  v_cvt_pk_bf16_f32 v25, v26, v27")
    A("  v_mov_b32 v22, s44")
    A("  ds_write_b64 v11, v[24:25]")
    A("  ds_write_b64 v3, v[22:23]")
    if stamps: A("  s_mov_b32 s86, s61")
    stamp(12)
    C("workgroup 0 times both 8 KiB-interleaved halves of the hand-off area and publishes which is closer;")
    C("every workgroup picks its reducer slot with that one bit")
    A("  s_cmp_lg_u32 s2, 0")
    A("  s_cbranch_scc1 L_pwait")
    A(f"  s_movk_i32 s44, {probe}")
    A("  s_mov_b32 s45, -1")
    A("  s_mov_b32 s47, -1")
    A("  s_memtime s[48:49]")
    A("  s_waitcnt lgkmcnt(0)")
    A("L_probe:")
    A(f"  s_load_dword s46, s[18:19], {hex(WS_PRB[0])} glc")
    A("  s_waitcnt lgkmcnt(0)")
    A("  s_memtime s[50:51]")
    A("  s_waitcnt lgkmcnt(0)")
    A(f"  s_load_dword s46, s[18:19], {hex(WS_PRB[1])} glc")
    A("  s_waitcnt lgkmcnt(0)")
    A("  s_sub_u32 s52, s50, s48")
    A("  s_memtime s[48:49]")
    A("  s_waitcnt lgkmcnt(0)")
    A("  s_sub_u32 s53, s48, s50")
    A("  s_min_u32 s45, s45, s52")
    A("  s_min_u32 s47, s47, s53")
    A("  s_sub_u32 s44, s44, 1")
    A("  s_cmp_lg_u32 s44, 0")
    A("  s_cbranch_scc1 L_probe")
    A("  s_cmp_gt_u32 s45, s47")
    A("  s_cselect_b32 s45, 0x2001, 1")
    A("  v_mov_b32 v24, s45")
    A("  v_mov_b32 v25, v23")
    A("  s_mov_b64 exec, 1")
    A(f"  buffer_store_dwordx2 v[24:25], v2, s[28:31], 0 offen offset:{WS_POL} sc1")
    A("  s_mov_b64 exec, -1")
    C("advance the launch counter once all 256 producers have published q, hence read the counter")
    A("  v_lshrrev_b32 v4, 2, v0")
    A("  v_mul_u32_u24 v4, 0x24000, v4")
    A("  v_lshl_add_u32 v4, v8, 10, v4")
    A(f"  s_mov_b32 s45, {WS_QG}")
    A("  s_mov_b32 s61, 0x40000")
    A("L_allq:")
    for j in range(4):
        A(f"  buffer_load_dword v{28+j}, v4, s[28:31], s45 offen offset:{j*256+12} sc1")
    A("  s_waitcnt vmcnt(0)")
    A("  v_min3_u32 v32, v28, v29, v30")
    A("  v_max3_u32 v33, v28, v29, v30")
    A("  v_min_u32 v32, v32, v31")
    A("  v_max_u32 v33, v33, v31")
    A("  v_and_b32 v32, -16, v32")
    A("  v_and_b32 v33, -16, v33")
    A("  v_cmp_eq_u32 vcc, s43, v32")
    A("  v_cmp_eq_u32 s[62:63], s43, v33")
    A("  s_and_b64 vcc, vcc, s[62:63]")
    A("  s_cmp_eq_u64 vcc, -1")
    spin_tail("L_allq_ok", "L_allq", 16)
    A("  s_mov_b64 exec, 1")
    A("  buffer_store_dword v23, v2, s[28:31], 0 offen sc1")
    A("  s_mov_b64 exec, -1")
    A("L_pwait:")
    A("  s_mov_b32 s61, 0x100000")
    lds_wait("L_wait_mid", 3, 24, 1, 8)
    A("  s_mov_b32 s61, 0x40000")
    A("  v_mov_b32 v4, 0")
    A("L_ppw:")
    A(f"  buffer_load_dwordx2 v[24:25], v4, s[28:31], 0 offen offset:{WS_POL} sc1")
    A("  s_waitcnt vmcnt(0)")
    A("  v_readfirstlane_b32 s45, v25")
    A("  v_readfirstlane_b32 s49, v24")
    A(f"  s_cmp_eq_u32 s45, s{sTag}")
    spin_tail("L_pgot", "L_ppw", 16)
    A("  s_and_b32 s49, s49, 0x2000")
    stamp(15)
    C("wo piece: 64 rows x 288 B, three rows per load")
    for ln in ["s_mov_b64 s[32:33], s[12:13]", "s_and_b32 s48, s2, 63", "s_mul_i32 s48, s48, 73728", "s_lshr_b32 s45, s2, 6",
               "s_mul_i32 s45, s45, 288", "s_add_u32 s48, s48, s45", "v_mul_u32_u24 v4, 57, v0", "v_lshrrev_b32 v4, 10, v4",
               "v_mul_u32_u24 v4, 864, v4", "v_add_u32 v6, v4, v2"]:
        A("  " + ln)
    C("reducer slot s55: twelve output columns at byte offset ((s55&7)*24 + (s55>>3))*24")
    for ln in ["s_lshr_b32 s55, s49, 11", "s_xor_b32 s55, s55, s24", "s_lshr_b32 s47, s55, 4", "s_lshl_b32 s47, s47, 17",
               "s_and_b32 s45, s55, 3", "s_lshl_b32 s45, s45, 14", "s_add_u32 s47, s47, s45",
               "s_and_b32 s45, s55, 4", "s_lshl_b32 s45, s45, 11",
               "s_add_u32 s47, s47, s45", "s_and_b32 s45, s55, 8", "s_lshl_b32 s46, s45, 9", "s_lshl_b32 s45, s45, 3",
               f"s_add_u32 s47, s47, {WS_YG}", "s_add_u32 s46, s46, s47", "s_add_u32 s47, s47, s45",
               "v_lshrrev_b32 v1, 2, v0", "v_lshlrev_b32 v1, 7, v1", "v_lshl_add_u32 v1, v8, 4, v1", "v_add_u32 v7, 4096, v1",
               "s_mov_b64 s[36:37], s[14:15]", "s_and_b32 s56, s55, 7", "s_mul_i32 s56, s56, 24", "s_lshr_b32 s45, s55, 3",
               "s_add_u32 s56, s56, s45", "s_mul_i32 s56, s56, 24",
               "v_lshrrev_b32 v10, 5, v0", "v_bfe_u32 v11, v0, 4, 1", "v_lshl_add_u32 v10, v11, 1, v10", "v_lshlrev_b32 v10, 3, v10",
               "v_lshl_add_u32 v10, v8, 1, v10"]:
        A("  " + ln)
    A("  v_lshlrev_b32 v5, 7, v0")
    if stamps: A("  s_mov_b32 s3, 4")
    A("  s_mov_b32 m0, 0")
    A("  s_mov_b32 s61, 0x400000")
    lds_wait("L_wait_end", 3, 8, 4, 2)
    stamp(13)
    C("prefetch the y lines (values unused), then load the wo piece")
    A("  s_mov_b32 exec_hi, 0")
    A("  s_cmpk_ge_u32 s24, 192")
    A("  s_cbranch_scc1 L_notouch")
    A("  buffer_load_dword v49, v5, s[28:31], s46 offen sc1")
    A("L_notouch:")
    A("  s_mov_b32 exec_hi, 0x3fffff")
    A("L_wo:")
    A("  buffer_load_dwordx4 v6, s[32:35], s48 offen nt lds")
    A("  s_addk_i32 m0, 864")
    A("  s_addk_i32 s48, 3456")
    A("  s_cmpk_lt_u32 m0, 18144")
    A("  s_cbranch_scc1 L_wo")
    A("  s_mov_b64 exec, 0x3ffff")
    A("  buffer_load_dwordx4 v6, s[32:35], s48 offen nt lds")
    A("  s_mov_b64 exec, -1")
    A("  s_mov_b32 s61, 0x40000")
    A("  s_waitcnt vmcnt(0)")
    A("  ds_write_b32 v3, v22 offset:12")
    stamp(2)
    A("  s_cmpk_ge_u32 s24, 192")
    A("  s_barrier")
    stamp(5)
    if stamps: A("  s_barrier")
    A("  s_cbranch_scc1 L_fin")
    if not stamps: A("  s_barrier")
    poll4("y", lambda j: A(f"  buffer_load_dwordx4 v[{32+4*j}:{35+4*j}], v{7 if j >= 2 else 1}, s[28:31], s47 offen offset:{(j&1)*2048} sc1"), 32)
    for ln in ["v_pk_add_f32 v[32:33], v[32:33], v[36:37]", "v_pk_add_f32 v[40:41], v[40:41], v[44:45]", "v_add_f32 v34, v34, v38",
               "v_add_f32 v42, v42, v46", "v_pk_add_f32 v[32:33], v[32:33], v[40:41]", "v_add_f32 v34, v34, v42", "v_mov_b32 v35, v34",
               "v_permlane32_swap_b32 v32, v33", "v_add_f32 v32, v32, v33", "v_permlane32_swap_b32 v34, v35", "v_add_f32 v34, v34, v35",
               "s_nop 1", "v_permlane16_swap_b32 v32, v34", "v_add_f32 v32, v32, v34", "s_nop 1",
               f"v_add_f32_dpp v32, v32, v32 row_ror:8 {dpp}", "s_nop 1", f"v_add_f32_dpp v32, v32, v32 row_ror:4 {dpp}",
               "s_mov_b32 exec_lo, 0x000f000f", "s_mov_b32 exec_hi, 0x0000000f", "v_cvt_pk_bf16_f32 v32, v32, v32",
               "buffer_store_short v32, v10, s[36:39], s56 offen"]:
        A("  " + ln)
    A("L_fin:")
    if stamps:
        stamp(6)
        A("  s_mul_i32 s44, s2, 5")
        A("  s_add_u32 s44, s44, s3")
        A("  s_lshl_b32 s44, s44, 6")
        A(f"  s_add_u32 s44, s44, {WS_TS}")
        A("  s_mov_b32 s78, s61")
        A("  s_waitcnt lgkmcnt(0)")
        A("  s_mov_b64 exec, 1")
        for i in range(16):
            A(f"  v_mov_b32 v{64+i}, s{64+2*i}")
        A("  v_mov_b32 v3, 0")
        for j in range(4):
            A(f"  buffer_store_dwordx4 v[{64+4*j}:{67+4*j}], v3, s[28:31], s44 offen offset:{16*j}")
    A("L_end:")
    A("  s_endpgm")
    A('.section .rodata,"a"')
    A(".p2align 6")
    A(f".amdhsa_kernel {NAME}")
    A(f"  .amdhsa_next_free_vgpr {NV}")
    A("  .amdhsa_next_free_sgpr %d" % (96 if stamps else 64))
    A(f"  .amdhsa_accum_offset {NV}")
    A("  .amdhsa_group_segment_fixed_size 0")
    A("  .amdhsa_kernarg_size 64")
    A("  .amdhsa_user_sgpr_count 2")
    A("  .amdhsa_user_sgpr_kernarg_segment_ptr 1")
    A("  .amdhsa_system_sgpr_workgroup_id_x 1")
    A("  .amdhsa_float_denorm_mode_32 3")
    A(".end_amdhsa_kernel")
    return "\n".join(L) + "\n"

if __name__ == "__main__":
    import json
    cfg = json.loads(sys.argv[1]) if len(sys.argv) > 1 else {}
    sys.stdout.write(gen(**cfg))
```
